```python
import torch

def _softmax(x, axis=-1):
    return torch.softmax(x, dim=axis)
def _gelu(x):
    return torch.nn.functional.gelu(x, approximate="tanh")
def _silu(x):
    return torch.nn.functional.silu(x)
def _sigmoid(x):
    return torch.sigmoid(x)
def _layernorm(x, axis=-1, eps=1e-5):
    m = x.mean(dim=axis, keepdim=True)
    v = x.var(dim=axis, keepdim=True, unbiased=False)
    return (x - m) / torch.sqrt(v + eps)
def _scatter_add(tgt, idx, src, axis=0):
    return tgt.clone().index_add_(axis, idx, src)
def _segment_sum(src, seg, n):
    out = torch.zeros((n,) + src.shape[1:], dtype=src.dtype)
    return out.index_add_(0, seg, src)
def _pad(x, pw):
    flat = tuple(v for pair in reversed(pw) for v in pair)
    return torch.nn.functional.pad(x, flat)

kernel_name = 'standalone__gqa_block_cached__near_ridge'

def setup_inputs():

    _w = (lambda a: (lambda t: t.to(torch.bfloat16) if t.is_floating_point() else t)(torch.as_tensor(a)))
    B, Sq, D = 8, 160, 448
    Hq, Hkv, Sk, Dh = 16, 8, 2048, 256
    assert Hq % Hkv == 0, (Hq, Hkv)
    return {
        "x": _w((lambda *s: torch.randn(*s, dtype=torch.bfloat16) * 0.8)(B, Sq, D)),
        "k_cache": _w((lambda *s: torch.randn(*s, dtype=torch.bfloat16) * 0.8)(B, Hkv, Sk, Dh)),
        "v_cache": _w((lambda *s: torch.randn(*s, dtype=torch.bfloat16) * 0.05)(B, Hkv, Sk, Dh)),
        "wq": _w((lambda *s: torch.randn(*s, dtype=torch.bfloat16) * 0.8)(D, Hq * Dh) * (D ** -0.5)),
        "wo": _w((lambda *s: torch.randn(*s, dtype=torch.bfloat16) * 0.05)(Hq * Dh, D) * ((Hq * Dh) ** -0.5)),
    }

def reference(x, k_cache, v_cache, wq, wo):
    B, Sq, D = x.shape
    Hq, Dh = 16, 256
    Hkv = k_cache.shape[1]
    rep = Hq // Hkv
    q = (lambda x, *d: x.permute(*d))((x @ wq).reshape(B, Sq, Hq, Dh), 0, 2, 1, 3)
    k = (lambda x, n, axis: torch.repeat_interleave(x, n, dim=axis))(k_cache, rep, axis=1)
    v = (lambda x, n, axis: torch.repeat_interleave(x, n, dim=axis))(v_cache, rep, axis=1)
    scores = torch.einsum("bhqd,bhkd->bhqk", q, k) * (Dh ** -0.5)
    p = _softmax(scores, axis=-1)
    o = torch.einsum("bhqk,bhkd->bhqd", p, v)
    return (lambda x, *d: x.permute(*d))(o, 0, 2, 1, 3).reshape(B, Sq, Hq * Dh) @ wo
```

```python
import re


def R(kind, base, n=1):
    return [(kind, base + i) for i in range(n)]


def rtxt(kind, base, n):
    return f"{kind}{base}" if n == 1 else f"{kind}[{base}:{base + n - 1}]"


class I:
    __slots__ = ("text", "kind", "rd", "wr", "srcc", "tag", "mark")

    def __init__(self, text, kind, rd=(), wr=(), srcc=(), tag=None):
        self.text, self.kind, self.rd, self.wr, self.srcc, self.tag = text, kind, list(rd), list(wr), list(srcc), tag
        self.mark = None

    def __repr__(self):
        return self.text


def mfma(d, a, b, c):
    ct = "0" if c == 0 else rtxt(c[0], c[1], 4)
    rd = R(a[0], a[1], 4) + R(b[0], b[1], 4)
    sc = [] if c == 0 else R(c[0], c[1], 4)
    return I(f"v_mfma_f32_16x16x32_bf16 {rtxt(d[0], d[1], 4)}, {rtxt(a[0], a[1], 4)}, {rtxt(b[0], b[1], 4)}, {ct}",
             "M", rd + sc, R(d[0], d[1], 4), sc)


def ds_r128(d, addr, off):
    return I(f"ds_read_b128 {rtxt(d[0], d[1], 4)}, v{addr} offset:{off}", "L", [("v", addr)], R(d[0], d[1], 4))


def ds_rtr(d, addr, off):
    return I(f"ds_read_b64_tr_b16 {rtxt(d[0], d[1], 2)}, v{addr} offset:{off}", "L", [("v", addr)], R(d[0], d[1], 2))


def ds_r64(d, addr, off):
    return I(f"ds_read_b64 {rtxt(d[0], d[1], 2)}, v{addr} offset:{off}", "L", [("v", addr)], R(d[0], d[1], 2))


def ds_w128(addr, s, off):
    return I(f"ds_write_b128 v{addr}, {rtxt(s[0], s[1], 4)} offset:{off}", "LW", [("v", addr)] + R(s[0], s[1], 4), [])


def ds_w64(addr, s, off):
    return I(f"ds_write_b64 v{addr}, {rtxt(s[0], s[1], 2)} offset:{off}", "LW", [("v", addr)] + R(s[0], s[1], 2), [])


_opnd = re.compile(r"^-?(?:abs\()?([vsa])(\d+)\)?$")
_opndr = re.compile(r"^([vsa])\[(\d+):(\d+)\]$")


def _regs_of(tok):
    tok = tok.strip()
    m = _opnd.match(tok)
    if m:
        return [(m.group(1), int(m.group(2)))]
    m = _opndr.match(tok)
    if m:
        return R(m.group(1), int(m.group(2)), int(m.group(3)) - int(m.group(2)) + 1)
    if tok in ("vcc", "m0", "exec"):
        return [(tok, 0)]
    return []


TRANS = ("v_exp_f32", "v_rcp_f32", "v_log_f32", "v_rsq_f32", "v_sqrt_f32")


def valu(text):
    op, rest = text.split(None, 1)
    toks = [t for t in rest.split(",")]
    dst = _regs_of(toks[0])
    src = [r for t in toks[1:] for r in _regs_of(t.split()[0] if t.split() else t)]
    if op.startswith("v_permlane") or op.startswith("v_swap"):
        return I(text, "P", dst + src, dst + src)
    if op.startswith("v_fmac") or op.startswith("v_pk_fmac"):
        src = src + dst
    if op.startswith("v_cndmask") and len(toks) == 3:
        src = src + [("vcc", 0)]
    return I(text, "E" if op in TRANS else "V", src, dst)


def salu(text):
    op, *rest = text.split(None, 1)
    toks = rest[0].split(",") if rest else []
    if op.startswith("s_cmp"):
        return I(text, "S", [r for t in toks for r in _regs_of(t)], [("scc", 0)])
    dst = _regs_of(toks[0]) if toks else []
    src = [r for t in toks[1:] for r in _regs_of(t)]
    if op.startswith("s_cselect") or op.startswith("s_addc"):
        src.append(("scc", 0))
    if not op.startswith("s_mov") and not op.startswith("s_cselect") and not op.startswith("s_mul"):
        dst = dst + [("scc", 0)]
    return I(text, "S", src, dst)


def dma(voff, srd, soff, imm, nt=False, tag=None):
    so = f"s{soff}" if isinstance(soff, int) else soff
    t = f"buffer_load_dwordx4 v{voff}, s[{srd}:{srd + 3}], {so} offen offset:{imm}" + (" nt" if nt else "") + " lds"
    rd = [("v", voff), ("m0", 0)] + R("s", srd, 4) + ([("s", soff)] if isinstance(soff, int) else [])
    return I(t, "D", rd, [], tag=tag)


def bstore(n, src, voff, srd, soff, imm, flags="", tag=None):
    so = f"s{soff}" if isinstance(soff, int) else soff
    suf = {1: "dword", 2: "dwordx2", 4: "dwordx4"}[n]
    t = f"buffer_store_{suf} {rtxt(src[0], src[1], n)}, v{voff}, s[{srd}:{srd + 3}], {so} offen offset:{imm}{flags}"
    rd = [("v", voff)] + R(src[0], src[1], n) + R("s", srd, 4) + ([("s", soff)] if isinstance(soff, int) else [])
    return I(t, "D", rd, [], tag="store")


def nop(n):
    return I(f"s_nop {n}", "N")


def raw(text, kind="S"):
    return I(text, kind)


class Task:
    __slots__ = ("ins", "cls", "rel", "dl", "deps", "gap", "prio", "name", "seq")
    _n = 0

    def __init__(self, ins, cls, rel=0, dl=10 ** 9, deps=(), prio=0, name=""):
        self.ins = ins if isinstance(ins, list) else [ins]
        self.cls, self.rel, self.dl, self.deps, self.prio, self.name = cls, rel, dl, list(deps), prio, name
        self.gap = None
        Task._n += 1
        self.seq = Task._n


def schedule(mf, tasks, pre_gap=True, verbose=False):
    n = len(mf)
    order = sorted(tasks, key=lambda t: -t.seq)
    changed = True
    while changed:
        changed = False
        for t in order:
            for d, delta in t.deps:
                if t.dl - delta < d.dl:
                    d.dl = t.dl - delta
                    changed = True
    pending = sorted(tasks, key=lambda t: (t.rel, t.seq))
    gaps = []
    over = 0

    def ready(t, g):
        if t.rel > g:
            return False
        for d, delta in t.deps:
            if d.gap is None or d.gap + delta > g:
                return False
        return True

    for g in range(-1, n):
        placed = []

        def pick(classes, maxdl=None):
            c = [t for t in pending if t.cls in classes and ready(t, g) and (maxdl is None or t.dl <= maxdl)]
            if not c:
                return None
            return min(c, key=lambda t: (t.dl - t.prio, t.seq))

        def put(t):
            t.gap = g
            pending.remove(t)
            placed.append(t)

        if g == -1:
            while True:
                t = pick(("L", "V", "E", "S", "D", "BAR"), maxdl=-1)
                if t is None:
                    break
                put(t)
            gaps.append(placed)
            continue
        tb = pick(("BAR",))
        tl = pick(("L",))
        te = pick(("E", "D"))
        if tb is not None:
            put(tb)
            t = pick(("V", "S"))
            if t is not None:
                put(t)
        elif tl is not None and not (te is not None and te.dl <= g and tl.dl > g):
            put(tl)
            t = pick(("V",)) or pick(("S",))
            ts = pick(("S",))
            if ts is not None and t is not None and ts.dl < t.dl:
                t = ts
            if t is not None:
                put(t)
        elif te is not None:
            if te.cls == "E":
                ts = pick(("S",))
                if ts is not None:
                    put(ts)
                put(te)
            else:
                put(te)
                t = pick(("V", "S"))
                if t is not None:
                    put(t)
        else:
            ts = pick(("S",))
            if ts is not None:
                put(ts)
            k = 0
            while k < 2:
                t = pick(("V",)) or pick(("S",))
                if t is None:
                    break
                put(t)
                k += 1
        while True:
            t = pick(("L", "V", "E", "S", "D", "BAR"), maxdl=g)
            if t is None:
                break
            put(t)
            over += 1
        for t in pending:
            if t.dl <= g:
                raise RuntimeError(f"deadline miss: {t.name} {t.ins} dl={t.dl} gap={g} rel={t.rel} deps={[(d.name, d.gap, de) for d, de in t.deps]}")
        gaps.append(placed)
    left = sorted(pending, key=lambda t: t.seq)
    for t in left:
        t.gap = n
    gaps.append(left)
    if verbose:
        print(f"; schedule: {n} mfma, {len(tasks)} tasks, forced {over}, leftover {len(left)}")
    return gaps


def linearize(mf, gaps):
    out = []
    for t in gaps[0]:
        out += t.ins
    for g, m in enumerate(mf):
        out.append(m)
        for t in gaps[g + 1]:
            out += t.ins
    for t in gaps[len(mf) + 1]:
        out += t.ins
    return out


def insert_lgkm_waits(code, age=7, lookback=6):
    out = list(code)
    i = 0
    lds = []
    covered = 0
    pend = {}
    mcount_at = {}
    mcount = 0
    res = []

    def good_slot(pos):
        j = pos + 1
        if j < len(res) and res[j].kind in ("S", "W", "B", "BR", "LAB", "N"):
            return False
        while j < len(res) and res[j].kind != "M":
            if res[j].kind in ("L", "LW", "D", "B", "LAB", "BR"):
                return False
            j += 1
        return True

    for ins in out:
        need = -1
        if ins.kind == "W" and ins.tag and ins.tag[0] == "resolve":
            key = ins.tag[2]
            k = -1
            for idx, l in enumerate(lds):
                if key is not None and l.tag == key:
                    k = idx
            if k >= covered:
                nn = len(lds) - 1 - k
                ins.mark = min(nn, 15)
                covered = max(covered, len(lds) - ins.mark)
            else:
                ins.mark = None
            res.append(ins)
            continue
        if ins.kind == "W":
            m = re.search(r"lgkmcnt\((\d+)\)", ins.text)
            if m:
                covered = max(covered, len(lds) - int(m.group(1)))
            res.append(ins)
            continue
        for r in ins.rd + ins.wr:
            if r in pend and pend[r] >= covered:
                need = max(need, pend[r])
        if need >= 0:
            pos = len(res) - 1
            seen = 0
            placed = False
            nl_after = 0
            while pos >= 0 and seen < lookback:
                x = res[pos]
                if x is lds[need] or x.kind in ("LAB", "BR") :
                    break
                if x.kind in ("L", "LW"):
                    nl_after += 1
                if x.kind == "M":
                    seen += 1
                    if good_slot(pos):
                        issued = len(lds) - nl_after
                        k = need
                        mc = mcount - (seen - 1)
                        while k + 1 < issued and mc - mcount_at[id(lds[k + 1])] >= age:
                            k += 1
                        nn = min(issued - 1 - k, 15)
                        res.insert(pos + 1, I(f"s_waitcnt lgkmcnt({nn})", "W"))
                        covered = max(covered, issued - nn)
                        placed = True
                        break
                pos -= 1
            if not placed:
                k = need
                while k + 1 < len(lds) and mcount - mcount_at[id(lds[k + 1])] >= age:
                    k += 1
                nn = min(len(lds) - 1 - k, 15)
                res.append(I(f"s_waitcnt lgkmcnt({nn})", "W"))
                covered = max(covered, len(lds) - nn)
        if ins.kind in ("L", "LW"):
            mcount_at[id(ins)] = mcount
            lds.append(ins)
            for r in ins.wr:
                pend[r] = len(lds) - 1
        else:
            for r in ins.wr:
                pend.pop(r, None)
        if ins.kind == "M":
            mcount += 1
        res.append(ins)
    return res


def resolve_vm_waits(code):
    vm = []
    out = []
    for ins in code:
        if ins.kind == "D":
            vm.append(ins)
        if ins.kind == "W" and ins.tag and ins.tag[0] == "resolve":
            keys = ins.tag[1]
            parts = []
            if keys:
                k = -1
                for idx, d in enumerate(vm):
                    if d.tag in keys:
                        k = idx
                assert k >= 0, f"no vmem op with tag {keys}"
                parts.append(f"vmcnt({min(len(vm) - 1 - k, 63)})")
            if ins.mark is not None:
                parts.append(f"lgkmcnt({ins.mark})")
            if not parts:
                continue
            ins.text = "s_waitcnt " + " ".join(parts)
        out.append(ins)
    return out


def check_hazards(code, fix=True):
    out = []
    nfix = 0

    def states(ins):
        if ins.kind == "N":
            return int(ins.text.split()[1]) + 1
        if ins.kind == "LAB":
            return 0
        return 1

    for ins in code:
        need = 0
        dist = 0
        for p in reversed(out[-24:]):
            req = 0
            pw, pr = set(p.wr), set(p.rd)
            ir, iw = set(ins.rd), set(ins.wr)
            isv = ins.kind in ("V", "E", "P")
            if p.kind in ("V", "E", "P"):
                vw = {r for r in pw if r[0] in ("v", "a")}
                if ins.kind == "M" and vw & ir:
                    req = max(req, 2)
                if ins.kind == "P" and vw & ir:
                    req = max(req, 2)
                if p.kind == "E" and isv and ins.kind != "E" and vw & ir:
                    req = max(req, 1)
                if isv and ("readfirstlane" in ins.text or "readlane" in ins.text) and vw & ir:
                    req = max(req, 1)
                sw = {r for r in pw if r[0] in ("s", "vcc")}
                if sw & ir:
                    if isv:
                        req = max(req, 2)
                    if ins.kind == "D":
                        req = max(req, 5)
                    if ins.kind in ("S", "BR"):
                        req = max(req, 1)
            if p.kind == "M":
                if ins.kind == "M":
                    ab = ir - set(ins.srcc)
                    if pw & ab:
                        req = max(req, 8)
                    if pw & set(ins.srcc) and set(ins.srcc) != pw:
                        req = max(req, 6)
                    if pw & iw and set(ins.srcc) != pw:
                        req = max(req, 6)
                elif isv or ins.kind in ("L", "LW", "D"):
                    if pw & (ir | iw):
                        req = max(req, 8)
                    if isv and set(p.srcc) & iw:
                        req = max(req, 3)
            if p.kind == "S" and ("m0", 0) in pw and ins.kind == "D" and ("m0", 0) in ir:
                req = max(req, 1)
            if p.kind == "D" and p.tag == "store" and (isv or ins.kind == "L") and {r for r in pr if r[0] in ("v", "a")} & iw:
                req = max(req, 2)
            if req > dist:
                need = max(need, req - dist)
            dist += states(p)
        if need:
            if not fix:
                raise RuntimeError(f"hazard before {ins.text}")
            out.append(nop(need - 1))
            nfix += 1
        out.append(ins)
    return out, nfix


def gap_cost(code):
    tot = 0
    i = 0
    n = len(code)
    while i < n and code[i].kind != "M":
        tot += 4
        i += 1
    while i < n:
        j = i + 1
        c = 4
        first = True
        while j < n and code[j].kind != "M":
            k = code[j].kind
            if k == "LAB":
                j += 1
                continue
            if k in ("V", "P", "E") and first:
                c += 4
            c += {"E": 8, "L": 8, "LW": 12, "D": 8}.get(k, 4)
            if k == "N":
                c += 4 * int(code[j].text.split()[1])
            first = False
            j += 1
        tot += max(16, c)
        i = j
    return tot
```

```python
import sys
from sched import *

DEBUG = None
STAMP = False
for a in sys.argv[1:]:
    if a.startswith("debug="):
        DEBUG = a.split("=")[1]
    if a == "stamp":
        STAMP = True

sX, sK, sV, sWQ, sWO, sWS = 8, 12, 16, 20, 24, 28
sW, sXW, sHW, sB, sH, sSP = 32, 33, 34, 35, 36, 37
sKoff, sVoff, sDst, sDstLim, sDst0 = 38, 39, 40, 41, 42
sHalf, sC1, sC2, sD = 43, 44, 45, 46
sPat = 48
sT0, sT1, sT2, sT3 = 50, 51, 52, 53
sThr, sCnt, sSite = 54, 55, 56
sWoff, sXoff, sWdst, sXdst, sWrd, sXrd, sDX = 57, 58, 59, 60, 61, 62, 63
sOF0, sOF1, sOH = 57, 58, 59
sArg = 64
sSt = 80
sK2 = 47

vLANE, vK0, vK1, vV, vWt, vX, vST = 1, 2, 3, 4, 5, 6, 7
KA = [8, 9, 10, 11]
VA = [12, 13, 14, 15]
WO_ = [16, 17, 18, 19]
XAF, XAH = [20, 21], [22, 23]
LV = [24, 25, 26, 27]
LK0 = 28
vT0, vT1, vT2 = 29, 30, 31
QB = [32, 64, 96]
SB = 128
PB = 176
NEGM = [224, 228, 232]
ET = 236
TS = [[244, 245, 246], [247, 248, 249]]
LS = [250, 251, 252]
vC = 253
vF = [253, 254, 255]
OB = [0, 64, 128]
FB = 192
SLOT = 32768
XBASE = 3 * SLOT
XSL = 20480
PART_WG = 143360
STATS_OFF = 40 << 20
QSCALE = 0x3DB8AA3B


def Sreg(j, kt, blk):
    return SB + ((2 * j + kt) % 4) * 12 + blk * 4


def Preg(j, blk):
    return PB + (j % 4) * 12 + blk * 4


class FragAlloc:
    def __init__(self):
        self.n = 0
        self.lastuse = {}

    def get(self):
        b = self.n % 16
        self.n += 1
        return b


def wait_bar(vm_keys, lg_key):
    return [I("s_waitcnt <resolve>", "W", tag=("resolve", vm_keys, lg_key)), I("s_barrier", "B")]


def stamp(k):
    if not STAMP:
        return []
    return [raw(f"s_memtime s[{sSt + 2 * k}:{sSt + 2 * k + 1}]")]


def prologue():
    c = []
    S = lambda t: c.append(salu(t))
    V = lambda t: c.append(valu(t))
    c.append(raw(f"s_load_dwordx16 s[{sArg}:{sArg + 15}], s[0:1], 0"))
    c += stamp(0)
    V(f"v_lshrrev_b32 v{vT0}, 6, v0")
    V(f"v_and_b32 v{vLANE}, 63, v0")
    V(f"v_readfirstlane_b32 s{sW}, v{vT0}")
    S(f"s_and_b32 s{sT0}, s2, 7")
    S(f"s_lshr_b32 s{sT1}, s2, 3")
    S(f"s_lshr_b32 s{sB}, s{sT1}, 2")
    S(f"s_and_b32 s{sH}, s{sT1}, 1")
    S(f"s_lshl_b32 s{sT2}, s{sT0}, 1")
    S(f"s_add_u32 s{sH}, s{sH}, s{sT2}")
    S(f"s_lshr_b32 s{sSP}, s{sT1}, 1")
    S(f"s_and_b32 s{sSP}, s{sSP}, 1")
    S(f"s_lshr_b32 s{sXW}, s{sW}, 1")
    S(f"s_and_b32 s{sHW}, s{sW}, 1")
    S(f"s_lshl_b32 s{sKoff}, s{sB}, 3")
    S(f"s_add_u32 s{sKoff}, s{sKoff}, s{sT0}")
    S(f"s_lshl_b32 s{sKoff}, s{sKoff}, 20")
    S(f"s_lshl_b32 s{sT2}, s{sSP}, 19")
    S(f"s_add_u32 s{sKoff}, s{sKoff}, s{sT2}")
    S(f"s_mov_b32 s{sVoff}, s{sKoff}")
    V(f"v_lshrrev_b32 v{vT0}, 3, v{vLANE}")
    V(f"v_and_b32 v{vT1}, 7, v{vLANE}")
    V(f"v_lshrrev_b32 v{vT2}, 1, v{vT0}")
    V(f"v_xor_b32 v{vK0}, v{vT1}, v{vT2}")
    V(f"v_lshlrev_b32 v{vK0}, 4, v{vK0}")
    V(f"v_lshlrev_b32 v{vV}, 1, v{vT2}")
    V(f"v_xor_b32 v{vV}, v{vT1}, v{vV}")
    V(f"v_lshlrev_b32 v{vV}, 4, v{vV}")
    S(f"s_lshl_b32 s{sT2}, s{sHW}, 6")
    V(f"v_xor_b32 v{vX}, s{sT2}, v{vK0}")
    V(f"v_mul_u32_u24 v{vST}, 896, v{vT0}")
    V(f"v_add_u32 v{vX}, v{vX}, v{vST}")
    V(f"v_and_b32 v{vWt}, 3, v{vT0}")
    V(f"v_lshrrev_b32 v{vST}, 2, v{vT0}")
    V(f"v_lshl_add_u32 v{vWt}, v{vST}, 3, v{vWt}")
    V(f"v_lshlrev_b32 v{vWt}, 13, v{vWt}")
    V(f"v_add_u32 v{vWt}, v{vWt}, v{vV}")
    S(f"s_lshl_b32 s{sT3}, s{sW}, 7")
    V(f"v_add_u32 v{vWt}, s{sT3}, v{vWt}")
    V(f"v_and_b32 v{vST}, 1, v{vT0}")
    V(f"v_lshl_add_u32 v{vST}, v{vT2}, 3, v{vST}")
    V(f"v_lshlrev_b32 v{vST}, 9, v{vST}")
    V(f"v_add_u32 v{vST}, s{sT3}, v{vST}")
    V(f"v_add_u32 v{vK0}, v{vK0}, v{vST}")
    V(f"v_add_u32 v{vV}, v{vV}, v{vST}")
    V(f"v_xor_b32 v{vK1}, 64, v{vK0}")
    c.append(I("s_waitcnt lgkmcnt(0)", "W"))
    for srd, arg, size in ((sX, 0, 8 * 160 * 448 * 2), (sK, 2, 0x4000000), (sV, 4, 0x4000000),
                           (sWQ, 6, 448 * 4096 * 2), (sWO, 8, 448 * 4096 * 2), (sWS, 14, 0x10000000)):
        S(f"s_mov_b32 s{srd}, s{sArg + arg}")
        S(f"s_mov_b32 s{srd + 1}, s{sArg + arg + 1}")
        S(f"s_mov_b32 s{srd + 2}, {size}")
        S(f"s_mov_b32 s{srd + 3}, 0x20000")
    S(f"s_lshl_b32 s{sWoff}, s{sH}, 9")
    S(f"s_mul_i32 s{sXoff}, s{sB}, {160 * 896}")
    S(f"s_mul_i32 s{sT2}, s{sW}, {8 * 896}")
    S(f"s_add_u32 s{sXoff}, s{sXoff}, s{sT2}")
    S(f"s_lshl_b32 s{sDst0}, s{sW}, 12")
    S(f"s_add_u32 s{sWdst}, s{sDst0}, {SLOT}")
    S(f"s_lshl_b32 s{sXdst}, s{sW}, 10")
    S(f"s_add_u32 s{sXdst}, s{sXdst}, {XBASE}")
    return c


def q_dma_tasks(cidx):
    g = []
    tag = ("Q", cidx)
    for x in range(2):
        for t in range(4):
            rows = 32 * x + 16 * (t & 1) + 4 * (t >> 1)
            pre = []
            if t == 0:
                pre.append(salu(f"s_add_u32 m0, s{sWdst}, {x * 16384}"))
            pre.append(salu(f"s_add_u32 s{sT0}, s{sWoff}, {rows * 8192 - t * 1024}"))
            g.append((pre, dma(vWt, sWQ, sT0, t * 1024, tag=tag)))
    for k in range(5):
        pre = [salu(f"s_add_u32 m0, s{sXdst}, {k * 4096}"), salu(f"s_add_u32 s{sT0}, s{sXoff}, {k * 32 * 896}")]
        g.append((pre, dma(vX, sX, sT0, 0, tag=tag)))
    adv = [[salu(f"s_add_u32 s{sWoff}, s{sWoff}, {64 * 8192}")], [salu(f"s_add_u32 s{sXoff}, s{sXoff}, 128")],
           [salu(f"s_cmp_lt_u32 s{sWdst}, {SLOT}"), salu(f"s_cselect_b32 s{sT1}, {3 * SLOT}, 0"),
            salu(f"s_add_u32 s{sWdst}, s{sWdst}, s{sT1}"), salu(f"s_sub_u32 s{sWdst}, s{sWdst}, {SLOT}")],
           [salu(f"s_cmp_ge_u32 s{sXdst}, {XBASE + 2 * XSL}"), salu(f"s_cselect_b32 s{sT1}, {3 * XSL}, 0"),
            salu(f"s_sub_u32 s{sXdst}, s{sXdst}, s{sT1}"), salu(f"s_add_u32 s{sXdst}, s{sXdst}, {XSL}")]]
    return g, adv


def kv_dma_tasks(kind, tag):
    g = []
    srd, off = (sK, sKoff) if kind == "K" else (sV, sVoff)
    for x in range(2):
        for t in range(4):
            pre = []
            if t == 0:
                pre.append(salu(f"s_add_u32 m0, s{sDst}, {x * 16384}") if x else salu(f"s_mov_b32 m0, s{sDst}"))
                if x:
                    pre.append(salu(f"s_add_u32 s{off}, s{off}, 16384"))
            vo = (vK1 if t & 1 else vK0) if kind == "K" else vV
            g.append((pre, dma(vo, srd, off, t * 1024, nt=True, tag=tag)))
    adv = [[salu(f"s_add_u32 s{off}, s{off}, 16384")], dst_adv()]
    return g, adv


def dst_adv():
    return [salu(f"s_add_u32 s{sDst}, s{sDst}, {SLOT}"), salu(f"s_cmp_eq_u32 s{sDst}, s{sDstLim}"),
            salu(f"s_cselect_b32 s{sDst}, s{sDst0}, s{sDst}")]


def wo_dma_tasks(tag):
    g = []
    for kk in range(2):
        for t in range(4):
            rows = 32 * kk + 16 * (t >> 1) + 8 * (t & 1)
            pre = []
            if t == 0:
                pre.append(salu(f"s_add_u32 s{sT1}, s{sDst}, s{sDst0}"))
                pre.append(salu(f"s_add_u32 m0, s{sT1}, {kk * 4096}"))
            pre.append(salu(f"s_add_u32 s{sT0}, s{sK2}, {rows * 896 - t * 1024}"))
            g.append((pre, dma(vWt, sWO, sT0, t * 1024, tag=tag)))
    adv = [[salu(f"s_add_u32 s{sK2}, s{sK2}, 128")]]
    return g, adv


def add_dma(tasks, g, adv, rel_task, rel, dl, spread=4):
    prev = rel_task
    k = 0
    for pre, d in g:
        for p in pre:
            t = Task(p, "S", rel=rel, dl=dl, deps=[(prev, 0)] if prev else [], name="dmapre")
            tasks.append(t)
            prev = t
        t = Task(d, "D", rel=rel + k * spread, dl=dl, deps=[(prev, 1 if prev.cls == "S" else 0)] if prev else [], name="dma")
        tasks.append(t)
        prev = t
        k += 1
    for a in adv:
        t = Task(a, "S", rel=rel, dl=dl, deps=[(prev, 0)], name="dmaadv")
        tasks.append(t)
        prev = t
    return prev


def emit_serial(c, g, adv):
    for pre, d in g:
        c += pre
        c.append(d)
    for a in adv:
        c += a


DIST = 15
MLAT = 5


def q_setup():
    c = []
    S = lambda t: c.append(salu(t))
    V = lambda t: c.append(valu(t))
    V(f"v_and_b32 v{vT0}, 15, v{vLANE}")
    V(f"v_lshrrev_b32 v{vT1}, 4, v{vLANE}")
    V(f"v_lshrrev_b32 v{vT2}, 1, v{vT0}")
    V(f"v_xor_b32 v{LK0}, v{vT1}, v{vT2}")
    V(f"v_lshlrev_b32 v{LK0}, 4, v{LK0}")
    V(f"v_lshl_add_u32 v{LK0}, v{vT0}, 7, v{LK0}")
    V(f"v_lshrrev_b32 v{vT0}, 2, v{vLANE}")
    V(f"v_and_b32 v{vT1}, 6, v{vT0}")
    V(f"v_bfe_u32 v{vT2}, v{vLANE}, 1, 1")
    V(f"v_xor_b32 v{vT1}, v{vT1}, v{vT2}")
    V(f"v_lshlrev_b32 v{vT1}, 4, v{vT1}")
    V(f"v_lshl_add_u32 v{vT1}, v{vT0}, 7, v{vT1}")
    V(f"v_and_b32 v{vT2}, 1, v{vLANE}")
    V(f"v_lshl_add_u32 v{LV[0]}, v{vT2}, 3, v{vT1}")
    for k in range(1, 4):
        V(f"v_xor_b32 v{LV[k]}, {32 * k}, v{LV[0]}")
    S(f"s_lshl_b32 s{sT0}, s{sXW}, 13")
    S(f"s_add_u32 s{sT1}, s{sT0}, {SLOT}")
    S(f"s_sub_u32 s{sT2}, {SLOT + 8192}, s{sT0}")
    for k in range(4):
        V(f"v_add_u32 v{VA[k]}, s{sT1}, v{LV[k]}")
        V(f"v_add_u32 v{WO_[k]}, s{sT2}, v{LV[k]}")
    S(f"s_lshl_b32 s{sT0}, s{sW}, 12")
    S(f"s_add_u32 s{sT0}, s{sT0}, {XBASE}")
    S(f"s_lshl_b32 s{sT1}, s{sHW}, 11")
    S(f"s_add_u32 s{sT1}, s{sT1}, {XBASE + 128 * 128}")
    V(f"v_add_u32 v{XAF[0]}, s{sT0}, v{LK0}")
    V(f"v_xor_b32 v{XAF[1]}, 64, v{XAF[0]}")
    V(f"v_add_u32 v{XAH[0]}, s{sT1}, v{LK0}")
    V(f"v_xor_b32 v{XAH[1]}, 64, v{XAH[0]}")
    S(f"s_mov_b32 s{sWrd}, {SLOT}")
    S(f"s_mov_b32 s{sXrd}, 0")
    S(f"s_add_u32 s{sDstLim}, s{sDst0}, {5 * SLOT}")
    S(f"s_mov_b32 s{sDst}, s{sDst0}")
    S(f"s_lshl_b32 s{sHalf}, s{sXW}, 15")
    S(f"s_sub_u32 s{sHalf}, s{sHalf}, 16384")
    S(f"s_sub_u32 s{sC1}, {2 * SLOT}, s{sHalf}")
    S(f"s_sub_u32 s{sC2}, {(-3 * SLOT) & 0xffffffff}, s{sHalf}")
    S(f"s_mov_b32 s{sThr}, 0x53800000")
    for r in range(96, 256):
        V(f"v_mov_b32 v{r}, 0")
    for r in range(192):
        c.append(I(f"v_accvgpr_write_b32 a{r}, 0", "V", [], [("a", r)]))
    return c


def qacc(blk, p):
    return (128 + blk * 64 + p * 4) if blk < 2 else (96 + p * 4)


def q_phase():
    mf, tasks = [], []
    fa = FragAlloc()
    marks = []
    XF = lambda ks, blk: 32 + (ks * 3 + blk) * 4
    bar = {}
    lastread = {}
    upd = {}
    xlast = {}
    prev_dma = None
    reads_by_addr = {}
    for cidx in range(7):
        start = len(mf)
        marks.append(start)
        if cidx == 0:
            bar[0] = Task(wait_bar([("Q", 0)], None), "BAR", rel=-1, dl=-1, name="bar0")
        else:
            bar[cidx] = Task(wait_bar([("Q", cidx)], ("QR", cidx - 1)), "BAR", deps=[(lastread[cidx - 1], 3)], name=f"bar{cidx}")
        tasks.append(bar[cidx])
        aup = {}
        if cidx > 0:
            sd = Task([salu(f"s_cmp_eq_u32 s{sWrd}, 0"), salu(f"s_cselect_b32 s{sD}, {2 * SLOT}, {(-SLOT) & 0xffffffff}") if False else
                       salu(f"s_cselect_b32 s{sD}, {3 * SLOT}, 0"), salu(f"s_sub_u32 s{sD}, s{sD}, {SLOT}"),
                       salu(f"s_add_u32 s{sWrd}, s{sWrd}, s{sD}")], "S", rel=start - 60, name="sdW")
            sx = Task([salu(f"s_cmp_eq_u32 s{sXrd}, {2 * XSL}"), salu(f"s_cselect_b32 s{sDX}, {3 * XSL}, 0"),
                       salu(f"s_sub_u32 s{sDX}, {XSL}, s{sDX}"), salu(f"s_add_u32 s{sXrd}, s{sXrd}, s{sDX}")], "S",
                      rel=start - 60, name="sdX")
            for t in (sd, sx):
                for r, u in upd.items():
                    t.deps.append((u, 0))
            tasks += [sd, sx]
            for r in VA + WO_:
                aup[r] = Task(valu(f"v_add_u32 v{r}, s{sD}, v{r}"), "V", deps=[(sd, 1), (reads_by_addr[r], 0)], name="aup")
            for r in XAF + XAH:
                aup[r] = Task(valu(f"v_add_u32 v{r}, s{sDX}, v{r}"), "V", deps=[(sx, 1), (reads_by_addr[r], 0)], name="aup")
            tasks += list(aup.values())
            upd = aup

        def rd(ins, consumer, extra=()):
            ins.tag = ("QR", cidx)
            a = ins.rd[0][1]
            deps = [(bar[cidx], 0)] + list(extra)
            if a in aup:
                deps.append((aup[a], 1))
            first = cidx == 0 and consumer < DIST
            t = Task(ins, "L", rel=-1 if first else consumer - DIST, dl=-1 if first else consumer - 5, deps=deps, name="rd")
            tasks.append(t)
            lastread[cidx] = t if cidx not in lastread or t.dl >= lastread[cidx].dl else lastread[cidx]
            if a not in reads_by_addr or True:
                pr = reads_by_addr.get(a)
                if pr is not None and pr.ins[0].tag == ins.tag:
                    t.deps.append((pr, 0))
                reads_by_addr[a] = t
            return t

        for ks in range(2):
            base = len(mf)
            for blk in range(3):
                a = (XAH if blk == 2 else XAF)[ks]
                t = rd(ds_r128(("v", XF(ks, blk)), a, 2048 if blk == 1 else 0), base)
                if (ks, blk) in xlast:
                    t.rel = max(t.rel, xlast[(ks, blk)])
            for tt in range(8):
                for own in (1, 0):
                    f = FB + fa.get() * 4
                    a = (VA if own else WO_)[tt & 3]
                    off = ks * 16384 + (tt >> 2) * 4096
                    c0 = len(mf)
                    rd(ds_rtr(("a", f), a, off), c0)
                    rd(ds_rtr(("a", f + 2), a, off + 2048), c0)
                    p = tt if own else 8 + tt
                    for blk in ((0, 1, 2) if own else (0, 1)):
                        d = ("v", qacc(blk, p))
                        mf.append(mfma(d, ("a", f), ("v", XF(ks, blk)), d))
                        xlast[(ks, blk)] = len(mf) - 1
        if cidx + 2 <= 6:
            g, adv = q_dma_tasks(cidx + 2)
        elif cidx == 5:
            g, adv = kv_dma_tasks("K", ("T", -1))
            adv = adv + [dst_adv()]
        else:
            g, adv = kv_dma_tasks("K", ("T", 1))
        first = Task([], "S", rel=start, deps=[(bar[cidx], 0)] + ([(prev_dma, 0)] if prev_dma else []), name="dmastart")
        tasks.append(first)
        prev_dma = add_dma(tasks, g, adv, first, start, start + 64, spread=4)
    gaps = schedule(mf, tasks, verbose=True)
    for k, m in enumerate(marks):
        mf[m].mark = ("Q", k)
    return linearize(mf, gaps)


def q_finish():
    c = []
    S = lambda t: c.append(salu(t))
    V = lambda t: c.append(valu(t))
    S(f"s_mov_b32 s{sT0}, {QSCALE:#x}")
    c.append(nop(7))

    def conv(blk, k):
        s = qacc(blk, 2 * k)
        d = QB[blk] + 4 * k
        for r in range(8):
            V(f"v_mul_f32 v{s + r}, s{sT0}, v{s + r}")
        for r in range(4):
            V(f"v_cvt_pk_bf16_f32 v{d + r}, v{s + 2 * r}, v{s + 2 * r + 1}")
        V(f"v_permlane32_swap_b32 v{d}, v{d + 2}")
        V(f"v_permlane32_swap_b32 v{d + 1}, v{d + 3}")
        V(f"v_permlane16_swap_b32 v{d}, v{d + 2}")
        V(f"v_permlane16_swap_b32 v{d + 1}, v{d + 3}")

    EX = XBASE + 2 * XSL
    for k in range(4):
        conv(2, k)
    S(f"s_lshl_b32 s{sT1}, s{sW}, 12")
    S(f"s_add_u32 s{sT1}, s{sT1}, {EX}")
    V(f"v_lshlrev_b32 v{vT0}, 4, v{vLANE}")
    V(f"v_add_u32 v{vT1}, s{sT1}, v{vT0}")
    V(f"v_xor_b32 v{vT2}, 8192, v{vT1}") if (EX & 8192) == 0 else None
    for k in range(4):
        c.append(ds_w128(vT1, ("v", QB[2] + 4 * k), k * 1024))
    S(f"s_xor_b32 s{sT2}, s{sW}, 2")
    S(f"s_lshl_b32 s{sT2}, s{sT2}, 12")
    S(f"s_add_u32 s{sT2}, s{sT2}, {EX}")
    V(f"v_add_u32 v{vT2}, s{sT2}, v{vT0}")
    for blk in range(2):
        for k in range(8):
            conv(blk, k)
    S(f"s_lshl_b32 s{sT0}, s{sXW}, 14")
    S(f"s_sub_u32 s{sT0}, 16384, s{sT0}")
    S(f"s_lshl_b32 s{sT1}, s{sXW}, 13")
    S(f"s_add_u32 s{sT2}, s{sT0}, s{sT1}")
    S(f"s_sub_u32 s{sT3}, s{sT0}, s{sT1}")
    S(f"s_add_u32 s{sT3}, s{sT3}, 8192")
    V(f"v_add_u32 v{KA[0]}, s{sT2}, v{LK0}")
    V(f"v_add_u32 v{KA[2]}, s{sT3}, v{LK0}")
    V(f"v_xor_b32 v{KA[1]}, 64, v{KA[0]}")
    V(f"v_xor_b32 v{KA[3]}, 64, v{KA[2]}")
    S(f"s_add_u32 s{sT0}, s{sT0}, {3 * SLOT}")
    for k in range(4):
        V(f"v_add_u32 v{VA[k]}, s{sT0}, v{LV[k]}")
    for r in range(NEGM[0], NEGM[0] + 12):
        V(f"v_mov_b32 v{r}, 0")
    for r in LS:
        V(f"v_mov_b32 v{r}, 0")
    pat = 0
    for j in range(0, 40):
        n = j + 1
        if n % 2 == 0:
            old, new = ((n - 2) % 5), (n % 5)
        else:
            old, new = ((n - 2) % 5), (n % 5)
        if new < old:
            pat |= 1 << j
    S(f"s_mov_b32 s{sPat}, {pat & 0xffffffff:#x}")
    S(f"s_mov_b32 s{sPat + 1}, {pat >> 32:#x}")
    V(f"v_lshrrev_b32 v{vT0}, 3, v{vLANE}")
    V(f"v_mul_u32_u24 v{vT0}, 896, v{vT0}")
    V(f"v_and_b32 v{vWt}, 0x70, v{vV}")
    V(f"v_add_u32 v{vWt}, v{vWt}, v{vT0}")
    S(f"s_lshl_b32 s{sK2}, s{sH}, 2")
    S(f"s_add_u32 s{sK2}, s{sK2}, s{sW}")
    S(f"s_mul_i32 s{sK2}, s{sK2}, {64 * 896}")
    c.append(I("s_waitcnt lgkmcnt(0)", "W"))
    c += wait_bar([("T", -1)], None)
    for k in range(4):
        i = ds_r128(("v", QB[2] + 16 + 4 * k), vT2, k * 1024)
        i.tag = ("EX", 0)
        c.append(i)
    return c


sites = []


def rowmax_tasks(tasks, src, t, u, dep, name):
    seq = [valu(f"v_max3_f32 v{t}, v{src}, v{src + 1}, v{src + 2}"), valu(f"v_max_f32 v{t}, v{t}, v{src + 3}"),
           valu(f"v_mov_b32 v{u}, v{t}"), valu(f"v_permlane32_swap_b32 v{t}, v{u}"), valu(f"v_max_f32 v{t}, v{t}, v{u}"),
           valu(f"v_mov_b32 v{u}, v{t}"), valu(f"v_permlane16_swap_b32 v{t}, v{u}"), valu(f"v_max_f32 v{t}, v{t}, v{u}"),
           valu(f"v_ceil_f32 v{t}, v{t}")]
    prev = dep
    for i in seq:
        tk = Task(i, "V", rel=dep[1] if isinstance(dep, tuple) else 0, deps=[] if isinstance(prev, tuple) else [(prev, 1 if i.kind == "P" else 0)], name=name)
        tasks.append(tk)
        prev = tk
    return prev


def main_phase():
    NS = 35
    mf, tasks = [], []
    fa = FragAlloc()
    start = {}
    chain_first, chain_last = {}, {}
    plan = []
    for j in range(NS):
        start[j] = len(mf)
        hasqk, haspv = j <= 31, j >= 3
        for gam in range(16):
            kt, ks = gam >> 3, gam & 7
            if hasqk:
                f = FB + fa.get() * 4
                plan.append(("K", j, gam, f, len(mf)))
                for blk in ((0, 1, 2) if j & 1 else (0, 1)):
                    d = ("v", Sreg(j, kt, blk))
                    mf.append(mfma(d, ("a", f), ("v", QB[blk] + 4 * ks), ("v", NEGM[blk]) if ks == 0 else d))
                    chain_first.setdefault((j, kt), len(mf) - 1)
                    chain_last[(j, kt, blk)] = len(mf) - 1
            if haspv:
                f = FB + fa.get() * 4
                plan.append(("V", j, gam, f, len(mf)))
                for blk in ((0, 1, 2) if (j & 1) == 0 else (0, 1)):
                    d = ("a", OB[blk] + 4 * gam)
                    mf.append(mfma(d, ("a", f), ("v", Preg(j - 3, blk)), d))
    start[NS] = len(mf)
    start[NS + 1] = len(mf)
    bar, aup, lastread, lastaddr = {}, {}, {}, {}
    prev_sd = None
    prev_aups = []

    def tile_of(kind, j):
        return ("K", j >> 1) if kind == "K" else ("V", (j - 3) >> 1)

    done_steps = set()

    def enter(j):
        nonlocal prev_sd, prev_aups
        done_steps.add(j)
        sw = "K" if j % 2 == 0 else "V"
        old = tile_of(sw, j - 1)
        newvalid = (sw == "K" and j <= 30) or (sw == "V" and 3 <= j <= 33)
        vm = [("T", j - 1)] if newvalid else []
        deps = []
        lg = None
        if old in lastread:
            deps.append((lastread[old], 3))
            lg = old
        if j == 1:
            lg = ("EX", 0)
        bar[j] = Task(wait_bar(vm, lg), "BAR", rel=start[j] - DIST + 4, dl=start[j] - 8, deps=deps + ([(bar[j - 1], 1)] if j - 1 in bar else []), name=f"bar{j}")
        tasks.append(bar[j])
        sd = Task([salu(f"s_bitcmp1_b64 s[{sPat}:{sPat + 1}], 0"), salu(f"s_cselect_b32 s{sD}, s{sC2}, s{sC1}"),
                   salu(f"s_lshr_b64 s[{sPat}:{sPat + 1}], s[{sPat}:{sPat + 1}], 1")], "S", rel=start[j - 1] + 8,
                  deps=[(t, 0) for t in prev_aups] + ([(prev_sd, 0)] if prev_sd else []), name="sd")
        sd.ins[0].wr = [("scc", 0)]
        tasks.append(sd)
        prev_sd = sd
        prev_aups = []
        for kind, regs in (("K", KA), ("V", VA)):
            active = (kind == "K" and 1 <= j <= 31) or (kind == "V" and 4 <= j <= 34)
            if not active:
                continue
            for r in regs:
                sreg = sD if kind == sw else sHalf
                t = Task(valu(f"v_add_u32 v{r}, s{sreg}, v{r}"), "V", deps=[(sd, 1), (lastaddr[r], 0)], name="aup")
                aup[(j, r)] = t
                tasks.append(t)
                prev_aups.append(t)

    for kind, j, gam, f, c0 in plan:
        if j >= 1 and j not in done_steps:
            enter(j)
        kt, ks = gam >> 3, gam & 7
        if kind == "K":
            a = KA[(ks >> 2) * 2 + (ks & 1)]
            ins = [ds_r128(("a", f), a, ((ks >> 1) & 1) * 4096 + kt * 2048)]
        else:
            a = VA[gam & 3]
            ins = [ds_rtr(("a", f), a, (gam >> 2) * 4096), ds_rtr(("a", f + 2), a, (gam >> 2) * 4096 + 2048)]
        tl = tile_of(kind, j)
        for i in ins:
            i.tag = tl
            deps = []
            swj = j if (kind == "K") == (j % 2 == 0) else j - 1
            if swj in bar:
                deps.append((bar[swj], 0))
            if (j, a) in aup:
                deps.append((aup[(j, a)], 1))
            if a in lastaddr:
                deps.append((lastaddr[a], 0))
            first = c0 < DIST
            t = Task(i, "L", rel=-1 if first else c0 - DIST, dl=-1 if first else c0 - 5, deps=deps, name=f"rd{kind}{j}.{gam}")
            tasks.append(t)
            lastread[tl] = t
            lastaddr[a] = t
    prev = None
    for j in range(NS):
        n = j + 2
        if n <= 32 and n != 31:
            g, adv = kv_dma_tasks("K" if n & 1 else "V", ("T", n))
        elif n in (31, 33):
            g, adv = wo_dma_tasks(("WO", (n - 31) // 2))
            adv = adv + [dst_adv()]
        else:
            continue
        first = Task([], "S", rel=start[j] - 6, deps=([(bar[j], 0)] if j in bar else []) + ([(prev, 0)] if prev else []), name="dmastart")
        tasks.append(first)
        L = start[j + 1] - start[j]
        prev = add_dma(tasks, g, adv, first, start[j] - 6, start[j + 1] - DIST, spread=max(1, (L - DIST) // 10))
    ecount = 0
    econs = {}
    prev_branch = None
    prev_ladd = {}
    for j in range(32):
        blks = (0, 1, 2) if j & 1 else (0, 1)
        dl_chk = chain_first[(j + 2, 0)] - 1 if j + 2 <= 31 else start[j + 3] - 4
        alladds = []
        tsdep = {}
        fix = {}
        for blk in blks:
            if (j == 0 and blk < 2) or (j == 1 and blk == 2):
                t, u = ET + 2 * (blk & 1), ET + 2 * (blk & 1) + 1
                base = Task([], "V", rel=chain_last[(j, 0, blk)] + MLAT, deps=[(prev_branch, 0)] if prev_branch else [], name="mx0")
                tasks.append(base)
                last = rowmax_tasks(tasks, Sreg(j, 0, blk), t, u, base, "mx")
                nm = []
                for r in range(4):
                    x = Task(valu(f"v_sub_f32 v{NEGM[blk] + r}, 0, v{t}"), "V", rel=chain_first[(j, 1)] + 6,
                             dl=chain_first[(j + (1 if blk < 2 else 2), 0)] - 3, deps=[(last, 0)], name="negm")
                    tasks.append(x)
                    nm.append(x)
                for kt in range(2):
                    for r in range(4):
                        s = Sreg(j, kt, blk) + r
                        x = Task(valu(f"v_sub_f32 v{s}, v{s}, v{t}"), "V", rel=chain_last[(j, kt, blk)] + MLAT, deps=[(last, 0)], name="sfix")
                        tasks.append(x)
                        fix[(kt, blk, r)] = x
                        econs.setdefault(t - ET, []).append(x)
                econs.setdefault(t - ET, []).extend(nm)
                econs.setdefault(u - ET, []).append(last)
        for kt in range(2):
            for blk in blks:
                ts = TS[j & 1][blk]
                for pr in range(2):
                    es = []
                    for r in (2 * pr, 2 * pr + 1):
                        e = ecount % 8
                        ecount += 1
                        deps = [(x, 0) for x in econs.get(e, [])]
                        if prev_branch:
                            deps.append((prev_branch, 0))
                        if (kt, blk, r) in fix:
                            deps.append((fix[(kt, blk, r)], 1))
                        if fix:
                            deps += [(x, 0) for x in fix.values() if False]
                        t = Task(valu(f"v_exp_f32 v{ET + e}, v{Sreg(j, kt, blk) + r}"), "E", rel=chain_last[(j, kt, blk)] + MLAT,
                                 deps=deps, name=f"exp{j}.{kt}")
                        tasks.append(t)
                        econs[e] = []
                        es.append((e, t))
                    (e0, t0), (e1, t1) = es
                    cv = Task(valu(f"v_cvt_pk_bf16_f32 v{Preg(j, blk) + 2 * kt + pr}, v{ET + e0}, v{ET + e1}"), "V",
                              deps=[(t0, 1), (t1, 1)], name="cvt")
                    tasks.append(cv)
                    alladds.append(cv)
                    if blk not in tsdep:
                        ad = Task(valu(f"v_add_f32 v{ts}, v{ET + e0}, v{ET + e1}"), "V",
                                  deps=[(t0, 1), (t1, 1)] + ([(prev_ladd[(j & 1, blk)], 0)] if (j & 1, blk) in prev_ladd else []), name="add")
                        tasks.append(ad)
                        econs[e0] += [cv, ad]
                        econs[e1] += [cv, ad]
                        tsdep[blk] = ad
                    else:
                        a0 = Task(valu(f"v_add_f32 v{ts}, v{ET + e0}, v{ts}"), "V", deps=[(t0, 1), (tsdep[blk], 1)], name="add")
                        a1 = Task(valu(f"v_add_f32 v{ts}, v{ET + e1}, v{ts}"), "V", deps=[(t1, 1), (a0, 1)], name="add")
                        tasks += [a0, a1]
                        econs[e0] += [cv, a0]
                        econs[e1] += [cv, a1]
                        tsdep[blk] = a1
        tsr = [TS[j & 1][b] for b in blks]
        mx = Task(valu(f"v_max3_f32 v{vC}, v{tsr[0]}, v{tsr[1]}, v{tsr[2]}") if len(tsr) == 3 else valu(f"v_max_f32 v{vC}, v{tsr[0]}, v{tsr[1]}"),
                  "V", deps=[(t, 1) for t in tsdep.values()], name="mx")
        cmp_ = Task(valu(f"v_cmp_lt_f32 vcc, s{sThr}, v{vC}"), "V", deps=[(mx, 1)], name="cmp")
        bri = I(f"s_cbranch_vccnz L_slow_@{j}", "BR", [("vcc", 0)], [], tag=("site", j))
        lab = I(f"L_ret_@{j}:", "LAB", tag=("ret", j))
        br = Task([bri, lab], "S", dl=dl_chk, deps=[(cmp_, 1)] + [(t, 0) for t in alladds], name=f"br{j}")
        tasks += [mx, cmp_, br]
        for blk in blks:
            la = Task(valu(f"v_add_f32 v{LS[blk]}, v{TS[j & 1][blk]}, v{LS[blk]}"), "V", deps=[(br, 0)], dl=dl_chk + 12, name="ladd")
            tasks.append(la)
            prev_ladd[(j & 1, blk)] = la
        if prev_branch is not None:
            pass
        br.deps += [(t, 0) for k, t in prev_ladd.items() if t.deps[0][0] is not br]
        prev_branch = br
        sites.append(dict(j=j, task=br, blks=blks))
    gaps = schedule(mf, tasks, verbose=True)
    for s in sites:
        j, g = s["j"], s["task"].gap
        s["later"] = [(jj, kt) for (jj, kt), idx in chain_first.items() if jj > j and idx <= g + 0]
        s["later_blk"] = {}
        for (jj, kt) in s["later"]:
            for blk in ((0, 1, 2) if jj & 1 else (0, 1)):
                if chain_first[(jj, kt)] + blk <= g:
                    s["later_blk"].setdefault(blk, []).append(Sreg(jj, kt, blk))
        s["pend"] = [jj for jj in range(max(0, j - 3), j) if start[jj + 4] - 1 > g]
    for j in range(NS):
        mf[start[j]].mark = ("M", j)
    return linearize(mf, gaps)


def slow_path(s, name):
    c = []
    V = lambda t: c.append(valu(t))
    j = s["j"]
    c.append(I(f"L_slow_{name}:", "LAB"))
    c.append(nop(15))
    t, u, x, y = ET, ET + 1, ET + 2, ET + 3
    for blk in range(3):
        if blk not in s["blks"]:
            V(f"v_mov_b32 v{vF[blk]}, 1.0")
            continue
        s0, s1 = Sreg(j, 0, blk), Sreg(j, 1, blk)
        V(f"v_max3_f32 v{t}, v{s0}, v{s0 + 1}, v{s0 + 2}")
        V(f"v_max3_f32 v{t}, v{t}, v{s0 + 3}, v{s1}")
        V(f"v_max3_f32 v{t}, v{t}, v{s1 + 1}, v{s1 + 2}")
        V(f"v_max_f32 v{t}, v{t}, v{s1 + 3}")
        for sw in ("v_permlane32_swap_b32", "v_permlane16_swap_b32"):
            V(f"v_mov_b32 v{u}, v{t}")
            V(f"{sw} v{t}, v{u}")
            V(f"v_max_f32 v{t}, v{t}, v{u}")
        V(f"v_ceil_f32 v{t}, v{t}")
        V(f"v_max_f32 v{t}, 0, v{t}")
        V(f"v_exp_f32 v{vF[blk]}, -v{t}")
        for base in [NEGM[blk], s0, s1] + s["later_blk"].get(blk, []):
            for r in range(4):
                V(f"v_sub_f32 v{base + r}, v{base + r}, v{t}")
        for jj in s["pend"]:
            if blk == 2 and not (jj & 1):
                continue
            for r in range(4):
                p = Preg(jj, blk) + r
                V(f"v_lshlrev_b32 v{x}, 16, v{p}")
                V(f"v_and_b32 v{y}, 0xffff0000, v{p}")
                V(f"v_mul_f32 v{x}, v{x}, v{vF[blk]}")
                V(f"v_mul_f32 v{y}, v{y}, v{vF[blk]}")
                V(f"v_cvt_pk_bf16_f32 v{p}, v{x}, v{y}")
        ts = TS[j & 1][blk]
        V(f"v_mov_b32 v{ts}, 0")
        for kt in range(2):
            for pr in range(2):
                sr = Sreg(j, kt, blk) + 2 * pr
                V(f"v_exp_f32 v{x}, v{sr}")
                V(f"v_exp_f32 v{y}, v{sr + 1}")
                V(f"v_cvt_pk_bf16_f32 v{Preg(j, blk) + 2 * kt + pr}, v{x}, v{y}")
                V(f"v_add_f32 v{ts}, v{x}, v{ts}")
                V(f"v_add_f32 v{ts}, v{y}, v{ts}")
    return c


def slow_tail(names):
    c = []
    V = lambda t: c.append(valu(t))
    c.append(I("L_slow_tail:", "LAB"))
    for blk in range(3):
        V(f"v_mul_f32 v{LS[blk]}, v{LS[blk]}, v{vF[blk]}")
        for r in range(0, 64, 4):
            for k in range(4):
                c.append(I(f"v_accvgpr_read_b32 v{ET + k}, a{OB[blk] + r + k}", "V", [("a", OB[blk] + r + k)], [("v", ET + k)]))
            for k in range(4):
                V(f"v_mul_f32 v{ET + k}, v{ET + k}, v{vF[blk]}")
            for k in range(4):
                c.append(I(f"v_accvgpr_write_b32 a{OB[blk] + r + k}, v{ET + k}", "V", [("v", ET + k)], [("a", OB[blk] + r + k)]))
    c.append(nop(3))
    for k, nm in enumerate(names):
        c.append(salu(f"s_cmp_eq_u32 s{sSite}, {k}"))
        c.append(I(f"s_cbranch_scc1 L_ret_{nm}", "BR"))
    c.append(I(f"s_branch L_ret_{names[-1]}", "BR"))
    return c


def xsum(c, r, u):
    V = lambda t: c.append(valu(t))
    for sw in ("v_permlane32_swap_b32", "v_permlane16_swap_b32"):
        V(f"v_mov_b32 v{u}, v{r}")
        V(f"{sw} v{r}, v{u}")
        V(f"v_add_f32 v{r}, v{r}, v{u}")


def attn_finish():
    c = []
    S = lambda t: c.append(salu(t))
    V = lambda t: c.append(valu(t))
    AR = lambda v, a: c.append(I(f"v_accvgpr_read_b32 v{v}, a{a}", "V", [("a", a)], [("v", v)]))
    c.append(nop(7))
    for blk in range(3):
        xsum(c, LS[blk], ET)
    c.append(I("s_waitcnt lgkmcnt(0)", "W"))
    c.append(I("s_barrier", "B"))
    S(f"s_mul_i32 s{sT0}, s{sXW}, {3 * SLOT}")
    S(f"s_lshl_b32 s{sT1}, s{sHW}, 14")
    S(f"s_add_u32 s{sT0}, s{sT0}, s{sT1}")
    S(f"s_sub_u32 s{sT2}, 1, s{sXW}")
    S(f"s_mul_i32 s{sT2}, s{sT2}, {3 * SLOT}")
    S(f"s_add_u32 s{sT2}, s{sT2}, s{sT1}")
    V(f"v_lshlrev_b32 v{vT0}, 4, v{vLANE}")
    V(f"v_add_u32 v{vT1}, s{sT0}, v{vT0}")
    V(f"v_add_u32 v{vT2}, s{sT2}, v{vT0}")
    for T in range(16):
        c.append(ds_w128(vT1, ("a", OB[2] + 4 * T), T * 1024))
    S(f"s_lshl_b32 s{sT0}, s{sW}, 9")
    S(f"s_add_u32 s{sT0}, s{sT0}, {SLOT}")
    S(f"s_xor_b32 s{sT1}, s{sT0}, 1024")
    V(f"v_lshlrev_b32 v{vT0}, 3, v{vLANE}")
    V(f"v_add_u32 v{KA[0]}, s{sT0}, v{vT0}")
    V(f"v_add_u32 v{KA[1]}, s{sT1}, v{vT0}")
    V(f"v_mov_b32 v{ET}, v{NEGM[2]}")
    V(f"v_mov_b32 v{ET + 1}, v{LS[2]}")
    c.append(ds_w64(KA[0], ("v", ET), 0))
    for blk in range(2):
        for T in range(16):
            for r in range(4):
                AR(SB + r, OB[blk] + 4 * T + r)
            V(f"v_cvt_pk_bf16_f32 v{QB[blk] + 2 * T}, v{SB}, v{SB + 1}")
            V(f"v_cvt_pk_bf16_f32 v{QB[blk] + 2 * T + 1}, v{SB + 2}, v{SB + 3}")
    c.append(I("s_waitcnt lgkmcnt(0)", "W"))
    c.append(I("s_barrier", "B"))
    c.append(ds_r64(("v", ET + 2), KA[1], 0))
    for T in range(16):
        c.append(ds_r128(("v", SB + 4 * T), vT2, T * 1024))
    nm, a_o, a_p = ET + 4, ET + 5, ET + 6
    V(f"v_min_f32 v{nm}, v{ET}, v{ET + 2}")
    V(f"v_sub_f32 v{a_o}, v{nm}, v{ET}")
    V(f"v_sub_f32 v{a_p}, v{nm}, v{ET + 2}")
    V(f"v_exp_f32 v{a_o}, v{a_o}")
    V(f"v_exp_f32 v{a_p}, v{a_p}")
    V(f"v_mov_b32 v{NEGM[2]}, v{nm}")
    V(f"v_mul_f32 v{LS[2]}, v{a_o}, v{ET + 1}")
    V(f"v_fmac_f32 v{LS[2]}, v{a_p}, v{ET + 3}")
    tmp = 192
    for T in range(16):
        for r in range(4):
            AR(tmp + r, OB[2] + 4 * T + r)
        for r in range(4):
            V(f"v_mul_f32 v{tmp + r}, v{a_o}, v{tmp + r}")
        for r in range(4):
            V(f"v_fmac_f32 v{tmp + r}, v{a_p}, v{SB + 4 * T + r}")
        V(f"v_cvt_pk_bf16_f32 v{QB[2] + 2 * T}, v{tmp}, v{tmp + 1}")
        V(f"v_cvt_pk_bf16_f32 v{QB[2] + 2 * T + 1}, v{tmp + 2}, v{tmp + 3}")
    V(f"v_and_b32 v{vT0}, 15, v{vLANE}")
    V(f"v_lshlrev_b32 v{vT0}, 3, v{vT0}")
    S(f"s_mul_i32 s{sT0}, s2, 1280")
    S(f"s_add_u32 s{sT0}, s{sT0}, {STATS_OFF}")
    S(f"s_lshl_b32 s{sT1}, s{sW}, 8")
    S(f"s_add_u32 s{sT1}, s{sT1}, s{sT0}")
    S(f"s_lshl_b32 s{sT2}, s{sHW}, 7")
    S(f"s_add_u32 s{sT2}, s{sT2}, s{sT0}")
    for blk in range(3):
        V(f"v_mov_b32 v{tmp + 2 * blk}, v{NEGM[blk]}")
        V(f"v_mov_b32 v{tmp + 2 * blk + 1}, v{LS[blk]}")
    c.append(bstore(2, ("v", tmp), vT0, sWS, sT1, 0))
    c.append(bstore(2, ("v", tmp + 2), vT0, sWS, sT1, 128))
    c.append(bstore(2, ("v", tmp + 4), vT0, sWS, sT2, 1024))
    S(f"s_lshl_b32 s{sT0}, s{sXW}, 6")
    for k in range(4):
        V(f"v_xor_b32 v{VA[k]}, s{sT0}, v{LV[k]}")
        V(f"v_add_u32 v{VA[k]}, {2 * SLOT}, v{VA[k]}")
    S(f"s_mul_i32 s{sT0}, s2, {PART_WG}")
    V(f"v_lshlrev_b32 v{vST}, 4, v{vLANE}")
    S(f"s_mul_i32 s{sOF0}, s{sW}, {2 * 14336}")
    S(f"s_add_u32 s{sOF0}, s{sOF0}, s{sT0}")
    S(f"s_add_u32 s{sOF1}, s{sOF0}, 14336")
    S(f"s_mul_i32 s{sOH}, s{sHW}, 14336")
    S(f"s_add_u32 s{sOH}, s{sOH}, s{sT0}")
    S(f"s_lshl_b32 s{sT1}, s{sXW}, 10")
    S(f"s_add_u32 s{sOH}, s{sOH}, s{sT1}")
    S(f"s_add_u32 s{sOH}, s{sOH}, {8 * 14336}")
    pat = 0
    for o in range(12):
        if (2 + 2 * (o + 1)) % 5 < (2 + 2 * o) % 5:
            pat |= 1 << o
    S(f"s_mov_b32 s{sPat}, {pat:#x}")
    S(f"s_mov_b32 s{sPat + 1}, {pat >> 2:#x}")
    S(f"s_mov_b32 s{sC1}, {2 * SLOT}")
    S(f"s_mov_b32 s{sC2}, {(-3 * SLOT) & 0xffffffff:#x}")
    S(f"s_add_u32 s{sDst}, s{sDst0}, {SLOT}")
    c.append(I("s_waitcnt lgkmcnt(0)", "W"))
    c += wait_bar([("WO", 0)], None)
    g, adv = wo_dma_tasks(("WO", 2))
    emit_serial(c, g, adv + [odst_adv()])
    return c


def odst_adv():
    return [salu(f"s_bitcmp1_b32 s{sPat + 1}, 0"), salu(f"s_cselect_b32 s{sT1}, s{sC2}, s{sC1}"),
            salu(f"s_add_u32 s{sDst}, s{sDst}, s{sT1}"), salu(f"s_lshr_b32 s{sPat + 1}, s{sPat + 1}, 1")]


def o_phase():
    mf, tasks = [], []
    fa = FragAlloc()
    marks = []
    ACC = [128, 148]
    PK = [[168, 172], [176, 180]]
    HST = 184
    bar, lastread, lastaddr = {}, {}, {}
    prev_dma = None
    prev_aups = []
    prev_cv = {}
    prev_st = {}
    prev_inc = None
    for o in range(7):
        start = len(mf)
        marks.append(start)
        aup = {}
        if o > 0:
            bar[o] = Task(wait_bar([("WO", o)], ("OR", o - 1)), "BAR", deps=[(lastread[o - 1], 3)], name=f"bar{o}")
            tasks.append(bar[o])
            sd = Task([salu(f"s_bitcmp1_b32 s{sPat}, 0"), salu(f"s_cselect_b32 s{sD}, s{sC2}, s{sC1}"),
                       salu(f"s_lshr_b32 s{sPat}, s{sPat}, 1")], "S", rel=start - 60, deps=[(t, 0) for t in prev_aups], name="sd")
            tasks.append(sd)
            for r in VA:
                aup[r] = Task(valu(f"v_add_u32 v{r}, s{sD}, v{r}"), "V", deps=[(sd, 1), (lastaddr[r], 0)], name="aup")
            tasks += list(aup.values())
            prev_aups = list(aup.values())
        for p in range(2):
            lastm = {}
            firstm = len(mf)
            for kb in range(8):
                for own in (1, 0):
                    f = FB + fa.get() * 4
                    a = VA[p if own else 2 + p]
                    c0 = len(mf)
                    for e in range(2):
                        i = ds_rtr(("a", f + 2 * e), a, kb * 4096 + e * 2048)
                        i.tag = ("OR", o)
                        deps = ([(bar[o], 0)] if o in bar else []) + ([(aup[a], 1)] if a in aup else []) + ([(lastaddr[a], 0)] if a in lastaddr else [])
                        first = c0 < DIST
                        t = Task(i, "L", rel=-1 if first else c0 - DIST, dl=-1 if first else c0 - 5, deps=deps, name="rd")
                        tasks.append(t)
                        lastread[o] = t
                        lastaddr[a] = t
                    for blk in ((0, 1, 2) if own else (0, 1)):
                        slot = blk if own else 3 + blk
                        d = ("v", ACC[p] + 4 * slot)
                        mf.append(mfma(d, ("a", f), ("v", QB[blk] + 4 * kb), 0 if kb == 0 else d))
                        lastm[slot] = len(mf) - 1
            dl = firstm + 80 - 2
            cvs = {}
            for slot in range(5):
                blk = slot % 3 if slot < 3 else slot - 3
                for h in range(2):
                    if slot == 2:
                        dst = HST + 2 * p + h
                        key = "H"
                    else:
                        dst = PK[p][blk] + (0 if slot < 3 else 2) + h
                        key = (p, blk)
                    s = ACC[p] + 4 * slot + 2 * h
                    t = Task(valu(f"v_cvt_pk_bf16_f32 v{dst}, v{s}, v{s + 1}"), "V", rel=lastm[slot] + MLAT, dl=dl,
                             deps=[(prev_st[key], 2)] if key in prev_st else [], name="cvt")
                    tasks.append(t)
                    cvs.setdefault(key, []).append(t)
            for blk in range(2):
                st = Task(bstore(4, ("v", PK[p][blk]), vST, sWS, (sOF0, sOF1)[blk], p * 1024), "D",
                          deps=[(t, 1) for t in cvs[(p, blk)]] + ([(prev_inc, 0)] if prev_inc else []), dl=dl + 20, name="st")
                tasks.append(st)
                prev_st[(p, blk)] = st
            if p == 0:
                hcv = cvs["H"]
            else:
                st = Task(bstore(4, ("v", HST), vST, sWS, sOH, 0), "D", deps=[(t, 1) for t in hcv + cvs["H"]] + ([(prev_inc, 0)] if prev_inc else []),
                          dl=dl + 20, name="stH")
                tasks.append(st)
                prev_st["H"] = st
                inc = Task([salu(f"s_add_u32 s{sOF0}, s{sOF0}, 2048"), salu(f"s_add_u32 s{sOF1}, s{sOF1}, 2048"),
                            salu(f"s_add_u32 s{sOH}, s{sOH}, 2048")], "S", deps=[(t, 0) for t in prev_st.values()], name="inc")
                tasks.append(inc)
                prev_inc = inc
        if o + 3 <= 6:
            g, adv = wo_dma_tasks(("WO", o + 3))
            first = Task([], "S", rel=start, deps=([(bar[o], 0)] if o in bar else []) + ([(prev_dma, 0)] if prev_dma else []), name="dmastart")
            tasks.append(first)
            prev_dma = add_dma(tasks, g, adv + [odst_adv()], first, start, start + 62, spread=5)
    gaps = schedule(mf, tasks, verbose=True)
    for k, m in enumerate(marks):
        mf[m].mark = ("O", k)
    return linearize(mf, gaps)


def norm(ins):
    t = ins.text
    if "@" in t:
        a, b = t.split("@")
        n = int(b.rstrip(":"))
        return f"{a}@{n % 4}"
    return t


def fold(code):
    segs, cur, keys = [], [], []
    key = None
    for ins in code:
        if ins.kind == "M" and ins.mark is not None:
            segs.append(cur)
            keys.append(key)
            cur, key = [], ins.mark
        if ins.kind == "LAB" and ins.tag and ins.tag[0] == "cut":
            segs.append(cur)
            keys.append(key)
            cur, key = [], None
            continue
        cur.append(ins)
    segs.append(cur)
    keys.append(key)
    txt = [tuple(norm(i) for i in s) for s in segs]
    out = []
    i = 0
    nloop = 0
    n = len(segs)
    sitekey = lambda s: (s["j"] % 4, tuple(sorted((b, tuple(v)) for b, v in s["later_blk"].items())), tuple(x % 4 for x in s["pend"]), s["blks"])
    sinfo = {s["j"]: s for s in sites}

    def sites_in(seg):
        return [sitekey(sinfo[x.tag[1]]) for x in seg if x.kind == "BR" and x.tag and x.tag[0] == "site"]

    while i < n:
        best = None
        if keys[i] is not None:
            p = 4 if keys[i][0] == "M" else 1
            k = 1
            while i + (k + 1) * p <= n and all(
                    keys[i + k * p + r] is not None and txt[i + k * p + r] == txt[i + r] and sites_in(segs[i + k * p + r]) == sites_in(segs[i + r])
                    for r in range(p)):
                k += 1
            if k >= 2:
                best = (p, k)
        if best:
            p, k = best
            out.append(salu(f"s_mov_b32 s{sCnt}, {k}"))
            out.append(I(f"L_loop{nloop}:", "LAB"))
            for r in range(p):
                out += segs[i + r]
            out.append(salu(f"s_sub_u32 s{sCnt}, s{sCnt}, 1"))
            out.append(salu(f"s_cmp_lg_u32 s{sCnt}, 0"))
            out.append(I(f"s_cbranch_scc1 L_loop{nloop}", "BR"))
            nloop += 1
            i += p * k
        else:
            out += segs[i]
            i += 1
    return out


def cut():
    return I("", "LAB", tag=("cut",))


def reduce_kernel():
    L = []
    A = L.append
    A("gqa_reduce_kernel:")
    A("s_cmp_ge_u32 s2, 280")
    A("s_cbranch_scc1 L_rend")
    A("s_load_dwordx2 s[4:5], s[0:1], 40")
    A("s_load_dwordx2 s[6:7], s[0:1], 56")
    A("v_lshrrev_b32 v1, 6, v0")
    A("v_and_b32 v2, 63, v0")
    A("v_readfirstlane_b32 s3, v1")
    A("s_lshl_b32 s16, s2, 2")
    A("s_add_u32 s16, s16, s3")
    A("s_mul_hi_u32 s17, s16, 0x1d41d42")
    A("s_mul_i32 s18, s17, 140")
    A("s_sub_u32 s18, s16, s18")
    A("s_mul_hi_u32 s19, s18, 0x12492493")
    A("s_mul_i32 s20, s19, 14")
    A("s_sub_u32 s20, s18, s20")
    A("s_waitcnt lgkmcnt(0)")
    A("s_mov_b32 s8, s4"); A("s_mov_b32 s9, s5"); A(f"s_mov_b32 s10, {8 * 160 * 448 * 2}"); A("s_mov_b32 s11, 0x20000")
    A("s_mov_b32 s12, s6"); A("s_mov_b32 s13, s7"); A("s_mov_b32 s14, 0x10000000"); A("s_mov_b32 s15, 0x20000")
    A(f"s_mul_i32 s21, s17, {32 * PART_WG}")
    A("s_lshl_b32 s22, s18, 10")
    A("s_add_u32 s21, s21, s22")
    A("v_lshlrev_b32 v3, 4, v2")
    A(f"s_mul_i32 s23, s17, {32 * 1280}")
    A("s_lshl_b32 s22, s19, 7")
    A("s_add_u32 s23, s23, s22")
    A(f"s_add_u32 s23, s23, {STATS_OFF}")
    A("v_and_b32 v4, 15, v2")
    A("v_lshlrev_b32 v5, 3, v4")
    for k in range(32):
        A(f"s_add_u32 s24, s23, {k * 1280}")
        A(f"buffer_load_dwordx2 v[{16 + 2 * k}:{17 + 2 * k}], v5, s[12:15], s24 offen")
    for k in range(32):
        A(f"s_add_u32 s24, s21, {k * PART_WG}")
        A(f"buffer_load_dwordx4 v[{80 + 4 * k}:{83 + 4 * k}], v3, s[12:15], s24 offen")
    A("s_waitcnt vmcnt(32)")
    for k in range(16):
        n0, l0, n1, l1 = 16 + 2 * k, 17 + 2 * k, 48 + 2 * k, 49 + 2 * k
        A(f"v_min_f32 v6, v{n0}, v{n1}")
        A(f"v_sub_f32 v{n0}, v6, v{n0}")
        A(f"v_sub_f32 v{n1}, v6, v{n1}")
        A(f"v_exp_f32 v{n0}, v{n0}")
        A(f"v_exp_f32 v{n1}, v{n1}")
        A("s_nop 0")
        A(f"v_mul_f32 v7, v{n0}, v{l0}")
        A(f"v_fmac_f32 v7, v{n1}, v{l1}")
        A("v_rcp_f32 v7, v7")
        A("s_nop 0")
        A(f"v_mul_f32 v{n0}, v{n0}, v7")
        A(f"v_mul_f32 v{n1}, v{n1}, v7")
    for r in range(8):
        A(f"v_mov_b32 v{8 + r}, 0")
    for k in range(32):
        A(f"s_waitcnt vmcnt({31 - k})")
        for r in range(4):
            x = 80 + 4 * k + r
            A(f"v_lshlrev_b32 v6, 16, v{x}")
            A(f"v_and_b32 v7, 0xffff0000, v{x}")
            A(f"v_fmac_f32 v{8 + 2 * r}, v6, v{16 + 2 * k}")
            A(f"v_fmac_f32 v{9 + 2 * r}, v7, v{16 + 2 * k}")
    for r in range(4):
        A(f"v_cvt_pk_bf16_f32 v{8 + r}, v{8 + 2 * r}, v{9 + 2 * r}")
    A("s_and_b32 s24, s20, 1")
    A("s_lshr_b32 s25, s20, 1")
    A("s_lshr_b32 s26, s19, 2")
    A("s_and_b32 s26, s26, 1")
    A("s_lshl_b32 s26, s26, 1")
    A("s_add_u32 s27, s24, s26")
    A("s_xor_b32 s28, s27, 2")
    A("s_lshl_b32 s29, s24, 1")
    A("s_add_u32 s30, s29, 1")
    A("s_cmp_ge_u32 s19, 8")
    A("s_cselect_b32 s27, s29, s27")
    A("s_cselect_b32 s28, s30, s28")
    A("s_mul_i32 s31, s17, 160")
    A("s_lshl_b32 s32, s19, 4")
    A("s_add_u32 s31, s31, s32")
    A("s_mul_i32 s31, s31, 896")
    A("s_lshl_b32 s25, s25, 7")
    A("s_add_u32 s31, s31, s25")
    A("s_lshl_b32 s27, s27, 5")
    A("s_lshl_b32 s28, s28, 5")
    A("s_add_u32 s27, s27, s31")
    A("s_add_u32 s28, s28, s31")
    A("v_mul_u32_u24 v4, 896, v4")
    A("v_lshrrev_b32 v5, 4, v2")
    A("v_lshl_add_u32 v4, v5, 3, v4")
    A("buffer_store_dwordx2 v[8:9], v4, s[8:11], s27 offen")
    A("buffer_store_dwordx2 v[10:11], v4, s[8:11], s28 offen")
    A("L_rend:")
    A("s_endpgm")
    return L


def dump_regs(regs, off):
    c = []
    n = len(regs)
    c.append(I("s_waitcnt vmcnt(0) lgkmcnt(0)", "W"))
    c.append(salu(f"s_lshl_b32 s{sT0}, s2, 2"))
    c.append(salu(f"s_add_u32 s{sT0}, s{sT0}, s{sW}"))
    c.append(salu(f"s_mul_i32 s{sT0}, s{sT0}, {n * 256}"))
    c.append(salu(f"s_add_u32 s{sT0}, s{sT0}, {off}"))
    c.append(valu(f"v_lshlrev_b32 v{vT0}, 4, v{vLANE}"))
    for k in range(0, n, 4):
        c.append(bstore(4, ("v", regs[k]), vT0, sWS, sT0, 0))
        c.append(salu(f"s_add_u32 s{sT0}, s{sT0}, 1024"))
    return c


def build():
    code = prologue()
    for cidx in range(2):
        g, adv = q_dma_tasks(cidx)
        emit_serial(code, g, adv)
    code += q_setup()
    code += stamp(1)
    code += q_phase()
    code.append(cut())
    code += stamp(2)
    code += q_finish()
    if DEBUG == "q":
        code += dump_regs(list(range(32, 128)), 64 << 20)
    code += stamp(3)
    code += main_phase()
    code.append(cut())
    code += stamp(4)
    code += attn_finish()
    if DEBUG == "o":
        code += dump_regs(list(range(32, 128)), 64 << 20)
    code += stamp(5)
    code += o_phase()
    code.append(cut())
    code += stamp(6)
    code = insert_lgkm_waits(code)
    code = resolve_vm_waits(code)
    code, nf = check_hazards(code)
    code = fold(code)
    names = []
    slow = []
    sinfo = {s["j"]: s for s in sites}
    for ins in code:
        if "@" in ins.text:
            ins.text = ins.text.replace("@", "")
        if ins.kind == "BR" and ins.tag and ins.tag[0] == "site":
            j = ins.tag[1]
            sp = slow_path(sinfo[j], str(j))
            sp.append(salu(f"s_mov_b32 s{sSite}, {len(names)}"))
            sp.append(I("s_branch L_slow_tail", "BR"))
            names.append(str(j))
            slow += check_hazards(sp)[0]
    slow += check_hazards(slow_tail(names))[0]
    fin = []
    if STAMP:
        fin.append(I("s_waitcnt vmcnt(0) lgkmcnt(0)", "W"))
        fin += [raw(f"s_memtime s[{sSt + 14}:{sSt + 15}]"), raw(f"s_memrealtime s[{sSt + 16}:{sSt + 17}]"), I("s_waitcnt lgkmcnt(0)", "W")]
        fin.append(salu(f"s_lshl_b32 s{sT0}, s2, 2"))
        fin.append(salu(f"s_add_u32 s{sT0}, s{sT0}, s{sW}"))
        fin.append(salu(f"s_lshl_b32 s{sT0}, s{sT0}, 6"))
        fin.append(salu(f"s_add_u32 s{sT0}, s{sT0}, {128 << 20}"))
        fin.append(valu(f"v_mov_b32 v{vT0}, 0"))
        for k in range(9):
            fin.append(valu(f"v_mov_b32 v{128 + k}, s{sSt + 2 * k}"))
        for k in range(0, 12, 4):
            fin.append(bstore(4, ("v", 128 + k), vT0, sWS, sT0, k * 4))
    NAME = "standalone__gqa_block_cached__near_ridge_kernel"
    hdr = open("standalone__gqa_block_cached__near_ridge.s.ref").read().split("; Override launch")[0]
    L = [hdr.rstrip()]
    A = L.append
    A(f"; @launch kernel={NAME} grid=(256,1,1) block=(256,1,1) lds=163840")
    A("; @launch kernel=gqa_reduce_kernel grid=(280,1,1) block=(256,1,1) lds=0")
    A('.amdgcn_target "amdgcn-amd-amdhsa--gfx950"')
    A(".text")
    A(f".globl {NAME}")
    A(".p2align 8")
    A(f".type {NAME},@function")
    A(f"{NAME}:")
    A("s_cmp_ge_u32 s2, 256")
    A("s_cbranch_scc1 L_end")
    L += [i.text for i in code if i.text]
    L += [i.text for i in fin]
    A("L_end:")
    A("s_endpgm")
    L += [i.text for i in slow]
    A(".globl gqa_reduce_kernel")
    A(".p2align 8")
    A(".type gqa_reduce_kernel,@function")
    L += reduce_kernel()
    A('.section .rodata,"a"')
    for nm, vg, ao in ((NAME, 512, 256), ("gqa_reduce_kernel", 208, 208)):
        A(".p2align 6")
        A(f".amdhsa_kernel {nm}")
        A(f"  .amdhsa_next_free_vgpr {vg}")
        A("  .amdhsa_next_free_sgpr 102")
        A(f"  .amdhsa_accum_offset {ao}")
        A("  .amdhsa_group_segment_fixed_size 0")
        A("  .amdhsa_kernarg_size 64")
        A("  .amdhsa_user_sgpr_count 2")
        A("  .amdhsa_user_sgpr_kernarg_segment_ptr 1")
        A("  .amdhsa_system_sgpr_workgroup_id_x 1")
        A(".end_amdhsa_kernel")
    return "\n".join(L) + "\n"


if __name__ == "__main__":
    out = [a for a in sys.argv[1:] if a.endswith(".s")]
    txt = build()
    open(out[0] if out else "k.s", "w").write(txt)
```

```python
import sys
from sched import *

DEBUG = None
STAMP = False
STF = ''
LDF = ''
for a in sys.argv[1:]:
    if a.startswith("debug="):
        DEBUG = a.split("=")[1]
    if a == "stamp":
        STAMP = True
    if a.startswith("stf="):
        STF = " " + a.split("=")[1].replace("+", " ")
    if a.startswith("ldf="):
        LDF = " " + a.split("=")[1].replace("+", " ")

sX, sK, sV, sWQ, sWO, sWS = 8, 12, 16, 20, 24, 28
sW, sXW, sHW, sB, sH, sSP = 32, 33, 34, 35, 36, 37
sKoff, sVoff, sDst, sDstLim, sDst0 = 38, 39, 40, 41, 42
sHalf, sC1, sC2, sD = 43, 44, 45, 46
sPat = 48
sT0, sT1, sT2, sT3 = 50, 51, 52, 53
sThr, sCnt, sSite = 54, 55, 56
sWoff, sXoff, sWdst, sXdst, sWrd, sXrd, sDX = 57, 58, 59, 60, 61, 62, 63
sOF0, sOF1, sOH = 57, 58, 59
sArg = 64
sSt = 80
sK2 = 47

vLANE, vK0, vK1, vV, vWt, vX, vST = 1, 2, 3, 4, 5, 6, 7
KA = [8, 9, 10, 11]
VA = [12, 13, 14, 15]
WO_ = [16, 17, 18, 19]
XAF, XAH = [20, 21], [22, 23]
LV = [24, 25, 26, 27]
LK0 = 28
vT0, vT1, vT2 = 29, 30, 31
QB = [32, 64, 96]
SB = 128
PB = 176
NEGM = [224, 228, 232]
ET = 236
TS = [[244, 245, 246], [247, 248, 249]]
LS = [250, 251, 252]
vC = 253
vF = [253, 254, 255]
OB = [0, 64, 128]
FB = 192
SLOT = 32768
XBASE = 3 * SLOT
XSL = 20480
PART_WG = 143360
STATS_OFF = 40 << 20
QSCALE = 0x3DB8AA3B


def Sreg(j, kt, blk):
    return SB + ((2 * j + kt) % 4) * 12 + blk * 4


def Preg(j, blk):
    return PB + (j % 4) * 12 + blk * 4


class FragAlloc:
    def __init__(self):
        self.n = 0
        self.lastuse = {}

    def get(self):
        b = self.n % 16
        self.n += 1
        return b


def wait_bar(vm_keys, lg_key):
    return [I("s_waitcnt <resolve>", "W", tag=("resolve", vm_keys, lg_key)), I("s_barrier", "B")]


def stamp(k):
    if not STAMP:
        return []
    return [raw(f"s_memtime s[{sSt + 2 * k}:{sSt + 2 * k + 1}]")]


def prologue():
    c = []
    S = lambda t: c.append(salu(t))
    V = lambda t: c.append(valu(t))
    c.append(raw(f"s_load_dwordx16 s[{sArg}:{sArg + 15}], s[0:1], 0"))
    c += stamp(0)
    if STAMP:
        c.append(raw("s_memrealtime s[98:99]"))
    V(f"v_lshrrev_b32 v{vT0}, 6, v0")
    V(f"v_and_b32 v{vLANE}, 63, v0")
    V(f"v_readfirstlane_b32 s{sW}, v{vT0}")
    S(f"s_and_b32 s{sT0}, s2, 7")
    S(f"s_lshr_b32 s{sT1}, s2, 3")
    S(f"s_lshr_b32 s{sB}, s{sT1}, 2")
    S(f"s_and_b32 s{sH}, s{sT1}, 1")
    S(f"s_lshl_b32 s{sT2}, s{sT0}, 1")
    S(f"s_add_u32 s{sH}, s{sH}, s{sT2}")
    S(f"s_lshr_b32 s{sSP}, s{sT1}, 1")
    S(f"s_and_b32 s{sSP}, s{sSP}, 1")
    S(f"s_lshr_b32 s{sXW}, s{sW}, 1")
    S(f"s_and_b32 s{sHW}, s{sW}, 1")
    S(f"s_lshl_b32 s{sKoff}, s{sB}, 3")
    S(f"s_add_u32 s{sKoff}, s{sKoff}, s{sT0}")
    S(f"s_lshl_b32 s{sKoff}, s{sKoff}, 20")
    S(f"s_lshl_b32 s{sT2}, s{sSP}, 19")
    S(f"s_add_u32 s{sKoff}, s{sKoff}, s{sT2}")
    S(f"s_mov_b32 s{sVoff}, s{sKoff}")
    V(f"v_lshrrev_b32 v{vT0}, 3, v{vLANE}")
    V(f"v_and_b32 v{vT1}, 7, v{vLANE}")
    V(f"v_lshrrev_b32 v{vT2}, 1, v{vT0}")
    V(f"v_xor_b32 v{vK0}, v{vT1}, v{vT2}")
    V(f"v_lshlrev_b32 v{vK0}, 4, v{vK0}")
    V(f"v_lshlrev_b32 v{vV}, 1, v{vT2}")
    V(f"v_xor_b32 v{vV}, v{vT1}, v{vV}")
    V(f"v_lshlrev_b32 v{vV}, 4, v{vV}")
    S(f"s_lshl_b32 s{sT2}, s{sHW}, 6")
    V(f"v_xor_b32 v{vX}, s{sT2}, v{vK0}")
    V(f"v_mul_u32_u24 v{vST}, 896, v{vT0}")
    V(f"v_add_u32 v{vX}, v{vX}, v{vST}")
    V(f"v_and_b32 v{vWt}, 3, v{vT0}")
    V(f"v_lshrrev_b32 v{vST}, 2, v{vT0}")
    V(f"v_lshl_add_u32 v{vWt}, v{vST}, 3, v{vWt}")
    V(f"v_lshlrev_b32 v{vWt}, 13, v{vWt}")
    V(f"v_add_u32 v{vWt}, v{vWt}, v{vV}")
    S(f"s_lshl_b32 s{sT3}, s{sW}, 7")
    V(f"v_add_u32 v{vWt}, s{sT3}, v{vWt}")
    V(f"v_and_b32 v{vST}, 1, v{vT0}")
    V(f"v_lshl_add_u32 v{vST}, v{vT2}, 3, v{vST}")
    V(f"v_lshlrev_b32 v{vST}, 9, v{vST}")
    V(f"v_add_u32 v{vST}, s{sT3}, v{vST}")
    V(f"v_add_u32 v{vK0}, v{vK0}, v{vST}")
    V(f"v_add_u32 v{vV}, v{vV}, v{vST}")
    V(f"v_xor_b32 v{vK1}, 64, v{vK0}")
    c.append(I("s_waitcnt lgkmcnt(0)", "W"))
    for srd, arg, size in ((sX, 0, 8 * 160 * 448 * 2), (sK, 2, 0x4000000), (sV, 4, 0x4000000),
                           (sWQ, 6, 448 * 4096 * 2), (sWO, 8, 448 * 4096 * 2), (sWS, 14, 0x10000000)):
        S(f"s_mov_b32 s{srd}, s{sArg + arg}")
        S(f"s_mov_b32 s{srd + 1}, s{sArg + arg + 1}")
        S(f"s_mov_b32 s{srd + 2}, {size}")
        S(f"s_mov_b32 s{srd + 3}, 0x20000")
    S(f"s_lshl_b32 s{sWoff}, s{sH}, 9")
    S(f"s_mul_i32 s{sXoff}, s{sB}, {160 * 896}")
    S(f"s_mul_i32 s{sT2}, s{sW}, {8 * 896}")
    S(f"s_add_u32 s{sXoff}, s{sXoff}, s{sT2}")
    S(f"s_lshl_b32 s{sDst0}, s{sW}, 12")
    S(f"s_add_u32 s{sWdst}, s{sDst0}, {SLOT}")
    S(f"s_lshl_b32 s{sXdst}, s{sW}, 10")
    S(f"s_add_u32 s{sXdst}, s{sXdst}, {XBASE}")
    return c


def q_dma_tasks(cidx):
    g = []
    tag = ("Q", cidx)
    for x in range(2):
        for t in range(4):
            rows = 32 * x + 16 * (t & 1) + 4 * (t >> 1)
            pre = []
            if t == 0:
                pre.append(salu(f"s_add_u32 m0, s{sWdst}, {x * 16384}"))
            pre.append(salu(f"s_add_u32 s{sT0}, s{sWoff}, {rows * 8192 - t * 1024}"))
            g.append((pre, dma(vWt, sWQ, sT0, t * 1024, tag=tag)))
    for k in range(5):
        pre = [salu(f"s_add_u32 m0, s{sXdst}, {k * 4096}"), salu(f"s_add_u32 s{sT0}, s{sXoff}, {k * 32 * 896}")]
        g.append((pre, dma(vX, sX, sT0, 0, tag=tag)))
    adv = [[salu(f"s_add_u32 s{sWoff}, s{sWoff}, {64 * 8192}")], [salu(f"s_add_u32 s{sXoff}, s{sXoff}, 128")],
           [salu(f"s_cmp_lt_u32 s{sWdst}, {SLOT}"), salu(f"s_cselect_b32 s{sT1}, {3 * SLOT}, 0"),
            salu(f"s_add_u32 s{sWdst}, s{sWdst}, s{sT1}"), salu(f"s_sub_u32 s{sWdst}, s{sWdst}, {SLOT}")],
           [salu(f"s_cmp_ge_u32 s{sXdst}, {XBASE + 2 * XSL}"), salu(f"s_cselect_b32 s{sT1}, {3 * XSL}, 0"),
            salu(f"s_sub_u32 s{sXdst}, s{sXdst}, s{sT1}"), salu(f"s_add_u32 s{sXdst}, s{sXdst}, {XSL}")]]
    return g, adv


def kv_dma_tasks(kind, tag):
    g = []
    srd, off = (sK, sKoff) if kind == "K" else (sV, sVoff)
    for x in range(2):
        for t in range(4):
            pre = []
            if t == 0:
                pre.append(salu(f"s_add_u32 m0, s{sDst}, {x * 16384}") if x else salu(f"s_mov_b32 m0, s{sDst}"))
                if x:
                    pre.append(salu(f"s_add_u32 s{off}, s{off}, 16384"))
            vo = (vK1 if t & 1 else vK0) if kind == "K" else vV
            g.append((pre, dma(vo, srd, off, t * 1024, nt=True, tag=tag)))
    adv = [[salu(f"s_add_u32 s{off}, s{off}, 16384")], dst_adv()]
    return g, adv


def dst_adv():
    return [salu(f"s_add_u32 s{sDst}, s{sDst}, {SLOT}"), salu(f"s_cmp_eq_u32 s{sDst}, s{sDstLim}"),
            salu(f"s_cselect_b32 s{sDst}, s{sDst0}, s{sDst}")]


def wo_dma_tasks(tag):
    g = []
    for kk in range(2):
        for t in range(4):
            rows = 32 * kk + 16 * (t >> 1) + 8 * (t & 1)
            pre = []
            if t == 0:
                pre.append(salu(f"s_add_u32 s{sT1}, s{sDst}, s{sDst0}"))
                pre.append(salu(f"s_add_u32 m0, s{sT1}, {kk * 4096}"))
            pre.append(salu(f"s_add_u32 s{sT0}, s{sK2}, {rows * 896 - t * 1024}"))
            g.append((pre, dma(vWt, sWO, sT0, t * 1024, tag=tag)))
    adv = [[salu(f"s_add_u32 s{sK2}, s{sK2}, 128")]]
    return g, adv


def add_dma(tasks, g, adv, rel_task, rel, dl, spread=4):
    prev = rel_task
    k = 0
    for pre, d in g:
        for p in pre:
            t = Task(p, "S", rel=rel, dl=dl, deps=[(prev, 0)] if prev else [], name="dmapre")
            tasks.append(t)
            prev = t
        t = Task(d, "D", rel=rel + k * spread, dl=dl, deps=[(prev, 1 if prev.cls == "S" else 0)] if prev else [], name="dma")
        tasks.append(t)
        prev = t
        k += 1
    for a in adv:
        t = Task(a, "S", rel=rel, dl=dl, deps=[(prev, 0)], name="dmaadv")
        tasks.append(t)
        prev = t
    return prev


def emit_serial(c, g, adv):
    for pre, d in g:
        c += pre
        c.append(d)
    for a in adv:
        c += a


DIST = 15
MLAT = 5


def q_setup():
    c = []
    S = lambda t: c.append(salu(t))
    V = lambda t: c.append(valu(t))
    V(f"v_and_b32 v{vT0}, 15, v{vLANE}")
    V(f"v_lshrrev_b32 v{vT1}, 4, v{vLANE}")
    V(f"v_lshrrev_b32 v{vT2}, 1, v{vT0}")
    V(f"v_xor_b32 v{LK0}, v{vT1}, v{vT2}")
    V(f"v_lshlrev_b32 v{LK0}, 4, v{LK0}")
    V(f"v_lshl_add_u32 v{LK0}, v{vT0}, 7, v{LK0}")
    V(f"v_lshrrev_b32 v{vT0}, 2, v{vLANE}")
    V(f"v_and_b32 v{vT1}, 6, v{vT0}")
    V(f"v_bfe_u32 v{vT2}, v{vLANE}, 1, 1")
    V(f"v_xor_b32 v{vT1}, v{vT1}, v{vT2}")
    V(f"v_lshlrev_b32 v{vT1}, 4, v{vT1}")
    V(f"v_lshl_add_u32 v{vT1}, v{vT0}, 7, v{vT1}")
    V(f"v_and_b32 v{vT2}, 1, v{vLANE}")
    V(f"v_lshl_add_u32 v{LV[0]}, v{vT2}, 3, v{vT1}")
    for k in range(1, 4):
        V(f"v_xor_b32 v{LV[k]}, {32 * k}, v{LV[0]}")
    S(f"s_lshl_b32 s{sT0}, s{sXW}, 13")
    S(f"s_add_u32 s{sT1}, s{sT0}, {SLOT}")
    S(f"s_sub_u32 s{sT2}, {SLOT + 8192}, s{sT0}")
    for k in range(4):
        V(f"v_add_u32 v{VA[k]}, s{sT1}, v{LV[k]}")
        V(f"v_add_u32 v{WO_[k]}, s{sT2}, v{LV[k]}")
    S(f"s_lshl_b32 s{sT0}, s{sW}, 12")
    S(f"s_add_u32 s{sT0}, s{sT0}, {XBASE}")
    S(f"s_lshl_b32 s{sT1}, s{sHW}, 11")
    S(f"s_add_u32 s{sT1}, s{sT1}, {XBASE + 128 * 128}")
    V(f"v_add_u32 v{XAF[0]}, s{sT0}, v{LK0}")
    V(f"v_xor_b32 v{XAF[1]}, 64, v{XAF[0]}")
    V(f"v_add_u32 v{XAH[0]}, s{sT1}, v{LK0}")
    V(f"v_xor_b32 v{XAH[1]}, 64, v{XAH[0]}")
    S(f"s_mov_b32 s{sWrd}, {SLOT}")
    S(f"s_mov_b32 s{sXrd}, 0")
    S(f"s_add_u32 s{sDstLim}, s{sDst0}, {5 * SLOT}")
    S(f"s_mov_b32 s{sDst}, s{sDst0}")
    S(f"s_lshl_b32 s{sHalf}, s{sXW}, 15")
    S(f"s_sub_u32 s{sHalf}, s{sHalf}, 16384")
    S(f"s_sub_u32 s{sC1}, {2 * SLOT}, s{sHalf}")
    S(f"s_sub_u32 s{sC2}, {(-3 * SLOT) & 0xffffffff}, s{sHalf}")
    S(f"s_mov_b32 s{sThr}, 0x53800000")
    for r in range(96, 256):
        V(f"v_mov_b32 v{r}, 0")
    for r in range(192):
        c.append(I(f"v_accvgpr_write_b32 a{r}, 0", "V", [], [("a", r)]))
    return c


def qacc(blk, p):
    return (128 + blk * 64 + p * 4) if blk < 2 else (96 + p * 4)


def q_phase():
    mf, tasks = [], []
    fa = FragAlloc()
    marks = []
    XF = lambda ks, blk: 32 + (ks * 3 + blk) * 4
    bar = {}
    lastread = {}
    upd = {}
    xlast = {}
    prev_dma = None
    reads_by_addr = {}
    for cidx in range(7):
        start = len(mf)
        marks.append(start)
        if cidx == 0:
            bar[0] = Task(wait_bar([("Q", 0)], None), "BAR", rel=-1, dl=-1, name="bar0")
        else:
            bar[cidx] = Task(wait_bar([("Q", cidx)], ("QR", cidx - 1)), "BAR", deps=[(lastread[cidx - 1], 3)], name=f"bar{cidx}")
        tasks.append(bar[cidx])
        aup = {}
        if cidx > 0:
            sd = Task([salu(f"s_cmp_eq_u32 s{sWrd}, 0"), salu(f"s_cselect_b32 s{sD}, {2 * SLOT}, {(-SLOT) & 0xffffffff}") if False else
                       salu(f"s_cselect_b32 s{sD}, {3 * SLOT}, 0"), salu(f"s_sub_u32 s{sD}, s{sD}, {SLOT}"),
                       salu(f"s_add_u32 s{sWrd}, s{sWrd}, s{sD}")], "S", rel=start - 60, name="sdW")
            sx = Task([salu(f"s_cmp_eq_u32 s{sXrd}, {2 * XSL}"), salu(f"s_cselect_b32 s{sDX}, {3 * XSL}, 0"),
                       salu(f"s_sub_u32 s{sDX}, {XSL}, s{sDX}"), salu(f"s_add_u32 s{sXrd}, s{sXrd}, s{sDX}")], "S",
                      rel=start - 60, name="sdX")
            for t in (sd, sx):
                for r, u in upd.items():
                    t.deps.append((u, 0))
            tasks += [sd, sx]
            for r in VA + WO_:
                aup[r] = Task(valu(f"v_add_u32 v{r}, s{sD}, v{r}"), "V", deps=[(sd, 1), (reads_by_addr[r], 0)], name="aup")
            for r in XAF + XAH:
                aup[r] = Task(valu(f"v_add_u32 v{r}, s{sDX}, v{r}"), "V", deps=[(sx, 1), (reads_by_addr[r], 0)], name="aup")
            tasks += list(aup.values())
            upd = aup

        def rd(ins, consumer, extra=()):
            ins.tag = ("QR", cidx)
            a = ins.rd[0][1]
            deps = [(bar[cidx], 0)] + list(extra)
            if a in aup:
                deps.append((aup[a], 1))
            first = cidx == 0 and consumer < DIST
            t = Task(ins, "L", rel=-1 if first else consumer - DIST, dl=-1 if first else consumer - 5, deps=deps, name="rd")
            tasks.append(t)
            lastread[cidx] = t if cidx not in lastread or t.dl >= lastread[cidx].dl else lastread[cidx]
            if a not in reads_by_addr or True:
                pr = reads_by_addr.get(a)
                if pr is not None and pr.ins[0].tag == ins.tag:
                    t.deps.append((pr, 0))
                reads_by_addr[a] = t
            return t

        for ks in range(2):
            base = len(mf)
            for blk in range(3):
                a = (XAH if blk == 2 else XAF)[ks]
                t = rd(ds_r128(("v", XF(ks, blk)), a, 2048 if blk == 1 else 0), base)
                if (ks, blk) in xlast:
                    t.rel = max(t.rel, xlast[(ks, blk)])
            for tt in range(8):
                for own in (1, 0):
                    f = FB + fa.get() * 4
                    a = (VA if own else WO_)[tt & 3]
                    off = ks * 16384 + (tt >> 2) * 4096
                    c0 = len(mf)
                    rd(ds_rtr(("a", f), a, off), c0)
                    rd(ds_rtr(("a", f + 2), a, off + 2048), c0)
                    p = tt if own else 8 + tt
                    for blk in ((0, 1, 2) if own else (0, 1)):
                        d = ("v", qacc(blk, p))
                        mf.append(mfma(d, ("a", f), ("v", XF(ks, blk)), d))
                        xlast[(ks, blk)] = len(mf) - 1
        if cidx + 2 <= 6:
            g, adv = q_dma_tasks(cidx + 2)
        elif cidx == 5:
            g, adv = kv_dma_tasks("K", ("T", -1))
            adv = adv + [dst_adv()]
        else:
            g, adv = kv_dma_tasks("K", ("T", 1))
        first = Task([], "S", rel=start, deps=[(bar[cidx], 0)] + ([(prev_dma, 0)] if prev_dma else []), name="dmastart")
        tasks.append(first)
        prev_dma = add_dma(tasks, g, adv, first, start, start + 64, spread=4)
    gaps = schedule(mf, tasks, verbose=True)
    for k, m in enumerate(marks):
        mf[m].mark = ("Q", k)
    return linearize(mf, gaps)


def q_finish():
    c = []
    S = lambda t: c.append(salu(t))
    V = lambda t: c.append(valu(t))
    S(f"s_mov_b32 s{sT0}, {QSCALE:#x}")
    c.append(nop(7))

    def conv(blk, k):
        s = qacc(blk, 2 * k)
        d = QB[blk] + 4 * k
        for r in range(8):
            V(f"v_mul_f32 v{s + r}, s{sT0}, v{s + r}")
        for r in range(4):
            V(f"v_cvt_pk_bf16_f32 v{d + r}, v{s + 2 * r}, v{s + 2 * r + 1}")
        V(f"v_permlane32_swap_b32 v{d}, v{d + 2}")
        V(f"v_permlane32_swap_b32 v{d + 1}, v{d + 3}")
        V(f"v_permlane16_swap_b32 v{d}, v{d + 2}")
        V(f"v_permlane16_swap_b32 v{d + 1}, v{d + 3}")

    EX = XBASE + 2 * XSL
    for k in range(4):
        conv(2, k)
    S(f"s_lshl_b32 s{sT1}, s{sW}, 12")
    S(f"s_add_u32 s{sT1}, s{sT1}, {EX}")
    V(f"v_lshlrev_b32 v{vT0}, 4, v{vLANE}")
    V(f"v_add_u32 v{vT1}, s{sT1}, v{vT0}")
    V(f"v_xor_b32 v{vT2}, 8192, v{vT1}") if (EX & 8192) == 0 else None
    for k in range(4):
        c.append(ds_w128(vT1, ("v", QB[2] + 4 * k), k * 1024))
    S(f"s_xor_b32 s{sT2}, s{sW}, 2")
    S(f"s_lshl_b32 s{sT2}, s{sT2}, 12")
    S(f"s_add_u32 s{sT2}, s{sT2}, {EX}")
    V(f"v_add_u32 v{vT2}, s{sT2}, v{vT0}")
    for blk in range(2):
        for k in range(8):
            conv(blk, k)
    S(f"s_lshl_b32 s{sT0}, s{sXW}, 14")
    S(f"s_sub_u32 s{sT0}, 16384, s{sT0}")
    S(f"s_lshl_b32 s{sT1}, s{sXW}, 13")
    S(f"s_add_u32 s{sT2}, s{sT0}, s{sT1}")
    S(f"s_sub_u32 s{sT3}, s{sT0}, s{sT1}")
    S(f"s_add_u32 s{sT3}, s{sT3}, 8192")
    V(f"v_add_u32 v{KA[0]}, s{sT2}, v{LK0}")
    V(f"v_add_u32 v{KA[2]}, s{sT3}, v{LK0}")
    V(f"v_xor_b32 v{KA[1]}, 64, v{KA[0]}")
    V(f"v_xor_b32 v{KA[3]}, 64, v{KA[2]}")
    S(f"s_add_u32 s{sT0}, s{sT0}, {3 * SLOT}")
    for k in range(4):
        V(f"v_add_u32 v{VA[k]}, s{sT0}, v{LV[k]}")
    for r in range(NEGM[0], NEGM[0] + 12):
        V(f"v_mov_b32 v{r}, 0")
    for r in LS:
        V(f"v_mov_b32 v{r}, 0")
    pat = 0
    for j in range(0, 40):
        n = j + 1
        if n % 2 == 0:
            old, new = ((n - 2) % 5), (n % 5)
        else:
            old, new = ((n - 2) % 5), (n % 5)
        if new < old:
            pat |= 1 << j
    S(f"s_mov_b32 s{sPat}, {pat & 0xffffffff:#x}")
    S(f"s_mov_b32 s{sPat + 1}, {pat >> 32:#x}")
    V(f"v_lshrrev_b32 v{vT0}, 3, v{vLANE}")
    V(f"v_mul_u32_u24 v{vT0}, 896, v{vT0}")
    V(f"v_and_b32 v{vWt}, 0x70, v{vV}")
    V(f"v_add_u32 v{vWt}, v{vWt}, v{vT0}")
    S(f"s_lshl_b32 s{sK2}, s{sH}, 2")
    S(f"s_add_u32 s{sK2}, s{sK2}, s{sW}")
    S(f"s_mul_i32 s{sK2}, s{sK2}, {64 * 896}")
    c.append(I("s_waitcnt lgkmcnt(0)", "W"))
    c += wait_bar([("T", -1)], None)
    for k in range(4):
        i = ds_r128(("v", QB[2] + 16 + 4 * k), vT2, k * 1024)
        i.tag = ("EX", 0)
        c.append(i)
    return c


sites = []


def rowmax_tasks(tasks, src, t, u, dep, name):
    seq = [valu(f"v_max3_f32 v{t}, v{src}, v{src + 1}, v{src + 2}"), valu(f"v_max_f32 v{t}, v{t}, v{src + 3}"),
           valu(f"v_mov_b32 v{u}, v{t}"), valu(f"v_permlane32_swap_b32 v{t}, v{u}"), valu(f"v_max_f32 v{t}, v{t}, v{u}"),
           valu(f"v_mov_b32 v{u}, v{t}"), valu(f"v_permlane16_swap_b32 v{t}, v{u}"), valu(f"v_max_f32 v{t}, v{t}, v{u}"),
           valu(f"v_ceil_f32 v{t}, v{t}")]
    prev = dep
    for i in seq:
        tk = Task(i, "V", rel=dep[1] if isinstance(dep, tuple) else 0, deps=[] if isinstance(prev, tuple) else [(prev, 1 if i.kind == "P" else 0)], name=name)
        tasks.append(tk)
        prev = tk
    return prev


def main_phase():
    NS = 35
    mf, tasks = [], []
    fa = FragAlloc()
    start = {}
    chain_first, chain_last = {}, {}
    plan = []
    for j in range(NS):
        start[j] = len(mf)
        hasqk, haspv = j <= 31, j >= 3
        for gam in range(16):
            kt, ks = gam >> 3, gam & 7
            if hasqk:
                f = FB + fa.get() * 4
                plan.append(("K", j, gam, f, len(mf)))
                for blk in ((0, 1, 2) if j & 1 else (0, 1)):
                    d = ("v", Sreg(j, kt, blk))
                    mf.append(mfma(d, ("a", f), ("v", QB[blk] + 4 * ks), ("v", NEGM[blk]) if ks == 0 else d))
                    chain_first.setdefault((j, kt), len(mf) - 1)
                    chain_last[(j, kt, blk)] = len(mf) - 1
            if haspv:
                f = FB + fa.get() * 4
                plan.append(("V", j, gam, f, len(mf)))
                for blk in ((0, 1, 2) if (j & 1) == 0 else (0, 1)):
                    d = ("a", OB[blk] + 4 * gam)
                    mf.append(mfma(d, ("a", f), ("v", Preg(j - 3, blk)), d))
    start[NS] = len(mf)
    start[NS + 1] = len(mf)
    bar, aup, lastread, lastaddr = {}, {}, {}, {}
    prev_sd = None
    prev_aups = []

    def tile_of(kind, j):
        return ("K", j >> 1) if kind == "K" else ("V", (j - 3) >> 1)

    done_steps = set()

    def enter(j):
        nonlocal prev_sd, prev_aups
        done_steps.add(j)
        sw = "K" if j % 2 == 0 else "V"
        old = tile_of(sw, j - 1)
        newvalid = (sw == "K" and j <= 30) or (sw == "V" and 3 <= j <= 33)
        vm = [("T", j - 1)] if newvalid else []
        deps = []
        lg = None
        if old in lastread:
            deps.append((lastread[old], 3))
            lg = old
        if j == 1:
            lg = ("EX", 0)
        bar[j] = Task(wait_bar(vm, lg), "BAR", rel=start[j] - DIST + 4, dl=start[j] - 8, deps=deps + ([(bar[j - 1], 1)] if j - 1 in bar else []), name=f"bar{j}")
        tasks.append(bar[j])
        sd = Task([salu(f"s_bitcmp1_b64 s[{sPat}:{sPat + 1}], 0"), salu(f"s_cselect_b32 s{sD}, s{sC2}, s{sC1}"),
                   salu(f"s_lshr_b64 s[{sPat}:{sPat + 1}], s[{sPat}:{sPat + 1}], 1")], "S", rel=start[j - 1] + 8,
                  deps=[(t, 0) for t in prev_aups] + ([(prev_sd, 0)] if prev_sd else []), name="sd")
        sd.ins[0].wr = [("scc", 0)]
        tasks.append(sd)
        prev_sd = sd
        prev_aups = []
        for kind, regs in (("K", KA), ("V", VA)):
            active = (kind == "K" and 1 <= j <= 31) or (kind == "V" and 4 <= j <= 34)
            if not active:
                continue
            for r in regs:
                sreg = sD if kind == sw else sHalf
                t = Task(valu(f"v_add_u32 v{r}, s{sreg}, v{r}"), "V", deps=[(sd, 1), (lastaddr[r], 0)], name="aup")
                aup[(j, r)] = t
                tasks.append(t)
                prev_aups.append(t)

    for kind, j, gam, f, c0 in plan:
        if j >= 1 and j not in done_steps:
            enter(j)
        kt, ks = gam >> 3, gam & 7
        if kind == "K":
            a = KA[(ks >> 2) * 2 + (ks & 1)]
            ins = [ds_r128(("a", f), a, ((ks >> 1) & 1) * 4096 + kt * 2048)]
        else:
            a = VA[gam & 3]
            ins = [ds_rtr(("a", f), a, (gam >> 2) * 4096), ds_rtr(("a", f + 2), a, (gam >> 2) * 4096 + 2048)]
        tl = tile_of(kind, j)
        for i in ins:
            i.tag = tl
            deps = []
            swj = j if (kind == "K") == (j % 2 == 0) else j - 1
            if swj in bar:
                deps.append((bar[swj], 0))
            if (j, a) in aup:
                deps.append((aup[(j, a)], 1))
            if a in lastaddr:
                deps.append((lastaddr[a], 0))
            first = c0 < DIST
            t = Task(i, "L", rel=-1 if first else c0 - DIST, dl=-1 if first else c0 - 5, deps=deps, name=f"rd{kind}{j}.{gam}")
            tasks.append(t)
            lastread[tl] = t
            lastaddr[a] = t
    prev = None
    for j in range(NS):
        n = j + 2
        if n <= 32 and n != 31:
            g, adv = kv_dma_tasks("K" if n & 1 else "V", ("T", n))
        elif n in (31, 33):
            g, adv = wo_dma_tasks(("WO", (n - 31) // 2))
            adv = adv + [dst_adv()]
        else:
            continue
        first = Task([], "S", rel=start[j] - 6, deps=([(bar[j], 0)] if j in bar else []) + ([(prev, 0)] if prev else []), name="dmastart")
        tasks.append(first)
        L = start[j + 1] - start[j]
        prev = add_dma(tasks, g, adv, first, start[j] - 6, start[j + 1] - DIST, spread=max(1, (L - DIST) // 10))
    ecount = 0
    econs = {}
    prev_branch = None
    prev_ladd = {}
    for j in range(32):
        blks = (0, 1, 2) if j & 1 else (0, 1)
        dl_chk = chain_first[(j + 2, 0)] - 1 if j + 2 <= 31 else start[j + 3] - 4
        alladds = []
        tsdep = {}
        fix = {}
        for blk in blks:
            if (j == 0 and blk < 2) or (j == 1 and blk == 2):
                t, u = ET + 2 * (blk & 1), ET + 2 * (blk & 1) + 1
                base = Task([], "V", rel=chain_last[(j, 0, blk)] + MLAT, deps=[(prev_branch, 0)] if prev_branch else [], name="mx0")
                tasks.append(base)
                last = rowmax_tasks(tasks, Sreg(j, 0, blk), t, u, base, "mx")
                nm = []
                for r in range(4):
                    x = Task(valu(f"v_sub_f32 v{NEGM[blk] + r}, 0, v{t}"), "V", rel=chain_first[(j, 1)] + 6,
                             dl=chain_first[(j + (1 if blk < 2 else 2), 0)] - 3, deps=[(last, 0)], name="negm")
                    tasks.append(x)
                    nm.append(x)
                for kt in range(2):
                    for r in range(4):
                        s = Sreg(j, kt, blk) + r
                        x = Task(valu(f"v_sub_f32 v{s}, v{s}, v{t}"), "V", rel=chain_last[(j, kt, blk)] + MLAT, deps=[(last, 0)], name="sfix")
                        tasks.append(x)
                        fix[(kt, blk, r)] = x
                        econs.setdefault(t - ET, []).append(x)
                econs.setdefault(t - ET, []).extend(nm)
                econs.setdefault(u - ET, []).append(last)
        for kt in range(2):
            for blk in blks:
                ts = TS[j & 1][blk]
                for pr in range(2):
                    es = []
                    for r in (2 * pr, 2 * pr + 1):
                        e = ecount % 8
                        ecount += 1
                        deps = [(x, 0) for x in econs.get(e, [])]
                        if prev_branch:
                            deps.append((prev_branch, 0))
                        if (kt, blk, r) in fix:
                            deps.append((fix[(kt, blk, r)], 1))
                        if fix:
                            deps += [(x, 0) for x in fix.values() if False]
                        t = Task(valu(f"v_exp_f32 v{ET + e}, v{Sreg(j, kt, blk) + r}"), "E", rel=chain_last[(j, kt, blk)] + MLAT,
                                 deps=deps, name=f"exp{j}.{kt}")
                        tasks.append(t)
                        econs[e] = []
                        es.append((e, t))
                    (e0, t0), (e1, t1) = es
                    cv = Task(valu(f"v_cvt_pk_bf16_f32 v{Preg(j, blk) + 2 * kt + pr}, v{ET + e0}, v{ET + e1}"), "V",
                              deps=[(t0, 1), (t1, 1)], name="cvt")
                    tasks.append(cv)
                    alladds.append(cv)
                    if blk not in tsdep:
                        ad = Task(valu(f"v_add_f32 v{ts}, v{ET + e0}, v{ET + e1}"), "V",
                                  deps=[(t0, 1), (t1, 1)] + ([(prev_ladd[(j & 1, blk)], 0)] if (j & 1, blk) in prev_ladd else []), name="add")
                        tasks.append(ad)
                        econs[e0] += [cv, ad]
                        econs[e1] += [cv, ad]
                        tsdep[blk] = ad
                    else:
                        a0 = Task(valu(f"v_add_f32 v{ts}, v{ET + e0}, v{ts}"), "V", deps=[(t0, 1), (tsdep[blk], 1)], name="add")
                        a1 = Task(valu(f"v_add_f32 v{ts}, v{ET + e1}, v{ts}"), "V", deps=[(t1, 1), (a0, 1)], name="add")
                        tasks += [a0, a1]
                        econs[e0] += [cv, a0]
                        econs[e1] += [cv, a1]
                        tsdep[blk] = a1
        tsr = [TS[j & 1][b] for b in blks]
        mx = Task(valu(f"v_max3_f32 v{vC}, v{tsr[0]}, v{tsr[1]}, v{tsr[2]}") if len(tsr) == 3 else valu(f"v_max_f32 v{vC}, v{tsr[0]}, v{tsr[1]}"),
                  "V", deps=[(t, 1) for t in tsdep.values()], name="mx")
        cmp_ = Task(valu(f"v_cmp_lt_f32 vcc, s{sThr}, v{vC}"), "V", deps=[(mx, 1)], name="cmp")
        bri = I(f"s_cbranch_vccnz L_slow_@{j}", "BR", [("vcc", 0)], [], tag=("site", j))
        lab = I(f"L_ret_@{j}:", "LAB", tag=("ret", j))
        br = Task([bri, lab], "S", dl=dl_chk, deps=[(cmp_, 1)] + [(t, 0) for t in alladds], name=f"br{j}")
        tasks += [mx, cmp_, br]
        for blk in blks:
            la = Task(valu(f"v_add_f32 v{LS[blk]}, v{TS[j & 1][blk]}, v{LS[blk]}"), "V", deps=[(br, 0)], dl=dl_chk + 12, name="ladd")
            tasks.append(la)
            prev_ladd[(j & 1, blk)] = la
        if prev_branch is not None:
            pass
        br.deps += [(t, 0) for k, t in prev_ladd.items() if t.deps[0][0] is not br]
        prev_branch = br
        sites.append(dict(j=j, task=br, blks=blks))
    gaps = schedule(mf, tasks, verbose=True)
    for s in sites:
        j, g = s["j"], s["task"].gap
        s["later"] = [(jj, kt) for (jj, kt), idx in chain_first.items() if jj > j and idx <= g + 0]
        s["later_blk"] = {}
        for (jj, kt) in s["later"]:
            for blk in ((0, 1, 2) if jj & 1 else (0, 1)):
                if chain_first[(jj, kt)] + blk <= g:
                    s["later_blk"].setdefault(blk, []).append(Sreg(jj, kt, blk))
        s["pend"] = [jj for jj in range(max(0, j - 3), j) if start[jj + 4] - 1 > g]
    for j in range(NS):
        mf[start[j]].mark = ("M", j)
    return linearize(mf, gaps)


def slow_path(s, name):
    c = []
    V = lambda t: c.append(valu(t))
    j = s["j"]
    c.append(I(f"L_slow_{name}:", "LAB"))
    c.append(nop(15))
    t, u, x, y = ET, ET + 1, ET + 2, ET + 3
    for blk in range(3):
        if blk not in s["blks"]:
            V(f"v_mov_b32 v{vF[blk]}, 1.0")
            continue
        s0, s1 = Sreg(j, 0, blk), Sreg(j, 1, blk)
        V(f"v_max3_f32 v{t}, v{s0}, v{s0 + 1}, v{s0 + 2}")
        V(f"v_max3_f32 v{t}, v{t}, v{s0 + 3}, v{s1}")
        V(f"v_max3_f32 v{t}, v{t}, v{s1 + 1}, v{s1 + 2}")
        V(f"v_max_f32 v{t}, v{t}, v{s1 + 3}")
        for sw in ("v_permlane32_swap_b32", "v_permlane16_swap_b32"):
            V(f"v_mov_b32 v{u}, v{t}")
            V(f"{sw} v{t}, v{u}")
            V(f"v_max_f32 v{t}, v{t}, v{u}")
        V(f"v_ceil_f32 v{t}, v{t}")
        V(f"v_max_f32 v{t}, 0, v{t}")
        V(f"v_exp_f32 v{vF[blk]}, -v{t}")
        for base in [NEGM[blk], s0, s1] + s["later_blk"].get(blk, []):
            for r in range(4):
                V(f"v_sub_f32 v{base + r}, v{base + r}, v{t}")
        for jj in s["pend"]:
            if blk == 2 and not (jj & 1):
                continue
            for r in range(4):
                p = Preg(jj, blk) + r
                V(f"v_lshlrev_b32 v{x}, 16, v{p}")
                V(f"v_and_b32 v{y}, 0xffff0000, v{p}")
                V(f"v_mul_f32 v{x}, v{x}, v{vF[blk]}")
                V(f"v_mul_f32 v{y}, v{y}, v{vF[blk]}")
                V(f"v_cvt_pk_bf16_f32 v{p}, v{x}, v{y}")
        ts = TS[j & 1][blk]
        V(f"v_mov_b32 v{ts}, 0")
        for kt in range(2):
            for pr in range(2):
                sr = Sreg(j, kt, blk) + 2 * pr
                V(f"v_exp_f32 v{x}, v{sr}")
                V(f"v_exp_f32 v{y}, v{sr + 1}")
                V(f"v_cvt_pk_bf16_f32 v{Preg(j, blk) + 2 * kt + pr}, v{x}, v{y}")
                V(f"v_add_f32 v{ts}, v{x}, v{ts}")
                V(f"v_add_f32 v{ts}, v{y}, v{ts}")
    return c


def slow_tail(names):
    c = []
    V = lambda t: c.append(valu(t))
    c.append(I("L_slow_tail:", "LAB"))
    for blk in range(3):
        V(f"v_mul_f32 v{LS[blk]}, v{LS[blk]}, v{vF[blk]}")
        for r in range(0, 64, 4):
            for k in range(4):
                c.append(I(f"v_accvgpr_read_b32 v{ET + k}, a{OB[blk] + r + k}", "V", [("a", OB[blk] + r + k)], [("v", ET + k)]))
            for k in range(4):
                V(f"v_mul_f32 v{ET + k}, v{ET + k}, v{vF[blk]}")
            for k in range(4):
                c.append(I(f"v_accvgpr_write_b32 a{OB[blk] + r + k}, v{ET + k}", "V", [("v", ET + k)], [("a", OB[blk] + r + k)]))
    c.append(nop(3))
    for k, nm in enumerate(names):
        c.append(salu(f"s_cmp_eq_u32 s{sSite}, {k}"))
        c.append(I(f"s_cbranch_scc1 L_ret_{nm}", "BR"))
    c.append(I(f"s_branch L_ret_{names[-1]}", "BR"))
    return c


def xsum(c, r, u):
    V = lambda t: c.append(valu(t))
    for sw in ("v_permlane32_swap_b32", "v_permlane16_swap_b32"):
        V(f"v_mov_b32 v{u}, v{r}")
        V(f"{sw} v{r}, v{u}")
        V(f"v_add_f32 v{r}, v{r}, v{u}")


def attn_finish():
    c = []
    S = lambda t: c.append(salu(t))
    V = lambda t: c.append(valu(t))
    AR = lambda v, a: c.append(I(f"v_accvgpr_read_b32 v{v}, a{a}", "V", [("a", a)], [("v", v)]))
    c.append(nop(7))
    for blk in range(3):
        xsum(c, LS[blk], ET)
    c.append(I("s_waitcnt lgkmcnt(0)", "W"))
    c.append(I("s_barrier", "B"))
    S(f"s_mul_i32 s{sT0}, s{sXW}, {3 * SLOT}")
    S(f"s_lshl_b32 s{sT1}, s{sHW}, 14")
    S(f"s_add_u32 s{sT0}, s{sT0}, s{sT1}")
    S(f"s_sub_u32 s{sT2}, 1, s{sXW}")
    S(f"s_mul_i32 s{sT2}, s{sT2}, {3 * SLOT}")
    S(f"s_add_u32 s{sT2}, s{sT2}, s{sT1}")
    V(f"v_lshlrev_b32 v{vT0}, 4, v{vLANE}")
    V(f"v_add_u32 v{vT1}, s{sT0}, v{vT0}")
    V(f"v_add_u32 v{vT2}, s{sT2}, v{vT0}")
    for T in range(16):
        c.append(ds_w128(vT1, ("a", OB[2] + 4 * T), T * 1024))
    S(f"s_lshl_b32 s{sT0}, s{sW}, 9")
    S(f"s_add_u32 s{sT0}, s{sT0}, {SLOT}")
    S(f"s_xor_b32 s{sT1}, s{sT0}, 1024")
    V(f"v_lshlrev_b32 v{vT0}, 3, v{vLANE}")
    V(f"v_add_u32 v{KA[0]}, s{sT0}, v{vT0}")
    V(f"v_add_u32 v{KA[1]}, s{sT1}, v{vT0}")
    V(f"v_mov_b32 v{ET}, v{NEGM[2]}")
    V(f"v_mov_b32 v{ET + 1}, v{LS[2]}")
    c.append(ds_w64(KA[0], ("v", ET), 0))
    for blk in range(2):
        for T in range(16):
            for r in range(4):
                AR(SB + r, OB[blk] + 4 * T + r)
            V(f"v_cvt_pk_bf16_f32 v{QB[blk] + 2 * T}, v{SB}, v{SB + 1}")
            V(f"v_cvt_pk_bf16_f32 v{QB[blk] + 2 * T + 1}, v{SB + 2}, v{SB + 3}")
    c.append(I("s_waitcnt lgkmcnt(0)", "W"))
    c.append(I("s_barrier", "B"))
    c.append(ds_r64(("v", ET + 2), KA[1], 0))
    for T in range(16):
        c.append(ds_r128(("v", SB + 4 * T), vT2, T * 1024))
    nm, a_o, a_p = ET + 4, ET + 5, ET + 6
    V(f"v_min_f32 v{nm}, v{ET}, v{ET + 2}")
    V(f"v_sub_f32 v{a_o}, v{nm}, v{ET}")
    V(f"v_sub_f32 v{a_p}, v{nm}, v{ET + 2}")
    V(f"v_exp_f32 v{a_o}, v{a_o}")
    V(f"v_exp_f32 v{a_p}, v{a_p}")
    V(f"v_mov_b32 v{NEGM[2]}, v{nm}")
    V(f"v_mul_f32 v{LS[2]}, v{a_o}, v{ET + 1}")
    V(f"v_fmac_f32 v{LS[2]}, v{a_p}, v{ET + 3}")
    tmp = 192
    for T in range(16):
        for r in range(4):
            AR(tmp + r, OB[2] + 4 * T + r)
        for r in range(4):
            V(f"v_mul_f32 v{tmp + r}, v{a_o}, v{tmp + r}")
        for r in range(4):
            V(f"v_fmac_f32 v{tmp + r}, v{a_p}, v{SB + 4 * T + r}")
        V(f"v_cvt_pk_bf16_f32 v{QB[2] + 2 * T}, v{tmp}, v{tmp + 1}")
        V(f"v_cvt_pk_bf16_f32 v{QB[2] + 2 * T + 1}, v{tmp + 2}, v{tmp + 3}")
    V(f"v_and_b32 v{vT0}, 15, v{vLANE}")
    V(f"v_lshlrev_b32 v{vT0}, 3, v{vT0}")
    S(f"s_mul_i32 s{sT0}, s2, 1280")
    S(f"s_add_u32 s{sT0}, s{sT0}, {STATS_OFF}")
    S(f"s_lshl_b32 s{sT1}, s{sW}, 8")
    S(f"s_add_u32 s{sT1}, s{sT1}, s{sT0}")
    S(f"s_lshl_b32 s{sT2}, s{sHW}, 7")
    S(f"s_add_u32 s{sT2}, s{sT2}, s{sT0}")
    for blk in range(3):
        V(f"v_mov_b32 v{tmp + 2 * blk}, v{NEGM[blk]}")
        V(f"v_mov_b32 v{tmp + 2 * blk + 1}, v{LS[blk]}")
    c.append(bstore(2, ("v", tmp), vT0, sWS, sT1, 0))
    c.append(bstore(2, ("v", tmp + 2), vT0, sWS, sT1, 128))
    c.append(bstore(2, ("v", tmp + 4), vT0, sWS, sT2, 1024))
    S(f"s_lshl_b32 s{sT0}, s{sXW}, 6")
    for k in range(4):
        V(f"v_xor_b32 v{VA[k]}, s{sT0}, v{LV[k]}")
        V(f"v_add_u32 v{VA[k]}, {2 * SLOT}, v{VA[k]}")
    S(f"s_mul_i32 s{sT0}, s2, {PART_WG}")
    V(f"v_lshlrev_b32 v{vST}, 4, v{vLANE}")
    S(f"s_mul_i32 s{sOF0}, s{sW}, {2 * 14336}")
    S(f"s_add_u32 s{sOF0}, s{sOF0}, s{sT0}")
    S(f"s_add_u32 s{sOF1}, s{sOF0}, 14336")
    S(f"s_mul_i32 s{sOH}, s{sHW}, 14336")
    S(f"s_add_u32 s{sOH}, s{sOH}, s{sT0}")
    S(f"s_lshl_b32 s{sT1}, s{sXW}, 10")
    S(f"s_add_u32 s{sOH}, s{sOH}, s{sT1}")
    S(f"s_add_u32 s{sOH}, s{sOH}, {8 * 14336}")
    pat = 0
    for o in range(12):
        if (2 + 2 * (o + 1)) % 5 < (2 + 2 * o) % 5:
            pat |= 1 << o
    S(f"s_mov_b32 s{sPat}, {pat:#x}")
    S(f"s_mov_b32 s{sPat + 1}, {pat >> 2:#x}")
    S(f"s_mov_b32 s{sC1}, {2 * SLOT}")
    S(f"s_mov_b32 s{sC2}, {(-3 * SLOT) & 0xffffffff:#x}")
    S(f"s_add_u32 s{sDst}, s{sDst0}, {SLOT}")
    c.append(I("s_waitcnt lgkmcnt(0)", "W"))
    c += wait_bar([("WO", 0)], None)
    g, adv = wo_dma_tasks(("WO", 2))
    emit_serial(c, g, adv + [odst_adv()])
    return c


def odst_adv():
    return [salu(f"s_bitcmp1_b32 s{sPat + 1}, 0"), salu(f"s_cselect_b32 s{sT1}, s{sC2}, s{sC1}"),
            salu(f"s_add_u32 s{sDst}, s{sDst}, s{sT1}"), salu(f"s_lshr_b32 s{sPat + 1}, s{sPat + 1}, 1")]


def o_phase():
    mf, tasks = [], []
    fa = FragAlloc()
    marks = []
    ACC = [128, 148]
    PK = [[168, 172], [176, 180]]
    HST = 184
    bar, lastread, lastaddr = {}, {}, {}
    prev_dma = None
    prev_aups = []
    prev_cv = {}
    prev_st = {}
    prev_inc = None
    for o in range(7):
        start = len(mf)
        marks.append(start)
        aup = {}
        if o > 0:
            bar[o] = Task(wait_bar([("WO", o)], ("OR", o - 1)), "BAR", deps=[(lastread[o - 1], 3)], name=f"bar{o}")
            tasks.append(bar[o])
            sd = Task([salu(f"s_bitcmp1_b32 s{sPat}, 0"), salu(f"s_cselect_b32 s{sD}, s{sC2}, s{sC1}"),
                       salu(f"s_lshr_b32 s{sPat}, s{sPat}, 1")], "S", rel=start - 60, deps=[(t, 0) for t in prev_aups], name="sd")
            tasks.append(sd)
            for r in VA:
                aup[r] = Task(valu(f"v_add_u32 v{r}, s{sD}, v{r}"), "V", deps=[(sd, 1), (lastaddr[r], 0)], name="aup")
            tasks += list(aup.values())
            prev_aups = list(aup.values())
        for p in range(2):
            lastm = {}
            firstm = len(mf)
            for kb in range(8):
                for own in (1, 0):
                    f = FB + fa.get() * 4
                    a = VA[p if own else 2 + p]
                    c0 = len(mf)
                    for e in range(2):
                        i = ds_rtr(("a", f + 2 * e), a, kb * 4096 + e * 2048)
                        i.tag = ("OR", o)
                        deps = ([(bar[o], 0)] if o in bar else []) + ([(aup[a], 1)] if a in aup else []) + ([(lastaddr[a], 0)] if a in lastaddr else [])
                        first = c0 < DIST
                        t = Task(i, "L", rel=-1 if first else c0 - DIST, dl=-1 if first else c0 - 5, deps=deps, name="rd")
                        tasks.append(t)
                        lastread[o] = t
                        lastaddr[a] = t
                    for blk in ((0, 1, 2) if own else (0, 1)):
                        slot = blk if own else 3 + blk
                        d = ("v", ACC[p] + 4 * slot)
                        mf.append(mfma(d, ("a", f), ("v", QB[blk] + 4 * kb), 0 if kb == 0 else d))
                        lastm[slot] = len(mf) - 1
            dl = firstm + 80 - 2
            cvs = {}
            for slot in range(5):
                blk = slot % 3 if slot < 3 else slot - 3
                for h in range(2):
                    if slot == 2:
                        dst = HST + 2 * p + h
                        key = "H"
                    else:
                        dst = PK[p][blk] + (0 if slot < 3 else 2) + h
                        key = (p, blk)
                    s = ACC[p] + 4 * slot + 2 * h
                    t = Task(valu(f"v_cvt_pk_bf16_f32 v{dst}, v{s}, v{s + 1}"), "V", rel=lastm[slot] + MLAT, dl=dl,
                             deps=[(prev_st[key], 2)] if key in prev_st else [], name="cvt")
                    tasks.append(t)
                    cvs.setdefault(key, []).append(t)
            for blk in range(2):
                st = Task(bstore(4, ("v", PK[p][blk]), vST, sWS, (sOF0, sOF1)[blk], p * 1024, STF), "D",
                          deps=[(t, 1) for t in cvs[(p, blk)]] + ([(prev_inc, 0)] if prev_inc else []), dl=dl + 20, name="st")
                tasks.append(st)
                prev_st[(p, blk)] = st
            if p == 0:
                hcv = cvs["H"]
            else:
                st = Task(bstore(4, ("v", HST), vST, sWS, sOH, 0, STF), "D", deps=[(t, 1) for t in hcv + cvs["H"]] + ([(prev_inc, 0)] if prev_inc else []),
                          dl=dl + 20, name="stH")
                tasks.append(st)
                prev_st["H"] = st
                inc = Task([salu(f"s_add_u32 s{sOF0}, s{sOF0}, 2048"), salu(f"s_add_u32 s{sOF1}, s{sOF1}, 2048"),
                            salu(f"s_add_u32 s{sOH}, s{sOH}, 2048")], "S", deps=[(t, 0) for t in prev_st.values()], name="inc")
                tasks.append(inc)
                prev_inc = inc
        if o + 3 <= 6:
            g, adv = wo_dma_tasks(("WO", o + 3))
            first = Task([], "S", rel=start, deps=([(bar[o], 0)] if o in bar else []) + ([(prev_dma, 0)] if prev_dma else []), name="dmastart")
            tasks.append(first)
            prev_dma = add_dma(tasks, g, adv + [odst_adv()], first, start, start + 62, spread=5)
    gaps = schedule(mf, tasks, verbose=True)
    for k, m in enumerate(marks):
        mf[m].mark = ("O", k)
    return linearize(mf, gaps)


def norm(ins):
    t = ins.text
    if "@" in t:
        a, b = t.split("@")
        n = int(b.rstrip(":"))
        return f"{a}@{n % 4}"
    return t


def fold(code):
    segs, cur, keys = [], [], []
    key = None
    for ins in code:
        if ins.kind == "M" and ins.mark is not None:
            segs.append(cur)
            keys.append(key)
            cur, key = [], ins.mark
        if ins.kind == "LAB" and ins.tag and ins.tag[0] == "cut":
            segs.append(cur)
            keys.append(key)
            cur, key = [], None
            continue
        cur.append(ins)
    segs.append(cur)
    keys.append(key)
    txt = [tuple(norm(i) for i in s) for s in segs]
    out = []
    i = 0
    nloop = 0
    n = len(segs)
    sitekey = lambda s: (s["j"] % 4, tuple(sorted((b, tuple(v)) for b, v in s["later_blk"].items())), tuple(x % 4 for x in s["pend"]), s["blks"])
    sinfo = {s["j"]: s for s in sites}

    def sites_in(seg):
        return [sitekey(sinfo[x.tag[1]]) for x in seg if x.kind == "BR" and x.tag and x.tag[0] == "site"]

    while i < n:
        best = None
        if keys[i] is not None:
            p = 4 if keys[i][0] == "M" else 1
            k = 1
            while i + (k + 1) * p <= n and all(
                    keys[i + k * p + r] is not None and txt[i + k * p + r] == txt[i + r] and sites_in(segs[i + k * p + r]) == sites_in(segs[i + r])
                    for r in range(p)):
                k += 1
            if k >= 2:
                best = (p, k)
        if best:
            p, k = best
            out.append(salu(f"s_mov_b32 s{sCnt}, {k}"))
            out.append(I(f"L_loop{nloop}:", "LAB"))
            for r in range(p):
                out += segs[i + r]
            out.append(salu(f"s_sub_u32 s{sCnt}, s{sCnt}, 1"))
            out.append(salu(f"s_cmp_lg_u32 s{sCnt}, 0"))
            out.append(I(f"s_cbranch_scc1 L_loop{nloop}", "BR"))
            nloop += 1
            i += p * k
        else:
            out += segs[i]
            i += 1
    return out


def cut():
    return I("", "LAB", tag=("cut",))


def reduce_kernel():
    L = []
    A = L.append
    A("gqa_reduce_kernel:")
    A("s_cmp_ge_u32 s2, 280")
    A("s_cbranch_scc1 L_rend")
    A("s_load_dwordx2 s[4:5], s[0:1], 40")
    A("s_load_dwordx2 s[6:7], s[0:1], 56")
    if STAMP:
        A("s_memrealtime s[40:41]")
    A("v_lshrrev_b32 v1, 6, v0")
    A("v_and_b32 v2, 63, v0")
    A("v_readfirstlane_b32 s3, v1")
    A("s_lshl_b32 s16, s2, 2")
    A("s_add_u32 s16, s16, s3")
    A("s_mul_hi_u32 s17, s16, 0x1d41d42")
    A("s_mul_i32 s18, s17, 140")
    A("s_sub_u32 s18, s16, s18")
    A("s_mul_hi_u32 s19, s18, 0x12492493")
    A("s_mul_i32 s20, s19, 14")
    A("s_sub_u32 s20, s18, s20")
    A("s_waitcnt lgkmcnt(0)")
    A("s_mov_b32 s8, s4"); A("s_mov_b32 s9, s5"); A(f"s_mov_b32 s10, {8 * 160 * 448 * 2}"); A("s_mov_b32 s11, 0x20000")
    A("s_mov_b32 s12, s6"); A("s_mov_b32 s13, s7"); A("s_mov_b32 s14, 0x10000000"); A("s_mov_b32 s15, 0x20000")
    A(f"s_mul_i32 s21, s17, {32 * PART_WG}")
    A("s_lshl_b32 s22, s18, 10")
    A("s_add_u32 s21, s21, s22")
    A("v_lshlrev_b32 v3, 4, v2")
    A(f"s_mul_i32 s23, s17, {32 * 1280}")
    A("s_lshl_b32 s22, s19, 7")
    A("s_add_u32 s23, s23, s22")
    A(f"s_add_u32 s23, s23, {STATS_OFF}")
    A("v_and_b32 v4, 15, v2")
    A("v_lshlrev_b32 v5, 3, v4")
    for k in range(32):
        A(f"s_add_u32 s24, s23, {k * 1280}")
        A(f"buffer_load_dwordx2 v[{16 + 2 * k}:{17 + 2 * k}], v5, s[12:15], s24 offen")
    for k in range(32):
        A(f"s_add_u32 s24, s21, {k * PART_WG}")
        A(f"buffer_load_dwordx4 v[{80 + 4 * k}:{83 + 4 * k}], v3, s[12:15], s24 offen" + LDF)
    A("s_waitcnt vmcnt(32)")
    for k in range(16):
        n0, l0, n1, l1 = 16 + 2 * k, 17 + 2 * k, 48 + 2 * k, 49 + 2 * k
        A(f"v_min_f32 v6, v{n0}, v{n1}")
        A(f"v_sub_f32 v{n0}, v6, v{n0}")
        A(f"v_sub_f32 v{n1}, v6, v{n1}")
        A(f"v_exp_f32 v{n0}, v{n0}")
        A(f"v_exp_f32 v{n1}, v{n1}")
        A("s_nop 0")
        A(f"v_mul_f32 v7, v{n0}, v{l0}")
        A(f"v_fmac_f32 v7, v{n1}, v{l1}")
        A("v_rcp_f32 v7, v7")
        A("s_nop 0")
        A(f"v_mul_f32 v{n0}, v{n0}, v7")
        A(f"v_mul_f32 v{n1}, v{n1}, v7")
    for r in range(8):
        A(f"v_mov_b32 v{8 + r}, 0")
    for k in range(32):
        A(f"s_waitcnt vmcnt({31 - k})")
        for r in range(4):
            x = 80 + 4 * k + r
            A(f"v_lshlrev_b32 v6, 16, v{x}")
            A(f"v_and_b32 v7, 0xffff0000, v{x}")
            A(f"v_fmac_f32 v{8 + 2 * r}, v6, v{16 + 2 * k}")
            A(f"v_fmac_f32 v{9 + 2 * r}, v7, v{16 + 2 * k}")
    for r in range(4):
        A(f"v_cvt_pk_bf16_f32 v{8 + r}, v{8 + 2 * r}, v{9 + 2 * r}")
    A("s_and_b32 s24, s20, 1")
    A("s_lshr_b32 s25, s20, 1")
    A("s_lshr_b32 s26, s19, 2")
    A("s_and_b32 s26, s26, 1")
    A("s_lshl_b32 s26, s26, 1")
    A("s_add_u32 s27, s24, s26")
    A("s_xor_b32 s28, s27, 2")
    A("s_lshl_b32 s29, s24, 1")
    A("s_add_u32 s30, s29, 1")
    A("s_cmp_ge_u32 s19, 8")
    A("s_cselect_b32 s27, s29, s27")
    A("s_cselect_b32 s28, s30, s28")
    A("s_mul_i32 s31, s17, 160")
    A("s_lshl_b32 s32, s19, 4")
    A("s_add_u32 s31, s31, s32")
    A("s_mul_i32 s31, s31, 896")
    A("s_lshl_b32 s25, s25, 7")
    A("s_add_u32 s31, s31, s25")
    A("s_lshl_b32 s27, s27, 5")
    A("s_lshl_b32 s28, s28, 5")
    A("s_add_u32 s27, s27, s31")
    A("s_add_u32 s28, s28, s31")
    A("v_mul_u32_u24 v4, 896, v4")
    A("v_lshrrev_b32 v5, 4, v2")
    A("v_lshl_add_u32 v4, v5, 3, v4")
    A("buffer_store_dwordx2 v[8:9], v4, s[8:11], s27 offen")
    A("buffer_store_dwordx2 v[10:11], v4, s[8:11], s28 offen")
    if STAMP:
        A("s_waitcnt vmcnt(0)")
        A("s_memrealtime s[42:43]")
        A("s_waitcnt lgkmcnt(0)")
        A("v_mov_b32 v8, s40"); A("v_mov_b32 v9, s42"); A("v_mov_b32 v4, 0")
        A("s_lshl_b32 s16, s16, 3"); A(f"s_add_u32 s16, s16, {130 << 20}")
        A("buffer_store_dwordx2 v[8:9], v4, s[12:15], s16 offen")
    A("L_rend:")
    A("s_endpgm")
    return L


def dump_regs(regs, off):
    c = []
    n = len(regs)
    c.append(I("s_waitcnt vmcnt(0) lgkmcnt(0)", "W"))
    c.append(salu(f"s_lshl_b32 s{sT0}, s2, 2"))
    c.append(salu(f"s_add_u32 s{sT0}, s{sT0}, s{sW}"))
    c.append(salu(f"s_mul_i32 s{sT0}, s{sT0}, {n * 256}"))
    c.append(salu(f"s_add_u32 s{sT0}, s{sT0}, {off}"))
    c.append(valu(f"v_lshlrev_b32 v{vT0}, 4, v{vLANE}"))
    for k in range(0, n, 4):
        c.append(bstore(4, ("v", regs[k]), vT0, sWS, sT0, 0))
        c.append(salu(f"s_add_u32 s{sT0}, s{sT0}, 1024"))
    return c


def build():
    code = prologue()
    for cidx in range(2):
        g, adv = q_dma_tasks(cidx)
        emit_serial(code, g, adv)
    code += q_setup()
    code += stamp(1)
    code += q_phase()
    code.append(cut())
    code += stamp(2)
    code += q_finish()
    if DEBUG == "q":
        code += dump_regs(list(range(32, 128)), 64 << 20)
    code += stamp(3)
    code += main_phase()
    code.append(cut())
    code += stamp(4)
    code += attn_finish()
    if DEBUG == "o":
        code += dump_regs(list(range(32, 128)), 64 << 20)
    code += stamp(5)
    code += o_phase()
    code.append(cut())
    code += stamp(6)
    code = insert_lgkm_waits(code)
    code = resolve_vm_waits(code)
    code, nf = check_hazards(code)
    code = fold(code)
    names = []
    slow = []
    sinfo = {s["j"]: s for s in sites}
    for ins in code:
        if "@" in ins.text:
            ins.text = ins.text.replace("@", "")
        if ins.kind == "BR" and ins.tag and ins.tag[0] == "site":
            j = ins.tag[1]
            sp = slow_path(sinfo[j], str(j))
            sp.append(salu(f"s_mov_b32 s{sSite}, {len(names)}"))
            sp.append(I("s_branch L_slow_tail", "BR"))
            names.append(str(j))
            slow += check_hazards(sp)[0]
    slow += check_hazards(slow_tail(names))[0]
    fin = []
    if STAMP:
        fin.append(I("s_waitcnt vmcnt(0) lgkmcnt(0)", "W"))
        fin += [raw(f"s_memtime s[{sSt + 14}:{sSt + 15}]"), raw(f"s_memrealtime s[{sSt + 16}:{sSt + 17}]"), I("s_waitcnt lgkmcnt(0)", "W")]
        fin.append(salu(f"s_lshl_b32 s{sT0}, s2, 2"))
        fin.append(salu(f"s_add_u32 s{sT0}, s{sT0}, s{sW}"))
        fin.append(salu(f"s_lshl_b32 s{sT0}, s{sT0}, 6"))
        fin.append(salu(f"s_add_u32 s{sT0}, s{sT0}, {128 << 20}"))
        fin.append(valu(f"v_mov_b32 v{vT0}, 0"))
        for k in range(9):
            fin.append(valu(f"v_mov_b32 v{128 + k}, s{sSt + 2 * k}"))
        fin.append(valu(f"v_mov_b32 v{128 + 9}, s98"))
        for k in range(0, 12, 4):
            fin.append(bstore(4, ("v", 128 + k), vT0, sWS, sT0, k * 4))
    NAME = "standalone__gqa_block_cached__near_ridge_kernel"
    hdr = open("standalone__gqa_block_cached__near_ridge.s.ref").read().split("; Override launch")[0]
    L = [hdr.rstrip()]
    A = L.append
    A(f"; @launch kernel={NAME} grid=(256,1,1) block=(256,1,1) lds=163840")
    A("; @launch kernel=gqa_reduce_kernel grid=(280,1,1) block=(256,1,1) lds=0")
    A('.amdgcn_target "amdgcn-amd-amdhsa--gfx950"')
    A(".text")
    A(f".globl {NAME}")
    A(".p2align 8")
    A(f".type {NAME},@function")
    A(f"{NAME}:")
    A("s_cmp_ge_u32 s2, 256")
    A("s_cbranch_scc1 L_end")
    L += [i.text for i in code if i.text]
    L += [i.text for i in fin]
    A("L_end:")
    A("s_endpgm")
    L += [i.text for i in slow]
    A(".globl gqa_reduce_kernel")
    A(".p2align 8")
    A(".type gqa_reduce_kernel,@function")
    L += reduce_kernel()
    A('.section .rodata,"a"')
    for nm, vg, ao in ((NAME, 512, 256), ("gqa_reduce_kernel", 208, 208)):
        A(".p2align 6")
        A(f".amdhsa_kernel {nm}")
        A(f"  .amdhsa_next_free_vgpr {vg}")
        A("  .amdhsa_next_free_sgpr 102")
        A(f"  .amdhsa_accum_offset {ao}")
        A("  .amdhsa_group_segment_fixed_size 0")
        A("  .amdhsa_kernarg_size 64")
        A("  .amdhsa_user_sgpr_count 2")
        A("  .amdhsa_user_sgpr_kernarg_segment_ptr 1")
        A("  .amdhsa_system_sgpr_workgroup_id_x 1")
        A(".end_amdhsa_kernel")
    return "\n".join(L) + "\n"


if __name__ == "__main__":
    out = [a for a in sys.argv[1:] if a.endswith(".s")]
    txt = build()
    open(out[0] if out else "k.s", "w").write(txt)
```

```python
import sys
from sched import *

OPT = dict(debug=None, stamp=0, dist=15, age=7, stf="sc1", ldf="sc1", pref=1)
for a in sys.argv[1:]:
    if "=" in a:
        k, v = a.split("=")
        OPT[k] = int(v) if v.lstrip("-").isdigit() else v
    elif a == "stamp":
        OPT["stamp"] = 1
STAMP, DEBUG = OPT["stamp"], OPT["debug"]
STF = " " + OPT["stf"].replace("+", " ") if OPT["stf"] else ""
LDF = " " + OPT["ldf"].replace("+", " ") if OPT["ldf"] else ""

sID = 3
sX, sK, sV, sWQ, sWO, sWS = 8, 12, 16, 20, 24, 28
sDBG, sOUT = 8, 20
sW, sXW, sHW, sB, sH, sSP = 32, 33, 34, 35, 36, 37
sKoff, sVoff, sDst, sDstLim, sDst0 = 38, 39, 40, 41, 42
sHalf, sC1, sC2, sD, sK2 = 43, 44, 45, 46, 47
sPat = 48
sT0, sT1, sT2, sT3 = 50, 51, 52, 53
sThr, sCnt, sSite = 54, 55, 56
sWoff, sXoff, sWdst, sXdst, sWrd, sXrd, sDX = 57, 58, 59, 60, 61, 62, 63
sE0, sE1, sE2, sE3, sE4, sE5, sE6 = 57, 58, 59, 60, 61, 62, 63
sArg = 64
sSt = 80

vLANE, vK0, vK1, vV, vWt, vX, vST = 1, 2, 3, 4, 5, 6, 7
KA = [8, 9]
XA = [10, 11]
VA = [12, 13, 14, 15]
QA = [16, 17, 18]
vU = [19, 20, 21, 22, 23]
LV = [24, 25, 26, 27]
LK0 = 28
vT0, vT1, vT2 = 29, 30, 31
QB = [32, 64, 96]
SB, PB = 128, 176
NEGM = [224, 228, 232]
ET = 236
TS = [[244, 245, 246], [247, 248, 249]]
LS = [250, 251, 252]
vC = 253
vF = [253, 254, 255]
OB = [0, 64, 128]
FB = 192
SLOT = 32768
XBASE, XSL = 3 * SLOT, 20480
EX_WG = 49152
PART0, PART_WG = 16 << 20, 73728
OOB = 0x7ff00000
QSCALE = 0x3DB8AA3B
DIST, MLAT = OPT["dist"], 5


def Sreg(j, kt, blk):
    return SB + ((2 * j + kt) % 4) * 12 + blk * 4


def Preg(j, blk):
    return PB + (j % 4) * 12 + blk * 4


def waitr(vm_keys, lg_key):
    return I("s_waitcnt <resolve>", "W", tag=("resolve", vm_keys, lg_key))


def wait_bar(vm_keys, lg_key):
    return [waitr(vm_keys, lg_key), I("s_barrier", "B")]


def stamp(k):
    return [raw(f"s_memtime s[{sSt + 2 * k}:{sSt + 2 * k + 1}]")] if STAMP else []


def AR(v, a):
    return I(f"v_accvgpr_read_b32 v{v}, a{a}", "V", [("a", a)], [("v", v)])


def bload(n, dst, voff, srd, soff, imm, flags="", tag=None):
    suf = {1: "dword", 2: "dwordx2", 4: "dwordx4"}[n]
    t = f"buffer_load_{suf} {rtxt(dst[0], dst[1], n)}, v{voff}, s[{srd}:{srd + 3}], s{soff} offen offset:{imm}{flags}"
    return I(t, "D", [("v", voff), ("s", soff)] + R("s", srd, 4), R(dst[0], dst[1], n), tag=tag)


def srd(c, d, arg, size):
    for t in (f"s_mov_b32 s{d}, s{sArg + arg}", f"s_mov_b32 s{d + 1}, s{sArg + arg + 1}", f"s_mov_b32 s{d + 2}, {size}",
              f"s_mov_b32 s{d + 3}, 0x20000"):
        c.append(salu(t))


def q_dma(cidx):
    g = []
    for x in range(2):
        for t in range(4):
            rows = 32 * x + 16 * (t & 1) + 4 * (t >> 1)
            pre = [salu(f"s_add_u32 m0, s{sWdst}, {x * 16384}")] if t == 0 else []
            pre.append(salu(f"s_add_u32 s{sT0}, s{sWoff}, {rows * 8192 - t * 1024}"))
            g.append((pre, dma(vWt, sWQ, sT0, t * 1024, tag=("QW", cidx))))
    for k in range(5):
        pre = [salu(f"s_add_u32 m0, s{sXdst}, {k * 4096}"), salu(f"s_add_u32 s{sT0}, s{sXoff}, {k * 32 * 896}")]
        g.append((pre, dma(vX, sX, sT0, 0, tag=("QX", cidx))))
    adv = [[salu(f"s_add_u32 s{sWoff}, s{sWoff}, {64 * 8192}")], [salu(f"s_add_u32 s{sXoff}, s{sXoff}, 128")],
           [salu(f"s_cmp_lt_u32 s{sWdst}, {SLOT}"), salu(f"s_cselect_b32 s{sT1}, {3 * SLOT}, 0")],
           [salu(f"s_add_u32 s{sWdst}, s{sWdst}, s{sT1}")], [salu(f"s_sub_u32 s{sWdst}, s{sWdst}, {SLOT}")],
           [salu(f"s_cmp_ge_u32 s{sXdst}, {XBASE + 2 * XSL}"), salu(f"s_cselect_b32 s{sT1}, {3 * XSL}, 0")],
           [salu(f"s_sub_u32 s{sXdst}, s{sXdst}, s{sT1}")], [salu(f"s_add_u32 s{sXdst}, s{sXdst}, {XSL}")]]
    return g, adv


def dst_adv():
    return [[salu(f"s_add_u32 s{sDst}, s{sDst}, {SLOT}")],
            [salu(f"s_cmp_eq_u32 s{sDst}, s{sDstLim}"), salu(f"s_cselect_b32 s{sDst}, s{sDst0}, s{sDst}")]]


def kv_dma(kind, tag):
    g = []
    r, off = (sK, sKoff) if kind == "K" else (sV, sVoff)
    for x in range(2):
        for t in range(4):
            pre = []
            if t == 0:
                pre.append(salu(f"s_add_u32 m0, s{sDst}, {x * 16384}") if x else salu(f"s_mov_b32 m0, s{sDst}"))
                if x:
                    pre.append(salu(f"s_add_u32 s{off}, s{off}, 16384"))
            vo = (vK1 if t & 1 else vK0) if kind == "K" else vV
            g.append((pre, dma(vo, r, off, t * 1024, nt=True, tag=tag)))
    return g, [[salu(f"s_add_u32 s{off}, s{off}, 16384")]] + dst_adv()


def wo_dma(o, slot):
    g = []
    for kk in range(2):
        for t in range(4):
            rows = 32 * kk + 16 * (t >> 1) + 8 * (t & 1)
            pre = [salu(f"s_add_u32 m0, s{sE6}, {slot * SLOT + kk * 4096}")] if t == 0 else []
            pre.append(salu(f"s_add_u32 s{sT0}, s{sK2}, {rows * 896 - t * 1024 + o * 128}"))
            g.append((pre, dma(vWt, sWO, sT0, t * 1024, tag=("WO", o))))
    return g, []


def add_dma(tasks, g, adv, first, rel, dl, spread):
    prev = first
    n = len(g)
    for k, (pre, d) in enumerate(g):
        ddl = dl - (n - 1 - k) * 3
        for p in pre:
            t = Task(p, "S", rel=rel, dl=ddl, deps=[(prev, 0)], name="dmapre")
            tasks.append(t)
            prev = t
        t = Task(d, "D", rel=rel + k * spread, dl=ddl, deps=[(prev, 1 if (prev.cls == "S" and prev.ins) else 0)], name="dma")
        tasks.append(t)
        prev = t
    for a in adv:
        t = Task(a, "S", rel=rel, dl=dl + 8, deps=[(prev, 0)], name="dmaadv")
        tasks.append(t)
        prev = t
    return prev


def emit_serial(c, g, adv, fill=None):
    for pre, d in g:
        c += pre
        c.append(d)
        if fill:
            for _ in range(6):
                if fill:
                    c.append(fill.pop(0))
    for a in adv:
        c += a


def prologue():
    c = []
    S = lambda t: c.append(salu(t))
    V = lambda t: c.append(valu(t))
    c.append(raw(f"s_load_dwordx16 s[{sArg}:{sArg + 15}], s[0:1], 0"))
    c += stamp(0)
    if STAMP:
        c.append(raw("s_memrealtime s[98:99]"))
    V(f"v_lshrrev_b32 v{vT0}, 6, v0")
    V(f"v_and_b32 v{vLANE}, 63, v0")
    V(f"v_readfirstlane_b32 s{sW}, v{vT0}")
    S(f"s_lshr_b32 s{sT1}, s2, 3")
    S(f"s_and_b32 s{sT3}, s2, 1")
    S(f"s_lshl_b32 s{sT3}, s{sT3}, 2")
    S(f"s_and_b32 s{sT2}, s{sT1}, 3")
    S(f"s_add_u32 s{sT3}, s{sT3}, s{sT2}")
    S(f"s_and_b32 s{sB}, s2, 6")
    S(f"s_bfe_u32 s{sT2}, s{sT1}, 0x10002")
    S(f"s_add_u32 s{sB}, s{sB}, s{sT2}")
    S(f"s_bfe_u32 s{sH}, s{sT1}, 0x10003")
    S(f"s_lshl_b32 s{sT2}, s{sT3}, 1")
    S(f"s_add_u32 s{sH}, s{sH}, s{sT2}")
    S(f"s_lshr_b32 s{sSP}, s{sT1}, 4")
    S(f"s_lshr_b32 s{sXW}, s{sW}, 1")
    S(f"s_and_b32 s{sHW}, s{sW}, 1")
    S(f"s_lshl_b32 s{sKoff}, s{sB}, 3")
    S(f"s_add_u32 s{sKoff}, s{sKoff}, s{sT3}")
    V(f"v_lshrrev_b32 v{vT0}, 3, v{vLANE}")
    V(f"v_and_b32 v{vT1}, 7, v{vLANE}")
    V(f"v_lshrrev_b32 v{vT2}, 1, v{vT0}")
    V(f"v_xor_b32 v{vK0}, v{vT1}, v{vT2}")
    V(f"v_lshlrev_b32 v{vK0}, 4, v{vK0}")
    V(f"v_lshlrev_b32 v{vV}, 1, v{vT2}")
    V(f"v_xor_b32 v{vV}, v{vT1}, v{vV}")
    V(f"v_lshlrev_b32 v{vV}, 4, v{vV}")
    S(f"s_lshl_b32 s{sT2}, s{sHW}, 6")
    V(f"v_xor_b32 v{vX}, s{sT2}, v{vK0}")
    V(f"v_mul_u32_u24 v{vST}, 896, v{vT0}")
    V(f"v_add_u32 v{vX}, v{vX}, v{vST}")
    V(f"v_and_b32 v{vWt}, 3, v{vT0}")
    V(f"v_lshrrev_b32 v{vST}, 2, v{vT0}")
    V(f"v_lshl_add_u32 v{vWt}, v{vST}, 3, v{vWt}")
    V(f"v_lshlrev_b32 v{vWt}, 13, v{vWt}")
    V(f"v_add_u32 v{vWt}, v{vWt}, v{vV}")
    S(f"s_lshl_b32 s{sT3}, s{sW}, 7")
    V(f"v_add_u32 v{vWt}, s{sT3}, v{vWt}")
    S(f"s_lshl_b32 s{sWoff}, s{sH}, 9")
    S(f"s_mul_i32 s{sXoff}, s{sB}, {160 * 896}")
    S(f"s_mul_i32 s{sT2}, s{sW}, {8 * 896}")
    S(f"s_add_u32 s{sXoff}, s{sXoff}, s{sT2}")
    S(f"s_lshl_b32 s{sDst0}, s{sW}, 12")
    S(f"s_add_u32 s{sWdst}, s{sDst0}, {SLOT}")
    S(f"s_lshl_b32 s{sXdst}, s{sW}, 10")
    S(f"s_add_u32 s{sXdst}, s{sXdst}, {XBASE}")
    c.append(I("s_waitcnt lgkmcnt(0)", "W"))
    srd(c, sWQ, 6, 448 * 4096 * 2)
    srd(c, sX, 0, 8 * 160 * 448 * 2)
    f = []
    c2, c = c, f
    S = lambda t: f.append(salu(t))
    V = lambda t: f.append(valu(t))
    V(f"v_and_b32 v{vST}, 1, v{vT0}")
    V(f"v_lshl_add_u32 v{vST}, v{vT2}, 3, v{vST}")
    V(f"v_lshlrev_b32 v{vST}, 9, v{vST}")
    V(f"v_add_u32 v{vST}, s{sT3}, v{vST}")
    V(f"v_add_u32 v{vK0}, v{vK0}, v{vST}")
    V(f"v_add_u32 v{vV}, v{vV}, v{vST}")
    V(f"v_xor_b32 v{vK1}, 64, v{vK0}")
    srd(f, sK, 2, 0x4000000)
    srd(f, sV, 4, 0x4000000)
    srd(f, sWO, 8, 448 * 4096 * 2)
    srd(f, sWS, 14, 0x10000000)
    S(f"s_lshl_b32 s{sKoff}, s{sKoff}, 20")
    S(f"s_lshl_b32 s{sVoff}, s{sSP}, 19")
    S(f"s_add_u32 s{sKoff}, s{sKoff}, s{sVoff}")
    S(f"s_mov_b32 s{sVoff}, s{sKoff}")
    S(f"s_lshl_b32 s{sID}, s{sB}, 1")
    S(f"s_add_u32 s{sID}, s{sID}, s{sSP}")
    S(f"s_lshl_b32 s{sID}, s{sID}, 4")
    S(f"s_add_u32 s{sID}, s{sID}, s{sH}")
    V(f"v_and_b32 v{vT0}, 15, v{vLANE}")
    V(f"v_lshrrev_b32 v{vT1}, 4, v{vLANE}")
    V(f"v_lshrrev_b32 v{vT2}, 1, v{vT0}")
    V(f"v_xor_b32 v{LK0}, v{vT1}, v{vT2}")
    V(f"v_lshlrev_b32 v{LK0}, 4, v{LK0}")
    V(f"v_lshl_add_u32 v{LK0}, v{vT0}, 7, v{LK0}")
    V(f"v_lshrrev_b32 v{vT0}, 2, v{vLANE}")
    V(f"v_and_b32 v{vT1}, 6, v{vT0}")
    V(f"v_bfe_u32 v{vT2}, v{vLANE}, 1, 1")
    V(f"v_xor_b32 v{vT1}, v{vT1}, v{vT2}")
    V(f"v_lshlrev_b32 v{vT1}, 4, v{vT1}")
    V(f"v_lshl_add_u32 v{vT1}, v{vT0}, 7, v{vT1}")
    V(f"v_and_b32 v{vT2}, 1, v{vLANE}")
    V(f"v_lshl_add_u32 v{LV[0]}, v{vT2}, 3, v{vT1}")
    for k in range(1, 4):
        V(f"v_xor_b32 v{LV[k]}, {32 * k}, v{LV[0]}")
    S(f"s_add_u32 s{sT2}, s{sDst0}, {SLOT}")
    for k in range(4):
        V(f"v_add_u32 v{VA[k]}, s{sT2}, v{LV[k]}")
    V(f"v_add_u32 v{XA[0]}, {XBASE}, v{LK0}")
    V(f"v_xor_b32 v{XA[1]}, 64, v{XA[0]}")
    S(f"s_mov_b32 s{sWrd}, {SLOT}")
    S(f"s_mov_b32 s{sXrd}, 0")
    S(f"s_add_u32 s{sDstLim}, s{sDst0}, {5 * SLOT}")
    S(f"s_mov_b32 s{sDst}, s{sDst0}")
    S(f"s_lshl_b32 s{sHalf}, s{sXW}, 15")
    S(f"s_sub_u32 s{sHalf}, s{sHalf}, 16384")
    S(f"s_sub_u32 s{sC1}, {2 * SLOT}, s{sHalf}")
    S(f"s_sub_u32 s{sC2}, {(-3 * SLOT) & 0xffffffff}, s{sHalf}")
    S(f"s_mov_b32 s{sThr}, 0x53800000")
    pat = 0
    for j in range(40):
        if (j + 1) % 5 < (j - 1) % 5:
            pat |= 1 << j
    S(f"s_mov_b32 s{sPat}, {pat & 0xffffffff:#x}")
    S(f"s_mov_b32 s{sPat + 1}, {pat >> 32:#x}")
    S(f"s_lshl_b32 s{sT2}, s{sXW}, 14")
    S(f"s_sub_u32 s{sT2}, 16384, s{sT2}")
    V(f"v_add_u32 v{KA[0]}, s{sT2}, v{LK0}")
    V(f"v_xor_b32 v{KA[1]}, 64, v{KA[0]}")
    V(f"v_and_b32 v{vT0}, 15, v{vLANE}")
    V(f"v_lshlrev_b32 v{vT0}, 4, v{vT0}")
    V(f"v_lshrrev_b32 v{vT1}, 5, v{vLANE}")
    V(f"v_lshl_add_u32 v{vT0}, v{vT1}, 8, v{vT0}")
    V(f"v_bfe_u32 v{vT1}, v{vLANE}, 4, 1")
    V(f"v_lshl_add_u32 v{vT0}, v{vT1}, 3, v{vT0}")
    S(f"s_lshl_b32 s{sT2}, s{sW}, 11")
    S(f"s_add_u32 s{sT3}, s{sT2}, {XBASE}")
    V(f"v_add_u32 v{vU[0]}, s{sT3}, v{vT0}")
    S(f"s_add_u32 s{sT3}, s{sT2}, {SLOT}")
    V(f"v_add_u32 v{vU[1]}, s{sT3}, v{vT0}")
    V(f"v_lshlrev_b32 v{vST}, 4, v{vLANE}")
    S(f"s_lshl_b32 s{sT2}, s{sW}, 1")
    S(f"s_add_u32 s{sT2}, s{sT2}, s{sSP}")
    S(f"s_lshl_b32 s{sT2}, s{sT2}, 13")
    S(f"s_add_u32 s{sT2}, s{sT2}, {XBASE}")
    V(f"v_add_u32 v{QA[0]}, s{sT2}, v{vST}")
    V(f"v_xor_b32 v{QA[1]}, 8192, v{QA[0]}")
    S(f"s_xor_b32 s{sT2}, s{sHW}, s{sSP}")
    S(f"s_lshl_b32 s{sT2}, s{sT2}, 13")
    S(f"s_add_u32 s{sT2}, s{sT2}, {SLOT}")
    V(f"v_add_u32 v{QA[2]}, s{sT2}, v{vST}")
    S(f"s_lshl_b32 s{sK2}, s{sH}, 2")
    S(f"s_add_u32 s{sK2}, s{sK2}, s{sW}")
    S(f"s_mul_i32 s{sK2}, s{sK2}, {64 * 896}")
    c = c2
    for cidx in range(2):
        g, adv = q_dma(cidx)
        emit_serial(c, g, adv, f)
    c += f
    return c


def qacc(blk, t):
    return 96 + (blk * 4 + t) * 4


def q_phase():
    mf, tasks, marks = [], [], []
    WF = lambda c, ks, t: (c & 1) * 32 + (ks * 4 + t) * 4
    XF = lambda blk, ks: 64 + (blk * 2 + ks) * 4
    bar, lastx, lastaddr, xuse, wuse = {}, {}, {}, {}, {}
    prev_dma, prev_aups = None, []
    allreads = []
    for cidx in range(7):
        start = 80 * cidx
        marks.append(start)
        if cidx == 0:
            bar[0] = Task(wait_bar([("QX", 0)], None), "BAR", rel=-1, dl=-1, name="bar0")
            wready = bar[0]
        else:
            bar[cidx] = Task(wait_bar([("QX", cidx)], ("XR", cidx - 1)), "BAR", rel=start - 20, dl=start - 10, deps=[(lastx[cidx - 1], 4)], name=f"bar{cidx}")
            wready = Task(waitr([("QW", cidx)], None), "S", rel=start - 44, name="wready")
            tasks.append(wready)
        tasks.append(bar[cidx])
        aup = {}
        if cidx > 0:
            sd = [Task([salu(f"s_cmp_eq_u32 s{sWrd}, 0"), salu(f"s_cselect_b32 s{sD}, {3 * SLOT}, 0")], "S", rel=start - 76, deps=[(t, 0) for t in prev_aups], name="sd")]
            for t in (f"s_sub_u32 s{sD}, s{sD}, {SLOT}", f"s_add_u32 s{sWrd}, s{sWrd}, s{sD}"):
                sd.append(Task(salu(t), "S", deps=[(sd[-1], 0)], name="sd"))
            sd.append(Task([salu(f"s_cmp_eq_u32 s{sXrd}, {2 * XSL}"), salu(f"s_cselect_b32 s{sDX}, {3 * XSL}, 0")], "S", deps=[(sd[-1], 0)], name="sd"))
            for t in (f"s_sub_u32 s{sDX}, {XSL}, s{sDX}", f"s_add_u32 s{sXrd}, s{sXrd}, s{sDX}"):
                sd.append(Task(salu(t), "S", deps=[(sd[-1], 0)], name="sd"))
            tasks += sd
            for r in VA:
                aup[r] = Task(valu(f"v_add_u32 v{r}, s{sD}, v{r}"), "V", deps=[(sd[-1], 1), (lastaddr[r], 0)], name="aup")
            for r in XA:
                aup[r] = Task(valu(f"v_add_u32 v{r}, s{sDX}, v{r}"), "V", deps=[(sd[-1], 1), (lastaddr[r], 0)], name="aup")
            tasks += list(aup.values())
            prev_aups = list(aup.values())

        def rd(ins, consumer, gate, tag, rel, war):
            ins.tag = tag
            a = ins.rd[0][1]
            deps = [(gate, 0)] + ([(aup[a], 1)] if a in aup else []) + ([(lastaddr[a], 0)] if a in lastaddr else [])
            first = cidx == 0 and consumer < 12
            t = Task(ins, "L", rel=-1 if first else max(rel, war), dl=-1 if first else consumer - 6, deps=deps, name="rd")
            tasks.append(t)
            lastaddr[a] = t
            allreads.append(t)
            return t

        for ks in range(2):
            for t in range(4):
                for e in range(2):
                    rd(ds_rtr(("a", WF(cidx, ks, t) + 2 * e), VA[t], ks * 16384 + e * 2048), start + ks * 4 + t, wready, ("WR", cidx),
                       start - 42, wuse.get(cidx & 1, -1))
        early = 60 if cidx == 6 else 22
        for blk in range(10):
            for ks in range(2):
                c0 = len(mf)
                lastx[cidx] = rd(ds_r128(("a", XF(blk, ks)), XA[ks], blk * 2048), c0, bar[cidx], ("XR", cidx), c0 - early, xuse.get((blk, ks), -1))
                for t in range(4):
                    d = ("v", qacc(blk, t))
                    mf.append(mfma(d, ("a", WF(cidx, ks, t)), ("a", XF(blk, ks)), 0 if (cidx == 0 and ks == 0) else d))
                xuse[(blk, ks)] = len(mf) - 1
        wuse[cidx & 1] = len(mf) - 1
        if cidx + 2 <= 6:
            g, adv = q_dma(cidx + 2)
        elif cidx == 5:
            g, adv = kv_dma("K", ("T", -1))
            adv = adv + dst_adv()
        else:
            g, adv = kv_dma("K", ("T", 1))
        first = Task([], "S", rel=start - 10, deps=[(bar[cidx], 0)] + ([(prev_dma, 0)] if prev_dma else []), name="dmastart")
        tasks.append(first)
        prev_dma = add_dma(tasks, g, adv, first, start - 10, start + 56, spread=4)
    start = 480
    dead = Task(wait_bar([], ("XR", 6)), "BAR", deps=[(lastx[6], 4)], name="dead")
    tasks.append(dead)
    sc = Task(salu(f"s_mov_b32 s{sT3}, {QSCALE:#x}"), "S", rel=start, name="sc")
    tasks.append(sc)
    for blk in range(10):
        for t in range(4):
            s = qacc(blk, t)
            done = start + blk * 8 + 4 + t
            ms = [Task(valu(f"v_mul_f32 v{s + r}, s{sT3}, v{s + r}"), "V", rel=done + MLAT, deps=[(sc, 1)], name="qmul") for r in range(4)]
            c0 = Task(valu(f"v_cvt_pk_bf16_f32 v{s}, v{s}, v{s + 1}"), "V", deps=[(ms[0], 0), (ms[1], 0)], name="qcv")
            c1 = Task(valu(f"v_cvt_pk_bf16_f32 v{s + 1}, v{s + 2}, v{s + 3}"), "V", deps=[(ms[2], 0), (ms[3], 0), (c0, 0)], name="qcv")
            w = ds_w64(vU[0] if blk < 8 else vU[1], ("v", s), (blk & 7) * 8192 + (t >> 1) * 1024 + (t & 1) * 512)
            wt = Task(w, "L", deps=[(c1, 0), (dead, 0)], name="qwr")
            tasks += ms + [c0, c1, wt]
    gaps = schedule(mf, tasks, verbose=True)
    for k, m in enumerate(marks):
        mf[m].mark = ("Q", k)
    return linearize(mf, gaps)


def q_finish():
    c = []
    S = lambda t: c.append(salu(t))
    V = lambda t: c.append(valu(t))
    S(f"s_lshl_b32 s{sT0}, s{sXW}, 14")
    S(f"s_sub_u32 s{sT0}, {3 * SLOT + 16384}, s{sT0}")
    for k in range(4):
        V(f"v_add_u32 v{VA[k]}, s{sT0}, v{LV[k]}")
    V(f"v_lshrrev_b32 v{vT0}, 3, v{vLANE}")
    V(f"v_mul_u32_u24 v{vT0}, 896, v{vT0}")
    V(f"v_and_b32 v{vWt}, 0x70, v{vV}")
    V(f"v_add_u32 v{vWt}, v{vWt}, v{vT0}")
    S(f"s_lshl_b32 s{sE6}, s{sW}, 13")
    c.append(I("s_waitcnt lgkmcnt(0)", "W"))
    for r in list(range(NEGM[0], NEGM[0] + 12)) + LS:
        V(f"v_mov_b32 v{r}, 0")
    c += wait_bar([("T", -1)], None)
    return c


sites = []


def rowmax_tasks(tasks, src, t, u, dep, name):
    seq = [f"v_max3_f32 v{t}, v{src}, v{src + 1}, v{src + 2}", f"v_max_f32 v{t}, v{t}, v{src + 3}", f"v_mov_b32 v{u}, v{t}",
           f"v_permlane32_swap_b32 v{t}, v{u}", f"v_max_f32 v{t}, v{t}, v{u}", f"v_mov_b32 v{u}, v{t}",
           f"v_permlane16_swap_b32 v{t}, v{u}", f"v_max_f32 v{t}, v{t}, v{u}", f"v_ceil_f32 v{t}, v{t}"]
    prev = dep
    for x in seq:
        i = valu(x)
        tk = Task(i, "V", deps=[(prev, 1 if i.kind == "P" else 0)], name=name)
        tasks.append(tk)
        prev = tk
    return prev


def main_phase():
    NS = 35
    mf, tasks = [], []
    nfrag = 0
    start, chain_first, chain_last, plan, qfirst = {}, {}, {}, [], {}
    for j in range(NS):
        start[j] = len(mf)
        for gam in range(16):
            kt, ks = gam >> 3, gam & 7
            if j <= 31:
                f = FB + (nfrag % 16) * 4
                nfrag += 1
                plan.append(("K", j, gam, f, len(mf)))
                for blk in ((0, 1, 2) if j & 1 else (0, 1)):
                    d = ("v", Sreg(j, kt, blk))
                    qfirst.setdefault((blk, ks), len(mf))
                    mf.append(mfma(d, ("a", f), ("v", QB[blk] + 4 * ks), ("v", NEGM[blk]) if ks == 0 else d))
                    chain_first.setdefault((j, kt), len(mf) - 1)
                    chain_last[(j, kt, blk)] = len(mf) - 1
            if j >= 3:
                f = FB + (nfrag % 16) * 4
                nfrag += 1
                plan.append(("V", j, gam, f, len(mf)))
                for blk in ((0, 1, 2) if (j & 1) == 0 else (0, 1)):
                    d = ("a", OB[blk] + 4 * gam)
                    mf.append(mfma(d, ("a", f), ("v", Preg(j - 3, blk)), 0 if j == (3 if blk < 2 else 4) else d))
    start[NS] = start[NS + 1] = len(mf)
    bar, aup, lastread, lastaddr = {}, {}, {}, {}
    qlast = None
    for (blk, ks), c0 in sorted(qfirst.items(), key=lambda x: x[1]):
        i = ds_r128(("v", QB[blk] + 4 * ks), QA[blk], ks * 1024)
        i.tag = ("QS", 0)
        first = c0 < 8
        qlast = Task(i, "L", rel=-1, dl=-1 if first else min(c0 - 6, 22), deps=[(qlast, 0)] if qlast else [], name="qrd")
        tasks.append(qlast)
    bar[0] = Task(wait_bar([], ("QS", 0)), "BAR", deps=[(qlast, 4)], name="barq")
    tasks.append(bar[0])
    st = dict(sd=None, aups=[])
    done_steps = set()

    def tile_of(kind, j):
        return ("K", j >> 1) if kind == "K" else ("V", (j - 3) >> 1)

    def enter(j):
        done_steps.add(j)
        sw = "K" if j % 2 == 0 else "V"
        old = tile_of(sw, j - 1)
        newvalid = (sw == "K" and j <= 30) or (sw == "V" and 3 <= j <= 33)
        vm = [("T", j - 1)] if newvalid else []
        deps, lg = [], None
        if old in lastread:
            deps.append((lastread[old], 3))
            lg = old
        if vm or lg:
            pb = max(k for k in bar)
            bar[j] = Task(wait_bar(vm, lg), "BAR", rel=start[j] - DIST + 4, dl=start[j] - 8, deps=deps + [(bar[pb], 1)], name=f"bar{j}")
            tasks.append(bar[j])
        sd0 = Task([salu(f"s_bitcmp1_b64 s[{sPat}:{sPat + 1}], 0"), salu(f"s_cselect_b32 s{sD}, s{sC2}, s{sC1}")], "S", rel=start[j - 1] + 8,
                   deps=[(t, 0) for t in st["aups"]] + ([(st["sd"], 0)] if st["sd"] else []), name="sd")
        sd0.ins[0].wr = [("scc", 0)]
        sd = Task(salu(f"s_lshr_b64 s[{sPat}:{sPat + 1}], s[{sPat}:{sPat + 1}], 1"), "S", deps=[(sd0, 0)], name="sd")
        tasks.extend([sd0, sd])
        st["sd"], st["aups"] = sd, []
        for kind, regs in (("K", KA), ("V", VA)):
            if not ((kind == "K" and 1 <= j <= 31) or (kind == "V" and 4 <= j <= 34)):
                continue
            for r in regs:
                t = Task(valu(f"v_add_u32 v{r}, s{sD if kind == sw else sHalf}, v{r}"), "V", deps=[(sd0, 1), (lastaddr[r], 0)], name="aup")
                aup[(j, r)] = t
                tasks.append(t)
                st["aups"].append(t)

    for kind, j, gam, f, c0 in plan:
        if j >= 1 and j not in done_steps:
            enter(j)
        kt, ks = gam >> 3, gam & 7
        if kind == "K":
            a = KA[ks & 1]
            ins = [ds_r128(("a", f), a, (ks >> 1) * 4096 + kt * 2048)]
        else:
            a = VA[gam & 3]
            ins = [ds_rtr(("a", f), a, (gam >> 2) * 4096), ds_rtr(("a", f + 2), a, (gam >> 2) * 4096 + 2048)]
        tl = tile_of(kind, j)
        for i in ins:
            i.tag = tl
            deps = []
            swj = j if (kind == "K") == (j % 2 == 0) else j - 1
            if swj in bar and swj > 0:
                deps.append((bar[swj], 0))
            if (j, a) in aup:
                deps.append((aup[(j, a)], 1))
            if a in lastaddr:
                deps.append((lastaddr[a], 0))
            first = c0 < 8
            t = Task(i, "L", rel=-1 if first else c0 - DIST, dl=-1 if first else c0 - 5, deps=deps, name=f"rd{kind}{j}.{gam}")
            tasks.append(t)
            lastread[tl] = t
            lastaddr[a] = t
    prev = None
    for j in range(NS):
        n = j + 2
        if n <= 32 and n != 31:
            g, adv = kv_dma("K" if n & 1 else "V", ("T", n))
        elif n in (31, 33):
            g, adv = wo_dma((n - 31) // 2, (n + 1) % 5)
            adv = dst_adv()
        else:
            continue
        pb = max(k for k in bar if k <= j)
        first = Task([], "S", rel=start[j] - 6, deps=[(bar[pb], 0)] + ([(prev, 0)] if prev else []), name="dmastart")
        tasks.append(first)
        L = start[j + 1] - start[j]
        dl = start[j + 1] - DIST if j >= 2 else start[j + 2] - DIST
        prev = add_dma(tasks, g, adv, first, start[j] - 6, dl, spread=max(3, (L - DIST) // 9))
    ecount, econs, prev_branch, prev_ladd = 0, {}, None, {}
    for j in range(32):
        blks = (0, 1, 2) if j & 1 else (0, 1)
        dl_chk = chain_first[(j + 2, 0)] - 1 if j + 2 <= 31 else start[j + 3] - 4
        allcv, tsdep, fix = [], {}, {}
        for blk in blks:
            if (j == 0 and blk < 2) or (j == 1 and blk == 2):
                t, u = ET + 2 * (blk & 1), ET + 2 * (blk & 1) + 1
                base = Task([], "V", rel=chain_last[(j, 0, blk)] + MLAT, deps=[(prev_branch, 0)] if prev_branch else [], name="mx0")
                tasks.append(base)
                last = rowmax_tasks(tasks, Sreg(j, 0, blk), t, u, base, "mx")
                nm = [Task(valu(f"v_sub_f32 v{NEGM[blk] + r}, 0, v{t}"), "V", rel=chain_first[(j, 1)] + 6,
                           dl=chain_first[(j + (1 if blk < 2 else 2), 0)] - 3, deps=[(last, 0)], name="negm") for r in range(4)]
                tasks += nm
                for kt in range(2):
                    for r in range(4):
                        s = Sreg(j, kt, blk) + r
                        x = Task(valu(f"v_sub_f32 v{s}, v{s}, v{t}"), "V", rel=chain_last[(j, kt, blk)] + MLAT, deps=[(last, 0)], name="sfix")
                        tasks.append(x)
                        fix[(kt, blk, r)] = x
                        econs.setdefault(t - ET, []).append(x)
                econs.setdefault(t - ET, []).extend(nm)
                econs.setdefault(u - ET, []).append(last)
        for kt in range(2):
            for blk in blks:
                ts = TS[j & 1][blk]
                for pr in range(2):
                    es = []
                    for r in (2 * pr, 2 * pr + 1):
                        e = ecount % 8
                        ecount += 1
                        deps = [(x, 0) for x in econs.get(e, [])] + ([(prev_branch, 0)] if prev_branch else [])
                        if (kt, blk, r) in fix:
                            deps.append((fix[(kt, blk, r)], 1))
                        t = Task(valu(f"v_exp_f32 v{ET + e}, v{Sreg(j, kt, blk) + r}"), "E", rel=chain_last[(j, kt, blk)] + MLAT, deps=deps, name=f"exp{j}.{kt}")
                        tasks.append(t)
                        econs[e] = []
                        es.append((e, t))
                    (e0, t0), (e1, t1) = es
                    cv = Task(valu(f"v_cvt_pk_bf16_f32 v{Preg(j, blk) + 2 * kt + pr}, v{ET + e0}, v{ET + e1}"), "V", deps=[(t0, 1), (t1, 1)], name="cvt")
                    tasks.append(cv)
                    allcv.append(cv)
                    if blk not in tsdep:
                        ad = Task(valu(f"v_add_f32 v{ts}, v{ET + e0}, v{ET + e1}"), "V",
                                  deps=[(t0, 1), (t1, 1)] + ([(prev_ladd[(j & 1, blk)], 0)] if (j & 1, blk) in prev_ladd else []), name="add")
                        tasks.append(ad)
                        econs[e0] += [cv, ad]
                        econs[e1] += [cv, ad]
                        tsdep[blk] = ad
                    else:
                        a0 = Task(valu(f"v_add_f32 v{ts}, v{ET + e0}, v{ts}"), "V", deps=[(t0, 1), (tsdep[blk], 1)], name="add")
                        a1 = Task(valu(f"v_add_f32 v{ts}, v{ET + e1}, v{ts}"), "V", deps=[(t1, 1), (a0, 1)], name="add")
                        tasks += [a0, a1]
                        econs[e0] += [cv, a0]
                        econs[e1] += [cv, a1]
                        tsdep[blk] = a1
        tsr = [TS[j & 1][b] for b in blks]
        mx = Task(valu(f"v_max3_f32 v{vC}, v{tsr[0]}, v{tsr[1]}, v{tsr[2]}") if len(tsr) == 3 else valu(f"v_max_f32 v{vC}, v{tsr[0]}, v{tsr[1]}"),
                  "V", deps=[(t, 1) for t in tsdep.values()], name="mx")
        cmp_ = Task(valu(f"v_cmp_lt_f32 vcc, s{sThr}, v{vC}"), "V", deps=[(mx, 1)], name="cmp")
        br = Task([I(f"s_cbranch_vccnz L_slow_@{j}", "BR", [("vcc", 0)], [], tag=("site", j)), I(f"L_ret_@{j}:", "LAB", tag=("ret", j))],
                  "S", dl=dl_chk, deps=[(cmp_, 1)] + [(t, 0) for t in allcv] + [(t, 0) for t in prev_ladd.values()], name=f"br{j}")
        tasks += [mx, cmp_, br]
        for blk in blks:
            la = Task(valu(f"v_add_f32 v{LS[blk]}, v{TS[j & 1][blk]}, v{LS[blk]}"), "V", deps=[(br, 0)], dl=dl_chk + 12, name="ladd")
            tasks.append(la)
            prev_ladd[(j & 1, blk)] = la
        prev_branch = br
        sites.append(dict(j=j, task=br, blks=blks))
    gaps = schedule(mf, tasks, verbose=True)
    for s in sites:
        j, g = s["j"], s["task"].gap
        s["later_blk"] = {}
        for (jj, kt), idx in chain_first.items():
            if jj > j:
                for blk in ((0, 1, 2) if jj & 1 else (0, 1)):
                    if idx + blk <= g:
                        s["later_blk"].setdefault(blk, []).append(Sreg(jj, kt, blk))
        s["pend"] = [jj for jj in range(max(0, j - 3), j) if start[jj + 4] - 1 > g]
    for j in range(NS):
        mf[start[j]].mark = ("M", j)
    return linearize(mf, gaps)


def slow_path(s, name):
    c = []
    V = lambda t: c.append(valu(t))
    j = s["j"]
    c.append(I(f"L_slow_{name}:", "LAB"))
    c.append(nop(15))
    t, u, x, y = ET, ET + 1, ET + 2, ET + 3
    for blk in range(3):
        if blk not in s["blks"]:
            V(f"v_mov_b32 v{vF[blk]}, 1.0")
            continue
        s0, s1 = Sreg(j, 0, blk), Sreg(j, 1, blk)
        V(f"v_max3_f32 v{t}, v{s0}, v{s0 + 1}, v{s0 + 2}")
        V(f"v_max3_f32 v{t}, v{t}, v{s0 + 3}, v{s1}")
        V(f"v_max3_f32 v{t}, v{t}, v{s1 + 1}, v{s1 + 2}")
        V(f"v_max_f32 v{t}, v{t}, v{s1 + 3}")
        for sw in ("v_permlane32_swap_b32", "v_permlane16_swap_b32"):
            V(f"v_mov_b32 v{u}, v{t}")
            V(f"{sw} v{t}, v{u}")
            V(f"v_max_f32 v{t}, v{t}, v{u}")
        V(f"v_ceil_f32 v{t}, v{t}")
        V(f"v_max_f32 v{t}, 0, v{t}")
        V(f"v_exp_f32 v{vF[blk]}, -v{t}")
        for base in [NEGM[blk], s0, s1] + s["later_blk"].get(blk, []):
            for r in range(4):
                V(f"v_sub_f32 v{base + r}, v{base + r}, v{t}")
        for jj in s["pend"]:
            if blk == 2 and not (jj & 1):
                continue
            for r in range(4):
                p = Preg(jj, blk) + r
                V(f"v_lshlrev_b32 v{x}, 16, v{p}")
                V(f"v_and_b32 v{y}, 0xffff0000, v{p}")
                V(f"v_mul_f32 v{x}, v{x}, v{vF[blk]}")
                V(f"v_mul_f32 v{y}, v{y}, v{vF[blk]}")
                V(f"v_cvt_pk_bf16_f32 v{p}, v{x}, v{y}")
        ts = TS[j & 1][blk]
        V(f"v_mov_b32 v{ts}, 0")
        for kt in range(2):
            for pr in range(2):
                sr = Sreg(j, kt, blk) + 2 * pr
                V(f"v_exp_f32 v{x}, v{sr}")
                V(f"v_exp_f32 v{y}, v{sr + 1}")
                V(f"v_cvt_pk_bf16_f32 v{Preg(j, blk) + 2 * kt + pr}, v{x}, v{y}")
                V(f"v_add_f32 v{ts}, v{x}, v{ts}")
                V(f"v_add_f32 v{ts}, v{y}, v{ts}")
    return c


def slow_tail(names):
    c = []
    V = lambda t: c.append(valu(t))
    c.append(I("L_slow_tail:", "LAB"))
    for blk in range(3):
        V(f"v_mul_f32 v{LS[blk]}, v{LS[blk]}, v{vF[blk]}")
        for r in range(0, 64, 4):
            for k in range(4):
                c.append(AR(ET + k, OB[blk] + r + k))
            for k in range(4):
                V(f"v_mul_f32 v{ET + k}, v{ET + k}, v{vF[blk]}")
            for k in range(4):
                c.append(I(f"v_accvgpr_write_b32 a{OB[blk] + r + k}, v{ET + k}", "V", [("v", ET + k)], [("a", OB[blk] + r + k)]))
    c.append(nop(3))
    for k, nm in enumerate(names):
        c.append(salu(f"s_cmp_eq_u32 s{sSite}, {k}"))
        c.append(I(f"s_cbranch_scc1 L_ret_{nm}", "BR"))
    c.append(I(f"s_branch L_ret_{names[-1]}", "BR"))
    return c


def xsum(c, r, u):
    for sw in ("v_permlane32_swap_b32", "v_permlane16_swap_b32"):
        c += [valu(f"v_mov_b32 v{u}, v{r}"), valu(f"{sw} v{r}, v{u}"), valu(f"v_add_f32 v{r}, v{r}, v{u}")]


WFR = [192, 224, 64, 96, 128, 160, 0]
WSL = [2, 4, 3, 2, 4, 0, 1]


def wfrag_reads(c, o):
    off = WSL[o] * SLOT
    a = vU[2] if off < 65536 else (vU[3] if off < 131072 else vU[4])
    off &= 65535
    for kb in range(8):
        for e in range(2):
            c.append(ds_rtr(("a", WFR[o] + 4 * kb + 2 * e), a, off + kb * 4096 + e * 2048))


def flag_store(c, val, lab):
    c.append(salu(f"s_cmp_lg_u32 s{sW}, 0"))
    c.append(I(f"s_cbranch_scc1 {lab}", "BR"))
    c.append(valu(f"v_mov_b32 v{vT0}, {val}"))
    c.append(valu(f"v_mov_b32 v{vT1}, 0"))
    c.append(raw(f"buffer_store_byte v{vT0}, v{vT1}, s[{sDBG}:{sDBG + 3}], s{sID} offen sc0 sc1", "X"))
    c.append(I(f"{lab}:", "LAB"))


def merge_coef(c, nm_o, l_o, pst, co, cp, t):
    V = lambda x: c.append(valu(x))
    V(f"v_min_f32 v{t}, v{nm_o}, v{pst}")
    V(f"v_sub_f32 v{co}, v{t}, v{nm_o}")
    V(f"v_sub_f32 v{cp}, v{t}, v{pst}")
    V(f"v_exp_f32 v{co}, v{co}")
    V(f"v_exp_f32 v{cp}, v{cp}")
    V(f"v_mul_f32 v{t}, v{co}, v{l_o}")
    V(f"v_fmac_f32 v{t}, v{cp}, v{pst + 1}")
    V(f"v_rcp_f32 v{t}, v{t}")
    V(f"v_mul_f32 v{co}, v{co}, v{t}")
    V(f"v_mul_f32 v{cp}, v{cp}, v{t}")


def tail():
    c = []
    S = lambda t: c.append(salu(t))
    V = lambda t: c.append(valu(t))
    W = lambda t: c.append(I(f"s_waitcnt {t}", "W"))
    BAR = lambda: c.append(I("s_barrier", "B"))
    srd(c, sDBG, 12, 256)
    srd(c, sOUT, 10, 8 * 160 * 448 * 2)
    S(f"s_mul_i32 s{sE0}, s{sID}, {EX_WG}")
    S(f"s_xor_b32 s{sT0}, s{sID}, 16")
    S(f"s_mul_i32 s{sE1}, s{sT0}, {EX_WG}")
    S(f"s_add_u32 s{sT1}, s{sE0}, s{sE6}")
    S(f"s_add_u32 s{sT2}, s{sT1}, 4096")
    S(f"s_lshl_b32 s{sT3}, s{sW}, 9")
    S(f"s_add_u32 s{sT3}, s{sT3}, s{sE0}")
    S(f"s_add_u32 s{sT3}, s{sT3}, 40960")
    V(f"v_lshlrev_b32 v{vT2}, 3, v{vLANE}")
    for blk in range(3):
        xsum(c, LS[blk], ET)
    for T in range(16):
        for r in range(4):
            c.append(AR(SB + r, OB[1] + 4 * T + r))
        V(f"v_cvt_pk_bf16_f32 v{QB[1] + 2 * T}, v{SB}, v{SB + 1}")
        V(f"v_cvt_pk_bf16_f32 v{QB[1] + 2 * T + 1}, v{SB + 2}, v{SB + 3}")
        if T & 1:
            kb = T >> 1
            c.append(bstore(4, ("v", QB[1] + 4 * kb), vST, sWS, sT1 if kb < 4 else sT2, (kb & 3) * 1024, STF))
    V(f"v_mov_b32 v{ET}, v{NEGM[1]}")
    V(f"v_mov_b32 v{ET + 1}, v{LS[1]}")
    c.append(bstore(2, ("v", ET), vT2, sWS, sT3, 0, STF))
    S(f"s_lshl_b32 s{sT0}, s{sW}, 5")
    V(f"v_xor_b32 v{vU[2]}, s{sT0}, v{LV[0]}")
    V(f"v_add_u32 v{vU[3]}, 0x10000, v{vU[2]}")
    V(f"v_add_u32 v{vU[4]}, 0x20000, v{vU[2]}")
    V(f"v_add_u32 v{KA[0]}, s{sE6}, v{vST}")
    V(f"v_xor_b32 v{KA[1]}, 16384, v{KA[0]}")
    S(f"s_lshl_b32 s{sT0}, s{sW}, 9")
    S(f"s_add_u32 s{sT0}, s{sT0}, {SLOT}")
    V(f"v_add_u32 v{XA[0]}, s{sT0}, v{vT2}")
    V(f"v_xor_b32 v{XA[1]}, 1024, v{XA[0]}")
    V(f"v_mov_b32 v{ET + 2}, v{NEGM[2]}")
    V(f"v_mov_b32 v{ET + 3}, v{LS[2]}")
    W("lgkmcnt(0)")
    c += wait_bar([("WO", 1)], None)
    emit_serial(c, *wo_dma(2, WSL[2]))
    HK = 192
    S(f"s_cmp_eq_u32 s{sXW}, 0")
    c.append(I("s_cbranch_scc1 L_h0", "BR"))
    for half, lab, nxt in ((1, None, "L_h1"), (0, "L_h0", None)):
        if lab:
            c.append(I(f"{lab}:", "LAB"))
        for T in range(8):
            i = ds_w128(KA[0], ("a", OB[2] + 32 * (1 - half) + 4 * T), T * 1024)
            if half == 1:
                i.kind = "X"
            c.append(i)
        for r in range(32):
            c.append(AR(HK + r, OB[2] + 32 * half + r))
        if nxt:
            c.append(I(f"s_branch {nxt}", "BR"))
    c.append(I("L_h1:", "LAB"))
    c.append(ds_w64(XA[0], ("v", ET + 2), 0))
    wfrag_reads(c, 0)
    wfrag_reads(c, 1)
    W("lgkmcnt(0)")
    BAR()
    c.append(ds_r64(("v", ET + 4), XA[1], 0))
    for T in range(8):
        c.append(ds_r128(("v", SB + 4 * T), KA[1], T * 1024))
    nm, a_o, a_p = ET + 6, ET + 7, vC
    V(f"v_min_f32 v{nm}, v{ET + 2}, v{ET + 4}")
    V(f"v_sub_f32 v{a_o}, v{nm}, v{ET + 2}")
    V(f"v_sub_f32 v{a_p}, v{nm}, v{ET + 4}")
    V(f"v_exp_f32 v{a_o}, v{a_o}")
    V(f"v_exp_f32 v{a_p}, v{a_p}")
    V(f"v_mov_b32 v{ET + 2}, v{nm}")
    V(f"v_mul_f32 v{ET + 3}, v{a_o}, v{ET + 3}")
    V(f"v_fmac_f32 v{ET + 3}, v{a_p}, v{ET + 5}")
    S(f"s_lshl_b32 s{sT0}, s{sXW}, 12")
    S(f"s_add_u32 s{sT0}, s{sT0}, 32768")
    S(f"s_lshl_b32 s{sT1}, s{sXW}, 9")
    S(f"s_add_u32 s{sT1}, s{sT1}, 43008")
    S(f"s_cmp_eq_u32 s{sHW}, 1")
    S(f"s_cselect_b32 s{sT2}, s{sE0}, {OOB:#x}")
    S(f"s_cselect_b32 s{sT3}, {OOB:#x}, s{sE1}")
    S(f"s_add_u32 s{sE2}, s{sT3}, s{sT0}")
    S(f"s_add_u32 s{sE3}, s{sT3}, s{sT1}")
    S(f"s_add_u32 s{sT0}, s{sT2}, s{sT0}")
    S(f"s_add_u32 s{sT1}, s{sT2}, s{sT1}")
    for T in range(8):
        for r in range(4):
            V(f"v_mul_f32 v{HK + 4 * T + r}, v{a_o}, v{HK + 4 * T + r}")
        for r in range(4):
            V(f"v_fmac_f32 v{HK + 4 * T + r}, v{a_p}, v{SB + 4 * T + r}")
        V(f"v_cvt_pk_bf16_f32 v{QB[2] + 2 * T}, v{HK + 4 * T}, v{HK + 4 * T + 1}")
        V(f"v_cvt_pk_bf16_f32 v{QB[2] + 2 * T + 1}, v{HK + 4 * T + 2}, v{HK + 4 * T + 3}")
        if T & 1:
            c.append(bstore(4, ("v", QB[2] + 2 * (T - 1)), vST, sWS, sT0, (T >> 1) * 1024, STF))
    i = bstore(2, ("v", ET + 2), vT2, sWS, sT1, 0, STF)
    c.append(i)
    emit_serial(c, *wo_dma(3, WSL[3]))
    emit_serial(c, *wo_dma(4, WSL[4]))
    OWN = 128
    for r in range(64):
        c.append(AR(OWN + r, OB[0] + r))
    W("vmcnt(16)")
    BAR()
    flag_store(c, 1, "L_f1")
    emit_serial(c, *wo_dma(5, WSL[5]))
    emit_serial(c, *wo_dma(6, WSL[6]))
    S(f"s_mul_i32 s{sT0}, s{sH}, 288")
    S(f"s_mul_i32 s{sT1}, s{sW}, 72")
    S(f"s_add_u32 s{sT0}, s{sT0}, s{sT1}")
    S(f"s_lshr_b32 s{sT1}, s{sH}, 2")
    S(f"s_mul_i32 s{sT2}, s{sT1}, 18")
    S(f"s_lshl_b32 s{sT1}, s{sT1}, 5")
    S(f"s_mul_i32 s{sT3}, s{sB}, 160")
    S(f"s_lshl_b32 s{sD}, s{sSP}, 4")
    S(f"s_add_u32 s{sT3}, s{sT3}, s{sD}")
    S(f"s_mul_i32 s{sT3}, s{sT3}, 896")
    S(f"s_add_u32 s{sT3}, s{sT3}, s{sT1}")
    RI, RA, RB = [QA[0], QA[1]], [QA[2], vU[0]], [vU[1], vX]
    for n in range(2):
        g, k, x, y = vK0, vK1, vV, vT0
        V(f"v_add_u32 v{g}, s{sT0}, v{vLANE}")
        if n:
            V(f"v_add_u32 v{g}, 64, v{g}")
        V(f"v_lshlrev_b32 v{RI[n]}, 4, v{g}")
        V(f"v_lshrrev_b32 v{k}, 6, v{g}")
        V(f"v_subrev_u32 v{k}, s{sT2}, v{k}")
        V(f"v_and_b32 v{x}, 15, v{g}")
        V(f"v_mul_u32_u24 v{x}, 896, v{x}")
        V(f"v_bfe_u32 v{y}, v{g}, 4, 2")
        V(f"v_lshl_add_u32 v{x}, v{y}, 3, v{x}")
        V(f"v_add_u32 v{x}, s{sT3}, v{x}")
        V(f"v_lshrrev_b32 v{y}, 1, v{k}")
        V(f"v_lshlrev_b32 v{y}, 7, v{y}")
        V(f"v_and_b32 v{g}, 1, v{k}")
        V(f"v_mul_u32_u24 v{g}, {64 * 896}, v{g}")
        V(f"v_add_u32 v{y}, v{y}, v{g}")
        V(f"v_lshlrev_b32 v{g}, 8, v{k}")
        V(f"v_add_u32 v{g}, {128 * 896 - 14 * 256}, v{g}")
        V(f"v_cmp_gt_u32 vcc, 14, v{k}")
        V(f"v_cndmask_b32 v{y}, v{g}, v{y}, vcc")
        V(f"v_add_u32 v{RA[n]}, v{x}, v{y}")
        V(f"v_mov_b32 v{g}, 128")
        V(f"v_mov_b32 v{y}, {32 * 896}")
        V(f"v_cndmask_b32 v{y}, v{g}, v{y}, vcc")
        V(f"v_add_u32 v{RB[n]}, v{RA[n]}, v{y}")
        V(f"v_mov_b32 v{g}, {OOB:#x}")
        V(f"v_cmp_eq_u32 vcc, 17, v{k}")
        V(f"v_cndmask_b32 v{RB[n]}, v{RB[n]}, v{g}, vcc")
        if n:
            V(f"v_cmp_gt_u32 vcc, 8, v{vLANE}")
            for r in (RI[1], RA[1], RB[1]):
                V(f"v_cndmask_b32 v{r}, v{g}, v{r}, vcc")
    W("vmcnt(0)")
    BAR()
    for o in range(2, 7):
        wfrag_reads(c, o)
    S(f"s_xor_b32 s{sT0}, s{sID}, 16")
    S(f"s_cmp_lg_u32 s{sW}, 0")
    c.append(I("s_cbranch_scc1 L_p1d", "BR"))
    S(f"s_mov_b32 s{sCnt}, 0")
    V(f"v_mov_b32 v{vT1}, 0")
    c.append(I("L_p1:", "LAB"))
    c.append(raw(f"buffer_load_ubyte v{vT0}, v{vT1}, s[{sDBG}:{sDBG + 3}], s{sT0} offen sc0 sc1", "X"))
    S(f"s_add_u32 s{sCnt}, s{sCnt}, 1")
    c.append(raw("s_waitcnt vmcnt(0)", "X"))
    V(f"v_readfirstlane_b32 s{sT1}, v{vT0}")
    S(f"s_cmp_gt_u32 s{sCnt}, 2000000")
    c.append(I("s_cbranch_scc1 L_p1d", "BR"))
    S(f"s_cmp_eq_u32 s{sT1}, 0")
    c.append(I("s_cbranch_scc1 L_p1", "BR"))
    c.append(I("L_p1d:", "LAB"))
    W("lgkmcnt(0)")
    BAR()
    c += stamp(5)
    PF, PH, OF, OH = 32, 64, 96, 80
    S(f"s_add_u32 s{sT1}, s{sE1}, s{sE6}")
    S(f"s_add_u32 s{sT2}, s{sT1}, 4096")
    S(f"s_lshl_b32 s{sT3}, s{sW}, 9")
    S(f"s_add_u32 s{sT3}, s{sT3}, s{sE1}")
    S(f"s_add_u32 s{sT3}, s{sT3}, 40960")
    c.append(bload(2, ("v", ET), vT2, sWS, sT3, 0, LDF))
    c.append(bload(2, ("v", ET + 4), vT2, sWS, sE3, 0, LDF))
    for kb in range(8):
        c.append(bload(4, ("v", PF + 4 * kb), vST, sWS, sT1 if kb < 4 else sT2, (kb & 3) * 1024, LDF))
    for kb in range(4):
        c.append(bload(4, ("v", PH + 4 * kb), vST, sWS, sE2, kb * 1024, LDF))
    S(f"s_lshl_b32 s{sT0}, s{sXW}, 12")
    S(f"s_lshl_b32 s{sT1}, s{sHW}, 13")
    S(f"s_add_u32 s{sT0}, s{sT0}, s{sT1}")
    S(f"s_add_u32 s{sT0}, s{sT0}, 32768")
    V(f"v_add_u32 v{KA[1]}, s{sT0}, v{vST}")
    W("vmcnt(12)")
    co, cp, ch, cq = TS[0][0], TS[0][1], TS[0][2], TS[1][0]
    merge_coef(c, NEGM[0], LS[0], ET, co, cp, vC)
    merge_coef(c, ET + 2, ET + 3, ET + 4, ch, cq, vC)
    for r in range(64):
        V(f"v_mul_f32 v{OWN + r}, v{co}, v{OWN + r}")
    for r in range(32):
        V(f"v_mul_f32 v{HK + r}, v{ch}, v{HK + r}")
    for own, pay, outr, n, cc, addr, base in ((OWN, PF, OF, 8, cp, KA[0], 11), (HK, PH, OH, 4, cq, KA[1], 3)):
        for kb in range(n):
            W(f"vmcnt({base - kb})")
            for r in range(4):
                p = pay + 4 * kb + r
                o = own + 8 * kb + 2 * r
                V(f"v_lshlrev_b32 v{ET + 6}, 16, v{p}")
                V(f"v_and_b32 v{ET + 7}, 0xffff0000, v{p}")
                V(f"v_fmac_f32 v{o}, v{cc}, v{ET + 6}")
                V(f"v_fmac_f32 v{o + 1}, v{cc}, v{ET + 7}")
                V(f"v_cvt_pk_bf16_f32 v{outr + 4 * kb + r}, v{o}, v{o + 1}")
            c.append(ds_w128(addr, ("v", outr + 4 * kb), kb * 1024))
    S(f"s_mul_i32 s{sE0}, s{sID}, {PART_WG}")
    S(f"s_mul_i32 s{sT0}, s{sW}, {18 * 1024}")
    S(f"s_add_u32 s{sE0}, s{sE0}, s{sT0}")
    S(f"s_add_u32 s{sE0}, s{sE0}, {PART0}")
    S(f"s_add_u32 s{sE1}, s{sE0}, {14 * 1024}")
    W("lgkmcnt(0)")
    BAR()
    return c


def o_phase():
    mf, tasks = [], []
    OF = lambda blk, kb: 32 + (blk * 8 + kb) * 4
    ACC = [192, 212]
    PK = [[232, 236], [240, 244]]
    HST = 248
    prev = None
    for kb in range(8):
        for blk in range(5):
            c0 = kb * 5 + blk
            prev = Task(ds_r128(("v", OF(blk, kb)), vST, blk * 8192 + kb * 1024), "L", rel=-1, dl=-1 if c0 < 10 else c0 - 8,
                        deps=[(prev, 0)] if prev else [], name="ord")
            tasks.append(prev)
    prev_st = {}
    prev_inc = None
    for o in range(7):
        p = o & 1
        firstm = len(mf)
        for kb in range(8):
            for blk in range(5):
                d = ("v", ACC[p] + 4 * blk)
                mf.append(mfma(d, ("a", WFR[o] + 4 * kb), ("v", OF(blk, kb)), 0 if kb == 0 else d))
        dl = firstm + 80 - 3
        cvs = {}
        for blk in range(5):
            for h in range(2):
                dst, key = (HST + 2 * p + h, "H") if blk == 4 else (PK[p][blk >> 1] + 2 * (blk & 1) + h, (p, blk >> 1))
                s = ACC[p] + 4 * blk + 2 * h
                t = Task(valu(f"v_cvt_pk_bf16_f32 v{dst}, v{s}, v{s + 1}"), "V", rel=firstm + 35 + blk + MLAT, dl=dl,
                         deps=[(prev_st[key], 2)] if key in prev_st else [], name="cvt")
                tasks.append(t)
                cvs.setdefault(key, []).append(t)
        sts = []
        for pr in range(2):
            st = Task(bstore(4, ("v", PK[p][pr]), vST, sWS, sE0, p * 2048 + pr * 1024, STF), "D",
                      deps=[(t, 1) for t in cvs[(p, pr)]] + ([(prev_inc, 0)] if prev_inc else []), name="st")
            tasks.append(st)
            prev_st[(p, pr)] = st
            sts.append(st)
        if p == 0:
            hcv = cvs["H"]
            sts0 = sts
        if p == 1 or o == 6:
            st = Task(bstore(4, ("v", HST), vST, sWS, sE1, (o >> 1) * 1024, STF), "D", deps=[(t, 1) for t in hcv + cvs["H"]], name="stH")
            tasks.append(st)
            prev_st["H"] = st
            prev_inc = Task(salu(f"s_add_u32 s{sE0}, s{sE0}, 4096"), "S", deps=[(t, 0) for t in sts + sts0], name="inc")
            tasks.append(prev_inc)
    gaps = schedule(mf, tasks, verbose=True)
    for o in range(7):
        mf[40 * o].mark = ("N", o)
    return linearize(mf, gaps)


def final():
    c = []
    S = lambda t: c.append(salu(t))
    V = lambda t: c.append(valu(t))
    W = lambda t: c.append(I(f"s_waitcnt {t}", "W"))
    RI, RA, RB = [QA[0], QA[1]], [QA[2], vU[0]], [vU[1], vX]
    S(f"s_and_b32 s{sT0}, s{sID}, 0xf0")
    S(f"s_mul_i32 s{sE2}, s{sT0}, {PART_WG}")
    S(f"s_add_u32 s{sE2}, s{sE2}, {PART0}")
    W("vmcnt(0)")
    c.append(I("s_barrier", "B"))
    S(f"s_cmp_lg_u32 s{sW}, 0")
    c.append(I("s_cbranch_scc1 L_p2d", "BR"))
    V(f"v_mov_b32 v{vT0}, 3")
    V(f"v_mov_b32 v{vT1}, 0")
    c.append(raw(f"buffer_store_byte v{vT0}, v{vT1}, s[{sDBG}:{sDBG + 3}], s{sID} offen sc0 sc1", "X"))
    S(f"s_mov_b32 s{sCnt}, 0")
    c.append(I("L_p2:", "LAB"))
    c.append(raw(f"buffer_load_dwordx4 v[32:35], v{vT1}, s[{sDBG}:{sDBG + 3}], s{sT0} offen sc0 sc1", "X"))
    S(f"s_add_u32 s{sCnt}, s{sCnt}, 1")
    c.append(raw("s_waitcnt vmcnt(0)", "X"))
    V("v_and_b32 v32, v32, v33")
    V("v_and_b32 v34, v34, v35")
    V("v_and_b32 v32, v32, v34")
    V(f"v_readfirstlane_b32 s{sT1}, v32")
    S(f"s_cmp_gt_u32 s{sCnt}, 2000000")
    c.append(I("s_cbranch_scc1 L_p2d", "BR"))
    S(f"s_and_b32 s{sT1}, s{sT1}, 0x02020202")
    S(f"s_cmp_lg_u32 s{sT1}, 0x02020202")
    c.append(I("s_cbranch_scc1 L_p2", "BR"))
    c.append(I("L_p2d:", "LAB"))
    c.append(I("s_barrier", "B"))
    c += stamp(7)
    for p in range(16):
        for n in range(2):
            c.append(bload(4, ("v", 32 + (n * 16 + p) * 4), RI[n], sWS, sE2, 0, LDF))
        S(f"s_add_u32 s{sE2}, s{sE2}, {PART_WG}")
    A0 = 192
    for p in range(16):
        W(f"vmcnt({30 - 2 * p})")
        for n in range(2):
            for r in range(4):
                x = 32 + (n * 16 + p) * 4 + r
                a = A0 + n * 8 + 2 * r
                if p == 0:
                    V(f"v_lshlrev_b32 v{a}, 16, v{x}")
                    V(f"v_and_b32 v{a + 1}, 0xffff0000, v{x}")
                else:
                    V(f"v_lshlrev_b32 v{ET}, 16, v{x}")
                    V(f"v_and_b32 v{ET + 1}, 0xffff0000, v{x}")
                    V(f"v_add_f32 v{a}, v{a}, v{ET}")
                    V(f"v_add_f32 v{a + 1}, v{a + 1}, v{ET + 1}")
    for n in range(2):
        for r in range(4):
            V(f"v_cvt_pk_bf16_f32 v{A0 + 16 + n * 4 + r}, v{A0 + n * 8 + 2 * r}, v{A0 + n * 8 + 2 * r + 1}")
        c.append(bstore(2, ("v", A0 + 16 + n * 4), RA[n], sOUT, "0", 0))
        c.append(bstore(2, ("v", A0 + 16 + n * 4 + 2), RB[n], sOUT, "0", 0))
    return c


def norm(ins):
    t = ins.text
    if "@" in t:
        a, b = t.split("@")
        return f"{a}@{int(b.rstrip(':')) % 4}"
    return t


def fold(code):
    segs, cur, keys, key = [], [], [], None
    for ins in code:
        if ins.kind == "M" and ins.mark is not None:
            segs.append(cur)
            keys.append(key)
            cur, key = [], ins.mark
        if ins.kind == "LAB" and ins.tag and ins.tag[0] == "cut":
            segs.append(cur)
            keys.append(key)
            cur, key = [], None
            continue
        cur.append(ins)
    segs.append(cur)
    keys.append(key)
    print("; est cycles/seg:", [gap_cost(s) for s in segs])
    txt = [tuple(norm(i) for i in s) for s in segs]
    out, i, nloop, n = [], 0, 0, len(segs)
    sitekey = lambda s: (s["j"] % 4, tuple(sorted((b, tuple(v)) for b, v in s["later_blk"].items())), tuple(x % 4 for x in s["pend"]), s["blks"])
    sinfo = {s["j"]: s for s in sites}
    sites_in = lambda seg: [sitekey(sinfo[x.tag[1]]) for x in seg if x.kind == "BR" and x.tag and x.tag[0] == "site"]
    while i < n:
        k = 1
        if keys[i] is not None:
            p = {"M": 4, "Q": 2}.get(keys[i][0], 1)
            while i + (k + 1) * p <= n and all(keys[i + k * p + r] is not None and txt[i + k * p + r] == txt[i + r] and
                                               sites_in(segs[i + k * p + r]) == sites_in(segs[i + r]) for r in range(p)):
                k += 1
        if k >= 2:
            out.append(salu(f"s_mov_b32 s{sCnt}, {k}"))
            out.append(I(f"L_loop{nloop}:", "LAB"))
            for r in range(p):
                out += segs[i + r]
            out += [salu(f"s_sub_u32 s{sCnt}, s{sCnt}, 1"), salu(f"s_cmp_lg_u32 s{sCnt}, 0"), I(f"s_cbranch_scc1 L_loop{nloop}", "BR")]
            nloop += 1
            i += p * k
        else:
            out += segs[i]
            i += 1
    return out


def cut():
    return I("", "LAB", tag=("cut",))


def build():
    code = prologue() + stamp(1) + q_phase() + [cut()] + stamp(2) + q_finish() + stamp(3) + main_phase() + [cut()] + stamp(4)
    code += tail() + stamp(6) + o_phase() + [cut()] + final()
    if STAMP:
        nc = []
        for ins in code:
            nc.append(ins)
            if ins.kind == "M" and ins.mark is not None:
                nc += [raw("s_mov_b32 s100, s96"), I(f"v_mov_b32 v{vT0}, s100", "V"), I(f"v_cndmask_b32 v0, v0, v{vT0}, s[4:5]", "V"), raw("s_memtime s[96:97]"),
                       raw("s_lshl_b64 s[4:5], s[4:5], 1")]
        code = [raw("s_mov_b64 s[4:5], 1"), raw("s_mov_b32 s96, 0")] + nc
    code = insert_lgkm_waits(code, age=OPT["age"])
    code = resolve_vm_waits(code)
    code, nf = check_hazards(code)
    code = fold(code)
    names, slow = [], []
    sinfo = {s["j"]: s for s in sites}
    for ins in code:
        ins.text = ins.text.replace("@", "")
        if ins.kind == "BR" and ins.tag and ins.tag[0] == "site":
            j = ins.tag[1]
            sp = slow_path(sinfo[j], str(j)) + [salu(f"s_mov_b32 s{sSite}, {len(names)}"), I("s_branch L_slow_tail", "BR")]
            names.append(str(j))
            slow += check_hazards(sp)[0]
    slow += check_hazards(slow_tail(names))[0]
    fin = []
    if STAMP:
        fin.append(I("s_waitcnt vmcnt(0) lgkmcnt(0)", "W"))
        fin += [raw(f"s_memtime s[100:101]"), raw(f"s_memrealtime s[96:97]"), I("s_waitcnt lgkmcnt(0)", "W")]
        for t in (f"s_lshl_b32 s{sT0}, s2, 2", f"s_add_u32 s{sT0}, s{sT0}, s{sW}", f"s_lshl_b32 s{sT0}, s{sT0}, 6",
                  f"s_lshl_b32 s{sT1}, s{sT0}, 2", f"s_add_u32 s{sT0}, s{sT0}, {128 << 20}", f"s_add_u32 s{sT1}, s{sT1}, {132 << 20}"):
            fin.append(salu(t))
        fin.append(valu(f"v_mov_b32 v{vT0}, 0"))
        for k in range(8):
            fin.append(valu(f"v_mov_b32 v{128 + k}, s{sSt + 2 * k}"))
        fin += [valu("v_mov_b32 v136, s100"), valu("v_mov_b32 v137, s96"), valu("v_mov_b32 v138, s98")]
        for k in range(0, 12, 4):
            fin.append(bstore(4, ("v", 128 + k), vT0, sWS, sT0, k * 4))
        fin.append(valu(f"v_lshlrev_b32 v{vT1}, 2, v{vLANE}"))
        fin.append(bstore(1, ("v", 0), vT1, sWS, sT1, 0))
    NAME = "standalone__gqa_block_cached__near_ridge_kernel"
    hdr = open("standalone__gqa_block_cached__near_ridge.s.ref").read().split("; Override launch")[0]
    L = [hdr.rstrip()]
    A = L.append
    A("; @launch grid=(256,1,1) block=(256,1,1) lds=163840")
    A('.amdgcn_target "amdgcn-amd-amdhsa--gfx950"')
    A(".text")
    A(f".globl {NAME}")
    A(".p2align 8")
    A(f".type {NAME},@function")
    A(f"{NAME}:")
    A("s_cmp_ge_u32 s2, 256")
    A("s_cbranch_scc1 L_end")
    L += [i.text for i in code if i.text]
    L += [i.text for i in fin]
    A("L_end:")
    A("s_endpgm")
    L += [i.text for i in slow]
    A('.section .rodata,"a"')
    A(".p2align 6")
    A(f".amdhsa_kernel {NAME}")
    for t in ("next_free_vgpr 512", "next_free_sgpr 102", "accum_offset 256", "group_segment_fixed_size 0", "kernarg_size 64",
              "user_sgpr_count 2", "user_sgpr_kernarg_segment_ptr 1", "system_sgpr_workgroup_id_x 1"):
        A(f"  .amdhsa_{t}")
    A(".end_amdhsa_kernel")
    return "\n".join(L) + "\n"


if __name__ == "__main__":
    out = [a for a in sys.argv[1:] if a.endswith(".s")]
    open(out[0] if out else "k2.s", "w").write(build())
```

```python
import sys
from sched import *

OPT = dict(debug=None, stamp=0, dist=15, age=7, stf="sc1", ldf="sc1", pref=1)
for a in sys.argv[1:]:
    if "=" in a:
        k, v = a.split("=")
        OPT[k] = int(v) if v.lstrip("-").isdigit() else v
    elif a == "stamp":
        OPT["stamp"] = 1
STAMP, DEBUG = OPT["stamp"], OPT["debug"]
STF = " " + OPT["stf"].replace("+", " ") if OPT["stf"] else ""
LDF = " " + OPT["ldf"].replace("+", " ") if OPT["ldf"] else ""

sID = 3
sX, sK, sV, sWQ, sWO, sWS = 8, 12, 16, 20, 24, 28
sDBG, sOUT = 8, 20
sW, sXW, sHW, sB, sH, sSP = 32, 33, 34, 35, 36, 37
sKoff, sVoff, sDst, sDstLim, sDst0 = 38, 39, 40, 41, 42
sHalf, sC1, sC2, sD, sK2 = 43, 44, 45, 46, 47
sPat = 48
sT0, sT1, sT2, sT3 = 50, 51, 52, 53
sThr, sCnt, sSite = 54, 55, 56
sWoff, sXoff, sWdst, sXdst, sWrd, sXrd, sDX = 57, 58, 59, 60, 61, 62, 63
sE0, sE1, sE2, sE3, sE4, sE5, sE6 = 57, 58, 59, 60, 61, 62, 63
sArg = 64
sSt = 80

vLANE, vK0, vK1, vV, vWt, vX, vST = 1, 2, 3, 4, 5, 6, 7
KA = [8, 9]
XA = [10, 11]
VA = [12, 13, 14, 15]
QA = [16, 17, 18]
vU = [19, 20, 21, 22, 23]
LV = [24, 25, 26, 27]
LK0 = 28
vT0, vT1, vT2 = 29, 30, 31
QB = [32, 64, 96]
SB, PB = 128, 176
NEGM = [224, 228, 232]
ET = 236
TS = [[244, 245, 246], [247, 248, 249]]
LS = [250, 251, 252]
vC = 253
vF = [253, 254, 255]
OB = [0, 64, 128]
FB = 192
SLOT = 32768
XBASE, XSL = 3 * SLOT, 20480
EX_WG = 49152
PART0, PART_WG = 16 << 20, 73728
OOB = 0x7ff00000
QSCALE = 0x3DB8AA3B
DIST, MLAT = OPT["dist"], 5


def Sreg(j, kt, blk):
    return SB + ((2 * j + kt) % 4) * 12 + blk * 4


def Preg(j, blk):
    return PB + (j % 4) * 12 + blk * 4


def waitr(vm_keys, lg_key):
    return I("s_waitcnt <resolve>", "W", tag=("resolve", vm_keys, lg_key))


def wait_bar(vm_keys, lg_key):
    return [waitr(vm_keys, lg_key), I("s_barrier", "B")]


def stamp(k):
    return [raw(f"s_memtime s[{sSt + 2 * k}:{sSt + 2 * k + 1}]")] if STAMP else []


def pst():
    if not STAMP:
        return []
    return [raw("s_waitcnt lgkmcnt(0)", "W"), raw("s_mov_b32 s100, s96"), I("v_mov_b32 v255, s100", "V"), I("v_cndmask_b32 v0, v0, v255, s[4:5]", "V"),
            raw("s_memtime s[96:97]"), raw("s_lshl_b64 s[4:5], s[4:5], 1")]


def AR(v, a):
    return I(f"v_accvgpr_read_b32 v{v}, a{a}", "V", [("a", a)], [("v", v)])


def bload(n, dst, voff, srd, soff, imm, flags="", tag=None):
    suf = {1: "dword", 2: "dwordx2", 4: "dwordx4"}[n]
    t = f"buffer_load_{suf} {rtxt(dst[0], dst[1], n)}, v{voff}, s[{srd}:{srd + 3}], s{soff} offen offset:{imm}{flags}"
    return I(t, "D", [("v", voff), ("s", soff)] + R("s", srd, 4), R(dst[0], dst[1], n), tag=tag)


def srd(c, d, arg, size):
    for t in (f"s_mov_b32 s{d}, s{sArg + arg}", f"s_mov_b32 s{d + 1}, s{sArg + arg + 1}", f"s_mov_b32 s{d + 2}, {size}",
              f"s_mov_b32 s{d + 3}, 0x20000"):
        c.append(salu(t))


def q_dma(cidx):
    g = []
    for x in range(2):
        for t in range(4):
            rows = 32 * x + 16 * (t & 1) + 4 * (t >> 1)
            pre = [salu(f"s_add_u32 m0, s{sWdst}, {x * 16384}")] if t == 0 else []
            pre.append(salu(f"s_add_u32 s{sT0}, s{sWoff}, {rows * 8192 - t * 1024}"))
            g.append((pre, dma(vWt, sWQ, sT0, t * 1024, tag=("QW", cidx))))
    for k in range(5):
        pre = [salu(f"s_add_u32 m0, s{sXdst}, {k * 4096}"), salu(f"s_add_u32 s{sT0}, s{sXoff}, {k * 32 * 896}")]
        g.append((pre, dma(vX, sX, sT0, 0, tag=("QX", cidx))))
    adv = [[salu(f"s_add_u32 s{sWoff}, s{sWoff}, {64 * 8192}")], [salu(f"s_add_u32 s{sXoff}, s{sXoff}, 128")],
           [salu(f"s_cmp_lt_u32 s{sWdst}, {SLOT}"), salu(f"s_cselect_b32 s{sT1}, {3 * SLOT}, 0")],
           [salu(f"s_add_u32 s{sWdst}, s{sWdst}, s{sT1}")], [salu(f"s_sub_u32 s{sWdst}, s{sWdst}, {SLOT}")],
           [salu(f"s_cmp_ge_u32 s{sXdst}, {XBASE + 2 * XSL}"), salu(f"s_cselect_b32 s{sT1}, {3 * XSL}, 0")],
           [salu(f"s_sub_u32 s{sXdst}, s{sXdst}, s{sT1}")], [salu(f"s_add_u32 s{sXdst}, s{sXdst}, {XSL}")]]
    return g, adv


def dst_adv():
    return [[salu(f"s_add_u32 s{sDst}, s{sDst}, {SLOT}")],
            [salu(f"s_cmp_eq_u32 s{sDst}, s{sDstLim}"), salu(f"s_cselect_b32 s{sDst}, s{sDst0}, s{sDst}")]]


def kv_dma(kind, tag):
    g = []
    r, off = (sK, sKoff) if kind == "K" else (sV, sVoff)
    for x in range(2):
        for t in range(4):
            pre = []
            if t == 0:
                pre.append(salu(f"s_add_u32 m0, s{sDst}, {x * 16384}") if x else salu(f"s_mov_b32 m0, s{sDst}"))
                if x:
                    pre.append(salu(f"s_add_u32 s{off}, s{off}, 16384"))
            vo = (vK1 if t & 1 else vK0) if kind == "K" else vV
            g.append((pre, dma(vo, r, off, t * 1024, nt=True, tag=tag)))
    return g, [[salu(f"s_add_u32 s{off}, s{off}, 16384")]] + dst_adv()


def wo_dma(o, slot):
    g = []
    for kk in range(2):
        for t in range(4):
            rows = 32 * kk + 16 * (t >> 1) + 8 * (t & 1)
            pre = [salu(f"s_add_u32 m0, s{sE6}, {slot * SLOT + kk * 4096}")] if t == 0 else []
            pre.append(salu(f"s_add_u32 s{sT0}, s{sK2}, {rows * 896 - t * 1024 + o * 128}"))
            g.append((pre, dma(vWt, sWO, sT0, t * 1024, tag=("WO", o))))
    return g, []


def add_dma(tasks, g, adv, first, rel, dl, spread):
    prev = first
    n = len(g)
    for k, (pre, d) in enumerate(g):
        ddl = dl - (n - 1 - k) * 3
        for p in pre:
            t = Task(p, "S", rel=rel, dl=ddl, deps=[(prev, 0)], name="dmapre")
            tasks.append(t)
            prev = t
        t = Task(d, "D", rel=rel + k * spread, dl=ddl, deps=[(prev, 1 if (prev.cls == "S" and prev.ins) else 0)], name="dma")
        tasks.append(t)
        prev = t
    for a in adv:
        t = Task(a, "S", rel=rel, dl=dl + 8, deps=[(prev, 0)], name="dmaadv")
        tasks.append(t)
        prev = t
    return prev


def emit_serial(c, g, adv, fill=None):
    for pre, d in g:
        c += pre
        c.append(d)
        if fill:
            for _ in range(6):
                if fill:
                    c.append(fill.pop(0))
    for a in adv:
        c += a


def prologue():
    c = []
    S = lambda t: c.append(salu(t))
    V = lambda t: c.append(valu(t))
    c.append(raw(f"s_load_dwordx16 s[{sArg}:{sArg + 15}], s[0:1], 0"))
    c += stamp(0)
    if STAMP or OPT.get("diag"):
        c.append(raw("s_memrealtime s[98:99]"))
    V(f"v_lshrrev_b32 v{vT0}, 6, v0")
    V(f"v_and_b32 v{vLANE}, 63, v0")
    V(f"v_readfirstlane_b32 s{sW}, v{vT0}")
    S(f"s_lshr_b32 s{sT1}, s2, 3")
    S(f"s_and_b32 s{sT3}, s2, 1")
    S(f"s_lshl_b32 s{sT3}, s{sT3}, 2")
    S(f"s_and_b32 s{sT2}, s{sT1}, 3")
    S(f"s_add_u32 s{sT3}, s{sT3}, s{sT2}")
    S(f"s_and_b32 s{sB}, s2, 6")
    S(f"s_bfe_u32 s{sT2}, s{sT1}, 0x10002")
    S(f"s_add_u32 s{sB}, s{sB}, s{sT2}")
    S(f"s_bfe_u32 s{sH}, s{sT1}, 0x10003")
    S(f"s_lshl_b32 s{sT2}, s{sT3}, 1")
    S(f"s_add_u32 s{sH}, s{sH}, s{sT2}")
    S(f"s_lshr_b32 s{sSP}, s{sT1}, 4")
    S(f"s_lshr_b32 s{sXW}, s{sW}, 1")
    S(f"s_and_b32 s{sHW}, s{sW}, 1")
    S(f"s_lshl_b32 s{sKoff}, s{sB}, 3")
    S(f"s_add_u32 s{sKoff}, s{sKoff}, s{sT3}")
    V(f"v_lshrrev_b32 v{vT0}, 3, v{vLANE}")
    V(f"v_and_b32 v{vT1}, 7, v{vLANE}")
    V(f"v_lshrrev_b32 v{vT2}, 1, v{vT0}")
    V(f"v_xor_b32 v{vK0}, v{vT1}, v{vT2}")
    V(f"v_lshlrev_b32 v{vK0}, 4, v{vK0}")
    V(f"v_lshlrev_b32 v{vV}, 1, v{vT2}")
    V(f"v_xor_b32 v{vV}, v{vT1}, v{vV}")
    V(f"v_lshlrev_b32 v{vV}, 4, v{vV}")
    S(f"s_lshl_b32 s{sT2}, s{sHW}, 6")
    V(f"v_xor_b32 v{vX}, s{sT2}, v{vK0}")
    V(f"v_mul_u32_u24 v{vST}, 896, v{vT0}")
    V(f"v_add_u32 v{vX}, v{vX}, v{vST}")
    V(f"v_and_b32 v{vWt}, 3, v{vT0}")
    V(f"v_lshrrev_b32 v{vST}, 2, v{vT0}")
    V(f"v_lshl_add_u32 v{vWt}, v{vST}, 3, v{vWt}")
    V(f"v_lshlrev_b32 v{vWt}, 13, v{vWt}")
    V(f"v_add_u32 v{vWt}, v{vWt}, v{vV}")
    S(f"s_lshl_b32 s{sT3}, s{sW}, 7")
    V(f"v_add_u32 v{vWt}, s{sT3}, v{vWt}")
    S(f"s_lshl_b32 s{sWoff}, s{sH}, 9")
    S(f"s_mul_i32 s{sXoff}, s{sB}, {160 * 896}")
    S(f"s_mul_i32 s{sT2}, s{sW}, {8 * 896}")
    S(f"s_add_u32 s{sXoff}, s{sXoff}, s{sT2}")
    S(f"s_lshl_b32 s{sDst0}, s{sW}, 12")
    S(f"s_add_u32 s{sWdst}, s{sDst0}, {SLOT}")
    S(f"s_lshl_b32 s{sXdst}, s{sW}, 10")
    S(f"s_add_u32 s{sXdst}, s{sXdst}, {XBASE}")
    c.append(I("s_waitcnt lgkmcnt(0)", "W"))
    srd(c, sWQ, 6, 448 * 4096 * 2)
    srd(c, sX, 0, 8 * 160 * 448 * 2)
    f = []
    c2, c = c, f
    S = lambda t: f.append(salu(t))
    V = lambda t: f.append(valu(t))
    V(f"v_and_b32 v{vST}, 1, v{vT0}")
    V(f"v_lshl_add_u32 v{vST}, v{vT2}, 3, v{vST}")
    V(f"v_lshlrev_b32 v{vST}, 9, v{vST}")
    V(f"v_add_u32 v{vST}, s{sT3}, v{vST}")
    V(f"v_add_u32 v{vK0}, v{vK0}, v{vST}")
    V(f"v_add_u32 v{vV}, v{vV}, v{vST}")
    V(f"v_xor_b32 v{vK1}, 64, v{vK0}")
    srd(f, sK, 2, 0x4000000)
    srd(f, sV, 4, 0x4000000)
    srd(f, sWO, 8, 448 * 4096 * 2)
    srd(f, sWS, 14, 0x10000000)
    S(f"s_lshl_b32 s{sKoff}, s{sKoff}, 20")
    S(f"s_lshl_b32 s{sVoff}, s{sSP}, 19")
    S(f"s_add_u32 s{sKoff}, s{sKoff}, s{sVoff}")
    S(f"s_mov_b32 s{sVoff}, s{sKoff}")
    S(f"s_lshl_b32 s{sID}, s{sB}, 1")
    S(f"s_add_u32 s{sID}, s{sID}, s{sSP}")
    S(f"s_lshl_b32 s{sID}, s{sID}, 4")
    S(f"s_add_u32 s{sID}, s{sID}, s{sH}")
    V(f"v_and_b32 v{vT0}, 15, v{vLANE}")
    V(f"v_lshrrev_b32 v{vT1}, 4, v{vLANE}")
    V(f"v_lshrrev_b32 v{vT2}, 1, v{vT0}")
    V(f"v_xor_b32 v{LK0}, v{vT1}, v{vT2}")
    V(f"v_lshlrev_b32 v{LK0}, 4, v{LK0}")
    V(f"v_lshl_add_u32 v{LK0}, v{vT0}, 7, v{LK0}")
    V(f"v_lshrrev_b32 v{vT0}, 2, v{vLANE}")
    V(f"v_and_b32 v{vT1}, 6, v{vT0}")
    V(f"v_bfe_u32 v{vT2}, v{vLANE}, 1, 1")
    V(f"v_xor_b32 v{vT1}, v{vT1}, v{vT2}")
    V(f"v_lshlrev_b32 v{vT1}, 4, v{vT1}")
    V(f"v_lshl_add_u32 v{vT1}, v{vT0}, 7, v{vT1}")
    V(f"v_and_b32 v{vT2}, 1, v{vLANE}")
    V(f"v_lshl_add_u32 v{LV[0]}, v{vT2}, 3, v{vT1}")
    for k in range(1, 4):
        V(f"v_xor_b32 v{LV[k]}, {32 * k}, v{LV[0]}")
    S(f"s_add_u32 s{sT2}, s{sDst0}, {SLOT}")
    for k in range(4):
        V(f"v_add_u32 v{VA[k]}, s{sT2}, v{LV[k]}")
    V(f"v_add_u32 v{XA[0]}, {XBASE}, v{LK0}")
    V(f"v_xor_b32 v{XA[1]}, 64, v{XA[0]}")
    S(f"s_mov_b32 s{sWrd}, {SLOT}")
    S(f"s_mov_b32 s{sXrd}, 0")
    S(f"s_add_u32 s{sDstLim}, s{sDst0}, {5 * SLOT}")
    S(f"s_mov_b32 s{sDst}, s{sDst0}")
    S(f"s_lshl_b32 s{sHalf}, s{sXW}, 15")
    S(f"s_sub_u32 s{sHalf}, s{sHalf}, 16384")
    S(f"s_sub_u32 s{sC1}, {2 * SLOT}, s{sHalf}")
    S(f"s_sub_u32 s{sC2}, {(-3 * SLOT) & 0xffffffff}, s{sHalf}")
    S(f"s_mov_b32 s{sThr}, 0x53800000")
    pat = 0
    for j in range(40):
        if (j + 1) % 5 < (j - 1) % 5:
            pat |= 1 << j
    S(f"s_mov_b32 s{sPat}, {pat & 0xffffffff:#x}")
    S(f"s_mov_b32 s{sPat + 1}, {pat >> 32:#x}")
    S(f"s_lshl_b32 s{sT2}, s{sXW}, 14")
    S(f"s_sub_u32 s{sT2}, 16384, s{sT2}")
    V(f"v_add_u32 v{KA[0]}, s{sT2}, v{LK0}")
    V(f"v_xor_b32 v{KA[1]}, 64, v{KA[0]}")
    V(f"v_and_b32 v{vT0}, 15, v{vLANE}")
    V(f"v_lshlrev_b32 v{vT0}, 4, v{vT0}")
    V(f"v_lshrrev_b32 v{vT1}, 5, v{vLANE}")
    V(f"v_lshl_add_u32 v{vT0}, v{vT1}, 8, v{vT0}")
    V(f"v_bfe_u32 v{vT1}, v{vLANE}, 4, 1")
    V(f"v_lshl_add_u32 v{vT0}, v{vT1}, 3, v{vT0}")
    S(f"s_lshl_b32 s{sT2}, s{sW}, 11")
    S(f"s_add_u32 s{sT3}, s{sT2}, {XBASE}")
    V(f"v_add_u32 v{vU[0]}, s{sT3}, v{vT0}")
    S(f"s_add_u32 s{sT3}, s{sT2}, {SLOT}")
    V(f"v_add_u32 v{vU[1]}, s{sT3}, v{vT0}")
    V(f"v_lshlrev_b32 v{vST}, 4, v{vLANE}")
    S(f"s_lshl_b32 s{sT2}, s{sW}, 1")
    S(f"s_add_u32 s{sT2}, s{sT2}, s{sSP}")
    S(f"s_lshl_b32 s{sT2}, s{sT2}, 13")
    S(f"s_add_u32 s{sT2}, s{sT2}, {XBASE}")
    V(f"v_add_u32 v{QA[0]}, s{sT2}, v{vST}")
    V(f"v_xor_b32 v{QA[1]}, 8192, v{QA[0]}")
    S(f"s_xor_b32 s{sT2}, s{sHW}, s{sSP}")
    S(f"s_lshl_b32 s{sT2}, s{sT2}, 13")
    S(f"s_add_u32 s{sT2}, s{sT2}, {SLOT}")
    V(f"v_add_u32 v{QA[2]}, s{sT2}, v{vST}")
    S(f"s_lshl_b32 s{sK2}, s{sH}, 2")
    S(f"s_add_u32 s{sK2}, s{sK2}, s{sW}")
    S(f"s_mul_i32 s{sK2}, s{sK2}, {64 * 896}")
    c = c2
    for cidx in range(2):
        g, adv = q_dma(cidx)
        emit_serial(c, g, adv, f)
    c += f
    return c


def qacc(blk, t):
    return 96 + (blk * 4 + t) * 4


def q_phase():
    mf, tasks, marks = [], [], []
    WF = lambda c, ks, t: (c & 1) * 32 + (ks * 4 + t) * 4
    XF = lambda blk, ks: 64 + (blk * 2 + ks) * 4
    bar, lastx, lastaddr, xuse, wuse = {}, {}, {}, {}, {}
    prev_dma, prev_aups = None, []
    allreads = []
    for cidx in range(7):
        start = 80 * cidx
        marks.append(start)
        if cidx == 0:
            bar[0] = Task(wait_bar([("QX", 0)], None), "BAR", rel=-1, dl=-1, name="bar0")
            wready = bar[0]
        else:
            bar[cidx] = Task(wait_bar([("QX", cidx)], ("XR", cidx - 1)), "BAR", rel=start - 20, dl=start - 10, deps=[(lastx[cidx - 1], 4)], name=f"bar{cidx}")
            wready = Task(waitr([("QW", cidx)], None), "S", rel=start - 44, name="wready")
            tasks.append(wready)
        tasks.append(bar[cidx])
        aup = {}
        if cidx > 0:
            sd = [Task([salu(f"s_cmp_eq_u32 s{sWrd}, 0"), salu(f"s_cselect_b32 s{sD}, {3 * SLOT}, 0")], "S", rel=start - 76, deps=[(t, 0) for t in prev_aups], name="sd")]
            for t in (f"s_sub_u32 s{sD}, s{sD}, {SLOT}", f"s_add_u32 s{sWrd}, s{sWrd}, s{sD}"):
                sd.append(Task(salu(t), "S", deps=[(sd[-1], 0)], name="sd"))
            sd.append(Task([salu(f"s_cmp_eq_u32 s{sXrd}, {2 * XSL}"), salu(f"s_cselect_b32 s{sDX}, {3 * XSL}, 0")], "S", deps=[(sd[-1], 0)], name="sd"))
            for t in (f"s_sub_u32 s{sDX}, {XSL}, s{sDX}", f"s_add_u32 s{sXrd}, s{sXrd}, s{sDX}"):
                sd.append(Task(salu(t), "S", deps=[(sd[-1], 0)], name="sd"))
            tasks += sd
            for r in VA:
                aup[r] = Task(valu(f"v_add_u32 v{r}, s{sD}, v{r}"), "V", deps=[(sd[-1], 1), (lastaddr[r], 0)], name="aup")
            for r in XA:
                aup[r] = Task(valu(f"v_add_u32 v{r}, s{sDX}, v{r}"), "V", deps=[(sd[-1], 1), (lastaddr[r], 0)], name="aup")
            tasks += list(aup.values())
            prev_aups = list(aup.values())

        def rd(ins, consumer, gate, tag, rel, war):
            ins.tag = tag
            a = ins.rd[0][1]
            deps = [(gate, 0)] + ([(aup[a], 1)] if a in aup else []) + ([(lastaddr[a], 0)] if a in lastaddr else [])
            first = cidx == 0 and consumer < 12
            t = Task(ins, "L", rel=-1 if first else max(rel, war), dl=-1 if first else consumer - 6, deps=deps, name="rd")
            tasks.append(t)
            lastaddr[a] = t
            allreads.append(t)
            return t

        for ks in range(2):
            for t in range(4):
                for e in range(2):
                    rd(ds_rtr(("a", WF(cidx, ks, t) + 2 * e), VA[t], ks * 16384 + e * 2048), start + ks * 4 + t, wready, ("WR", cidx),
                       start - 42, wuse.get(cidx & 1, -1))
        early = 60 if cidx == 6 else 22
        for blk in range(10):
            for ks in range(2):
                c0 = len(mf)
                lastx[cidx] = rd(ds_r128(("a", XF(blk, ks)), XA[ks], blk * 2048), c0, bar[cidx], ("XR", cidx), c0 - early, xuse.get((blk, ks), -1))
                for t in range(4):
                    d = ("v", qacc(blk, t))
                    mf.append(mfma(d, ("a", WF(cidx, ks, t)), ("a", XF(blk, ks)), 0 if (cidx == 0 and ks == 0) else d))
                xuse[(blk, ks)] = len(mf) - 1
        wuse[cidx & 1] = len(mf) - 1
        if cidx + 2 <= 6:
            g, adv = q_dma(cidx + 2)
        elif cidx == 5:
            g, adv = kv_dma("K", ("T", -1))
            adv = adv + dst_adv()
        else:
            g, adv = kv_dma("K", ("T", 1))
        first = Task([], "S", rel=start - 10, deps=[(bar[cidx], 0)] + ([(prev_dma, 0)] if prev_dma else []), name="dmastart")
        tasks.append(first)
        prev_dma = add_dma(tasks, g, adv, first, start - 10, start + 56, spread=4)
    start = 480
    dead = Task(wait_bar([], ("XR", 6)), "BAR", deps=[(lastx[6], 4)], name="dead")
    tasks.append(dead)
    sc = Task(salu(f"s_mov_b32 s{sT3}, {QSCALE:#x}"), "S", rel=start, name="sc")
    tasks.append(sc)
    for blk in range(10):
        for t in range(4):
            s = qacc(blk, t)
            done = start + blk * 8 + 4 + t
            ms = [Task(valu(f"v_mul_f32 v{s + r}, s{sT3}, v{s + r}"), "V", rel=done + MLAT, deps=[(sc, 1)], name="qmul") for r in range(4)]
            c0 = Task(valu(f"v_cvt_pk_bf16_f32 v{s}, v{s}, v{s + 1}"), "V", deps=[(ms[0], 0), (ms[1], 0)], name="qcv")
            c1 = Task(valu(f"v_cvt_pk_bf16_f32 v{s + 1}, v{s + 2}, v{s + 3}"), "V", deps=[(ms[2], 0), (ms[3], 0), (c0, 0)], name="qcv")
            w = ds_w64(vU[0] if blk < 8 else vU[1], ("v", s), (blk & 7) * 8192 + (t >> 1) * 1024 + (t & 1) * 512)
            wt = Task(w, "L", deps=[(c1, 0), (dead, 0)], name="qwr")
            tasks += ms + [c0, c1, wt]
    gaps = schedule(mf, tasks, verbose=True)
    for k, m in enumerate(marks):
        mf[m].mark = ("Q", k)
    return linearize(mf, gaps)


def q_finish():
    c = []
    S = lambda t: c.append(salu(t))
    V = lambda t: c.append(valu(t))
    S(f"s_lshl_b32 s{sT0}, s{sXW}, 14")
    S(f"s_sub_u32 s{sT0}, {3 * SLOT + 16384}, s{sT0}")
    for k in range(4):
        V(f"v_add_u32 v{VA[k]}, s{sT0}, v{LV[k]}")
    V(f"v_lshrrev_b32 v{vT0}, 3, v{vLANE}")
    V(f"v_mul_u32_u24 v{vT0}, 896, v{vT0}")
    V(f"v_and_b32 v{vWt}, 0x70, v{vV}")
    V(f"v_add_u32 v{vWt}, v{vWt}, v{vT0}")
    S(f"s_lshl_b32 s{sE6}, s{sW}, 13")
    c.append(I("s_waitcnt lgkmcnt(0)", "W"))
    for r in list(range(NEGM[0], NEGM[0] + 12)) + LS:
        V(f"v_mov_b32 v{r}, 0")
    c += wait_bar([("T", -1)], None)
    return c


sites = []


def rowmax_tasks(tasks, src, t, u, dep, name):
    seq = [f"v_max3_f32 v{t}, v{src}, v{src + 1}, v{src + 2}", f"v_max_f32 v{t}, v{t}, v{src + 3}", f"v_mov_b32 v{u}, v{t}",
           f"v_permlane32_swap_b32 v{t}, v{u}", f"v_max_f32 v{t}, v{t}, v{u}", f"v_mov_b32 v{u}, v{t}",
           f"v_permlane16_swap_b32 v{t}, v{u}", f"v_max_f32 v{t}, v{t}, v{u}", f"v_ceil_f32 v{t}, v{t}"]
    prev = dep
    for x in seq:
        i = valu(x)
        tk = Task(i, "V", deps=[(prev, 1 if i.kind == "P" else 0)], name=name)
        tasks.append(tk)
        prev = tk
    return prev


def main_phase():
    NS = 35
    mf, tasks = [], []
    nfrag = 0
    start, chain_first, chain_last, plan, qfirst = {}, {}, {}, [], {}
    for j in range(NS):
        start[j] = len(mf)
        for gam in range(16):
            kt, ks = gam >> 3, gam & 7
            if j <= 31:
                f = FB + (nfrag % 16) * 4
                nfrag += 1
                plan.append(("K", j, gam, f, len(mf)))
                for blk in ((0, 1, 2) if j & 1 else (0, 1)):
                    d = ("v", Sreg(j, kt, blk))
                    qfirst.setdefault((blk, ks), len(mf))
                    mf.append(mfma(d, ("a", f), ("v", QB[blk] + 4 * ks), ("v", NEGM[blk]) if ks == 0 else d))
                    chain_first.setdefault((j, kt), len(mf) - 1)
                    chain_last[(j, kt, blk)] = len(mf) - 1
            if j >= 3:
                f = FB + (nfrag % 16) * 4
                nfrag += 1
                plan.append(("V", j, gam, f, len(mf)))
                for blk in ((0, 1, 2) if (j & 1) == 0 else (0, 1)):
                    d = ("a", OB[blk] + 4 * gam)
                    mf.append(mfma(d, ("a", f), ("v", Preg(j - 3, blk)), 0 if j == (3 if blk < 2 else 4) else d))
    start[NS] = start[NS + 1] = len(mf)
    bar, aup, lastread, lastaddr = {}, {}, {}, {}
    qlast = None
    for (blk, ks), c0 in sorted(qfirst.items(), key=lambda x: x[1]):
        i = ds_r128(("v", QB[blk] + 4 * ks), QA[blk], ks * 1024)
        i.tag = ("QS", 0)
        first = c0 < 8
        qlast = Task(i, "L", rel=-1, dl=-1 if first else min(c0 - 6, 22), deps=[(qlast, 0)] if qlast else [], name="qrd")
        tasks.append(qlast)
    bar[0] = Task(wait_bar([], ("QS", 0)), "BAR", deps=[(qlast, 4)], name="barq")
    tasks.append(bar[0])
    st = dict(sd=None, aups=[])
    done_steps = set()

    def tile_of(kind, j):
        return ("K", j >> 1) if kind == "K" else ("V", (j - 3) >> 1)

    def enter(j):
        done_steps.add(j)
        sw = "K" if j % 2 == 0 else "V"
        old = tile_of(sw, j - 1)
        newvalid = (sw == "K" and j <= 30) or (sw == "V" and 3 <= j <= 33)
        vm = [("T", j - 1)] if newvalid else []
        deps, lg = [], None
        if old in lastread:
            deps.append((lastread[old], 3))
            lg = old
        if vm or lg:
            pb = max(k for k in bar)
            bar[j] = Task(wait_bar(vm, lg), "BAR", rel=start[j] - DIST + 4, dl=start[j] - 8, deps=deps + [(bar[pb], 1)], name=f"bar{j}")
            tasks.append(bar[j])
        sd0 = Task([salu(f"s_bitcmp1_b64 s[{sPat}:{sPat + 1}], 0"), salu(f"s_cselect_b32 s{sD}, s{sC2}, s{sC1}")], "S", rel=start[j - 1] + 8,
                   deps=[(t, 0) for t in st["aups"]] + ([(st["sd"], 0)] if st["sd"] else []), name="sd")
        sd0.ins[0].wr = [("scc", 0)]
        sd = Task(salu(f"s_lshr_b64 s[{sPat}:{sPat + 1}], s[{sPat}:{sPat + 1}], 1"), "S", deps=[(sd0, 0)], name="sd")
        tasks.extend([sd0, sd])
        st["sd"], st["aups"] = sd, []
        for kind, regs in (("K", KA), ("V", VA)):
            if not ((kind == "K" and 1 <= j <= 31) or (kind == "V" and 4 <= j <= 34)):
                continue
            for r in regs:
                t = Task(valu(f"v_add_u32 v{r}, s{sD if kind == sw else sHalf}, v{r}"), "V", deps=[(sd0, 1), (lastaddr[r], 0)], name="aup")
                aup[(j, r)] = t
                tasks.append(t)
                st["aups"].append(t)

    for kind, j, gam, f, c0 in plan:
        if j >= 1 and j not in done_steps:
            enter(j)
        kt, ks = gam >> 3, gam & 7
        if kind == "K":
            a = KA[ks & 1]
            ins = [ds_r128(("a", f), a, (ks >> 1) * 4096 + kt * 2048)]
        else:
            a = VA[gam & 3]
            ins = [ds_rtr(("a", f), a, (gam >> 2) * 4096), ds_rtr(("a", f + 2), a, (gam >> 2) * 4096 + 2048)]
        tl = tile_of(kind, j)
        for i in ins:
            i.tag = tl
            deps = []
            swj = j if (kind == "K") == (j % 2 == 0) else j - 1
            if swj in bar and swj > 0:
                deps.append((bar[swj], 0))
            if (j, a) in aup:
                deps.append((aup[(j, a)], 1))
            if a in lastaddr:
                deps.append((lastaddr[a], 0))
            first = c0 < 8
            t = Task(i, "L", rel=-1 if first else c0 - DIST, dl=-1 if first else c0 - 5, deps=deps, name=f"rd{kind}{j}.{gam}")
            tasks.append(t)
            lastread[tl] = t
            lastaddr[a] = t
    prev = None
    for j in range(NS):
        n = j + 2
        if n <= 32 and n != 31:
            g, adv = kv_dma("K" if n & 1 else "V", ("T", n))
        elif n in (31, 33):
            g, adv = wo_dma((n - 31) // 2, (n + 1) % 5)
            adv = dst_adv()
        else:
            continue
        pb = max(k for k in bar if k <= j)
        first = Task([], "S", rel=start[j] - 6, deps=[(bar[pb], 0)] + ([(prev, 0)] if prev else []), name="dmastart")
        tasks.append(first)
        L = start[j + 1] - start[j]
        dl = start[j + 1] - DIST if j >= 2 else start[j + 2] - DIST
        prev = add_dma(tasks, g, adv, first, start[j] - 6, dl, spread=max(3, (L - DIST) // 9))
    ecount, econs, prev_branch, prev_ladd = 0, {}, None, {}
    for j in range(32):
        blks = (0, 1, 2) if j & 1 else (0, 1)
        dl_chk = chain_first[(j + 2, 0)] - 1 if j + 2 <= 31 else start[j + 3] - 4
        allcv, tsdep, fix = [], {}, {}
        for blk in blks:
            if (j == 0 and blk < 2) or (j == 1 and blk == 2):
                t, u = ET + 2 * (blk & 1), ET + 2 * (blk & 1) + 1
                base = Task([], "V", rel=chain_last[(j, 0, blk)] + MLAT, deps=[(prev_branch, 0)] if prev_branch else [], name="mx0")
                tasks.append(base)
                last = rowmax_tasks(tasks, Sreg(j, 0, blk), t, u, base, "mx")
                nm = [Task(valu(f"v_sub_f32 v{NEGM[blk] + r}, 0, v{t}"), "V", rel=chain_first[(j, 1)] + 6,
                           dl=chain_first[(j + (1 if blk < 2 else 2), 0)] - 3, deps=[(last, 0)], name="negm") for r in range(4)]
                tasks += nm
                for kt in range(2):
                    for r in range(4):
                        s = Sreg(j, kt, blk) + r
                        x = Task(valu(f"v_sub_f32 v{s}, v{s}, v{t}"), "V", rel=chain_last[(j, kt, blk)] + MLAT, deps=[(last, 0)], name="sfix")
                        tasks.append(x)
                        fix[(kt, blk, r)] = x
                        econs.setdefault(t - ET, []).append(x)
                econs.setdefault(t - ET, []).extend(nm)
                econs.setdefault(u - ET, []).append(last)
        for kt in range(2):
            for blk in blks:
                ts = TS[j & 1][blk]
                for pr in range(2):
                    es = []
                    for r in (2 * pr, 2 * pr + 1):
                        e = ecount % 8
                        ecount += 1
                        deps = [(x, 0) for x in econs.get(e, [])] + ([(prev_branch, 0)] if prev_branch else [])
                        if (kt, blk, r) in fix:
                            deps.append((fix[(kt, blk, r)], 1))
                        t = Task(valu(f"v_exp_f32 v{ET + e}, v{Sreg(j, kt, blk) + r}"), "E", rel=chain_last[(j, kt, blk)] + MLAT, deps=deps, name=f"exp{j}.{kt}")
                        tasks.append(t)
                        econs[e] = []
                        es.append((e, t))
                    (e0, t0), (e1, t1) = es
                    cv = Task(valu(f"v_cvt_pk_bf16_f32 v{Preg(j, blk) + 2 * kt + pr}, v{ET + e0}, v{ET + e1}"), "V", deps=[(t0, 1), (t1, 1)], name="cvt")
                    tasks.append(cv)
                    allcv.append(cv)
                    if blk not in tsdep:
                        ad = Task(valu(f"v_add_f32 v{ts}, v{ET + e0}, v{ET + e1}"), "V",
                                  deps=[(t0, 1), (t1, 1)] + ([(prev_ladd[(j & 1, blk)], 0)] if (j & 1, blk) in prev_ladd else []), name="add")
                        tasks.append(ad)
                        econs[e0] += [cv, ad]
                        econs[e1] += [cv, ad]
                        tsdep[blk] = ad
                    else:
                        a0 = Task(valu(f"v_add_f32 v{ts}, v{ET + e0}, v{ts}"), "V", deps=[(t0, 1), (tsdep[blk], 1)], name="add")
                        a1 = Task(valu(f"v_add_f32 v{ts}, v{ET + e1}, v{ts}"), "V", deps=[(t1, 1), (a0, 1)], name="add")
                        tasks += [a0, a1]
                        econs[e0] += [cv, a0]
                        econs[e1] += [cv, a1]
                        tsdep[blk] = a1
        tsr = [TS[j & 1][b] for b in blks]
        mx = Task(valu(f"v_max3_f32 v{vC}, v{tsr[0]}, v{tsr[1]}, v{tsr[2]}") if len(tsr) == 3 else valu(f"v_max_f32 v{vC}, v{tsr[0]}, v{tsr[1]}"),
                  "V", deps=[(t, 1) for t in tsdep.values()], name="mx")
        cmp_ = Task(valu(f"v_cmp_lt_f32 vcc, s{sThr}, v{vC}"), "V", deps=[(mx, 1)], name="cmp")
        br = Task([I(f"s_cbranch_vccnz L_slow_@{j}", "BR", [("vcc", 0)], [], tag=("site", j)), I(f"L_ret_@{j}:", "LAB", tag=("ret", j))],
                  "S", dl=dl_chk, deps=[(cmp_, 1)] + [(t, 0) for t in allcv] + [(t, 0) for t in prev_ladd.values()], name=f"br{j}")
        tasks += [mx, cmp_, br]
        for blk in blks:
            la = Task(valu(f"v_add_f32 v{LS[blk]}, v{TS[j & 1][blk]}, v{LS[blk]}"), "V", deps=[(br, 0)], dl=dl_chk + 12, name="ladd")
            tasks.append(la)
            prev_ladd[(j & 1, blk)] = la
        prev_branch = br
        sites.append(dict(j=j, task=br, blks=blks))
    gaps = schedule(mf, tasks, verbose=True)
    for s in sites:
        j, g = s["j"], s["task"].gap
        s["later_blk"] = {}
        for (jj, kt), idx in chain_first.items():
            if jj > j:
                for blk in ((0, 1, 2) if jj & 1 else (0, 1)):
                    if idx + blk <= g:
                        s["later_blk"].setdefault(blk, []).append(Sreg(jj, kt, blk))
        s["pend"] = [jj for jj in range(max(0, j - 3), j) if start[jj + 4] - 1 > g]
    for j in range(NS):
        mf[start[j]].mark = ("M", j)
    return linearize(mf, gaps)


def slow_path(s, name):
    c = []
    V = lambda t: c.append(valu(t))
    j = s["j"]
    c.append(I(f"L_slow_{name}:", "LAB"))
    c.append(nop(15))
    t, u, x, y = ET, ET + 1, ET + 2, ET + 3
    for blk in range(3):
        if blk not in s["blks"]:
            V(f"v_mov_b32 v{vF[blk]}, 1.0")
            continue
        s0, s1 = Sreg(j, 0, blk), Sreg(j, 1, blk)
        V(f"v_max3_f32 v{t}, v{s0}, v{s0 + 1}, v{s0 + 2}")
        V(f"v_max3_f32 v{t}, v{t}, v{s0 + 3}, v{s1}")
        V(f"v_max3_f32 v{t}, v{t}, v{s1 + 1}, v{s1 + 2}")
        V(f"v_max_f32 v{t}, v{t}, v{s1 + 3}")
        for sw in ("v_permlane32_swap_b32", "v_permlane16_swap_b32"):
            V(f"v_mov_b32 v{u}, v{t}")
            V(f"{sw} v{t}, v{u}")
            V(f"v_max_f32 v{t}, v{t}, v{u}")
        V(f"v_ceil_f32 v{t}, v{t}")
        V(f"v_max_f32 v{t}, 0, v{t}")
        V(f"v_exp_f32 v{vF[blk]}, -v{t}")
        for base in [NEGM[blk], s0, s1] + s["later_blk"].get(blk, []):
            for r in range(4):
                V(f"v_sub_f32 v{base + r}, v{base + r}, v{t}")
        for jj in s["pend"]:
            if blk == 2 and not (jj & 1):
                continue
            for r in range(4):
                p = Preg(jj, blk) + r
                V(f"v_lshlrev_b32 v{x}, 16, v{p}")
                V(f"v_and_b32 v{y}, 0xffff0000, v{p}")
                V(f"v_mul_f32 v{x}, v{x}, v{vF[blk]}")
                V(f"v_mul_f32 v{y}, v{y}, v{vF[blk]}")
                V(f"v_cvt_pk_bf16_f32 v{p}, v{x}, v{y}")
        ts = TS[j & 1][blk]
        V(f"v_mov_b32 v{ts}, 0")
        for kt in range(2):
            for pr in range(2):
                sr = Sreg(j, kt, blk) + 2 * pr
                V(f"v_exp_f32 v{x}, v{sr}")
                V(f"v_exp_f32 v{y}, v{sr + 1}")
                V(f"v_cvt_pk_bf16_f32 v{Preg(j, blk) + 2 * kt + pr}, v{x}, v{y}")
                V(f"v_add_f32 v{ts}, v{x}, v{ts}")
                V(f"v_add_f32 v{ts}, v{y}, v{ts}")
    return c


def slow_tail(names):
    c = []
    V = lambda t: c.append(valu(t))
    c.append(I("L_slow_tail:", "LAB"))
    for blk in range(3):
        V(f"v_mul_f32 v{LS[blk]}, v{LS[blk]}, v{vF[blk]}")
        for r in range(0, 64, 4):
            for k in range(4):
                c.append(AR(ET + k, OB[blk] + r + k))
            for k in range(4):
                V(f"v_mul_f32 v{ET + k}, v{ET + k}, v{vF[blk]}")
            for k in range(4):
                c.append(I(f"v_accvgpr_write_b32 a{OB[blk] + r + k}, v{ET + k}", "V", [("v", ET + k)], [("a", OB[blk] + r + k)]))
    c.append(nop(3))
    for k, nm in enumerate(names):
        c.append(salu(f"s_cmp_eq_u32 s{sSite}, {k}"))
        c.append(I(f"s_cbranch_scc1 L_ret_{nm}", "BR"))
    c.append(I(f"s_branch L_ret_{names[-1]}", "BR"))
    return c


def xsum(c, r, u):
    for sw in ("v_permlane32_swap_b32", "v_permlane16_swap_b32"):
        c += [valu(f"v_mov_b32 v{u}, v{r}"), valu(f"{sw} v{r}, v{u}"), valu(f"v_add_f32 v{r}, v{r}, v{u}")]


WFR = [192, 224, 64, 96, 128, 160, 0]
WSL = [2, 4, 3, 2, 4, 0, 1]


def wfrag_reads(c, o):
    off = WSL[o] * SLOT
    a = vU[2] if off < 65536 else (vU[3] if off < 131072 else vU[4])
    off &= 65535
    for kb in range(8):
        for e in range(2):
            c.append(ds_rtr(("a", WFR[o] + 4 * kb + 2 * e), a, off + kb * 4096 + e * 2048))


def flag_store(c, val, lab):
    c.append(salu(f"s_cmp_lg_u32 s{sW}, 0"))
    c.append(I(f"s_cbranch_scc1 {lab}", "BR"))
    c.append(valu(f"v_mov_b32 v{vT0}, {val}"))
    c.append(valu(f"v_mov_b32 v{vT1}, 0"))
    c.append(raw(f"buffer_store_byte v{vT0}, v{vT1}, s[{sDBG}:{sDBG + 3}], s{sID} offen sc0 sc1", "X"))
    c.append(I(f"{lab}:", "LAB"))


def merge_coef(c, nm_o, l_o, pst, co, cp, t):
    V = lambda x: c.append(valu(x))
    V(f"v_min_f32 v{t}, v{nm_o}, v{pst}")
    V(f"v_sub_f32 v{co}, v{t}, v{nm_o}")
    V(f"v_sub_f32 v{cp}, v{t}, v{pst}")
    V(f"v_exp_f32 v{co}, v{co}")
    V(f"v_exp_f32 v{cp}, v{cp}")
    V(f"v_mul_f32 v{t}, v{co}, v{l_o}")
    V(f"v_fmac_f32 v{t}, v{cp}, v{pst + 1}")
    V(f"v_rcp_f32 v{t}, v{t}")
    V(f"v_mul_f32 v{co}, v{co}, v{t}")
    V(f"v_mul_f32 v{cp}, v{cp}, v{t}")


def tail():
    c = []
    S = lambda t: c.append(salu(t))
    V = lambda t: c.append(valu(t))
    W = lambda t: c.append(I(f"s_waitcnt {t}", "W"))
    BAR = lambda: c.append(I("s_barrier", "B"))
    c += pst()
    srd(c, sDBG, 12, 256)
    srd(c, sOUT, 10, 8 * 160 * 448 * 2)
    S(f"s_mul_i32 s{sE0}, s{sID}, {EX_WG}")
    S(f"s_xor_b32 s{sT0}, s{sID}, 16")
    S(f"s_mul_i32 s{sE1}, s{sT0}, {EX_WG}")
    S(f"s_add_u32 s{sT1}, s{sE0}, s{sE6}")
    S(f"s_add_u32 s{sT2}, s{sT1}, 4096")
    S(f"s_lshl_b32 s{sT3}, s{sW}, 9")
    S(f"s_add_u32 s{sT3}, s{sT3}, s{sE0}")
    S(f"s_add_u32 s{sT3}, s{sT3}, 40960")
    V(f"v_lshlrev_b32 v{vT2}, 3, v{vLANE}")
    for blk in range(3):
        xsum(c, LS[blk], ET)
    for T in range(16):
        for r in range(4):
            c.append(AR(SB + r, OB[1] + 4 * T + r))
        V(f"v_cvt_pk_bf16_f32 v{QB[1] + 2 * T}, v{SB}, v{SB + 1}")
        V(f"v_cvt_pk_bf16_f32 v{QB[1] + 2 * T + 1}, v{SB + 2}, v{SB + 3}")
        if T & 1:
            kb = T >> 1
            c.append(bstore(4, ("v", QB[1] + 4 * kb), vST, sWS, sT1 if kb < 4 else sT2, (kb & 3) * 1024, STF))
    V(f"v_mov_b32 v{ET}, v{NEGM[1]}")
    V(f"v_mov_b32 v{ET + 1}, v{LS[1]}")
    c.append(bstore(2, ("v", ET), vT2, sWS, sT3, 0, STF))
    S(f"s_lshl_b32 s{sT0}, s{sW}, 5")
    V(f"v_xor_b32 v{vU[2]}, s{sT0}, v{LV[0]}")
    V(f"v_add_u32 v{vU[3]}, 0x10000, v{vU[2]}")
    V(f"v_add_u32 v{vU[4]}, 0x20000, v{vU[2]}")
    V(f"v_add_u32 v{KA[0]}, s{sE6}, v{vST}")
    V(f"v_xor_b32 v{KA[1]}, 16384, v{KA[0]}")
    S(f"s_lshl_b32 s{sT0}, s{sW}, 9")
    S(f"s_add_u32 s{sT0}, s{sT0}, {SLOT}")
    V(f"v_add_u32 v{XA[0]}, s{sT0}, v{vT2}")
    V(f"v_xor_b32 v{XA[1]}, 1024, v{XA[0]}")
    V(f"v_mov_b32 v{ET + 2}, v{NEGM[2]}")
    V(f"v_mov_b32 v{ET + 3}, v{LS[2]}")
    W("lgkmcnt(0)")
    c += pst()
    c += wait_bar([("WO", 1)], None)
    c += pst()
    emit_serial(c, *wo_dma(2, WSL[2]))
    HK = 192
    S(f"s_cmp_eq_u32 s{sXW}, 0")
    c.append(I("s_cbranch_scc1 L_h0", "BR"))
    for half, lab, nxt in ((1, None, "L_h1"), (0, "L_h0", None)):
        if lab:
            c.append(I(f"{lab}:", "LAB"))
        for T in range(8):
            i = ds_w128(KA[0], ("a", OB[2] + 32 * (1 - half) + 4 * T), T * 1024)
            if half == 1:
                i.kind = "X"
            c.append(i)
        for r in range(32):
            c.append(AR(HK + r, OB[2] + 32 * half + r))
        if nxt:
            c.append(I(f"s_branch {nxt}", "BR"))
    c.append(I("L_h1:", "LAB"))
    c.append(ds_w64(XA[0], ("v", ET + 2), 0))
    wfrag_reads(c, 0)
    wfrag_reads(c, 1)
    W("lgkmcnt(0)")
    BAR()
    c += pst()
    c.append(ds_r64(("v", ET + 4), XA[1], 0))
    for T in range(8):
        c.append(ds_r128(("v", SB + 4 * T), KA[1], T * 1024))
    nm, a_o, a_p = ET + 6, ET + 7, vC
    V(f"v_min_f32 v{nm}, v{ET + 2}, v{ET + 4}")
    V(f"v_sub_f32 v{a_o}, v{nm}, v{ET + 2}")
    V(f"v_sub_f32 v{a_p}, v{nm}, v{ET + 4}")
    V(f"v_exp_f32 v{a_o}, v{a_o}")
    V(f"v_exp_f32 v{a_p}, v{a_p}")
    V(f"v_mov_b32 v{ET + 2}, v{nm}")
    V(f"v_mul_f32 v{ET + 3}, v{a_o}, v{ET + 3}")
    V(f"v_fmac_f32 v{ET + 3}, v{a_p}, v{ET + 5}")
    S(f"s_lshl_b32 s{sT0}, s{sXW}, 12")
    S(f"s_add_u32 s{sT0}, s{sT0}, 32768")
    S(f"s_lshl_b32 s{sT1}, s{sXW}, 9")
    S(f"s_add_u32 s{sT1}, s{sT1}, 43008")
    S(f"s_cmp_eq_u32 s{sHW}, 1")
    S(f"s_cselect_b32 s{sT2}, s{sE0}, {OOB:#x}")
    S(f"s_cselect_b32 s{sT3}, {OOB:#x}, s{sE1}")
    S(f"s_add_u32 s{sE2}, s{sT3}, s{sT0}")
    S(f"s_add_u32 s{sE3}, s{sT3}, s{sT1}")
    S(f"s_add_u32 s{sT0}, s{sT2}, s{sT0}")
    S(f"s_add_u32 s{sT1}, s{sT2}, s{sT1}")
    for T in range(8):
        for r in range(4):
            V(f"v_mul_f32 v{HK + 4 * T + r}, v{a_o}, v{HK + 4 * T + r}")
        for r in range(4):
            V(f"v_fmac_f32 v{HK + 4 * T + r}, v{a_p}, v{SB + 4 * T + r}")
        V(f"v_cvt_pk_bf16_f32 v{QB[2] + 2 * T}, v{HK + 4 * T}, v{HK + 4 * T + 1}")
        V(f"v_cvt_pk_bf16_f32 v{QB[2] + 2 * T + 1}, v{HK + 4 * T + 2}, v{HK + 4 * T + 3}")
        if T & 1:
            c.append(bstore(4, ("v", QB[2] + 2 * (T - 1)), vST, sWS, sT0, (T >> 1) * 1024, STF))
    i = bstore(2, ("v", ET + 2), vT2, sWS, sT1, 0, STF)
    c.append(i)
    emit_serial(c, *wo_dma(3, WSL[3]))
    emit_serial(c, *wo_dma(4, WSL[4]))
    OWN = 128
    for r in range(64):
        c.append(AR(OWN + r, OB[0] + r))
    c += pst()
    W("vmcnt(16)")
    c += pst()
    BAR()
    flag_store(c, 1, "L_f1")
    emit_serial(c, *wo_dma(5, WSL[5]))
    emit_serial(c, *wo_dma(6, WSL[6]))
    S(f"s_mul_i32 s{sT0}, s{sH}, 288")
    S(f"s_mul_i32 s{sT1}, s{sW}, 72")
    S(f"s_add_u32 s{sT0}, s{sT0}, s{sT1}")
    S(f"s_lshr_b32 s{sT1}, s{sH}, 2")
    S(f"s_mul_i32 s{sT2}, s{sT1}, 18")
    S(f"s_lshl_b32 s{sT1}, s{sT1}, 5")
    S(f"s_mul_i32 s{sT3}, s{sB}, 160")
    S(f"s_lshl_b32 s{sD}, s{sSP}, 4")
    S(f"s_add_u32 s{sT3}, s{sT3}, s{sD}")
    S(f"s_mul_i32 s{sT3}, s{sT3}, 896")
    S(f"s_add_u32 s{sT3}, s{sT3}, s{sT1}")
    RI, RA, RB = [QA[0], QA[1]], [QA[2], vU[0]], [vU[1], vX]
    for n in range(2):
        g, k, x, y = vK0, vK1, vV, vT0
        V(f"v_add_u32 v{g}, s{sT0}, v{vLANE}")
        if n:
            V(f"v_add_u32 v{g}, 64, v{g}")
        V(f"v_lshlrev_b32 v{RI[n]}, 4, v{g}")
        V(f"v_lshrrev_b32 v{k}, 6, v{g}")
        V(f"v_subrev_u32 v{k}, s{sT2}, v{k}")
        V(f"v_and_b32 v{x}, 15, v{g}")
        V(f"v_mul_u32_u24 v{x}, 896, v{x}")
        V(f"v_bfe_u32 v{y}, v{g}, 4, 2")
        V(f"v_lshl_add_u32 v{x}, v{y}, 3, v{x}")
        V(f"v_add_u32 v{x}, s{sT3}, v{x}")
        V(f"v_lshrrev_b32 v{y}, 1, v{k}")
        V(f"v_lshlrev_b32 v{y}, 7, v{y}")
        V(f"v_and_b32 v{g}, 1, v{k}")
        V(f"v_mul_u32_u24 v{g}, {64 * 896}, v{g}")
        V(f"v_add_u32 v{y}, v{y}, v{g}")
        V(f"v_lshlrev_b32 v{g}, 8, v{k}")
        V(f"v_add_u32 v{g}, {128 * 896 - 14 * 256}, v{g}")
        V(f"v_cmp_gt_u32 vcc, 14, v{k}")
        V(f"v_cndmask_b32 v{y}, v{g}, v{y}, vcc")
        V(f"v_add_u32 v{RA[n]}, v{x}, v{y}")
        V(f"v_mov_b32 v{g}, 128")
        V(f"v_mov_b32 v{y}, {32 * 896}")
        V(f"v_cndmask_b32 v{y}, v{g}, v{y}, vcc")
        V(f"v_add_u32 v{RB[n]}, v{RA[n]}, v{y}")
        V(f"v_mov_b32 v{g}, {OOB:#x}")
        V(f"v_cmp_eq_u32 vcc, 17, v{k}")
        V(f"v_cndmask_b32 v{RB[n]}, v{RB[n]}, v{g}, vcc")
        if n:
            V(f"v_cmp_gt_u32 vcc, 8, v{vLANE}")
            for r in (RI[1], RA[1], RB[1]):
                V(f"v_cndmask_b32 v{r}, v{g}, v{r}, vcc")
    c += pst()
    W("vmcnt(0)")
    BAR()
    c += pst()
    for o in range(2, 7):
        wfrag_reads(c, o)
    c += pst()
    S(f"s_xor_b32 s{sT0}, s{sID}, 16")
    S(f"s_cmp_lg_u32 s{sW}, 0")
    c.append(I("s_cbranch_scc1 L_p1d", "BR"))
    S(f"s_mov_b32 s{sCnt}, 0")
    V(f"v_mov_b32 v{vT1}, 0")
    c.append(I("L_p1:", "LAB"))
    c.append(raw(f"buffer_load_ubyte v{vT0}, v{vT1}, s[{sDBG}:{sDBG + 3}], s{sT0} offen sc0 sc1", "X"))
    S(f"s_add_u32 s{sCnt}, s{sCnt}, 1")
    c.append(raw("s_waitcnt vmcnt(0)", "X"))
    V(f"v_readfirstlane_b32 s{sT1}, v{vT0}")
    S(f"s_cmp_gt_u32 s{sCnt}, 2000000")
    c.append(I("s_cbranch_scc1 L_p1d", "BR"))
    S(f"s_cmp_eq_u32 s{sT1}, 0")
    c.append(I("s_cbranch_scc1 L_p1", "BR"))
    c.append(I("L_p1d:", "LAB"))
    W("lgkmcnt(0)")
    BAR()
    c += stamp(5)
    c += pst()
    PF, PH, OF, OH = 32, 64, 96, 80
    S(f"s_add_u32 s{sT1}, s{sE1}, s{sE6}")
    S(f"s_add_u32 s{sT2}, s{sT1}, 4096")
    S(f"s_lshl_b32 s{sT3}, s{sW}, 9")
    S(f"s_add_u32 s{sT3}, s{sT3}, s{sE1}")
    S(f"s_add_u32 s{sT3}, s{sT3}, 40960")
    c.append(bload(2, ("v", ET), vT2, sWS, sT3, 0, LDF))
    c.append(bload(2, ("v", ET + 4), vT2, sWS, sE3, 0, LDF))
    for kb in range(8):
        c.append(bload(4, ("v", PF + 4 * kb), vST, sWS, sT1 if kb < 4 else sT2, (kb & 3) * 1024, LDF))
    for kb in range(4):
        c.append(bload(4, ("v", PH + 4 * kb), vST, sWS, sE2, kb * 1024, LDF))
    S(f"s_lshl_b32 s{sT0}, s{sXW}, 12")
    S(f"s_lshl_b32 s{sT1}, s{sHW}, 13")
    S(f"s_add_u32 s{sT0}, s{sT0}, s{sT1}")
    S(f"s_add_u32 s{sT0}, s{sT0}, 32768")
    V(f"v_add_u32 v{KA[1]}, s{sT0}, v{vST}")
    W("vmcnt(12)")
    c += pst()
    co, cp, ch, cq = TS[0][0], TS[0][1], TS[0][2], TS[1][0]
    merge_coef(c, NEGM[0], LS[0], ET, co, cp, vC)
    merge_coef(c, ET + 2, ET + 3, ET + 4, ch, cq, vC)
    for r in range(64):
        V(f"v_mul_f32 v{OWN + r}, v{co}, v{OWN + r}")
    for r in range(32):
        V(f"v_mul_f32 v{HK + r}, v{ch}, v{HK + r}")
    for own, pay, outr, n, cc, addr, base in ((OWN, PF, OF, 8, cp, KA[0], 11), (HK, PH, OH, 4, cq, KA[1], 3)):
        for kb in range(n):
            W(f"vmcnt({base - kb})")
            for r in range(4):
                p = pay + 4 * kb + r
                o = own + 8 * kb + 2 * r
                V(f"v_lshlrev_b32 v{ET + 6}, 16, v{p}")
                V(f"v_and_b32 v{ET + 7}, 0xffff0000, v{p}")
                V(f"v_fmac_f32 v{o}, v{cc}, v{ET + 6}")
                V(f"v_fmac_f32 v{o + 1}, v{cc}, v{ET + 7}")
                V(f"v_cvt_pk_bf16_f32 v{outr + 4 * kb + r}, v{o}, v{o + 1}")
            c.append(ds_w128(addr, ("v", outr + 4 * kb), kb * 1024))
    S(f"s_mul_i32 s{sE0}, s{sID}, {PART_WG}")
    S(f"s_mul_i32 s{sT0}, s{sW}, {18 * 1024}")
    S(f"s_add_u32 s{sE0}, s{sE0}, s{sT0}")
    S(f"s_add_u32 s{sE0}, s{sE0}, {PART0}")
    S(f"s_add_u32 s{sE1}, s{sE0}, {14 * 1024}")
    W("lgkmcnt(0)")
    BAR()
    return c


def o_phase():
    mf, tasks = [], []
    OF = lambda blk, kb: 32 + (blk * 8 + kb) * 4
    ACC = [192, 212]
    PK = [[232, 236], [240, 244]]
    HST = 248
    prev = None
    for kb in range(8):
        for blk in range(5):
            c0 = kb * 5 + blk
            prev = Task(ds_r128(("v", OF(blk, kb)), vST, blk * 8192 + kb * 1024), "L", rel=-1, dl=-1 if c0 < 10 else c0 - 8,
                        deps=[(prev, 0)] if prev else [], name="ord")
            tasks.append(prev)
    prev_st = {}
    prev_inc = None
    for o in range(7):
        p = o & 1
        firstm = len(mf)
        for kb in range(8):
            for blk in range(5):
                d = ("v", ACC[p] + 4 * blk)
                mf.append(mfma(d, ("a", WFR[o] + 4 * kb), ("v", OF(blk, kb)), 0 if kb == 0 else d))
        dl = firstm + 80 - 3
        cvs = {}
        for blk in range(5):
            for h in range(2):
                dst, key = (HST + 2 * p + h, "H") if blk == 4 else (PK[p][blk >> 1] + 2 * (blk & 1) + h, (p, blk >> 1))
                s = ACC[p] + 4 * blk + 2 * h
                t = Task(valu(f"v_cvt_pk_bf16_f32 v{dst}, v{s}, v{s + 1}"), "V", rel=firstm + 35 + blk + MLAT, dl=dl,
                         deps=[(prev_st[key], 2)] if key in prev_st else [], name="cvt")
                tasks.append(t)
                cvs.setdefault(key, []).append(t)
        sts = []
        for pr in range(2):
            st = Task(bstore(4, ("v", PK[p][pr]), vST, sWS, sE0, p * 2048 + pr * 1024, STF), "D",
                      deps=[(t, 1) for t in cvs[(p, pr)]] + ([(prev_inc, 0)] if prev_inc else []), name="st")
            tasks.append(st)
            prev_st[(p, pr)] = st
            sts.append(st)
        if p == 0:
            hcv = cvs["H"]
            sts0 = sts
        if p == 1 or o == 6:
            st = Task(bstore(4, ("v", HST), vST, sWS, sE1, (o >> 1) * 1024, STF), "D", deps=[(t, 1) for t in hcv + cvs["H"]], name="stH")
            tasks.append(st)
            prev_st["H"] = st
            prev_inc = Task(salu(f"s_add_u32 s{sE0}, s{sE0}, 4096"), "S", deps=[(t, 0) for t in sts + sts0], name="inc")
            tasks.append(prev_inc)
    gaps = schedule(mf, tasks, verbose=True)
    for o in range(7):
        mf[40 * o].mark = ("N", o)
    return linearize(mf, gaps)


def final():
    c = []
    S = lambda t: c.append(salu(t))
    V = lambda t: c.append(valu(t))
    W = lambda t: c.append(I(f"s_waitcnt {t}", "W"))
    RI, RA, RB = [QA[0], QA[1]], [QA[2], vU[0]], [vU[1], vX]
    S(f"s_and_b32 s{sT0}, s{sID}, 0xf0")
    S(f"s_mul_i32 s{sE2}, s{sT0}, {PART_WG}")
    S(f"s_add_u32 s{sE2}, s{sE2}, {PART0}")
    c += pst()
    W("vmcnt(0)")
    c += pst()
    c.append(I("s_barrier", "B"))
    c += pst()
    S(f"s_cmp_lg_u32 s{sW}, 0")
    c.append(I("s_cbranch_scc1 L_p2d", "BR"))
    V(f"v_mov_b32 v{vT0}, 3")
    if OPT.get("diag"):
        c.append(raw("s_memrealtime s[96:97]"))
        c.append(raw("s_waitcnt lgkmcnt(0)"))
        for t in ("s_sub_u32 s96, s96, s98", "s_mul_i32 s96, s96, 655", "s_lshr_b32 s96, s96, 16", f"s_sub_u32 s96, s96, {OPT['diag']}", "s_min_u32 s96, s96, 63", "s_lshl_b32 s96, s96, 2", "s_or_b32 s96, s96, 3"):
            c.append(raw(t))
        V(f"v_mov_b32 v{vT0}, s96")
    V(f"v_mov_b32 v{vT1}, 0")
    c.append(raw(f"buffer_store_byte v{vT0}, v{vT1}, s[{sDBG}:{sDBG + 3}], s{sID} offen sc0 sc1", "X"))
    S(f"s_mov_b32 s{sCnt}, 0")
    c.append(I("L_p2:", "LAB"))
    c.append(raw(f"buffer_load_dwordx4 v[32:35], v{vT1}, s[{sDBG}:{sDBG + 3}], s{sT0} offen sc0 sc1", "X"))
    S(f"s_add_u32 s{sCnt}, s{sCnt}, 1")
    c.append(raw("s_waitcnt vmcnt(0)", "X"))
    V("v_and_b32 v32, v32, v33")
    V("v_and_b32 v34, v34, v35")
    V("v_and_b32 v32, v32, v34")
    V(f"v_readfirstlane_b32 s{sT1}, v32")
    S(f"s_cmp_gt_u32 s{sCnt}, 2000000")
    c.append(I("s_cbranch_scc1 L_p2d", "BR"))
    S(f"s_and_b32 s{sT1}, s{sT1}, 0x02020202")
    S(f"s_cmp_lg_u32 s{sT1}, 0x02020202")
    c.append(I("s_cbranch_scc1 L_p2", "BR"))
    c.append(I("L_p2d:", "LAB"))
    c.append(I("s_barrier", "B"))
    c += stamp(7)
    c += pst()
    for p in range(16):
        for n in range(2):
            c.append(bload(4, ("v", 32 + (n * 16 + p) * 4), RI[n], sWS, sE2, 0, LDF))
        S(f"s_add_u32 s{sE2}, s{sE2}, {PART_WG}")
    A0 = 192
    c += pst()
    for p in range(16):
        W(f"vmcnt({30 - 2 * p})")
        if p == 0:
            c += pst()
        for n in range(2):
            for r in range(4):
                x = 32 + (n * 16 + p) * 4 + r
                a = A0 + n * 8 + 2 * r
                if p == 0:
                    V(f"v_lshlrev_b32 v{a}, 16, v{x}")
                    V(f"v_and_b32 v{a + 1}, 0xffff0000, v{x}")
                else:
                    V(f"v_lshlrev_b32 v{ET}, 16, v{x}")
                    V(f"v_and_b32 v{ET + 1}, 0xffff0000, v{x}")
                    V(f"v_add_f32 v{a}, v{a}, v{ET}")
                    V(f"v_add_f32 v{a + 1}, v{a + 1}, v{ET + 1}")
    for n in range(2):
        for r in range(4):
            V(f"v_cvt_pk_bf16_f32 v{A0 + 16 + n * 4 + r}, v{A0 + n * 8 + 2 * r}, v{A0 + n * 8 + 2 * r + 1}")
        c.append(bstore(2, ("v", A0 + 16 + n * 4), RA[n], sOUT, "0", 0))
        c.append(bstore(2, ("v", A0 + 16 + n * 4 + 2), RB[n], sOUT, "0", 0))
    c += pst() + pst()
    return c


def norm(ins):
    t = ins.text
    if "@" in t:
        a, b = t.split("@")
        return f"{a}@{int(b.rstrip(':')) % 4}"
    return t


def fold(code):
    segs, cur, keys, key = [], [], [], None
    for ins in code:
        if ins.kind == "M" and ins.mark is not None:
            segs.append(cur)
            keys.append(key)
            cur, key = [], ins.mark
        if ins.kind == "LAB" and ins.tag and ins.tag[0] == "cut":
            segs.append(cur)
            keys.append(key)
            cur, key = [], None
            continue
        cur.append(ins)
    segs.append(cur)
    keys.append(key)
    print("; est cycles/seg:", [gap_cost(s) for s in segs])
    txt = [tuple(norm(i) for i in s) for s in segs]
    out, i, nloop, n = [], 0, 0, len(segs)
    sitekey = lambda s: (s["j"] % 4, tuple(sorted((b, tuple(v)) for b, v in s["later_blk"].items())), tuple(x % 4 for x in s["pend"]), s["blks"])
    sinfo = {s["j"]: s for s in sites}
    sites_in = lambda seg: [sitekey(sinfo[x.tag[1]]) for x in seg if x.kind == "BR" and x.tag and x.tag[0] == "site"]
    while i < n:
        k = 1
        if keys[i] is not None:
            p = {"M": 4, "Q": 2}.get(keys[i][0], 1)
            while i + (k + 1) * p <= n and all(keys[i + k * p + r] is not None and txt[i + k * p + r] == txt[i + r] and
                                               sites_in(segs[i + k * p + r]) == sites_in(segs[i + r]) for r in range(p)):
                k += 1
        if k >= 2:
            out.append(salu(f"s_mov_b32 s{sCnt}, {k}"))
            out.append(I(f"L_loop{nloop}:", "LAB"))
            for r in range(p):
                out += segs[i + r]
            out += [salu(f"s_sub_u32 s{sCnt}, s{sCnt}, 1"), salu(f"s_cmp_lg_u32 s{sCnt}, 0"), I(f"s_cbranch_scc1 L_loop{nloop}", "BR")]
            nloop += 1
            i += p * k
        else:
            out += segs[i]
            i += 1
    return out


def cut():
    return I("", "LAB", tag=("cut",))


def build():
    code = prologue() + stamp(1) + q_phase() + [cut()] + stamp(2) + q_finish() + stamp(3) + main_phase() + [cut()] + stamp(4)
    code += tail() + stamp(6) + o_phase() + [cut()] + final()
    if STAMP:
        nc = []
        for ins in code:
            nc.append(ins)
            if ins.kind == "M" and ins.mark is not None:
                if ins.mark[0] == "N" and ins.mark[1] not in (0,):
                    continue
                nc += pst()[1:]
        code = [raw("s_mov_b64 s[4:5], 1"), raw("s_mov_b32 s96, 0")] + nc
    code = insert_lgkm_waits(code, age=OPT["age"])
    code = resolve_vm_waits(code)
    code, nf = check_hazards(code)
    code = fold(code)
    names, slow = [], []
    sinfo = {s["j"]: s for s in sites}
    for ins in code:
        ins.text = ins.text.replace("@", "")
        if ins.kind == "BR" and ins.tag and ins.tag[0] == "site":
            j = ins.tag[1]
            sp = slow_path(sinfo[j], str(j)) + [salu(f"s_mov_b32 s{sSite}, {len(names)}"), I("s_branch L_slow_tail", "BR")]
            names.append(str(j))
            slow += check_hazards(sp)[0]
    slow += check_hazards(slow_tail(names))[0]
    fin = []
    if STAMP:
        fin.append(I("s_waitcnt vmcnt(0) lgkmcnt(0)", "W"))
        fin += [raw(f"s_memtime s[100:101]"), raw(f"s_memrealtime s[96:97]"), I("s_waitcnt lgkmcnt(0)", "W")]
        for t in (f"s_lshl_b32 s{sT0}, s2, 2", f"s_add_u32 s{sT0}, s{sT0}, s{sW}", f"s_lshl_b32 s{sT0}, s{sT0}, 6",
                  f"s_lshl_b32 s{sT1}, s{sT0}, 2", f"s_add_u32 s{sT0}, s{sT0}, {128 << 20}", f"s_add_u32 s{sT1}, s{sT1}, {132 << 20}"):
            fin.append(salu(t))
        fin.append(valu(f"v_mov_b32 v{vT0}, 0"))
        for k in range(8):
            fin.append(valu(f"v_mov_b32 v{128 + k}, s{sSt + 2 * k}"))
        fin += [valu("v_mov_b32 v136, s100"), valu("v_mov_b32 v137, s96"), valu("v_mov_b32 v138, s98")]
        for k in range(0, 12, 4):
            fin.append(bstore(4, ("v", 128 + k), vT0, sWS, sT0, k * 4))
        fin.append(valu(f"v_lshlrev_b32 v{vT1}, 2, v{vLANE}"))
        fin.append(bstore(1, ("v", 0), vT1, sWS, sT1, 0))
    NAME = "standalone__gqa_block_cached__near_ridge_kernel"
    hdr = open("standalone__gqa_block_cached__near_ridge.s.ref").read().split("; Override launch")[0]
    L = [hdr.rstrip()]
    A = L.append
    A("; @launch grid=(256,1,1) block=(256,1,1) lds=163840")
    A('.amdgcn_target "amdgcn-amd-amdhsa--gfx950"')
    A(".text")
    A(f".globl {NAME}")
    A(".p2align 8")
    A(f".type {NAME},@function")
    A(f"{NAME}:")
    A("s_cmp_ge_u32 s2, 256")
    A("s_cbranch_scc1 L_end")
    L += [i.text for i in code if i.text]
    L += [i.text for i in fin]
    A("L_end:")
    A("s_endpgm")
    L += [i.text for i in slow]
    A('.section .rodata,"a"')
    A(".p2align 6")
    A(f".amdhsa_kernel {NAME}")
    for t in ("next_free_vgpr 512", "next_free_sgpr 102", "accum_offset 256", "group_segment_fixed_size 0", "kernarg_size 64",
              "user_sgpr_count 2", "user_sgpr_kernarg_segment_ptr 1", "system_sgpr_workgroup_id_x 1"):
        A(f"  .amdhsa_{t}")
    A(".end_amdhsa_kernel")
    return "\n".join(L) + "\n"


if __name__ == "__main__":
    out = [a for a in sys.argv[1:] if a.endswith(".s")]
    open(out[0] if out else "k2.s", "w").write(build())
```

```python
import sys
from sched import *

OPT = dict(debug=None, stamp=0, dist=15, age=7, stf="sc1", ldf="sc1", pref=0, rot=1, ish=8, flf="sc1", codemax=47616)
for a in sys.argv[1:]:
    if "=" in a:
        k, v = a.split("=")
        OPT[k] = int(v) if v.lstrip("-").isdigit() else v
    elif a == "stamp":
        OPT["stamp"] = 1
STAMP, DEBUG = OPT["stamp"], OPT["debug"]
STF = " " + OPT["stf"].replace("+", " ") if OPT["stf"] else ""
LDF = " " + OPT["ldf"].replace("+", " ") if OPT["ldf"] else ""

sID = 3
sX, sK, sV, sWQ, sWO, sWS = 8, 12, 16, 20, 24, 28
sDBG, sOUT = 4, 20
INBOX = 48 << 20
sIN = 82
sWlim, sXlim, sK3 = 88, 89, 90
sW, sXW, sHW, sB, sH, sSP = 32, 33, 34, 35, 36, 37
sKoff, sVoff, sDst, sDstLim, sDst0 = 38, 39, 40, 41, 42
sHalf, sC1, sC2, sD, sK2 = 43, 44, 45, 46, 47
sPat = 48
sT0, sT1, sT2, sT3 = 50, 51, 52, 53
sThr, sCnt, sSite = 54, 55, 56
sWoff, sXoff, sWdst, sXdst, sWrd, sXrd, sDX = 57, 58, 59, 60, 61, 62, 63
sE0, sE1, sE2, sE3, sE4, sE5, sE6 = 57, 58, 59, 60, 61, 62, 63
sArg = 64
sSt = 80

vLANE, vK0, vK1, vV, vWt, vX, vST = 1, 2, 3, 4, 5, 6, 7
KA = [8, 9]
XA = [10, 11]
VA = [12, 13, 14, 15]
QA = [16, 17, 18]
vU = [19, 20, 21, 22, 23]
LV = [24, 25, 26, 27]
LK0 = 28
vT0, vT1, vT2 = 29, 30, 31
QB = [32, 64, 96]
SB, PB = 128, 176
NEGM = [224, 228, 232]
ET = 236
TS = [[244, 245, 246], [247, 248, 249]]
LS = [250, 251, 252]
vC = 253
vF = [253, 254, 255]
OB = [0, 64, 128]
FB = 192
SLOT = 32768
XBASE, XSL = 3 * SLOT, 20480
EX_WG = 49152
PART0, PART_WG = 16 << 20, 73728
OOB = 0x7ff00000
QSCALE = 0x3DB8AA3B
ISH = OPT.get("ish", 7)
FLF = " " + OPT.get("flf", "sc0+sc1").replace("+", " ")
DIST, MLAT = OPT["dist"], 5


def Sreg(j, kt, blk):
    return SB + ((2 * j + kt) % 4) * 12 + blk * 4


def Preg(j, blk):
    return PB + (j % 4) * 12 + blk * 4


def waitr(vm_keys, lg_key):
    return I("s_waitcnt <resolve>", "W", tag=("resolve", vm_keys, lg_key))


def wait_bar(vm_keys, lg_key):
    return [waitr(vm_keys, lg_key), I("s_barrier", "B")]


def stamp(k):
    return [raw(f"s_memtime s[{84 + 2 * k}:{85 + 2 * k}]")] if STAMP and k < 2 else []


def pst():
    if not STAMP:
        return []
    return [raw("s_waitcnt lgkmcnt(0)", "W"), raw("s_mov_b32 s100, s96"), I("v_mov_b32 v28, s100", "V"), I("v_cndmask_b32 v0, v0, v28, s[80:81]", "V"),
            raw("s_memrealtime s[96:97]" if OPT.get("rt") else "s_memtime s[96:97]"), raw("s_lshl_b64 s[80:81], s[80:81], 1")]


def AR(v, a):
    return I(f"v_accvgpr_read_b32 v{v}, a{a}", "V", [("a", a)], [("v", v)])


def bload(n, dst, voff, srd, soff, imm, flags="", tag=None):
    suf = {1: "dword", 2: "dwordx2", 4: "dwordx4"}[n]
    t = f"buffer_load_{suf} {rtxt(dst[0], dst[1], n)}, v{voff}, s[{srd}:{srd + 3}], s{soff} offen offset:{imm}{flags}"
    return I(t, "D", [("v", voff), ("s", soff)] + R("s", srd, 4), R(dst[0], dst[1], n), tag=tag)


def srd(c, d, arg, size):
    for t in (f"s_mov_b32 s{d}, s{sArg + arg}", f"s_mov_b32 s{d + 1}, s{sArg + arg + 1}", f"s_mov_b32 s{d + 2}, {size}",
              f"s_mov_b32 s{d + 3}, 0x20000"):
        c.append(salu(t))


def qw_dma(cidx):
    g = []
    for x in range(2):
        for t in range(4):
            rows = 32 * x + 16 * (t & 1) + 4 * (t >> 1)
            pre = [salu(f"s_add_u32 m0, s{sWdst}, {x * 16384}")] if t == 0 else []
            pre.append(salu(f"s_add_u32 s{sT0}, s{sWoff}, {rows * 8192 - t * 1024}"))
            g.append((pre, dma(vWt, sWQ, sT0, t * 1024, tag=("QW", cidx))))
    adv = [[salu(f"s_add_u32 s{sWoff}, s{sWoff}, {64 * 8192}")],
           [salu(f"s_cmp_ge_u32 s{sWoff}, {448 * 8192}"), salu(f"s_cselect_b32 s{sT1}, {448 * 8192}, 0")],
           [salu(f"s_sub_u32 s{sWoff}, s{sWoff}, s{sT1}")],
           [salu(f"s_cmp_lt_u32 s{sWdst}, {SLOT}"), salu(f"s_cselect_b32 s{sT1}, {3 * SLOT}, 0")],
           [salu(f"s_add_u32 s{sWdst}, s{sWdst}, s{sT1}")], [salu(f"s_sub_u32 s{sWdst}, s{sWdst}, {SLOT}")]]
    return g, adv


def qx_dma(cidx):
    g = []
    for k in range(5):
        pre = [salu(f"s_add_u32 m0, s{sXdst}, {k * 4096}"), salu(f"s_add_u32 s{sT0}, s{sXoff}, {k * 32 * 896}")]
        g.append((pre, dma(vX, sX, sT0, 0, tag=("QX", cidx))))
    adv = [[salu(f"s_add_u32 s{sXoff}, s{sXoff}, 128")],
           [salu(f"s_cmp_eq_u32 s{sXoff}, s{sXlim}"), salu(f"s_cselect_b32 s{sT1}, 896, 0")],
           [salu(f"s_sub_u32 s{sXoff}, s{sXoff}, s{sT1}")],
           [salu(f"s_cmp_ge_u32 s{sXdst}, {XBASE + 2 * XSL}"), salu(f"s_cselect_b32 s{sT1}, {3 * XSL}, 0")],
           [salu(f"s_sub_u32 s{sXdst}, s{sXdst}, s{sT1}")], [salu(f"s_add_u32 s{sXdst}, s{sXdst}, {XSL}")]]
    return g, adv


def dst_adv():
    return [[salu(f"s_add_u32 s{sDst}, s{sDst}, {SLOT}")],
            [salu(f"s_cmp_eq_u32 s{sDst}, s{sDstLim}"), salu(f"s_cselect_b32 s{sDst}, s{sDst0}, s{sDst}")]]


def kv_dma(kind, tag):
    g = []
    r, off = (sK, sKoff) if kind == "K" else (sV, sVoff)
    for x in range(2):
        for t in range(4):
            pre = []
            if t == 0:
                pre.append(salu(f"s_add_u32 m0, s{sDst}, {x * 16384}") if x else salu(f"s_mov_b32 m0, s{sDst}"))
                if x:
                    pre.append(salu(f"s_add_u32 s{off}, s{off}, 16384"))
            vo = (vK1 if t & 1 else vK0) if kind == "K" else vV
            g.append((pre, dma(vo, r, off, t * 1024, nt=OPT.get("nt", 1), tag=tag)))
    return g, [[salu(f"s_add_u32 s{off}, s{off}, 16384")]] + dst_adv()


def wo_dma(o, slot):
    g = []
    for kk in range(2):
        for t in range(4):
            rows = 32 * kk + 16 * (t >> 1) + 8 * (t & 1)
            pre = [salu(f"s_add_u32 m0, s{sE6}, {slot * SLOT + kk * 4096}")] if t == 0 else []
            pre.append(salu(f"s_add_u32 s{sT0}, s{sK2 if o < 3 else sK3}, {rows * 896 - t * 1024 + o * 128}"))
            g.append((pre, dma(vWt, sWO, sT0, t * 1024, tag=("WO", o))))
    return g, []


def add_dma(tasks, g, adv, first, rel, dl, spread, gapmin=0):
    prev = first
    pd = None
    n = len(g)
    for k, (pre, d) in enumerate(g):
        ddl = dl - (n - 1 - k) * 3
        for p in pre:
            t = Task(p, "S", rel=rel, dl=ddl, deps=[(prev, 0)], name="dmapre")
            tasks.append(t)
            prev = t
        t = Task(d, "D", rel=rel + k * spread, dl=ddl, deps=[(prev, 1 if (prev.cls == "S" and prev.ins) else 0)] + ([(pd, gapmin)] if pd and gapmin else []), name="dma")
        tasks.append(t)
        prev = pd = t
    for a in adv:
        t = Task(a, "S", rel=rel, dl=dl + 8, deps=[(prev, 0)], name="dmaadv")
        tasks.append(t)
        prev = t
    return prev


def emit_serial(c, g, adv, fill=None):
    for pre, d in g:
        c += pre
        c.append(d)
        if fill:
            for _ in range(6):
                if fill:
                    c.append(fill.pop(0))
    for a in adv:
        c += a


def prologue():
    c = []
    S = lambda t: c.append(salu(t))
    V = lambda t: c.append(valu(t))
    c.append(raw(f"s_load_dwordx16 s[{sArg}:{sArg + 15}], s[0:1], 0"))
    c += stamp(0)
    if STAMP or OPT.get("diag"):
        c.append(raw("s_memrealtime s[98:99]"))
    V(f"v_lshrrev_b32 v{vT0}, 6, v0")
    V(f"v_and_b32 v{vLANE}, 63, v0")
    V(f"v_readfirstlane_b32 s{sW}, v{vT0}")
    S(f"s_lshr_b32 s{sT1}, s2, 3")
    S(f"s_and_b32 s{sT3}, s2, 1")
    S(f"s_lshl_b32 s{sT3}, s{sT3}, 2")
    S(f"s_and_b32 s{sT2}, s{sT1}, 3")
    S(f"s_add_u32 s{sT3}, s{sT3}, s{sT2}")
    S(f"s_and_b32 s{sB}, s2, 6")
    S(f"s_bfe_u32 s{sT2}, s{sT1}, 0x10002")
    S(f"s_add_u32 s{sB}, s{sB}, s{sT2}")
    S(f"s_bfe_u32 s{sH}, s{sT1}, 0x10003")
    S(f"s_lshl_b32 s{sT2}, s{sT3}, 1")
    S(f"s_add_u32 s{sH}, s{sH}, s{sT2}")
    S(f"s_lshr_b32 s{sSP}, s{sT1}, 4")
    S(f"s_lshr_b32 s{sXW}, s{sW}, 1")
    S(f"s_and_b32 s{sHW}, s{sW}, 1")
    S(f"s_lshl_b32 s{sKoff}, s{sB}, 3")
    S(f"s_add_u32 s{sKoff}, s{sKoff}, s{sT3}")
    V(f"v_lshrrev_b32 v{vT0}, 3, v{vLANE}")
    V(f"v_and_b32 v{vT1}, 7, v{vLANE}")
    V(f"v_lshrrev_b32 v{vT2}, 1, v{vT0}")
    V(f"v_xor_b32 v{vK0}, v{vT1}, v{vT2}")
    V(f"v_lshlrev_b32 v{vK0}, 4, v{vK0}")
    V(f"v_lshlrev_b32 v{vV}, 1, v{vT2}")
    V(f"v_xor_b32 v{vV}, v{vT1}, v{vV}")
    V(f"v_lshlrev_b32 v{vV}, 4, v{vV}")
    S(f"s_lshl_b32 s{sT2}, s{sHW}, 6")
    V(f"v_xor_b32 v{vX}, s{sT2}, v{vK0}")
    V(f"v_mul_u32_u24 v{vST}, 896, v{vT0}")
    V(f"v_add_u32 v{vX}, v{vX}, v{vST}")
    V(f"v_and_b32 v{vWt}, 3, v{vT0}")
    V(f"v_lshrrev_b32 v{vST}, 2, v{vT0}")
    V(f"v_lshl_add_u32 v{vWt}, v{vST}, 3, v{vWt}")
    V(f"v_lshlrev_b32 v{vWt}, 13, v{vWt}")
    V(f"v_add_u32 v{vWt}, v{vWt}, v{vV}")
    S(f"s_lshl_b32 s{sT3}, s{sW}, 7")
    V(f"v_add_u32 v{vWt}, s{sT3}, v{vWt}")
    S(f"s_lshl_b32 s{sWoff}, s{sH}, 9")
    S(f"s_mul_i32 s{sXoff}, s{sB}, {160 * 896}")
    S(f"s_mul_i32 s{sT2}, s{sW}, {8 * 896}")
    S(f"s_add_u32 s{sXoff}, s{sXoff}, s{sT2}")
    S(f"s_add_u32 s{sXlim}, s{sXoff}, 896")
    if OPT["rot"]:
        S(f"s_and_b32 s{sT2}, s{sB}, 1")
        S(f"s_lshl_b32 s{sT1}, s{sSP}, 1")
        S(f"s_add_u32 s{sT2}, s{sT2}, s{sT1}")
        S(f"s_lshl_b32 s{sT2}, s{sT2}, 1")
        S(f"s_and_b32 s{sT1}, s{sH}, 3")
        S(f"s_add_u32 s{sT2}, s{sT2}, s{sT1}")
        S(f"s_cmp_ge_u32 s{sT2}, 7")
        S(f"s_cselect_b32 s{sT1}, 7, 0")
        S(f"s_sub_u32 s{sT2}, s{sT2}, s{sT1}")
        S(f"s_lshl_b32 s{sT1}, s{sT2}, 19")
        S(f"s_add_u32 s{sWoff}, s{sWoff}, s{sT1}")
        S(f"s_lshl_b32 s{sT1}, s{sT2}, 7")
        S(f"s_add_u32 s{sXoff}, s{sXoff}, s{sT1}")
    S(f"s_lshl_b32 s{sDst0}, s{sW}, 12")
    S(f"s_add_u32 s{sWdst}, s{sDst0}, {SLOT}")
    S(f"s_lshl_b32 s{sXdst}, s{sW}, 10")
    S(f"s_add_u32 s{sXdst}, s{sXdst}, {XBASE}")
    c.append(I("s_waitcnt lgkmcnt(0)", "W"))
    srd(c, sWQ, 6, 448 * 4096 * 2)
    srd(c, sX, 0, 8 * 160 * 448 * 2)
    f = []
    c2, c = c, f
    S = lambda t: f.append(salu(t))
    V = lambda t: f.append(valu(t))
    V(f"v_and_b32 v{vST}, 1, v{vT0}")
    V(f"v_lshl_add_u32 v{vST}, v{vT2}, 3, v{vST}")
    V(f"v_lshlrev_b32 v{vST}, 9, v{vST}")
    V(f"v_add_u32 v{vST}, s{sT3}, v{vST}")
    V(f"v_add_u32 v{vK0}, v{vK0}, v{vST}")
    V(f"v_add_u32 v{vV}, v{vV}, v{vST}")
    V(f"v_xor_b32 v{vK1}, 64, v{vK0}")
    srd(f, sK, 2, 0x4000000)
    srd(f, sV, 4, 0x4000000)
    srd(f, sWO, 8, 448 * 4096 * 2)
    srd(f, sWS, 14, 0x10000000)
    S(f"s_lshl_b32 s{sKoff}, s{sKoff}, 20")
    S(f"s_lshl_b32 s{sVoff}, s{sSP}, 19")
    S(f"s_add_u32 s{sKoff}, s{sKoff}, s{sVoff}")
    S(f"s_mov_b32 s{sVoff}, s{sKoff}")
    S(f"s_lshl_b32 s{sID}, s{sB}, 1")
    S(f"s_add_u32 s{sID}, s{sID}, s{sSP}")
    S(f"s_lshl_b32 s{sID}, s{sID}, 4")
    S(f"s_add_u32 s{sID}, s{sID}, s{sH}")
    srd(f, sDBG, 12, 256)
    S(f"s_lshl_b32 s{sIN}, s{sID}, {ISH}")
    S(f"s_add_u32 s{sIN}, s{sIN}, {INBOX}")
    f.append(I(f"s_cmp_eq_u32 s{sW}, 0\ns_cselect_b32 s{sT2}, s{sIN}, {OOB:#x}\ns_cselect_b32 s{sIN + 1}, s{sID}, {OOB:#x}", "S"))
    V(f"v_and_b32 v{vT0}, 31, v{vLANE}")
    V(f"v_lshlrev_b32 v{vT0}, 2, v{vT0}")
    V(f"v_mov_b32 v{vU[2]}, 0")
    V(f"v_mov_b32 v{vU[3]}, 1")
    f.append(bstore(1, ("v", vU[2]), vT0, sWS, sT2, 0, " sc0 sc1"))
    f.append(nop(1))
    V(f"v_and_b32 v{vT0}, 15, v{vLANE}")
    V(f"v_lshrrev_b32 v{vT1}, 4, v{vLANE}")
    V(f"v_lshrrev_b32 v{vT2}, 1, v{vT0}")
    V(f"v_xor_b32 v{LK0}, v{vT1}, v{vT2}")
    V(f"v_lshlrev_b32 v{LK0}, 4, v{LK0}")
    V(f"v_lshl_add_u32 v{LK0}, v{vT0}, 7, v{LK0}")
    V(f"v_lshrrev_b32 v{vT0}, 2, v{vLANE}")
    V(f"v_and_b32 v{vT1}, 6, v{vT0}")
    V(f"v_bfe_u32 v{vT2}, v{vLANE}, 1, 1")
    V(f"v_xor_b32 v{vT1}, v{vT1}, v{vT2}")
    V(f"v_lshlrev_b32 v{vT1}, 4, v{vT1}")
    V(f"v_lshl_add_u32 v{vT1}, v{vT0}, 7, v{vT1}")
    V(f"v_and_b32 v{vT2}, 1, v{vLANE}")
    V(f"v_lshl_add_u32 v{LV[0]}, v{vT2}, 3, v{vT1}")
    for k in range(1, 4):
        V(f"v_xor_b32 v{LV[k]}, {32 * k}, v{LV[0]}")
    S(f"s_add_u32 s{sT2}, s{sDst0}, {SLOT}")
    for k in range(4):
        V(f"v_add_u32 v{VA[k]}, s{sT2}, v{LV[k]}")
    V(f"v_add_u32 v{XA[0]}, {XBASE}, v{LK0}")
    V(f"v_xor_b32 v{XA[1]}, 64, v{XA[0]}")
    S(f"s_mov_b32 s{sWrd}, {SLOT}")
    S(f"s_mov_b32 s{sXrd}, 0")
    S(f"s_add_u32 s{sDstLim}, s{sDst0}, {5 * SLOT}")
    S(f"s_mov_b32 s{sDst}, s{sDst0}")
    S(f"s_lshl_b32 s{sHalf}, s{sXW}, 15")
    S(f"s_sub_u32 s{sHalf}, s{sHalf}, 16384")
    S(f"s_sub_u32 s{sC1}, {2 * SLOT}, s{sHalf}")
    S(f"s_sub_u32 s{sC2}, {(-3 * SLOT) & 0xffffffff}, s{sHalf}")
    S(f"s_mov_b32 s{sThr}, 0x53800000")
    pat = 0
    for j in range(40):
        if (j + 1) % 5 < (j - 1) % 5:
            pat |= 1 << j
    S(f"s_mov_b32 s{sPat}, {pat & 0xffffffff:#x}")
    S(f"s_mov_b32 s{sPat + 1}, {pat >> 32:#x}")
    S(f"s_lshl_b32 s{sT2}, s{sXW}, 14")
    S(f"s_sub_u32 s{sT2}, 16384, s{sT2}")
    V(f"v_add_u32 v{KA[0]}, s{sT2}, v{LK0}")
    V(f"v_xor_b32 v{KA[1]}, 64, v{KA[0]}")
    V(f"v_and_b32 v{vT0}, 15, v{vLANE}")
    V(f"v_lshlrev_b32 v{vT0}, 4, v{vT0}")
    V(f"v_lshrrev_b32 v{vT1}, 5, v{vLANE}")
    V(f"v_lshl_add_u32 v{vT0}, v{vT1}, 8, v{vT0}")
    V(f"v_bfe_u32 v{vT1}, v{vLANE}, 4, 1")
    V(f"v_lshl_add_u32 v{vT0}, v{vT1}, 3, v{vT0}")
    S(f"s_lshl_b32 s{sT2}, s{sW}, 11")
    S(f"s_add_u32 s{sT3}, s{sT2}, {XBASE}")
    V(f"v_add_u32 v{vU[0]}, s{sT3}, v{vT0}")
    S(f"s_add_u32 s{sT3}, s{sT2}, {SLOT}")
    V(f"v_add_u32 v{vU[1]}, s{sT3}, v{vT0}")
    V(f"v_lshlrev_b32 v{vST}, 4, v{vLANE}")
    S(f"s_lshl_b32 s{sT2}, s{sW}, 1")
    S(f"s_add_u32 s{sT2}, s{sT2}, s{sSP}")
    S(f"s_lshl_b32 s{sT2}, s{sT2}, 13")
    S(f"s_add_u32 s{sT2}, s{sT2}, {XBASE}")
    V(f"v_add_u32 v{QA[0]}, s{sT2}, v{vST}")
    V(f"v_xor_b32 v{QA[1]}, 8192, v{QA[0]}")
    S(f"s_xor_b32 s{sT2}, s{sHW}, s{sSP}")
    S(f"s_lshl_b32 s{sT2}, s{sT2}, 13")
    S(f"s_add_u32 s{sT2}, s{sT2}, {SLOT}")
    V(f"v_add_u32 v{QA[2]}, s{sT2}, v{vST}")
    S(f"s_lshl_b32 s{sK2}, s{sH}, 2")
    S(f"s_add_u32 s{sK2}, s{sK2}, s{sW}")
    S(f"s_mul_i32 s{sK2}, s{sK2}, {64 * 896}")
    S(f"s_mul_i32 s{sT2}, s{sSP}, {3 * 128 * OPT['rot']}")
    S(f"s_sub_u32 s{sK3}, s{sK2}, s{sT2}")
    S(f"s_lshl_b32 s{sT2}, s{sSP}, {9 if OPT['rot'] else 31}")
    S(f"s_and_b32 s{sT2}, s{sT2}, 512")
    S(f"s_add_u32 s{sK2}, s{sK2}, s{sT2}")
    c = c2
    for fn, cidx in ((qw_dma, 0), (qx_dma, 0), (qw_dma, 1)):
        g, adv = fn(cidx)
        emit_serial(c, g, adv, f)
    c += f
    if OPT["pref"]:
        S = lambda t: c.append(salu(t))
        V = lambda t: c.append(valu(t))
        S(f"s_and_b32 s{sT0}, s{sB}, 1")
        S(f"s_lshl_b32 s{sT0}, s{sT0}, 1")
        S(f"s_add_u32 s{sT0}, s{sT0}, s{sSP}")
        S(f"s_lshl_b32 s{sT0}, s{sT0}, 2")
        S(f"s_add_u32 s{sT0}, s{sT0}, s{sW}")
        V(f"v_lshrrev_b32 v{vT0}, 2, v{vLANE}")
        V(f"v_lshlrev_b32 v{vT0}, 13, v{vT0}")
        V(f"v_and_b32 v{vT1}, 3, v{vLANE}")
        V(f"v_lshl_add_u32 v{vT0}, v{vT1}, 7, v{vT0}")
        S(f"s_lshl_b32 s{sT1}, s{sT0}, 17")
        S(f"s_add_u32 s{sT1}, s{sT1}, s{sWoff}")
        c.append(bload(1, ("v", 32), vT0, sWQ, sT1, 0))
        S(f"s_lshr_b32 s{sT1}, s2, 3")
        S(f"s_and_b32 s{sT2}, s{sT1}, 3")
        S(f"s_lshr_b32 s{sT1}, s{sT1}, 3")
        S(f"s_lshl_b32 s{sT1}, s{sT1}, 2")
        S(f"s_add_u32 s{sT1}, s{sT1}, s{sT2}")
        S(f"s_lshl_b32 s{sT1}, s{sT1}, 2")
        S(f"s_add_u32 s{sT1}, s{sT1}, s{sW}")
        S(f"s_mul_i32 s{sT1}, s{sT1}, {18 * 128}")
        S(f"s_mul_i32 s{sT2}, s{sB}, {160 * 896}")
        S(f"s_add_u32 s{sT1}, s{sT1}, s{sT2}")
        V(f"v_min_u32 v{vT1}, 17, v{vLANE}")
        V(f"v_lshlrev_b32 v{vT1}, 7, v{vT1}")
        c.append(bload(1, ("v", 33), vT1, sX, sT1, 0))
        c.append(raw(f"s_getpc_b64 s[{sT2}:{sT3}]"))
        S(f"s_and_b32 s{sT1}, s{sT0}, 7")
        S(f"s_lshl_b32 s{sT1}, s{sT1}, 13")
        V(f"v_lshlrev_b32 v{vT1}, 7, v{vLANE}")
        V(f"v_add_u32 v{vT1}, s{sT1}, v{vT1}")
        V(f"v_min_u32 v{vT1}, @CODEMAX, v{vT1}")
        c.append(I(f"global_load_dword v34, v{vT1}, s[{sT2}:{sT3}]", "D", [("v", vT1)], [("v", 34)]))
        S(f"s_mul_i32 s{sT1}, s{sH}, {256 * 896}")
        S(f"s_mul_i32 s{sT0}, s{sT0}, {112 * 128}")
        S(f"s_add_u32 s{sT1}, s{sT1}, s{sT0}")
        V(f"v_lshlrev_b32 v{vT1}, 7, v{vLANE}")
        if OPT["pref"] > 1:
            c.append(bload(1, ("v", 35), vT1, sWO, sT1, 0))
            S(f"s_add_u32 s{sT1}, s{sT1}, {48 * 128}")
            c.append(bload(1, ("v", 36), vT1, sWO, sT1, 0))
    return c


def qacc(blk, t):
    return 96 + (blk * 4 + t) * 4


def q_phase():
    mf, tasks, marks = [], [], []
    WF = lambda c, ks, t: (c & 1) * 32 + (ks * 4 + t) * 4
    XF = lambda blk, ks: 64 + (blk * 2 + ks) * 4
    bar, lastx, lastaddr, xuse, wuse = {}, {}, {}, {}, {}
    prev_dma, prev_aups = None, []
    allreads = []
    for cidx in range(7):
        start = 80 * cidx
        marks.append(start)
        if cidx == 0:
            bar[0] = Task(wait_bar([("QX", 0)], None), "BAR", rel=-1, dl=-1, name="bar0")
            wready = bar[0]
        else:
            bar[cidx] = Task(wait_bar([("QX", cidx)], ("XR", cidx - 1)), "BAR", rel=start - 20, dl=start - 10, deps=[(lastx[cidx - 1], 4)], name=f"bar{cidx}")
            wready = Task(waitr([("QW", cidx)], None), "S", rel=start - 44, name="wready")
            tasks.append(wready)
        tasks.append(bar[cidx])
        aup = {}
        if cidx > 0:
            sd = [Task([salu(f"s_cmp_eq_u32 s{sWrd}, 0"), salu(f"s_cselect_b32 s{sD}, {3 * SLOT}, 0")], "S", rel=start - 76, deps=[(t, 0) for t in prev_aups], name="sd")]
            for t in (f"s_sub_u32 s{sD}, s{sD}, {SLOT}", f"s_add_u32 s{sWrd}, s{sWrd}, s{sD}"):
                sd.append(Task(salu(t), "S", deps=[(sd[-1], 0)], name="sd"))
            sd.append(Task([salu(f"s_cmp_eq_u32 s{sXrd}, {2 * XSL}"), salu(f"s_cselect_b32 s{sDX}, {3 * XSL}, 0")], "S", deps=[(sd[-1], 0)], name="sd"))
            for t in (f"s_sub_u32 s{sDX}, {XSL}, s{sDX}", f"s_add_u32 s{sXrd}, s{sXrd}, s{sDX}"):
                sd.append(Task(salu(t), "S", deps=[(sd[-1], 0)], name="sd"))
            tasks += sd
            for r in VA:
                aup[r] = Task(valu(f"v_add_u32 v{r}, s{sD}, v{r}"), "V", deps=[(sd[-1], 1), (lastaddr[r], 0)], name="aup")
            for r in XA:
                aup[r] = Task(valu(f"v_add_u32 v{r}, s{sDX}, v{r}"), "V", deps=[(sd[-1], 1), (lastaddr[r], 0)], name="aup")
            tasks += list(aup.values())
            prev_aups = list(aup.values())

        def rd(ins, consumer, gate, tag, rel, war):
            ins.tag = tag
            a = ins.rd[0][1]
            deps = [(gate, 0)] + ([(aup[a], 1)] if a in aup else []) + ([(lastaddr[a], 0)] if a in lastaddr else [])
            first = cidx == 0 and consumer < 12
            t = Task(ins, "L", rel=-1 if first else max(rel, war), dl=-1 if first else consumer - 6, deps=deps, name="rd")
            tasks.append(t)
            lastaddr[a] = t
            allreads.append(t)
            return t

        for ks in range(2):
            for t in range(4):
                for e in range(2):
                    rd(ds_rtr(("a", WF(cidx, ks, t) + 2 * e), VA[t], ks * 16384 + e * 2048), start + ks * 4 + t, wready, ("WR", cidx),
                       start - 42, wuse.get(cidx & 1, -1))
        early = 60 if cidx == 6 else 22
        for blk in range(10):
            for ks in range(2):
                c0 = len(mf)
                lastx[cidx] = rd(ds_r128(("a", XF(blk, ks)), XA[ks], blk * 2048), c0, bar[cidx], ("XR", cidx), c0 - early, xuse.get((blk, ks), -1))
                for t in range(4):
                    d = ("v", qacc(blk, t))
                    mf.append(mfma(d, ("a", WF(cidx, ks, t)), ("a", XF(blk, ks)), 0 if (cidx == 0 and ks == 0) else d))
                xuse[(blk, ks)] = len(mf) - 1
        wuse[cidx & 1] = len(mf) - 1
    q = []
    for cidx in range(1, 7):
        q.append((qx_dma(cidx), bar[max(cidx - 2, 0)], max(0, 80 * (cidx - 2) - 10), 80 * (cidx - 1) + (30 if cidx > 1 else 16)))
        if cidx + 1 <= 6:
            q.append((qw_dma(cidx + 1), bar[0], max(0, 80 * (cidx - 2) + 10), 80 * (cidx - 1) + 62))
    g, adv = kv_dma("K", ("T", -1))
    q.append(((g, adv + dst_adv()), bar[0], 80 * 4 + 10, 80 * 5 + 40))
    q.append((kv_dma("K", ("T", 1)), bar[0], 80 * 5 + 10, 80 * 6 + 20))
    for (g, adv), gate, r0, d0 in q:
        first = Task([], "S", rel=r0, deps=[(gate, 0)] + ([(prev_dma, 0)] if prev_dma else []), name="dmastart")
        tasks.append(first)
        prev_dma = add_dma(tasks, g, adv, first, r0, d0, spread=0, gapmin=OPT.get("qgap", 3))
    an = I(f"buffer_store_byte v{vU[3]}, v{vU[2]}, s[{sDBG}:{sDBG + 3}], s{sIN + 1} offen sc0 sc1", "D", [("v", vU[3]), ("v", vU[2])], [], tag="store")
    seq = [an]
    if OPT.get("tlb", 1):
        seq += [bload(1, ("v", vX), vU[2], sV, sVoff, 0), bload(1, ("v", vX), vU[2], sWO, sK2, 0),
                salu(f"s_mul_i32 s{sT0}, s{sID}, {EX_WG}"), bload(1, ("v", vX), vU[2], sWS, sT0, 0),
                salu(f"s_xor_b32 s{sT0}, s{sID}, 16"), salu(f"s_mul_i32 s{sT0}, s{sT0}, {EX_WG}"), bload(1, ("v", vX), vU[2], sWS, sT0, 0),
                salu(f"s_and_b32 s{sT0}, s{sID}, 0xf0"), salu(f"s_lshl_b32 s{sT1}, s{sW}, 2"), salu(f"s_add_u32 s{sT0}, s{sT0}, s{sT1}"),
                salu(f"s_mul_i32 s{sT0}, s{sT0}, {PART_WG}"), salu(f"s_add_u32 s{sT0}, s{sT0}, {PART0}"), bload(1, ("v", vX), vU[2], sWS, sT0, 0)]
    for i in seq:
        prev_dma = Task(i, i.kind, deps=[(prev_dma, 1)], dl=80 * 6 + 60, name="warm")
        tasks.append(prev_dma)
    start = 480
    dead = Task(wait_bar([], ("XR", 6)), "BAR", deps=[(lastx[6], 4)], name="dead")
    tasks.append(dead)
    sc = Task([salu(f"s_mov_b32 s{sT2}, {QSCALE:#x}"), salu(f"s_mov_b32 s{sT3}, {QSCALE:#x}")], "S", rel=start, name="sc")
    tasks.append(sc)
    for blk in range(10):
        for t in range(4):
            s = qacc(blk, t)
            done = start + blk * 8 + 4 + t
            if blk < OPT.get("pkfrom", 4):
                ms = [Task(valu(f"v_mul_f32 v{s + r}, s{sT3}, v{s + r}"), "V", rel=done + MLAT, deps=[(sc, 1)], name="qmul") for r in range(4)]
            else:
                m2 = [Task(valu(f"v_pk_mul_f32 v[{s + r}:{s + r + 1}], v[{s + r}:{s + r + 1}], s[{sT2}:{sT3}]"), "V", rel=done + MLAT, deps=[(sc, 1)], name="qmul") for r in (0, 2)]
                ms = [m2[0], m2[0], m2[1], m2[1]]
            c0 = Task(valu(f"v_cvt_pk_bf16_f32 v{s}, v{s}, v{s + 1}"), "V", deps=[(ms[0], 0), (ms[1], 0)], name="qcv")
            c1 = Task(valu(f"v_cvt_pk_bf16_f32 v{s + 1}, v{s + 2}, v{s + 3}"), "V", deps=[(ms[2], 0), (ms[3], 0), (c0, 0)], name="qcv")
            w = ds_w64(vU[0] if blk < 8 else vU[1], ("v", s), (blk & 7) * 8192 + (t >> 1) * 1024 + (t & 1) * 512)
            wt = Task(w, "L", deps=[(c1, 0), (dead, 0)], name="qwr")
            tasks += list(dict.fromkeys(ms)) + [c0, c1, wt]
    gaps = schedule(mf, tasks, verbose=True)
    for k, m in enumerate(marks):
        mf[m].mark = ("Q", k)
    return linearize(mf, gaps)


def q_finish():
    c = []
    S = lambda t: c.append(salu(t))
    V = lambda t: c.append(valu(t))
    S(f"s_lshl_b32 s{sT0}, s{sXW}, 14")
    S(f"s_sub_u32 s{sT0}, {3 * SLOT + 16384}, s{sT0}")
    for k in range(4):
        V(f"v_add_u32 v{VA[k]}, s{sT0}, v{LV[k]}")
    V(f"v_lshrrev_b32 v{vT0}, 3, v{vLANE}")
    V(f"v_mul_u32_u24 v{vT0}, 896, v{vT0}")
    V(f"v_and_b32 v{vWt}, 0x70, v{vV}")
    V(f"v_add_u32 v{vWt}, v{vWt}, v{vT0}")
    S(f"s_lshl_b32 s{sE6}, s{sW}, 13")
    c.append(I("s_waitcnt lgkmcnt(0)", "W"))
    for r in list(range(NEGM[0], NEGM[0] + 12)) + LS:
        V(f"v_mov_b32 v{r}, 0")
    c += wait_bar([("T", -1)], None)
    return c


sites = []


def rowmax_tasks(tasks, src, t, u, dep, name):
    seq = [f"v_max3_f32 v{t}, v{src}, v{src + 1}, v{src + 2}", f"v_max_f32 v{t}, v{t}, v{src + 3}", f"v_mov_b32 v{u}, v{t}",
           f"v_permlane32_swap_b32 v{t}, v{u}", f"v_max_f32 v{t}, v{t}, v{u}", f"v_mov_b32 v{u}, v{t}",
           f"v_permlane16_swap_b32 v{t}, v{u}", f"v_max_f32 v{t}, v{t}, v{u}", f"v_ceil_f32 v{t}, v{t}"]
    prev = dep
    for x in seq:
        i = valu(x)
        tk = Task(i, "V", deps=[(prev, 1 if i.kind == "P" else 0)], name=name)
        tasks.append(tk)
        prev = tk
    return prev


def main_phase():
    NS = 35
    mf, tasks = [], []
    nfrag = 0
    start, chain_first, chain_last, plan, qfirst = {}, {}, {}, [], {}
    for j in range(NS):
        start[j] = len(mf)
        for gam in range(16):
            kt, ks = gam >> 3, gam & 7
            if j <= 31:
                f = FB + (nfrag % 16) * 4
                nfrag += 1
                plan.append(("K", j, gam, f, len(mf)))
                for blk in ((0, 1, 2) if j & 1 else (0, 1)):
                    d = ("v", Sreg(j, kt, blk))
                    qfirst.setdefault((blk, ks), len(mf))
                    mf.append(mfma(d, ("a", f), ("v", QB[blk] + 4 * ks), ("v", NEGM[blk]) if ks == 0 else d))
                    chain_first.setdefault((j, kt), len(mf) - 1)
                    chain_last[(j, kt, blk)] = len(mf) - 1
            if j >= 3:
                f = FB + (nfrag % 16) * 4
                nfrag += 1
                plan.append(("V", j, gam, f, len(mf)))
                for blk in ((0, 1, 2) if (j & 1) == 0 else (0, 1)):
                    d = ("a", OB[blk] + 4 * gam)
                    mf.append(mfma(d, ("a", f), ("v", Preg(j - 3, blk)), 0 if j == (3 if blk < 2 else 4) else d))
    start[NS] = start[NS + 1] = len(mf)
    bar, aup, lastread, lastaddr = {}, {}, {}, {}
    qlast = None
    for (blk, ks), c0 in sorted(qfirst.items(), key=lambda x: x[1]):
        i = ds_r128(("v", QB[blk] + 4 * ks), QA[blk], ks * 1024)
        i.tag = ("QS", 0)
        first = c0 < 8
        qlast = Task(i, "L", rel=-1, dl=-1 if first else min(c0 - 6, 22), deps=[(qlast, 0)] if qlast else [], name="qrd")
        tasks.append(qlast)
    bar[0] = Task(wait_bar([], ("QS", 0)), "BAR", deps=[(qlast, 4)], name="barq")
    tasks.append(bar[0])
    st = dict(sd=None, aups=[])
    done_steps = set()

    def tile_of(kind, j):
        return ("K", j >> 1) if kind == "K" else ("V", (j - 3) >> 1)

    def add_wreads(o, gate, rel, dl):
        c = []
        wfrag_reads(c, o)
        prev = gate
        for i in c:
            prev = Task(i, "L", rel=rel, dl=dl, deps=[(prev, 0), (setup_done, 1)], prio=-40, name="wrd")
            tasks.append(prev)
        return prev

    su = []
    tail_setup(su)
    setup_done = None
    for i in su:
        setup_done = Task(i, "S" if i.kind == "S" else "V", rel=start[30], dl=start[32] - 30, deps=[(setup_done, 0)] if setup_done else [], name="su")
        tasks.append(setup_done)

    def enter(j):
        done_steps.add(j)
        sw = "K" if j % 2 == 0 else "V"
        old = tile_of(sw, j - 1)
        newvalid = (sw == "K" and j <= 30) or (sw == "V" and 3 <= j <= 33)
        vm = [("T", j - 1)] if newvalid else []
        deps, lg = [], None
        if old in lastread:
            deps.append((lastread[old], 3))
            lg = old
        if j == 32:
            vm = [("WO", 0)]
        if j == 33:
            vm = vm + [("WO", 1)]
        if j in (33, 34):
            wl = add_wreads(j - 33, bar[j - 1], start[j - 1], start[j] - DIST)
            deps = [(wl, 3)] + deps
            lg = ("ANY", j)
            for t in [wl] + ([lastread[old]] if old in lastread else []):
                t.ins[0].tag = ("ANY", j)
        if vm or lg:
            pb = max(k for k in bar)
            bar[j] = Task(wait_bar(vm, lg), "BAR", rel=start[j] - DIST + 4, dl=start[j] - 8, deps=deps + [(bar[pb], 1)], name=f"bar{j}")
            tasks.append(bar[j])
        sd0 = Task([salu(f"s_bitcmp1_b64 s[{sPat}:{sPat + 1}], 0"), salu(f"s_cselect_b32 s{sD}, s{sC2}, s{sC1}")], "S", rel=start[j - 1] + 8,
                   deps=[(t, 0) for t in st["aups"]] + ([(st["sd"], 0)] if st["sd"] else []), name="sd")
        sd0.ins[0].wr = [("scc", 0)]
        sd = Task(salu(f"s_lshr_b64 s[{sPat}:{sPat + 1}], s[{sPat}:{sPat + 1}], 1"), "S", deps=[(sd0, 0)], name="sd")
        tasks.extend([sd0, sd])
        st["sd"], st["aups"] = sd, []
        for kind, regs in (("K", KA), ("V", VA)):
            if not ((kind == "K" and 1 <= j <= 31) or (kind == "V" and 4 <= j <= 34)):
                continue
            for r in regs:
                t = Task(valu(f"v_add_u32 v{r}, s{sD if kind == sw else sHalf}, v{r}"), "V", deps=[(sd0, 1), (lastaddr[r], 0)], name="aup")
                aup[(j, r)] = t
                tasks.append(t)
                st["aups"].append(t)

    for kind, j, gam, f, c0 in plan:
        if j >= 1 and j not in done_steps:
            enter(j)
        kt, ks = gam >> 3, gam & 7
        if kind == "K":
            a = KA[ks & 1]
            ins = [ds_r128(("a", f), a, (ks >> 1) * 4096 + kt * 2048)]
        else:
            a = VA[gam & 3]
            ins = [ds_rtr(("a", f), a, (gam >> 2) * 4096), ds_rtr(("a", f + 2), a, (gam >> 2) * 4096 + 2048)]
        tl = tile_of(kind, j)
        for i in ins:
            i.tag = tl
            deps = []
            swj = j if (kind == "K") == (j % 2 == 0) else j - 1
            if swj in bar and swj > 0:
                deps.append((bar[swj], 0))
            if (j, a) in aup:
                deps.append((aup[(j, a)], 1))
            if a in lastaddr:
                deps.append((lastaddr[a], 0))
            first = c0 < 8
            t = Task(i, "L", rel=-1 if first else c0 - DIST, dl=-1 if first else c0 - 5, deps=deps, name=f"rd{kind}{j}.{gam}")
            tasks.append(t)
            lastread[tl] = t
            lastaddr[a] = t
    prev = None
    for j in range(NS):
        n = j + 2
        if n <= 32 and n != 31:
            g, adv = kv_dma("K" if n & 1 else "V", ("T", n))
        elif n in (31, 33):
            g, adv = wo_dma((n - 31) // 2, (n + 1) % 5)
            adv = dst_adv()
        elif n in (34, 35):
            g, adv = wo_dma(n - 32, WSL[n - 32])
        else:
            continue
        pb = max(k for k in bar if k <= j)
        first = Task([], "S", rel=start[j] - 6, deps=[(bar[pb], 0)] + ([(prev, 0)] if prev else []), name="dmastart")
        tasks.append(first)
        L = start[j + 1] - start[j]
        dl = start[j + 1] - DIST if 2 <= j < 32 else start[j + 2] - DIST
        prev = add_dma(tasks, g, adv, first, start[j] - 6, dl, spread=max(3, (L - DIST) // 9))
    ecount, econs, prev_branch, prev_ladd = 0, {}, None, {}
    for j in range(32):
        blks = (0, 1, 2) if j & 1 else (0, 1)
        dl_chk = chain_first[(j + 2, 0)] - 1 if j + 2 <= 31 else start[j + 3] - 4
        allcv, tsdep, fix = [], {}, {}
        for blk in blks:
            if (j == 0 and blk < 2) or (j == 1 and blk == 2):
                t, u = ET + 2 * (blk & 1), ET + 2 * (blk & 1) + 1
                base = Task([], "V", rel=chain_last[(j, 0, blk)] + MLAT, deps=[(prev_branch, 0)] if prev_branch else [], name="mx0")
                tasks.append(base)
                last = rowmax_tasks(tasks, Sreg(j, 0, blk), t, u, base, "mx")
                nm = [Task(valu(f"v_sub_f32 v{NEGM[blk] + r}, 0, v{t}"), "V", rel=chain_first[(j, 1)] + 6,
                           dl=chain_first[(j + (1 if blk < 2 else 2), 0)] - 3, deps=[(last, 0)], name="negm") for r in range(4)]
                tasks += nm
                for kt in range(2):
                    for r in range(4):
                        s = Sreg(j, kt, blk) + r
                        x = Task(valu(f"v_sub_f32 v{s}, v{s}, v{t}"), "V", rel=chain_last[(j, kt, blk)] + MLAT, deps=[(last, 0)], name="sfix")
                        tasks.append(x)
                        fix[(kt, blk, r)] = x
                        econs.setdefault(t - ET, []).append(x)
                econs.setdefault(t - ET, []).extend(nm)
                econs.setdefault(u - ET, []).append(last)
        for kt in range(2):
            for blk in blks:
                ts = TS[j & 1][blk]
                for pr in range(2):
                    es = []
                    for r in (2 * pr, 2 * pr + 1):
                        e = ecount % 8
                        ecount += 1
                        deps = [(x, 0) for x in econs.get(e, [])] + ([(prev_branch, 0)] if prev_branch else [])
                        if (kt, blk, r) in fix:
                            deps.append((fix[(kt, blk, r)], 1))
                        t = Task(valu(f"v_exp_f32 v{ET + e}, v{Sreg(j, kt, blk) + r}"), "E", rel=chain_last[(j, kt, blk)] + MLAT, deps=deps, name=f"exp{j}.{kt}")
                        tasks.append(t)
                        econs[e] = []
                        es.append((e, t))
                    (e0, t0), (e1, t1) = es
                    cv = Task(valu(f"v_cvt_pk_bf16_f32 v{Preg(j, blk) + 2 * kt + pr}, v{ET + e0}, v{ET + e1}"), "V", deps=[(t0, 1), (t1, 1)], name="cvt")
                    tasks.append(cv)
                    allcv.append(cv)
                    if blk not in tsdep:
                        ad = Task(valu(f"v_add_f32 v{ts}, v{ET + e0}, v{ET + e1}"), "V",
                                  deps=[(t0, 1), (t1, 1)] + ([(prev_ladd[(j & 1, blk)], 0)] if (j & 1, blk) in prev_ladd else []), name="add")
                        tasks.append(ad)
                        econs[e0] += [cv, ad]
                        econs[e1] += [cv, ad]
                        tsdep[blk] = ad
                    else:
                        a0 = Task(valu(f"v_add_f32 v{ts}, v{ET + e0}, v{ts}"), "V", deps=[(t0, 1), (tsdep[blk], 1)], name="add")
                        a1 = Task(valu(f"v_add_f32 v{ts}, v{ET + e1}, v{ts}"), "V", deps=[(t1, 1), (a0, 1)], name="add")
                        tasks += [a0, a1]
                        econs[e0] += [cv, a0]
                        econs[e1] += [cv, a1]
                        tsdep[blk] = a1
        tsr = [TS[j & 1][b] for b in blks]
        mx = Task(valu(f"v_max3_f32 v{vC}, v{tsr[0]}, v{tsr[1]}, v{tsr[2]}") if len(tsr) == 3 else valu(f"v_max_f32 v{vC}, v{tsr[0]}, v{tsr[1]}"),
                  "V", deps=[(t, 1) for t in tsdep.values()], name="mx")
        cmp_ = Task(valu(f"v_cmp_lt_f32 vcc, s{sThr}, v{vC}"), "V", deps=[(mx, 1)], name="cmp")
        br = Task([I(f"s_cbranch_vccnz L_slow_@{j}", "BR", [("vcc", 0)], [], tag=("site", j)), I(f"L_ret_@{j}:", "LAB", tag=("ret", j))],
                  "S", dl=dl_chk, deps=[(cmp_, 1)] + [(t, 0) for t in allcv] + [(t, 0) for t in prev_ladd.values()], name=f"br{j}")
        tasks += [mx, cmp_, br]
        for blk in blks:
            la = Task(valu(f"v_add_f32 v{LS[blk]}, v{TS[j & 1][blk]}, v{LS[blk]}"), "V", deps=[(br, 0)], dl=dl_chk + 12, name="ladd")
            tasks.append(la)
            prev_ladd[(j & 1, blk)] = la
        prev_branch = br
        sites.append(dict(j=j, task=br, blks=blks))
    last = None
    for blk in (1, 2, 0):
        xs = []
        xsum(xs, LS[blk], vT1)
        for i in xs:
            last = Task(i, "V", deps=[(t, 0) for t in prev_ladd.values()] + ([(last, 1 if i.kind == "P" else 0)] if last else []), name="xsum")
            tasks.append(last)
        if blk == 1:
            m0_ = Task(valu(f"v_mov_b32 v{ET}, v{NEGM[1]}"), "V", deps=[(last, 0)], name="st")
            m1_ = Task(valu(f"v_mov_b32 v{ET + 1}, v{LS[1]}"), "V", deps=[(last, 0)], name="st")
            stt = Task(bstore(2, ("v", ET), vT2, sWS, sT3, 0, STF), "D", deps=[(m0_, 1), (m1_, 1), (prev, 0)], name="st")
            tasks += [m0_, m1_, stt]
    pcv = {}
    for T in range(16):
        done = start[34] + 3 * T + 1
        tmp = SB + 4 * (T & 3)
        ars = [Task(AR(tmp + r, OB[1] + 4 * T + r), "V", rel=done + MLAT, deps=[(prev_branch, 0)] + [(x, 0) for x in pcv.get(T & 3, [])], name="ar") for r in range(4)]
        cv = [Task(valu(f"v_cvt_pk_bf16_f32 v{FSB + 2 * T + h}, v{tmp + 2 * h}, v{tmp + 2 * h + 1}"), "V", deps=[(ars[2 * h], 0), (ars[2 * h + 1], 0)], name="cv") for h in range(2)]
        tasks += ars + cv
        if T & 1:
            kb = T >> 1
            tasks.append(Task(bstore(4, ("v", FSB + 4 * kb), vST, sWS, sE4 if kb < 4 else sE5, (kb & 3) * 1024, STF), "D",
                              deps=[(x, 1) for x in cv + pcv[(T - 1) & 3]] + [(prev, 0)], name="fst"))
        pcv[T & 3] = cv
    gaps = schedule(mf, tasks, verbose=True)
    for s in sites:
        j, g = s["j"], s["task"].gap
        s["later_blk"] = {}
        for (jj, kt), idx in chain_first.items():
            if jj > j:
                for blk in ((0, 1, 2) if jj & 1 else (0, 1)):
                    if idx + blk <= g:
                        s["later_blk"].setdefault(blk, []).append(Sreg(jj, kt, blk))
        s["pend"] = [jj for jj in range(max(0, j - 3), j) if start[jj + 4] - 1 > g]
    for j in range(NS):
        mf[start[j]].mark = ("M", j)
    return linearize(mf, gaps)


def slow_path(s, name):
    c = []
    V = lambda t: c.append(valu(t))
    j = s["j"]
    c.append(I(f"L_slow_{name}:", "LAB"))
    c.append(nop(15))
    t, u, x, y = ET, ET + 1, ET + 2, ET + 3
    for blk in range(3):
        if blk not in s["blks"]:
            V(f"v_mov_b32 v{vF[blk]}, 1.0")
            continue
        s0, s1 = Sreg(j, 0, blk), Sreg(j, 1, blk)
        V(f"v_max3_f32 v{t}, v{s0}, v{s0 + 1}, v{s0 + 2}")
        V(f"v_max3_f32 v{t}, v{t}, v{s0 + 3}, v{s1}")
        V(f"v_max3_f32 v{t}, v{t}, v{s1 + 1}, v{s1 + 2}")
        V(f"v_max_f32 v{t}, v{t}, v{s1 + 3}")
        for sw in ("v_permlane32_swap_b32", "v_permlane16_swap_b32"):
            V(f"v_mov_b32 v{u}, v{t}")
            V(f"{sw} v{t}, v{u}")
            V(f"v_max_f32 v{t}, v{t}, v{u}")
        V(f"v_ceil_f32 v{t}, v{t}")
        V(f"v_max_f32 v{t}, 0, v{t}")
        V(f"v_exp_f32 v{vF[blk]}, -v{t}")
        for base in [NEGM[blk], s0, s1] + s["later_blk"].get(blk, []):
            for r in range(4):
                V(f"v_sub_f32 v{base + r}, v{base + r}, v{t}")
        for jj in s["pend"]:
            if blk == 2 and not (jj & 1):
                continue
            for r in range(4):
                p = Preg(jj, blk) + r
                V(f"v_lshlrev_b32 v{x}, 16, v{p}")
                V(f"v_and_b32 v{y}, 0xffff0000, v{p}")
                V(f"v_mul_f32 v{x}, v{x}, v{vF[blk]}")
                V(f"v_mul_f32 v{y}, v{y}, v{vF[blk]}")
                V(f"v_cvt_pk_bf16_f32 v{p}, v{x}, v{y}")
        ts = TS[j & 1][blk]
        V(f"v_mov_b32 v{ts}, 0")
        for kt in range(2):
            for pr in range(2):
                sr = Sreg(j, kt, blk) + 2 * pr
                V(f"v_exp_f32 v{x}, v{sr}")
                V(f"v_exp_f32 v{y}, v{sr + 1}")
                V(f"v_cvt_pk_bf16_f32 v{Preg(j, blk) + 2 * kt + pr}, v{x}, v{y}")
                V(f"v_add_f32 v{ts}, v{x}, v{ts}")
                V(f"v_add_f32 v{ts}, v{y}, v{ts}")
    return c


def slow_tail(names):
    c = []
    V = lambda t: c.append(valu(t))
    c.append(I("L_slow_tail:", "LAB"))
    for blk in range(3):
        V(f"v_mul_f32 v{LS[blk]}, v{LS[blk]}, v{vF[blk]}")
        for r in range(0, 64, 4):
            for k in range(4):
                c.append(AR(ET + k, OB[blk] + r + k))
            for k in range(4):
                V(f"v_mul_f32 v{ET + k}, v{ET + k}, v{vF[blk]}")
            for k in range(4):
                c.append(I(f"v_accvgpr_write_b32 a{OB[blk] + r + k}, v{ET + k}", "V", [("v", ET + k)], [("a", OB[blk] + r + k)]))
    c.append(nop(3))
    for k, nm in enumerate(names):
        c.append(salu(f"s_cmp_eq_u32 s{sSite}, {k}"))
        c.append(I(f"s_cbranch_scc1 L_ret_{nm}", "BR"))
    c.append(I(f"s_branch L_ret_{names[-1]}", "BR"))
    return c


def xsum(c, r, u):
    for sw in ("v_permlane32_swap_b32", "v_permlane16_swap_b32"):
        c += [valu(f"v_mov_b32 v{u}, v{r}"), valu(f"{sw} v{r}, v{u}"), valu(f"v_add_f32 v{r}, v{r}, v{u}")]


WFR = [("v", 32), ("v", 64), ("a", 96), ("a", 128), ("a", 160), ("a", 192), ("a", 224)]
WSL = [2, 4, 0, 2, 3, 1, 4]
FSB = 96
RI, RA, RB = [QA[0], QA[1]], [QA[2], vU[0]], [vU[1], vX]


def OFR(blk, kb):
    n = blk * 8 + kb
    return ("a", 4 * n) if n < 24 else ("v", 128 + 4 * (n - 24))


def wfrag_reads(c, o):
    off = WSL[o] * SLOT
    a = vU[2] if off < 65536 else (vU[3] if off < 131072 else vU[4])
    off &= 65535
    k, b = WFR[o]
    for kb in range(8):
        for e in range(2):
            c.append(ds_rtr((k, b + 4 * kb + 2 * e), a, off + kb * 4096 + e * 2048))


def tail_setup(c):
    S = lambda t: c.append(salu(t))
    V = lambda t: c.append(valu(t))
    srd(c, sOUT, 10, 8 * 160 * 448 * 2)
    S(f"s_mul_i32 s{sE0}, s{sID}, {EX_WG}")
    S(f"s_xor_b32 s{sT1}, s{sID}, 16")
    S(f"s_mul_i32 s{sE1}, s{sT1}, {EX_WG}")
    S(f"s_add_u32 s{sE4}, s{sE0}, s{sE6}")
    S(f"s_add_u32 s{sE5}, s{sE4}, 4096")
    S(f"s_lshl_b32 s{sT3}, s{sW}, 9")
    S(f"s_add_u32 s{sT2}, s{sT3}, {4 * SLOT}")
    S(f"s_add_u32 s{sT3}, s{sT3}, s{sE0}")
    S(f"s_add_u32 s{sT3}, s{sT3}, 40960")
    V(f"v_lshlrev_b32 v{vT2}, 3, v{vLANE}")
    V(f"v_add_u32 v{XA[0]}, s{sT2}, v{vT2}")
    V(f"v_xor_b32 v{XA[1]}, 1024, v{XA[0]}")
    S(f"s_lshl_b32 s{sT1}, s{sW}, 5")
    V(f"v_xor_b32 v{vU[2]}, s{sT1}, v{LV[0]}")
    V(f"v_add_u32 v{vU[3]}, 0x10000, v{vU[2]}")
    V(f"v_add_u32 v{vU[4]}, 0x20000, v{vU[2]}")


def merge_coef(c, nm_o, l_o, pst_, co, cp, t):
    V = lambda x: c.append(valu(x))
    V(f"v_min_f32 v{t}, v{nm_o}, v{pst_}")
    V(f"v_sub_f32 v{co}, v{t}, v{nm_o}")
    V(f"v_sub_f32 v{cp}, v{t}, v{pst_}")
    V(f"v_exp_f32 v{co}, v{co}")
    V(f"v_exp_f32 v{cp}, v{cp}")
    V(f"v_mul_f32 v{t}, v{co}, v{l_o}")
    V(f"v_fmac_f32 v{t}, v{cp}, v{pst_ + 1}")
    V(f"v_rcp_f32 v{t}, v{t}")
    V(f"v_mul_f32 v{co}, v{co}, v{t}")
    V(f"v_mul_f32 v{cp}, v{cp}, v{t}")
    V(f"v_mov_b32 v{co + 1}, v{co}")
    V(f"v_mov_b32 v{cp + 1}, v{cp}")


def pk(op, d, *src):
    return valu(f"{op} v[{d}:{d + 1}], " + ", ".join(f"v[{x}:{x + 1}]" for x in src))


def decode(c):
    S = lambda t: c.append(salu(t))
    V = lambda t: c.append(valu(t))
    S(f"s_mul_i32 s{sC1}, s{sH}, 288")
    S(f"s_mul_i32 s{sT1}, s{sW}, 72")
    S(f"s_add_u32 s{sC1}, s{sC1}, s{sT1}")
    S(f"s_lshr_b32 s{sT1}, s{sH}, 2")
    S(f"s_mul_i32 s{sT2}, s{sT1}, 18")
    S(f"s_lshl_b32 s{sT1}, s{sT1}, 5")
    S(f"s_mul_i32 s{sT3}, s{sB}, 160")
    S(f"s_lshl_b32 s{sD}, s{sSP}, 4")
    S(f"s_add_u32 s{sT3}, s{sT3}, s{sD}")
    S(f"s_mul_i32 s{sT3}, s{sT3}, 896")
    S(f"s_add_u32 s{sT3}, s{sT3}, s{sT1}")
    S(f"s_mov_b32 s{sD}, {PART_WG}")
    S(f"s_mul_i32 s{sC2}, s{sSP}, {4 * OPT['rot']}")
    for n in range(2):
        g, k, x, y = vK0, vK1, vV, vT0
        if n == 0:
            V(f"v_add_u32 v{g}, s{sC1}, v{vLANE}")
            V(f"v_lshlrev_b32 v{RI[n]}, 4, v{g}")
        else:
            V(f"v_and_b32 v{g}, 7, v{vLANE}")
            V(f"v_add_u32 v{g}, s{sC1}, v{g}")
            V(f"v_add_u32 v{g}, 64, v{g}")
            V(f"v_lshrrev_b32 v{k}, 3, v{vLANE}")
            V(f"v_mul_lo_u32 v{k}, v{k}, s{sD}")
            V(f"v_lshl_add_u32 v{RI[n]}, v{g}, 4, v{k}")
        V(f"v_lshrrev_b32 v{k}, 6, v{g}")
        V(f"v_subrev_u32 v{k}, s{sT2}, v{k}")
        V(f"v_and_b32 v{x}, 15, v{g}")
        V(f"v_mul_u32_u24 v{x}, 896, v{x}")
        V(f"v_bfe_u32 v{y}, v{g}, 4, 2")
        V(f"v_lshl_add_u32 v{x}, v{y}, 3, v{x}")
        V(f"v_add_u32 v{x}, s{sT3}, v{x}")
        z = VA[1]
        V(f"v_lshrrev_b32 v{y}, 1, v{k}")
        V(f"v_lshlrev_b32 v{g}, 1, v{k}")
        V(f"v_subrev_u32 v{g}, 28, v{g}")
        V(f"v_cmp_gt_u32 vcc, 14, v{k}")
        V(f"v_cndmask_b32 v{y}, v{g}, v{y}, vcc")
        V(f"v_add_u32 v{g}, 1, v{y}")
        V(f"v_cndmask_b32 v{z}, v{g}, v{y}, vcc")
        V(f"v_and_b32 v{g}, 1, v{k}")
        V(f"v_mul_u32_u24 v{g}, {64 * 896}, v{g}")
        V(f"v_mov_b32 v{RB[n]}, {128 * 896}")
        V(f"v_cndmask_b32 v{g}, v{RB[n]}, v{g}, vcc")
        V(f"v_add_u32 v{RA[n]}, v{x}, v{g}")
        V(f"v_mov_b32 v{g}, {32 * 896}")
        V(f"v_cndmask_b32 v{g}, 0, v{g}, vcc")
        V(f"v_add_u32 v{RB[n]}, v{RA[n]}, v{g}")
        for pz, dst in ((y, RA[n]), (z, RB[n])):
            V(f"v_add_u32 v{pz}, s{sC2}, v{pz}")
            V(f"v_subrev_u32 v{g}, 7, v{pz}")
            V(f"v_min_u32 v{pz}, v{pz}, v{g}")
            V(f"v_lshl_add_u32 v{dst}, v{pz}, 7, v{dst}")
        V(f"v_mov_b32 v{g}, {OOB:#x}")
        V(f"v_cmp_eq_u32 vcc, 17, v{k}")
        V(f"v_cndmask_b32 v{RB[n]}, v{RB[n]}, v{g}, vcc")
        if n:
            V(f"v_cmp_gt_u32 vcc, 8, v{vLANE}")
            for r in (RA[1], RB[1]):
                V(f"v_cndmask_b32 v{r}, v{g}, v{r}, vcc")


def tail():
    c = []
    S = lambda t: c.append(salu(t))
    V = lambda t: c.append(valu(t))
    W = lambda t: c.append(I(f"s_waitcnt {t}", "W"))
    BAR = lambda: c.append(I("s_barrier", "B"))
    HK, OWN, HSB, PH = 192, 128, 160, 224
    hs, fs_p, hs_p, own_nm = 246, 240, 242, 244
    c += pst()
    V(f"v_and_b32 v{vT0}, 7, v{vLANE}")
    V(f"v_lshlrev_b32 v{vT0}, 2, v{vT0}")
    S(f"s_lshl_b32 s{sC1}, s{sB}, 5")
    S(f"s_mov_b32 s{sC2}, 0x01010101")
    c.append(bload(1, ("v", vT1), vT0, sDBG, sC1, 0, " sc0 sc1"))
    V(f"v_add_u32 v{KA[0]}, s{sE6}, v{vST}")
    V(f"v_xor_b32 v{KA[1]}, 16384, v{KA[0]}")
    V(f"v_mov_b32 v{hs}, v{NEGM[2]}")
    V(f"v_mov_b32 v{hs + 1}, v{LS[2]}")
    V(f"v_mov_b32 v{own_nm}, v{NEGM[0]}")
    c.append(ds_w64(XA[0], ("v", hs), 0))
    S(f"s_cmp_eq_u32 s{sXW}, 0")
    c.append(I("s_cbranch_scc1 L_h0", "BR"))
    for half, lab, nxt in ((1, None, "L_h1"), (0, "L_h0", None)):
        if lab:
            c.append(I(f"{lab}:", "LAB"))
        for T in range(8):
            i = ds_w128(KA[0], ("a", OB[2] + 32 * (1 - half) + 4 * T), SLOT + T * 1024)
            if half == 1:
                i.kind = "X"
            c.append(i)
        for r in range(32):
            c.append(AR(HK + r, OB[2] + 32 * half + r))
        if nxt:
            c.append(I(f"s_branch {nxt}", "BR"))
    c.append(I("L_h1:", "LAB"))
    S(f"s_lshl_b32 s{sT0}, s{sXW}, 12")
    S(f"s_add_u32 s{sT0}, s{sT0}, 32768")
    S(f"s_lshl_b32 s{sT1}, s{sXW}, 9")
    S(f"s_add_u32 s{sT1}, s{sT1}, 43008")
    S(f"s_cmp_eq_u32 s{sHW}, 1")
    S(f"s_cselect_b32 s{sT2}, s{sE0}, {OOB:#x}")
    S(f"s_cselect_b32 s{sT3}, {OOB:#x}, s{sE1}")
    S(f"s_add_u32 s{sE2}, s{sT3}, s{sT0}")
    S(f"s_add_u32 s{sE3}, s{sT3}, s{sT1}")
    S(f"s_add_u32 s{sE4}, s{sT2}, s{sT0}")
    S(f"s_add_u32 s{sE5}, s{sT2}, s{sT1}")
    W("lgkmcnt(0)")
    BAR()
    c += pst()
    c.append(ds_r64(("v", hs_p), XA[1], 0))
    for T in range(8):
        c.append(ds_r128(("v", OWN + 4 * T), KA[1], SLOT + T * 1024))
    nm, a_o, a_p = 253, 248, 236
    V(f"v_min_f32 v{nm}, v{hs}, v{hs_p}")
    V(f"v_sub_f32 v{a_o}, v{nm}, v{hs}")
    V(f"v_sub_f32 v{a_p}, v{nm}, v{hs_p}")
    V(f"v_exp_f32 v{a_o}, v{a_o}")
    V(f"v_exp_f32 v{a_p}, v{a_p}")
    V(f"v_mov_b32 v{hs}, v{nm}")
    V(f"v_mul_f32 v{hs + 1}, v{a_o}, v{hs + 1}")
    V(f"v_fmac_f32 v{hs + 1}, v{a_p}, v{hs_p + 1}")
    V(f"v_mov_b32 v{a_o + 1}, v{a_o}")
    V(f"v_mov_b32 v{a_p + 1}, v{a_p}")
    c.append(bstore(2, ("v", hs), vT2, sWS, sE5, 0, STF))
    for r in range(0, 32, 2):
        c.append(pk("v_pk_mul_f32", HK + r, HK + r, a_o))
    for T in range(8):
        for r in (0, 2):
            c.append(pk("v_pk_fma_f32", HK + 4 * T + r, OWN + 4 * T + r, a_p, HK + 4 * T + r))
        V(f"v_cvt_pk_bf16_f32 v{HSB + 2 * T}, v{HK + 4 * T}, v{HK + 4 * T + 1}")
        V(f"v_cvt_pk_bf16_f32 v{HSB + 2 * T + 1}, v{HK + 4 * T + 2}, v{HK + 4 * T + 3}")
        if T & 1:
            c.append(bstore(4, ("v", HSB + 2 * (T - 1)), vST, sWS, sE4, (T >> 1) * 1024, STF))
    c += pst()
    c += [AR(OWN + r, OB[0] + r) for r in range(64)]
    c += pst()
    W("vmcnt(0)")
    S(f"s_mov_b32 s{sCnt}, 0")
    c.append(I("L_an:", "LAB"))
    V(f"v_cmp_ne_u32 vcc, s{sC2}, v{vT1}")
    S(f"s_add_u32 s{sCnt}, s{sCnt}, 1")
    c.append(I("s_cbranch_vccz L_and", "BR", [("vcc", 0)]))
    c.append(raw(f"buffer_load_dword v{vT1}, v{vT0}, s[{sDBG}:{sDBG + 3}], s{sC1} offen sc0 sc1", "X"))
    c.append(raw("s_waitcnt vmcnt(0)", "X"))
    S(f"s_cmp_lt_u32 s{sCnt}, 2000000")
    c.append(I("s_cbranch_scc1 L_an", "BR"))
    c.append(I("L_and:", "LAB"))
    S(f"s_xor_b32 s{sT0}, s{sIN}, {16 << ISH}")
    S(f"s_lshl_b32 s{sT1}, s{sW}, 2")
    S(f"s_add_u32 s{sT0}, s{sT0}, s{sT1}")
    V(f"v_mov_b32 v{vT0}, 1")
    V(f"v_mov_b32 v{vT1}, 0")
    c.append(bstore(1, ("v", vT0), vT1, sWS, sT0, 64, FLF))
    BAR()
    c += pst()
    wfrag_reads(c, 2)
    wfrag_reads(c, 3)
    decode(c)
    S(f"s_add_u32 s{sT1}, s{sE1}, s{sE6}")
    S(f"s_add_u32 s{sT2}, s{sT1}, 4096")
    S(f"s_lshl_b32 s{sT3}, s{sW}, 9")
    S(f"s_add_u32 s{sT3}, s{sT3}, s{sE1}")
    S(f"s_add_u32 s{sT3}, s{sT3}, 40960")
    S(f"s_lshl_b32 s{sT0}, s{sXW}, 3")
    S(f"s_add_u32 s{sT0}, s{sT0}, s{sIN}")
    c += pst()
    S(f"s_mov_b32 s{sCnt}, 0")
    c.append(I("L_p1:", "LAB"))
    if OPT.get("slp"):
        c.append(raw(f"s_sleep {OPT['slp']}"))
    c.append(raw(f"buffer_load_dwordx2 v[{fs_p}:{fs_p + 1}], v{vT1}, s[{sWS}:{sWS + 3}], s{sT0} offen offset:64{FLF}", "X"))
    S(f"s_add_u32 s{sCnt}, s{sCnt}, 1")
    c.append(raw("s_waitcnt vmcnt(0)", "X"))
    V(f"v_and_b32 v{fs_p}, v{fs_p}, v{fs_p + 1}")
    S(f"s_cmp_gt_u32 s{sCnt}, 2000000")
    V(f"v_readfirstlane_b32 s{sD}, v{fs_p}")
    c.append(I("s_cbranch_scc1 L_p1d", "BR"))
    S(f"s_cmp_eq_u32 s{sD}, 0")
    c.append(I("s_cbranch_scc1 L_p1", "BR"))
    c.append(I("L_p1d:", "LAB"))
    c += pst()
    c.append(bload(2, ("v", fs_p), vT2, sWS, sT3, 0, LDF))
    c.append(bload(2, ("v", hs_p), vT2, sWS, sE3, 0, LDF))
    for kb in range(8):
        c.append(bload(4, ("v", FSB + 4 * kb), vST, sWS, sT1 if kb < 4 else sT2, (kb & 3) * 1024, LDF))
    for kb in range(4):
        c.append(bload(4, ("v", PH + 4 * kb), vST, sWS, sE2, kb * 1024, LDF))
    W("lgkmcnt(0)")
    BAR()
    S(f"s_lshl_b32 s{sT0}, s{sXW}, 12")
    S(f"s_lshl_b32 s{sT1}, s{sHW}, 13")
    S(f"s_add_u32 s{sT0}, s{sT0}, s{sT1}")
    S(f"s_add_u32 s{sT0}, s{sT0}, {2 * SLOT}")
    V(f"v_add_u32 v{KA[1]}, s{sT0}, v{vST}")
    S(f"s_mul_i32 s{sE0}, s{sID}, {PART_WG}")
    S(f"s_mul_i32 s{sT0}, s{sW}, {18 * 1024}")
    S(f"s_add_u32 s{sE0}, s{sE0}, s{sT0}")
    S(f"s_add_u32 s{sE0}, s{sE0}, {PART0}")
    S(f"s_add_u32 s{sE1}, s{sE0}, {14 * 1024}")
    V(f"v_add_u32 v{XA[0]}, {2 * SLOT}, v{vST}")
    W("vmcnt(12)")
    c += pst()
    co, cp, ch, cq = 248, 254, vK0, VA[0]
    merge_coef(c, own_nm, LS[0], fs_p, co, cp, 253)
    merge_coef(c, hs, hs + 1, hs_p, ch, cq, 253)
    for r in range(0, 64, 2):
        c.append(pk("v_pk_mul_f32", OWN + r, OWN + r, co))
    for r in range(0, 32, 2):
        c.append(pk("v_pk_mul_f32", HK + r, HK + r, ch))
    u = [240, 242]
    dm = [x for o in (4, 5, 6) for x in wo_dma(o, WSL[o])[0]]
    left, nd = 12, 0
    for own, pay, n, cc, addr in ((OWN, FSB, 8, cp, KA[0]), (HK, PH, 4, cq, KA[1])):
        for kb in range(n):
            left -= 1
            W(f"vmcnt({left + nd})")
            for r in range(4):
                p, o, t = pay + 4 * kb + r, own + 8 * kb + 2 * r, u[r & 1]
                V(f"v_lshlrev_b32 v{t}, 16, v{p}")
                V(f"v_and_b32 v{t + 1}, 0xffff0000, v{p}")
                c.append(pk("v_pk_fma_f32", o, t, cc, o))
                V(f"v_cvt_pk_bf16_f32 v{p}, v{o}, v{o + 1}")
                if r & 1:
                    pre, d = dm.pop(0)
                    c += pre + [d]
                    nd += 1
            c.append(ds_w128(addr, ("v", pay + 4 * kb), kb * 1024))
    assert not dm
    W("lgkmcnt(0)")
    BAR()
    return c


def o_phase():
    mf, tasks = [], []
    ACC = [192, 212]
    PK = [[232, 236], [240, 244]]
    HST = 248
    prev = None
    for kb in range(8):
        for blk in range(5):
            c0 = kb * 5 + blk
            i = ds_r128(OFR(blk, kb), vST, blk * 8192 + kb * 1024) if blk < 4 else ds_r128(OFR(blk, kb), XA[0], kb * 1024)
            prev = Task(i, "L", rel=-1, dl=-1 if c0 < 10 else c0 - 8, deps=[(prev, 0)] if prev else [], name="ord")
            tasks.append(prev)
    lb = Task(wait_bar([("WO", 6)], None), "BAR", rel=OPT.get("lb", 70), deps=[(prev, 0)], name="latebar")
    tasks.append(lb)
    prev = lb
    for o in (4, 5, 6):
        cc = []
        wfrag_reads(cc, o)
        for k, i in enumerate(cc):
            prev = Task(i, "L", dl=40 * o + (k >> 1) * 5 - 8, deps=[(prev, 0)], name="wrd")
            tasks.append(prev)
    prev_st, prev_inc = {}, None
    for o in range(7):
        p = o & 1
        firstm = len(mf)
        for kb in range(8):
            for blk in range(5):
                d = ("v", ACC[p] + 4 * blk)
                mf.append(mfma(d, (WFR[o][0], WFR[o][1] + 4 * kb), OFR(blk, kb), 0 if kb == 0 else d))
        dl = firstm + 80 - 3
        cvs = {}
        for blk in range(5):
            for h in range(2):
                dst, key = (HST + 2 * p + h, "H") if blk == 4 else (PK[p][blk >> 1] + 2 * (blk & 1) + h, (p, blk >> 1))
                s = ACC[p] + 4 * blk + 2 * h
                t = Task(valu(f"v_cvt_pk_bf16_f32 v{dst}, v{s}, v{s + 1}"), "V", rel=firstm + 35 + blk + MLAT, dl=dl,
                         deps=[(prev_st[key], 2)] if key in prev_st else [], name="cvt")
                tasks.append(t)
                cvs.setdefault(key, []).append(t)
        sts = []
        for pr in range(2):
            st = Task(bstore(4, ("v", PK[p][pr]), vST, sWS, sE0, p * 2048 + pr * 1024, STF), "D",
                      deps=[(t, 1) for t in cvs[(p, pr)]] + ([(prev_inc, 0)] if prev_inc else []), name="st")
            tasks.append(st)
            prev_st[(p, pr)] = st
            sts.append(st)
        if p == 0:
            hcv, sts0 = cvs["H"], sts
        if p == 1 or o == 6:
            st = Task(bstore(4, ("v", HST), vST, sWS, sE1, (o >> 1) * 1024, STF), "D", deps=[(t, 1) for t in hcv + cvs["H"]], name="stH")
            tasks.append(st)
            prev_st["H"] = st
            prev_inc = Task(salu(f"s_add_u32 s{sE0}, s{sE0}, 4096"), "S", deps=[(t, 0) for t in sts + sts0], name="inc")
            tasks.append(prev_inc)
    gaps = schedule(mf, tasks, verbose=True)
    for o in range(7):
        mf[40 * o].mark = ("N", o)
    return linearize(mf, gaps)


def final():
    c = []
    S = lambda t: c.append(salu(t))
    V = lambda t: c.append(valu(t))
    W = lambda t: c.append(I(f"s_waitcnt {t}", "W"))
    S(f"s_and_b32 s{sT0}, s{sID}, 0xf0")
    S(f"s_mul_i32 s{sE2}, s{sT0}, {PART_WG}")
    S(f"s_add_u32 s{sE2}, s{sE2}, {PART0}")
    S(f"s_add_u32 s{sE3}, s{sE2}, {8 * PART_WG}")
    S(f"s_lshl_b32 s{sT1}, s{sW}, 2")
    S(f"s_add_u32 s{sT1}, s{sT1}, s{sT0}")
    S(f"s_lshl_b32 s{sT1}, s{sT1}, {ISH}")
    S(f"s_lshl_b32 s{sT2}, s{sH}, 2")
    S(f"s_add_u32 s{sT1}, s{sT1}, s{sT2}")
    S(f"s_add_u32 s{sT1}, s{sT1}, {INBOX}")
    V(f"v_and_b32 v{vK0}, 3, v{vLANE}")
    V(f"v_lshlrev_b32 v{vK0}, {ISH}, v{vK0}")
    V(f"v_and_b32 v{vK1}, 15, v{vLANE}")
    V(f"v_lshlrev_b32 v{vK1}, 2, v{vK1}")
    V(f"v_mov_b32 v{vT0}, 1")
    c += pst()
    W("vmcnt(0)")
    c += pst()
    c.append(bstore(1, ("v", vT0), vK0, sWS, sT1, 0, FLF))
    S(f"s_mov_b32 s{sCnt}, 0")
    c.append(I("L_p2:", "LAB"))
    if OPT.get("slp"):
        c.append(raw(f"s_sleep {OPT['slp']}"))
    c.append(raw(f"buffer_load_dword v{vV}, v{vK1}, s[{sWS}:{sWS + 3}], s{sIN} offen{FLF}", "X"))
    S(f"s_add_u32 s{sCnt}, s{sCnt}, 1")
    c.append(raw("s_waitcnt vmcnt(0)", "X"))
    V(f"v_cmp_eq_u32 vcc, 0, v{vV}")
    S(f"s_cmp_gt_u32 s{sCnt}, 2000000")
    c.append(I("s_cbranch_scc1 L_p2d", "BR"))
    c.append(I("s_cbranch_vccnz L_p2", "BR", [("vcc", 0)]))
    c.append(I("L_p2d:", "LAB"))
    c += stamp(7) + pst()
    c.append(bload(4, ("v", 96), RI[1], sWS, sE2, 0, LDF))
    c.append(bload(4, ("v", 100), RI[1], sWS, sE3, 0, LDF))
    for p in range(16):
        c.append(bload(4, ("v", 32 + p * 4), RI[0], sWS, sE2, 0, LDF))
        S(f"s_add_u32 s{sE2}, s{sE2}, {PART_WG}")
    A0, A1, U = 192, 200, [208, 210]
    c += pst()

    def acc(a, x, first):
        for r in range(4):
            t = a + 2 * r if first else U[r & 1]
            V(f"v_lshlrev_b32 v{t}, 16, v{x + r}")
            V(f"v_and_b32 v{t + 1}, 0xffff0000, v{x + r}")
            if not first:
                c.append(pk("v_pk_add_f32", a + 2 * r, a + 2 * r, t))

    W("vmcnt(16)")
    c += pst()
    acc(A1, 96, True)
    acc(A1, 100, False)
    for sw in ("v_permlane32_swap_b32", "v_permlane16_swap_b32"):
        for r in range(8):
            V(f"v_mov_b32 v{212 + r}, v{A1 + r}")
        for r in range(8):
            V(f"{sw} v{A1 + r}, v{212 + r}")
        for r in range(0, 8, 2):
            c.append(pk("v_pk_add_f32", A1 + r, A1 + r, 212 + r))
    c.append(nop(1))
    for r in range(8):
        c.append(I(f"v_add_f32_dpp v{A1 + r}, v{A1 + r}, v{A1 + r} row_ror:8 row_mask:0xf bank_mask:0xf", "V", [("v", A1 + r)], [("v", A1 + r)]))
    for p in range(16):
        W(f"vmcnt({15 - p})")
        acc(A0, 32 + 4 * p, p == 0)
    for n, a in enumerate((A0, A1)):
        for r in range(4):
            V(f"v_cvt_pk_bf16_f32 v{220 + n * 4 + r}, v{a + 2 * r}, v{a + 2 * r + 1}")
        c.append(bstore(2, ("v", 220 + n * 4), RA[n], sOUT, "0", 0))
        c.append(bstore(2, ("v", 220 + n * 4 + 2), RB[n], sOUT, "0", 0))
    c += pst() + pst()
    return c


def norm(ins):
    t = ins.text
    if "@" in t:
        a, b = t.split("@")
        if b.startswith("CODE"):
            return t
        return f"{a}@{int(b.rstrip(':')) % 4}"
    return t


def fold(code):
    segs, cur, keys, key = [], [], [], None
    for ins in code:
        if ins.kind == "M" and ins.mark is not None:
            segs.append(cur)
            keys.append(key)
            cur, key = [], ins.mark
        if ins.kind == "LAB" and ins.tag and ins.tag[0] == "cut":
            segs.append(cur)
            keys.append(key)
            cur, key = [], None
            continue
        cur.append(ins)
    segs.append(cur)
    keys.append(key)
    print("; est cycles/seg:", [gap_cost(s) for s in segs])
    txt = [tuple(norm(i) for i in s) for s in segs]
    out, i, nloop, n = [], 0, 0, len(segs)
    sitekey = lambda s: (s["j"] % 4, tuple(sorted((b, tuple(v)) for b, v in s["later_blk"].items())), tuple(x % 4 for x in s["pend"]), s["blks"])
    sinfo = {s["j"]: s for s in sites}
    sites_in = lambda seg: [sitekey(sinfo[x.tag[1]]) for x in seg if x.kind == "BR" and x.tag and x.tag[0] == "site"]
    while i < n:
        k = 1
        if keys[i] is not None:
            p = {"M": 4, "Q": 2}.get(keys[i][0], 1)
            while i + (k + 1) * p <= n and all(keys[i + k * p + r] is not None and txt[i + k * p + r] == txt[i + r] and
                                               sites_in(segs[i + k * p + r]) == sites_in(segs[i + r]) for r in range(p)):
                k += 1
        if k >= 2:
            out.append(salu(f"s_mov_b32 s{sCnt}, {k}"))
            out.append(I(f"L_loop{nloop}:", "LAB"))
            for r in range(p):
                out += segs[i + r]
            out += [salu(f"s_sub_u32 s{sCnt}, s{sCnt}, 1"), salu(f"s_cmp_lg_u32 s{sCnt}, 0"), I(f"s_cbranch_scc1 L_loop{nloop}", "BR")]
            nloop += 1
            i += p * k
        else:
            out += segs[i]
            i += 1
    return out


def cut():
    return I("", "LAB", tag=("cut",))


def build():
    code = prologue() + stamp(1) + q_phase() + [cut()] + stamp(2) + q_finish() + stamp(3) + main_phase() + [cut()] + stamp(4)
    code += tail() + stamp(6) + o_phase() + [cut()] + final()
    if STAMP:
        nc = []
        for ins in code:
            nc.append(ins)
            if ins.kind == "M" and ins.mark is not None:
                if ins.mark[0] == "N" and ins.mark[1] not in (0,):
                    continue
                nc += pst()[1:]
        code = [raw("s_mov_b64 s[80:81], 1"), raw("s_mov_b32 s96, 0")] + nc
    code = insert_lgkm_waits(code, age=OPT["age"])
    code = resolve_vm_waits(code)
    code, nf = check_hazards(code)
    code = fold(code)
    names, slow = [], []
    sinfo = {s["j"]: s for s in sites}
    for ins in code:
        ins.text = ins.text.replace("@CODEMAX", str(OPT.get("codemax", 45056))).replace("@", "")
        if ins.kind == "BR" and ins.tag and ins.tag[0] == "site":
            j = ins.tag[1]
            sp = slow_path(sinfo[j], str(j)) + [salu(f"s_mov_b32 s{sSite}, {len(names)}"), I("s_branch L_slow_tail", "BR")]
            names.append(str(j))
            slow += check_hazards(sp)[0]
    slow += check_hazards(slow_tail(names))[0]
    fin = []
    if STAMP:
        fin.append(I("s_waitcnt vmcnt(0) lgkmcnt(0)", "W"))
        fin += [raw(f"s_memtime s[100:101]"), raw(f"s_memrealtime s[96:97]"), I("s_waitcnt lgkmcnt(0)", "W")]
        for t in (f"s_lshl_b32 s{sT0}, s2, 2", f"s_add_u32 s{sT0}, s{sT0}, s{sW}", f"s_lshl_b32 s{sT0}, s{sT0}, 6",
                  f"s_lshl_b32 s{sT1}, s{sT0}, 2", f"s_add_u32 s{sT0}, s{sT0}, {128 << 20}", f"s_add_u32 s{sT1}, s{sT1}, {132 << 20}"):
            fin.append(salu(t))
        fin.append(valu(f"v_mov_b32 v{vT0}, 0"))
        for k in range(8):
            fin.append(valu(f"v_mov_b32 v{128 + k}, s{84 + 2 * min(k, 1)}"))
        fin += [valu("v_mov_b32 v136, s100"), valu("v_mov_b32 v137, s96"), valu("v_mov_b32 v138, s98")]
        for k in range(0, 12, 4):
            fin.append(bstore(4, ("v", 128 + k), vT0, sWS, sT0, k * 4))
        fin.append(valu(f"v_lshlrev_b32 v{vT1}, 2, v{vLANE}"))
        fin.append(bstore(1, ("v", 0), vT1, sWS, sT1, 0))
    NAME = "standalone__gqa_block_cached__near_ridge_kernel"
    hdr = open("standalone__gqa_block_cached__near_ridge.s.ref").read().split("; Override launch")[0]
    L = [hdr.rstrip()]
    A = L.append
    A("; @launch grid=(256,1,1) block=(256,1,1) lds=163840")
    A('.amdgcn_target "amdgcn-amd-amdhsa--gfx950"')
    A(".text")
    A(f".globl {NAME}")
    A(".p2align 8")
    A(f".type {NAME},@function")
    A(f"{NAME}:")
    A("s_cmp_ge_u32 s2, 256")
    A("s_cbranch_scc1 L_end")
    L += [i.text for i in code if i.text]
    L += [i.text for i in fin]
    A("L_end:")
    A("s_endpgm")
    L += [i.text for i in slow]
    A('.section .rodata,"a"')
    A(".p2align 6")
    A(f".amdhsa_kernel {NAME}")
    for t in ("next_free_vgpr 512", "next_free_sgpr 102", "accum_offset 256", "group_segment_fixed_size 0", "kernarg_size 64",
              "user_sgpr_count 2", "user_sgpr_kernarg_segment_ptr 1", "system_sgpr_workgroup_id_x 1"):
        A(f"  .amdhsa_{t}")
    A(".end_amdhsa_kernel")
    return "\n".join(L) + "\n"


if __name__ == "__main__":
    out = [a for a in sys.argv[1:] if a.endswith(".s")]
    open(out[0] if out else "k2.s", "w").write(build())
```

```python
import sys
from sched import *

OPT = dict(debug=None, stamp=0, dist=15, age=7, stf="sc1", ldf="sc1", pref=0, rot=1, ish=8, flf="sc1", codemax=47616)
for a in sys.argv[1:]:
    if "=" in a:
        k, v = a.split("=")
        OPT[k] = int(v) if v.lstrip("-").isdigit() else v
    elif a == "stamp":
        OPT["stamp"] = 1
STAMP, DEBUG = OPT["stamp"], OPT["debug"]
STF = " " + OPT["stf"].replace("+", " ") if OPT["stf"] else ""
LDF = " " + OPT["ldf"].replace("+", " ") if OPT["ldf"] else ""

sID = 3
sX, sK, sV, sWQ, sWO, sWS = 8, 12, 16, 20, 24, 28
sDBG, sOUT = 4, 20
INBOX = 48 << 20
sIN = 82
sWlim, sXlim, sK3 = 88, 89, 90
sW, sXW, sHW, sB, sH, sSP = 32, 33, 34, 35, 36, 37
sKoff, sVoff, sDst, sDstLim, sDst0 = 38, 39, 40, 41, 42
sHalf, sC1, sC2, sD, sK2 = 43, 44, 45, 46, 47
sPat = 48
sT0, sT1, sT2, sT3 = 50, 51, 52, 53
sThr, sCnt, sSite = 54, 55, 56
sWoff, sXoff, sWdst, sXdst, sWrd, sXrd, sDX = 57, 58, 59, 60, 61, 62, 63
sE0, sE1, sE2, sE3, sE4, sE5, sE6 = 57, 58, 59, 60, 61, 62, 63
sArg = 64
sSt = 80

vLANE, vK0, vK1, vV, vWt, vX, vST = 1, 2, 3, 4, 5, 6, 7
KA = [8, 9]
XA = [10, 11]
VA = [12, 13, 14, 15]
QA = [16, 17, 18]
vU = [19, 20, 21, 22, 23]
LV = [24, 25, 26, 27]
LK0 = 28
vT0, vT1, vT2 = 29, 30, 31
QB = [32, 64, 96]
SB, PB = 128, 176
NEGM = [224, 228, 232]
ET = 236
TS = [[244, 245, 246], [247, 248, 249]]
LS = [250, 251, 252]
vC = 253
vF = [253, 254, 255]
OB = [0, 64, 128]
FB = 192
SLOT = 32768
XBASE, XSL = 3 * SLOT, 20480
EX_WG = 49152
PART0, PART_WG = 16 << 20, 73728
OOB = 0x7ff00000
QSCALE = 0x3DB8AA3B
ISH = OPT.get("ish", 7)
FLF = " " + OPT.get("flf", "sc0+sc1").replace("+", " ")
DIST, MLAT = OPT["dist"], 5


def Sreg(j, kt, blk):
    return SB + ((2 * j + kt) % 4) * 12 + blk * 4


def Preg(j, blk):
    return PB + (j % 4) * 12 + blk * 4


def waitr(vm_keys, lg_key):
    return I("s_waitcnt <resolve>", "W", tag=("resolve", vm_keys, lg_key))


def wait_bar(vm_keys, lg_key):
    return [waitr(vm_keys, lg_key), I("s_barrier", "B")]


def stamp(k):
    return [raw(f"s_memtime s[{84 + 2 * k}:{85 + 2 * k}]")] if STAMP and k < 2 else []


def pst():
    if not STAMP:
        return []
    return [raw("s_waitcnt lgkmcnt(0)", "W"), raw("s_mov_b32 s100, s96"), I("v_mov_b32 v28, s100", "V"), I("v_cndmask_b32 v0, v0, v28, s[80:81]", "V"),
            raw("s_memrealtime s[96:97]" if OPT.get("rt") else "s_memtime s[96:97]"), raw("s_lshl_b64 s[80:81], s[80:81], 1")]


def AR(v, a):
    return I(f"v_accvgpr_read_b32 v{v}, a{a}", "V", [("a", a)], [("v", v)])


def bload(n, dst, voff, srd, soff, imm, flags="", tag=None):
    suf = {1: "dword", 2: "dwordx2", 4: "dwordx4"}[n]
    t = f"buffer_load_{suf} {rtxt(dst[0], dst[1], n)}, v{voff}, s[{srd}:{srd + 3}], s{soff} offen offset:{imm}{flags}"
    return I(t, "D", [("v", voff), ("s", soff)] + R("s", srd, 4), R(dst[0], dst[1], n), tag=tag)


def srd(c, d, arg, size):
    for t in (f"s_mov_b32 s{d}, s{sArg + arg}", f"s_mov_b32 s{d + 1}, s{sArg + arg + 1}", f"s_mov_b32 s{d + 2}, {size}",
              f"s_mov_b32 s{d + 3}, 0x20000"):
        c.append(salu(t))


def qw_dma(cidx):
    g = []
    for x in range(2):
        for t in range(4):
            rows = 32 * x + 16 * (t & 1) + 4 * (t >> 1)
            pre = [salu(f"s_add_u32 m0, s{sWdst}, {x * 16384}")] if t == 0 else []
            pre.append(salu(f"s_add_u32 s{sT0}, s{sWoff}, {rows * 8192 - t * 1024}"))
            g.append((pre, dma(vWt, sWQ, sT0, t * 1024, tag=("QW", cidx))))
    adv = [[salu(f"s_add_u32 s{sWoff}, s{sWoff}, {64 * 8192}")],
           [salu(f"s_cmp_ge_u32 s{sWoff}, {448 * 8192}"), salu(f"s_cselect_b32 s{sT1}, {448 * 8192}, 0")],
           [salu(f"s_sub_u32 s{sWoff}, s{sWoff}, s{sT1}")],
           [salu(f"s_cmp_lt_u32 s{sWdst}, {SLOT}"), salu(f"s_cselect_b32 s{sT1}, {3 * SLOT}, 0")],
           [salu(f"s_add_u32 s{sWdst}, s{sWdst}, s{sT1}")], [salu(f"s_sub_u32 s{sWdst}, s{sWdst}, {SLOT}")]]
    return g, adv


def qx_dma(cidx):
    g = []
    for k in range(5):
        pre = [salu(f"s_add_u32 m0, s{sXdst}, {k * 4096}"), salu(f"s_add_u32 s{sT0}, s{sXoff}, {k * 32 * 896}")]
        g.append((pre, dma(vX, sX, sT0, 0, tag=("QX", cidx))))
    adv = [[salu(f"s_add_u32 s{sXoff}, s{sXoff}, 128")],
           [salu(f"s_cmp_eq_u32 s{sXoff}, s{sXlim}"), salu(f"s_cselect_b32 s{sT1}, 896, 0")],
           [salu(f"s_sub_u32 s{sXoff}, s{sXoff}, s{sT1}")],
           [salu(f"s_cmp_ge_u32 s{sXdst}, {XBASE + 2 * XSL}"), salu(f"s_cselect_b32 s{sT1}, {3 * XSL}, 0")],
           [salu(f"s_sub_u32 s{sXdst}, s{sXdst}, s{sT1}")], [salu(f"s_add_u32 s{sXdst}, s{sXdst}, {XSL}")]]
    return g, adv


def dst_adv():
    return [[salu(f"s_add_u32 s{sDst}, s{sDst}, {SLOT}")],
            [salu(f"s_cmp_eq_u32 s{sDst}, s{sDstLim}"), salu(f"s_cselect_b32 s{sDst}, s{sDst0}, s{sDst}")]]


def kv_dma(kind, tag):
    g = []
    r, off = (sK, sKoff) if kind == "K" else (sV, sVoff)
    for x in range(2):
        for t in range(4):
            pre = []
            if t == 0:
                pre.append(salu(f"s_add_u32 m0, s{sDst}, {x * 16384}") if x else salu(f"s_mov_b32 m0, s{sDst}"))
                if x:
                    pre.append(salu(f"s_add_u32 s{off}, s{off}, 16384"))
            vo = (vK1 if t & 1 else vK0) if kind == "K" else vV
            g.append((pre, dma(vo, r, off, t * 1024, nt=OPT.get("nt", 1), tag=tag)))
    return g, [[salu(f"s_add_u32 s{off}, s{off}, 16384")]] + dst_adv()


def wo_dma(o, slot):
    g = []
    for kk in range(2):
        for t in range(4):
            rows = 32 * kk + 16 * (t >> 1) + 8 * (t & 1)
            pre = [salu(f"s_add_u32 m0, s{sE6}, {slot * SLOT + kk * 4096}")] if t == 0 else []
            pre.append(salu(f"s_add_u32 s{sT0}, s{sK2 if o < 3 else sK3}, {rows * 896 - t * 1024 + o * 128}"))
            g.append((pre, dma(vWt, sWO, sT0, t * 1024, tag=("WO", o))))
    return g, []


def add_dma(tasks, g, adv, first, rel, dl, spread, gapmin=0):
    prev = first
    pd = None
    n = len(g)
    for k, (pre, d) in enumerate(g):
        ddl = dl - (n - 1 - k) * 3
        for p in pre:
            t = Task(p, "S", rel=rel, dl=ddl, deps=[(prev, 0)], name="dmapre")
            tasks.append(t)
            prev = t
        t = Task(d, "D", rel=rel + k * spread, dl=ddl, deps=[(prev, 1 if (prev.cls == "S" and prev.ins) else 0)] + ([(pd, gapmin)] if pd and gapmin else []), name="dma")
        tasks.append(t)
        prev = pd = t
    for a in adv:
        t = Task(a, "S", rel=rel, dl=dl + 8, deps=[(prev, 0)], name="dmaadv")
        tasks.append(t)
        prev = t
    return prev


def emit_serial(c, g, adv, fill=None):
    for pre, d in g:
        c += pre
        c.append(d)
        if fill:
            for _ in range(6):
                if fill:
                    c.append(fill.pop(0))
    for a in adv:
        c += a


def prologue():
    c = []
    S = lambda t: c.append(salu(t))
    V = lambda t: c.append(valu(t))
    c.append(raw(f"s_load_dwordx16 s[{sArg}:{sArg + 15}], s[0:1], 0"))
    c += stamp(0)
    if STAMP or OPT.get("diag"):
        c.append(raw("s_memrealtime s[98:99]"))
    V(f"v_lshrrev_b32 v{vT0}, 6, v0")
    V(f"v_and_b32 v{vLANE}, 63, v0")
    V(f"v_readfirstlane_b32 s{sW}, v{vT0}")
    if OPT.get("cpf"):
        c.append(raw(f"s_getpc_b64 s[{sT2}:{sT3}]"))
        S(f"s_lshr_b32 s{sT1}, s2, 3")
        S(f"s_and_b32 s{sT1}, s{sT1}, 1")
        S(f"s_lshl_b32 s{sT1}, s{sT1}, 15")
        V(f"v_lshlrev_b32 v{vT1}, 7, v0")
        V(f"v_add_u32 v{vT1}, s{sT1}, v{vT1}")
        V(f"v_min_u32 v{vT1}, @CODEMAX, v{vT1}")
        c.append(I(f"global_load_dword v{vU[4]}, v{vT1}, s[{sT2}:{sT3}]", "D", [("v", vT1)], [("v", vU[4])]))
    S(f"s_lshr_b32 s{sT1}, s2, 3")
    S(f"s_and_b32 s{sT3}, s2, 1")
    S(f"s_lshl_b32 s{sT3}, s{sT3}, 2")
    S(f"s_and_b32 s{sT2}, s{sT1}, 3")
    S(f"s_add_u32 s{sT3}, s{sT3}, s{sT2}")
    S(f"s_and_b32 s{sB}, s2, 6")
    S(f"s_bfe_u32 s{sT2}, s{sT1}, 0x10002")
    S(f"s_add_u32 s{sB}, s{sB}, s{sT2}")
    S(f"s_bfe_u32 s{sH}, s{sT1}, 0x10003")
    S(f"s_lshl_b32 s{sT2}, s{sT3}, 1")
    S(f"s_add_u32 s{sH}, s{sH}, s{sT2}")
    S(f"s_lshr_b32 s{sSP}, s{sT1}, 4")
    S(f"s_lshr_b32 s{sXW}, s{sW}, 1")
    S(f"s_and_b32 s{sHW}, s{sW}, 1")
    S(f"s_lshl_b32 s{sKoff}, s{sB}, 3")
    S(f"s_add_u32 s{sKoff}, s{sKoff}, s{sT3}")
    V(f"v_lshrrev_b32 v{vT0}, 3, v{vLANE}")
    V(f"v_and_b32 v{vT1}, 7, v{vLANE}")
    V(f"v_lshrrev_b32 v{vT2}, 1, v{vT0}")
    V(f"v_xor_b32 v{vK0}, v{vT1}, v{vT2}")
    V(f"v_lshlrev_b32 v{vK0}, 4, v{vK0}")
    V(f"v_lshlrev_b32 v{vV}, 1, v{vT2}")
    V(f"v_xor_b32 v{vV}, v{vT1}, v{vV}")
    V(f"v_lshlrev_b32 v{vV}, 4, v{vV}")
    S(f"s_lshl_b32 s{sT2}, s{sHW}, 6")
    V(f"v_xor_b32 v{vX}, s{sT2}, v{vK0}")
    V(f"v_mul_u32_u24 v{vST}, 896, v{vT0}")
    V(f"v_add_u32 v{vX}, v{vX}, v{vST}")
    V(f"v_and_b32 v{vWt}, 3, v{vT0}")
    V(f"v_lshrrev_b32 v{vST}, 2, v{vT0}")
    V(f"v_lshl_add_u32 v{vWt}, v{vST}, 3, v{vWt}")
    V(f"v_lshlrev_b32 v{vWt}, 13, v{vWt}")
    V(f"v_add_u32 v{vWt}, v{vWt}, v{vV}")
    S(f"s_lshl_b32 s{sT3}, s{sW}, 7")
    V(f"v_add_u32 v{vWt}, s{sT3}, v{vWt}")
    S(f"s_lshl_b32 s{sWoff}, s{sH}, 9")
    S(f"s_mul_i32 s{sXoff}, s{sB}, {160 * 896}")
    S(f"s_mul_i32 s{sT2}, s{sW}, {8 * 896}")
    S(f"s_add_u32 s{sXoff}, s{sXoff}, s{sT2}")
    S(f"s_add_u32 s{sXlim}, s{sXoff}, 896")
    if OPT["rot"]:
        S(f"s_and_b32 s{sT2}, s{sB}, 1")
        S(f"s_lshl_b32 s{sT1}, s{sSP}, 1")
        S(f"s_add_u32 s{sT2}, s{sT2}, s{sT1}")
        S(f"s_lshl_b32 s{sT2}, s{sT2}, 1")
        S(f"s_and_b32 s{sT1}, s{sH}, 3")
        S(f"s_add_u32 s{sT2}, s{sT2}, s{sT1}")
        S(f"s_cmp_ge_u32 s{sT2}, 7")
        S(f"s_cselect_b32 s{sT1}, 7, 0")
        S(f"s_sub_u32 s{sT2}, s{sT2}, s{sT1}")
        S(f"s_lshl_b32 s{sT1}, s{sT2}, 19")
        S(f"s_add_u32 s{sWoff}, s{sWoff}, s{sT1}")
        S(f"s_lshl_b32 s{sT1}, s{sT2}, 7")
        S(f"s_add_u32 s{sXoff}, s{sXoff}, s{sT1}")
    S(f"s_lshl_b32 s{sDst0}, s{sW}, 12")
    S(f"s_add_u32 s{sWdst}, s{sDst0}, {SLOT}")
    S(f"s_lshl_b32 s{sXdst}, s{sW}, 10")
    S(f"s_add_u32 s{sXdst}, s{sXdst}, {XBASE}")
    c.append(I("s_waitcnt lgkmcnt(0)", "W"))
    srd(c, sWQ, 6, 448 * 4096 * 2)
    srd(c, sX, 0, 8 * 160 * 448 * 2)
    f = []
    c2, c = c, f
    S = lambda t: f.append(salu(t))
    V = lambda t: f.append(valu(t))
    V(f"v_and_b32 v{vST}, 1, v{vT0}")
    V(f"v_lshl_add_u32 v{vST}, v{vT2}, 3, v{vST}")
    V(f"v_lshlrev_b32 v{vST}, 9, v{vST}")
    V(f"v_add_u32 v{vST}, s{sT3}, v{vST}")
    V(f"v_add_u32 v{vK0}, v{vK0}, v{vST}")
    V(f"v_add_u32 v{vV}, v{vV}, v{vST}")
    V(f"v_xor_b32 v{vK1}, 64, v{vK0}")
    srd(f, sK, 2, 0x4000000)
    srd(f, sV, 4, 0x4000000)
    srd(f, sWO, 8, 448 * 4096 * 2)
    srd(f, sWS, 14, 0x10000000)
    S(f"s_lshl_b32 s{sKoff}, s{sKoff}, 20")
    S(f"s_lshl_b32 s{sVoff}, s{sSP}, 19")
    S(f"s_add_u32 s{sKoff}, s{sKoff}, s{sVoff}")
    S(f"s_mov_b32 s{sVoff}, s{sKoff}")
    S(f"s_lshl_b32 s{sID}, s{sB}, 1")
    S(f"s_add_u32 s{sID}, s{sID}, s{sSP}")
    S(f"s_lshl_b32 s{sID}, s{sID}, 4")
    S(f"s_add_u32 s{sID}, s{sID}, s{sH}")
    srd(f, sDBG, 12, 256)
    S(f"s_lshl_b32 s{sIN}, s{sID}, {ISH}")
    S(f"s_add_u32 s{sIN}, s{sIN}, {INBOX}")
    f.append(I(f"s_cmp_eq_u32 s{sW}, 0\ns_cselect_b32 s{sT2}, s{sIN}, {OOB:#x}\ns_cselect_b32 s{sIN + 1}, s{sID}, {OOB:#x}", "S"))
    V(f"v_and_b32 v{vT0}, 31, v{vLANE}")
    V(f"v_lshlrev_b32 v{vT0}, 2, v{vT0}")
    V(f"v_mov_b32 v{vU[2]}, 0")
    V(f"v_mov_b32 v{vU[3]}, 1")
    f.append(bstore(1, ("v", vU[2]), vT0, sWS, sT2, 0, " sc0 sc1"))
    f.append(nop(1))
    V(f"v_and_b32 v{vT0}, 15, v{vLANE}")
    V(f"v_lshrrev_b32 v{vT1}, 4, v{vLANE}")
    V(f"v_lshrrev_b32 v{vT2}, 1, v{vT0}")
    V(f"v_xor_b32 v{LK0}, v{vT1}, v{vT2}")
    V(f"v_lshlrev_b32 v{LK0}, 4, v{LK0}")
    V(f"v_lshl_add_u32 v{LK0}, v{vT0}, 7, v{LK0}")
    V(f"v_lshrrev_b32 v{vT0}, 2, v{vLANE}")
    V(f"v_and_b32 v{vT1}, 6, v{vT0}")
    V(f"v_bfe_u32 v{vT2}, v{vLANE}, 1, 1")
    V(f"v_xor_b32 v{vT1}, v{vT1}, v{vT2}")
    V(f"v_lshlrev_b32 v{vT1}, 4, v{vT1}")
    V(f"v_lshl_add_u32 v{vT1}, v{vT0}, 7, v{vT1}")
    V(f"v_and_b32 v{vT2}, 1, v{vLANE}")
    V(f"v_lshl_add_u32 v{LV[0]}, v{vT2}, 3, v{vT1}")
    for k in range(1, 4):
        V(f"v_xor_b32 v{LV[k]}, {32 * k}, v{LV[0]}")
    S(f"s_add_u32 s{sT2}, s{sDst0}, {SLOT}")
    for k in range(4):
        V(f"v_add_u32 v{VA[k]}, s{sT2}, v{LV[k]}")
    V(f"v_add_u32 v{XA[0]}, {XBASE}, v{LK0}")
    V(f"v_xor_b32 v{XA[1]}, 64, v{XA[0]}")
    S(f"s_mov_b32 s{sWrd}, {SLOT}")
    S(f"s_mov_b32 s{sXrd}, 0")
    S(f"s_add_u32 s{sDstLim}, s{sDst0}, {5 * SLOT}")
    S(f"s_mov_b32 s{sDst}, s{sDst0}")
    S(f"s_lshl_b32 s{sHalf}, s{sXW}, 15")
    S(f"s_sub_u32 s{sHalf}, s{sHalf}, 16384")
    S(f"s_sub_u32 s{sC1}, {2 * SLOT}, s{sHalf}")
    S(f"s_sub_u32 s{sC2}, {(-3 * SLOT) & 0xffffffff}, s{sHalf}")
    S(f"s_mov_b32 s{sThr}, 0x53800000")
    pat = 0
    for j in range(40):
        if (j + 1) % 5 < (j - 1) % 5:
            pat |= 1 << j
    S(f"s_mov_b32 s{sPat}, {pat & 0xffffffff:#x}")
    S(f"s_mov_b32 s{sPat + 1}, {pat >> 32:#x}")
    S(f"s_lshl_b32 s{sT2}, s{sXW}, 14")
    S(f"s_sub_u32 s{sT2}, 16384, s{sT2}")
    V(f"v_add_u32 v{KA[0]}, s{sT2}, v{LK0}")
    V(f"v_xor_b32 v{KA[1]}, 64, v{KA[0]}")
    V(f"v_and_b32 v{vT0}, 15, v{vLANE}")
    V(f"v_lshlrev_b32 v{vT0}, 4, v{vT0}")
    V(f"v_lshrrev_b32 v{vT1}, 5, v{vLANE}")
    V(f"v_lshl_add_u32 v{vT0}, v{vT1}, 8, v{vT0}")
    V(f"v_bfe_u32 v{vT1}, v{vLANE}, 4, 1")
    V(f"v_lshl_add_u32 v{vT0}, v{vT1}, 3, v{vT0}")
    S(f"s_lshl_b32 s{sT2}, s{sW}, 11")
    S(f"s_add_u32 s{sT3}, s{sT2}, {XBASE}")
    V(f"v_add_u32 v{vU[0]}, s{sT3}, v{vT0}")
    S(f"s_add_u32 s{sT3}, s{sT2}, {SLOT}")
    V(f"v_add_u32 v{vU[1]}, s{sT3}, v{vT0}")
    V(f"v_lshlrev_b32 v{vST}, 4, v{vLANE}")
    S(f"s_lshl_b32 s{sT2}, s{sW}, 1")
    S(f"s_add_u32 s{sT2}, s{sT2}, s{sSP}")
    S(f"s_lshl_b32 s{sT2}, s{sT2}, 13")
    S(f"s_add_u32 s{sT2}, s{sT2}, {XBASE}")
    V(f"v_add_u32 v{QA[0]}, s{sT2}, v{vST}")
    V(f"v_xor_b32 v{QA[1]}, 8192, v{QA[0]}")
    S(f"s_xor_b32 s{sT2}, s{sHW}, s{sSP}")
    S(f"s_lshl_b32 s{sT2}, s{sT2}, 13")
    S(f"s_add_u32 s{sT2}, s{sT2}, {SLOT}")
    V(f"v_add_u32 v{QA[2]}, s{sT2}, v{vST}")
    S(f"s_lshl_b32 s{sK2}, s{sH}, 2")
    S(f"s_add_u32 s{sK2}, s{sK2}, s{sW}")
    S(f"s_mul_i32 s{sK2}, s{sK2}, {64 * 896}")
    S(f"s_mul_i32 s{sT2}, s{sSP}, {3 * 128 * OPT['rot']}")
    S(f"s_sub_u32 s{sK3}, s{sK2}, s{sT2}")
    S(f"s_lshl_b32 s{sT2}, s{sSP}, {9 if OPT['rot'] else 31}")
    S(f"s_and_b32 s{sT2}, s{sT2}, 512")
    S(f"s_add_u32 s{sK2}, s{sK2}, s{sT2}")
    c = c2
    for fn, cidx in ((qw_dma, 0), (qx_dma, 0), (qw_dma, 1)):
        g, adv = fn(cidx)
        emit_serial(c, g, adv, f)
    c += f
    if OPT["pref"]:
        S = lambda t: c.append(salu(t))
        V = lambda t: c.append(valu(t))
        S(f"s_and_b32 s{sT0}, s{sB}, 1")
        S(f"s_lshl_b32 s{sT0}, s{sT0}, 1")
        S(f"s_add_u32 s{sT0}, s{sT0}, s{sSP}")
        S(f"s_lshl_b32 s{sT0}, s{sT0}, 2")
        S(f"s_add_u32 s{sT0}, s{sT0}, s{sW}")
        V(f"v_lshrrev_b32 v{vT0}, 2, v{vLANE}")
        V(f"v_lshlrev_b32 v{vT0}, 13, v{vT0}")
        V(f"v_and_b32 v{vT1}, 3, v{vLANE}")
        V(f"v_lshl_add_u32 v{vT0}, v{vT1}, 7, v{vT0}")
        S(f"s_lshl_b32 s{sT1}, s{sT0}, 17")
        S(f"s_add_u32 s{sT1}, s{sT1}, s{sWoff}")
        c.append(bload(1, ("v", 32), vT0, sWQ, sT1, 0))
        S(f"s_lshr_b32 s{sT1}, s2, 3")
        S(f"s_and_b32 s{sT2}, s{sT1}, 3")
        S(f"s_lshr_b32 s{sT1}, s{sT1}, 3")
        S(f"s_lshl_b32 s{sT1}, s{sT1}, 2")
        S(f"s_add_u32 s{sT1}, s{sT1}, s{sT2}")
        S(f"s_lshl_b32 s{sT1}, s{sT1}, 2")
        S(f"s_add_u32 s{sT1}, s{sT1}, s{sW}")
        S(f"s_mul_i32 s{sT1}, s{sT1}, {18 * 128}")
        S(f"s_mul_i32 s{sT2}, s{sB}, {160 * 896}")
        S(f"s_add_u32 s{sT1}, s{sT1}, s{sT2}")
        V(f"v_min_u32 v{vT1}, 17, v{vLANE}")
        V(f"v_lshlrev_b32 v{vT1}, 7, v{vT1}")
        c.append(bload(1, ("v", 33), vT1, sX, sT1, 0))
        c.append(raw(f"s_getpc_b64 s[{sT2}:{sT3}]"))
        S(f"s_and_b32 s{sT1}, s{sT0}, 7")
        S(f"s_lshl_b32 s{sT1}, s{sT1}, 13")
        V(f"v_lshlrev_b32 v{vT1}, 7, v{vLANE}")
        V(f"v_add_u32 v{vT1}, s{sT1}, v{vT1}")
        V(f"v_min_u32 v{vT1}, @CODEMAX, v{vT1}")
        c.append(I(f"global_load_dword v34, v{vT1}, s[{sT2}:{sT3}]", "D", [("v", vT1)], [("v", 34)]))
        S(f"s_mul_i32 s{sT1}, s{sH}, {256 * 896}")
        S(f"s_mul_i32 s{sT0}, s{sT0}, {112 * 128}")
        S(f"s_add_u32 s{sT1}, s{sT1}, s{sT0}")
        V(f"v_lshlrev_b32 v{vT1}, 7, v{vLANE}")
        if OPT["pref"] > 1:
            c.append(bload(1, ("v", 35), vT1, sWO, sT1, 0))
            S(f"s_add_u32 s{sT1}, s{sT1}, {48 * 128}")
            c.append(bload(1, ("v", 36), vT1, sWO, sT1, 0))
    return c


def qacc(blk, t):
    return 96 + (blk * 4 + t) * 4


def q_phase():
    mf, tasks, marks = [], [], []
    WF = lambda c, ks, t: (c & 1) * 32 + (ks * 4 + t) * 4
    XF = lambda blk, ks: 64 + (blk * 2 + ks) * 4
    bar, lastx, lastaddr, xuse, wuse = {}, {}, {}, {}, {}
    prev_dma, prev_aups = None, []
    allreads = []
    for cidx in range(7):
        start = 80 * cidx
        marks.append(start)
        if cidx == 0:
            bar[0] = Task(wait_bar([("QX", 0)], None), "BAR", rel=-1, dl=-1, name="bar0")
            wready = bar[0]
        else:
            bar[cidx] = Task(wait_bar([("QX", cidx)], ("XR", cidx - 1)), "BAR", rel=start - 20, dl=start - 10, deps=[(lastx[cidx - 1], 4)], name=f"bar{cidx}")
            wready = Task(waitr([("QW", cidx)], None), "S", rel=start - 44, name="wready")
            tasks.append(wready)
        tasks.append(bar[cidx])
        aup = {}
        if cidx > 0:
            sd = [Task([salu(f"s_cmp_eq_u32 s{sWrd}, 0"), salu(f"s_cselect_b32 s{sD}, {3 * SLOT}, 0")], "S", rel=start - 76, deps=[(t, 0) for t in prev_aups], name="sd")]
            for t in (f"s_sub_u32 s{sD}, s{sD}, {SLOT}", f"s_add_u32 s{sWrd}, s{sWrd}, s{sD}"):
                sd.append(Task(salu(t), "S", deps=[(sd[-1], 0)], name="sd"))
            sd.append(Task([salu(f"s_cmp_eq_u32 s{sXrd}, {2 * XSL}"), salu(f"s_cselect_b32 s{sDX}, {3 * XSL}, 0")], "S", deps=[(sd[-1], 0)], name="sd"))
            for t in (f"s_sub_u32 s{sDX}, {XSL}, s{sDX}", f"s_add_u32 s{sXrd}, s{sXrd}, s{sDX}"):
                sd.append(Task(salu(t), "S", deps=[(sd[-1], 0)], name="sd"))
            tasks += sd
            for r in VA:
                aup[r] = Task(valu(f"v_add_u32 v{r}, s{sD}, v{r}"), "V", deps=[(sd[-1], 1), (lastaddr[r], 0)], name="aup")
            for r in XA:
                aup[r] = Task(valu(f"v_add_u32 v{r}, s{sDX}, v{r}"), "V", deps=[(sd[-1], 1), (lastaddr[r], 0)], name="aup")
            tasks += list(aup.values())
            prev_aups = list(aup.values())

        def rd(ins, consumer, gate, tag, rel, war):
            ins.tag = tag
            a = ins.rd[0][1]
            deps = [(gate, 0)] + ([(aup[a], 1)] if a in aup else []) + ([(lastaddr[a], 0)] if a in lastaddr else [])
            first = cidx == 0 and consumer < 12
            t = Task(ins, "L", rel=-1 if first else max(rel, war), dl=-1 if first else consumer - 6, deps=deps, name="rd")
            tasks.append(t)
            lastaddr[a] = t
            allreads.append(t)
            return t

        for ks in range(2):
            for t in range(4):
                for e in range(2):
                    rd(ds_rtr(("a", WF(cidx, ks, t) + 2 * e), VA[t], ks * 16384 + e * 2048), start + ks * 4 + t, wready, ("WR", cidx),
                       start - 42, wuse.get(cidx & 1, -1))
        early = 60 if cidx == 6 else 22
        for blk in range(10):
            for ks in range(2):
                c0 = len(mf)
                lastx[cidx] = rd(ds_r128(("a", XF(blk, ks)), XA[ks], blk * 2048), c0, bar[cidx], ("XR", cidx), c0 - early, xuse.get((blk, ks), -1))
                for t in range(4):
                    d = ("v", qacc(blk, t))
                    mf.append(mfma(d, ("a", WF(cidx, ks, t)), ("a", XF(blk, ks)), 0 if (cidx == 0 and ks == 0) else d))
                xuse[(blk, ks)] = len(mf) - 1
        wuse[cidx & 1] = len(mf) - 1
    q = []
    for cidx in range(1, 7):
        q.append((qx_dma(cidx), bar[max(cidx - 2, 0)], max(0, 80 * (cidx - 2) - 10), 80 * (cidx - 1) + (30 if cidx > 1 else 16)))
        if cidx + 1 <= 6:
            q.append((qw_dma(cidx + 1), bar[0], max(0, 80 * (cidx - 2) + 10), 80 * (cidx - 1) + 62))
    g, adv = kv_dma("K", ("T", -1))
    q.append(((g, adv + dst_adv()), bar[0], 80 * 4 + 10, 80 * 5 + 40))
    q.append((kv_dma("K", ("T", 1)), bar[0], 80 * 5 + 10, 80 * 6 + 20))
    for (g, adv), gate, r0, d0 in q:
        first = Task([], "S", rel=r0, deps=[(gate, 0)] + ([(prev_dma, 0)] if prev_dma else []), name="dmastart")
        tasks.append(first)
        prev_dma = add_dma(tasks, g, adv, first, r0, d0, spread=0, gapmin=OPT.get("qgap", 3))
    an = I(f"buffer_store_byte v{vU[3]}, v{vU[2]}, s[{sDBG}:{sDBG + 3}], s{sIN + 1} offen sc0 sc1", "D", [("v", vU[3]), ("v", vU[2])], [], tag="store")
    seq = [an]
    if OPT.get("tlb", 1):
        seq += [bload(1, ("v", vX), vU[2], sV, sVoff, 0), bload(1, ("v", vX), vU[2], sWO, sK2, 0),
                salu(f"s_mul_i32 s{sT0}, s{sID}, {EX_WG}"), bload(1, ("v", vX), vU[2], sWS, sT0, 0),
                salu(f"s_xor_b32 s{sT0}, s{sID}, 16"), salu(f"s_mul_i32 s{sT0}, s{sT0}, {EX_WG}"), bload(1, ("v", vX), vU[2], sWS, sT0, 0),
                salu(f"s_and_b32 s{sT0}, s{sID}, 0xf0"), salu(f"s_lshl_b32 s{sT1}, s{sW}, 2"), salu(f"s_add_u32 s{sT0}, s{sT0}, s{sT1}"),
                salu(f"s_mul_i32 s{sT0}, s{sT0}, {PART_WG}"), salu(f"s_add_u32 s{sT0}, s{sT0}, {PART0}"), bload(1, ("v", vX), vU[2], sWS, sT0, 0)]
    for i in seq:
        prev_dma = Task(i, i.kind, deps=[(prev_dma, 1)], dl=80 * 6 + 60, name="warm")
        tasks.append(prev_dma)
    start = 480
    dead = Task(wait_bar([], ("XR", 6)), "BAR", deps=[(lastx[6], 4)], name="dead")
    tasks.append(dead)
    sc = Task([salu(f"s_mov_b32 s{sT2}, {QSCALE:#x}"), salu(f"s_mov_b32 s{sT3}, {QSCALE:#x}")], "S", rel=start, name="sc")
    tasks.append(sc)
    for blk in range(10):
        for t in range(4):
            s = qacc(blk, t)
            done = start + blk * 8 + 4 + t
            if blk < OPT.get("pkfrom", 4):
                ms = [Task(valu(f"v_mul_f32 v{s + r}, s{sT3}, v{s + r}"), "V", rel=done + MLAT, deps=[(sc, 1)], name="qmul") for r in range(4)]
            else:
                m2 = [Task(valu(f"v_pk_mul_f32 v[{s + r}:{s + r + 1}], v[{s + r}:{s + r + 1}], s[{sT2}:{sT3}]"), "V", rel=done + MLAT, deps=[(sc, 1)], name="qmul") for r in (0, 2)]
                ms = [m2[0], m2[0], m2[1], m2[1]]
            c0 = Task(valu(f"v_cvt_pk_bf16_f32 v{s}, v{s}, v{s + 1}"), "V", deps=[(ms[0], 0), (ms[1], 0)], name="qcv")
            c1 = Task(valu(f"v_cvt_pk_bf16_f32 v{s + 1}, v{s + 2}, v{s + 3}"), "V", deps=[(ms[2], 0), (ms[3], 0), (c0, 0)], name="qcv")
            w = ds_w64(vU[0] if blk < 8 else vU[1], ("v", s), (blk & 7) * 8192 + (t >> 1) * 1024 + (t & 1) * 512)
            wt = Task(w, "L", deps=[(c1, 0), (dead, 0)], name="qwr")
            tasks += list(dict.fromkeys(ms)) + [c0, c1, wt]
    gaps = schedule(mf, tasks, verbose=True)
    for k, m in enumerate(marks):
        mf[m].mark = ("Q", k)
    return linearize(mf, gaps)


def q_finish():
    c = []
    S = lambda t: c.append(salu(t))
    V = lambda t: c.append(valu(t))
    S(f"s_lshl_b32 s{sT0}, s{sXW}, 14")
    S(f"s_sub_u32 s{sT0}, {3 * SLOT + 16384}, s{sT0}")
    for k in range(4):
        V(f"v_add_u32 v{VA[k]}, s{sT0}, v{LV[k]}")
    V(f"v_lshrrev_b32 v{vT0}, 3, v{vLANE}")
    V(f"v_mul_u32_u24 v{vT0}, 896, v{vT0}")
    V(f"v_and_b32 v{vWt}, 0x70, v{vV}")
    V(f"v_add_u32 v{vWt}, v{vWt}, v{vT0}")
    S(f"s_lshl_b32 s{sE6}, s{sW}, 13")
    c.append(I("s_waitcnt lgkmcnt(0)", "W"))
    for r in list(range(NEGM[0], NEGM[0] + 12)) + LS:
        V(f"v_mov_b32 v{r}, 0")
    c += wait_bar([("T", -1)], None)
    return c


sites = []


def rowmax_tasks(tasks, src, t, u, dep, name):
    seq = [f"v_max3_f32 v{t}, v{src}, v{src + 1}, v{src + 2}", f"v_max_f32 v{t}, v{t}, v{src + 3}", f"v_mov_b32 v{u}, v{t}",
           f"v_permlane32_swap_b32 v{t}, v{u}", f"v_max_f32 v{t}, v{t}, v{u}", f"v_mov_b32 v{u}, v{t}",
           f"v_permlane16_swap_b32 v{t}, v{u}", f"v_max_f32 v{t}, v{t}, v{u}", f"v_ceil_f32 v{t}, v{t}"]
    prev = dep
    for x in seq:
        i = valu(x)
        tk = Task(i, "V", deps=[(prev, 1 if i.kind == "P" else 0)], name=name)
        tasks.append(tk)
        prev = tk
    return prev


def main_phase():
    NS = 35
    mf, tasks = [], []
    nfrag = 0
    start, chain_first, chain_last, plan, qfirst = {}, {}, {}, [], {}
    for j in range(NS):
        start[j] = len(mf)
        for gam in range(16):
            kt, ks = gam >> 3, gam & 7
            if j <= 31:
                f = FB + (nfrag % 16) * 4
                nfrag += 1
                plan.append(("K", j, gam, f, len(mf)))
                for blk in ((0, 1, 2) if j & 1 else (0, 1)):
                    d = ("v", Sreg(j, kt, blk))
                    qfirst.setdefault((blk, ks), len(mf))
                    mf.append(mfma(d, ("a", f), ("v", QB[blk] + 4 * ks), ("v", NEGM[blk]) if ks == 0 else d))
                    chain_first.setdefault((j, kt), len(mf) - 1)
                    chain_last[(j, kt, blk)] = len(mf) - 1
            if j >= 3:
                f = FB + (nfrag % 16) * 4
                nfrag += 1
                plan.append(("V", j, gam, f, len(mf)))
                for blk in ((0, 1, 2) if (j & 1) == 0 else (0, 1)):
                    d = ("a", OB[blk] + 4 * gam)
                    mf.append(mfma(d, ("a", f), ("v", Preg(j - 3, blk)), 0 if j == (3 if blk < 2 else 4) else d))
    start[NS] = start[NS + 1] = len(mf)
    bar, aup, lastread, lastaddr = {}, {}, {}, {}
    qlast = None
    for (blk, ks), c0 in sorted(qfirst.items(), key=lambda x: x[1]):
        i = ds_r128(("v", QB[blk] + 4 * ks), QA[blk], ks * 1024)
        i.tag = ("QS", 0)
        first = c0 < 8
        qlast = Task(i, "L", rel=-1, dl=-1 if first else min(c0 - 6, 22), deps=[(qlast, 0)] if qlast else [], name="qrd")
        tasks.append(qlast)
    bar[0] = Task(wait_bar([], ("QS", 0)), "BAR", deps=[(qlast, 4)], name="barq")
    tasks.append(bar[0])
    st = dict(sd=None, aups=[])
    done_steps = set()

    def tile_of(kind, j):
        return ("K", j >> 1) if kind == "K" else ("V", (j - 3) >> 1)

    def add_wreads(o, gate, rel, dl):
        c = []
        wfrag_reads(c, o)
        prev = gate
        for i in c:
            prev = Task(i, "L", rel=rel, dl=dl, deps=[(prev, 0), (setup_done, 1)], prio=-40, name="wrd")
            tasks.append(prev)
        return prev

    su = []
    tail_setup(su)
    setup_done = None
    for i in su:
        setup_done = Task(i, "S" if i.kind == "S" else "V", rel=start[30], dl=start[32] - 30, deps=[(setup_done, 0)] if setup_done else [], name="su")
        tasks.append(setup_done)

    def enter(j):
        done_steps.add(j)
        sw = "K" if j % 2 == 0 else "V"
        old = tile_of(sw, j - 1)
        newvalid = (sw == "K" and j <= 30) or (sw == "V" and 3 <= j <= 33)
        vm = [("T", j - 1)] if newvalid else []
        deps, lg = [], None
        if old in lastread:
            deps.append((lastread[old], 3))
            lg = old
        if j == 32:
            vm = [("WO", 0)]
        if j == 33:
            vm = vm + [("WO", 1)]
        if j in (33, 34):
            wl = add_wreads(j - 33, bar[j - 1], start[j - 1], start[j] - DIST)
            deps = [(wl, 3)] + deps
            lg = ("ANY", j)
            for t in [wl] + ([lastread[old]] if old in lastread else []):
                t.ins[0].tag = ("ANY", j)
        if vm or lg:
            pb = max(k for k in bar)
            bar[j] = Task(wait_bar(vm, lg), "BAR", rel=start[j] - DIST + 4, dl=start[j] - 8, deps=deps + [(bar[pb], 1)], name=f"bar{j}")
            tasks.append(bar[j])
        sd0 = Task([salu(f"s_bitcmp1_b64 s[{sPat}:{sPat + 1}], 0"), salu(f"s_cselect_b32 s{sD}, s{sC2}, s{sC1}")], "S", rel=start[j - 1] + 8,
                   deps=[(t, 0) for t in st["aups"]] + ([(st["sd"], 0)] if st["sd"] else []), name="sd")
        sd0.ins[0].wr = [("scc", 0)]
        sd = Task(salu(f"s_lshr_b64 s[{sPat}:{sPat + 1}], s[{sPat}:{sPat + 1}], 1"), "S", deps=[(sd0, 0)], name="sd")
        tasks.extend([sd0, sd])
        st["sd"], st["aups"] = sd, []
        for kind, regs in (("K", KA), ("V", VA)):
            if not ((kind == "K" and 1 <= j <= 31) or (kind == "V" and 4 <= j <= 34)):
                continue
            for r in regs:
                t = Task(valu(f"v_add_u32 v{r}, s{sD if kind == sw else sHalf}, v{r}"), "V", deps=[(sd0, 1), (lastaddr[r], 0)], name="aup")
                aup[(j, r)] = t
                tasks.append(t)
                st["aups"].append(t)

    for kind, j, gam, f, c0 in plan:
        if j >= 1 and j not in done_steps:
            enter(j)
        kt, ks = gam >> 3, gam & 7
        if kind == "K":
            a = KA[ks & 1]
            ins = [ds_r128(("a", f), a, (ks >> 1) * 4096 + kt * 2048)]
        else:
            a = VA[gam & 3]
            ins = [ds_rtr(("a", f), a, (gam >> 2) * 4096), ds_rtr(("a", f + 2), a, (gam >> 2) * 4096 + 2048)]
        tl = tile_of(kind, j)
        for i in ins:
            i.tag = tl
            deps = []
            swj = j if (kind == "K") == (j % 2 == 0) else j - 1
            if swj in bar and swj > 0:
                deps.append((bar[swj], 0))
            if (j, a) in aup:
                deps.append((aup[(j, a)], 1))
            if a in lastaddr:
                deps.append((lastaddr[a], 0))
            first = c0 < 8
            t = Task(i, "L", rel=-1 if first else c0 - DIST, dl=-1 if first else c0 - 5, deps=deps, name=f"rd{kind}{j}.{gam}")
            tasks.append(t)
            lastread[tl] = t
            lastaddr[a] = t
    prev = None
    for j in range(NS):
        n = j + 2
        if n <= 32 and n != 31:
            g, adv = kv_dma("K" if n & 1 else "V", ("T", n))
        elif n in (31, 33):
            g, adv = wo_dma((n - 31) // 2, (n + 1) % 5)
            adv = dst_adv()
        elif n in (34, 35):
            g, adv = wo_dma(n - 32, WSL[n - 32])
        else:
            continue
        pb = max(k for k in bar if k <= j)
        first = Task([], "S", rel=start[j] - 6, deps=[(bar[pb], 0)] + ([(prev, 0)] if prev else []), name="dmastart")
        tasks.append(first)
        L = start[j + 1] - start[j]
        dl = start[j + 1] - DIST if 2 <= j < 32 else start[j + 2] - DIST
        prev = add_dma(tasks, g, adv, first, start[j] - 6, dl, spread=max(3, (L - DIST) // 9))
    ecount, econs, prev_branch, prev_ladd = 0, {}, None, {}
    for j in range(32):
        blks = (0, 1, 2) if j & 1 else (0, 1)
        dl_chk = chain_first[(j + 2, 0)] - 1 if j + 2 <= 31 else start[j + 3] - 4
        allcv, tsdep, fix = [], {}, {}
        for blk in blks:
            if (j == 0 and blk < 2) or (j == 1 and blk == 2):
                t, u = ET + 2 * (blk & 1), ET + 2 * (blk & 1) + 1
                base = Task([], "V", rel=chain_last[(j, 0, blk)] + MLAT, deps=[(prev_branch, 0)] if prev_branch else [], name="mx0")
                tasks.append(base)
                last = rowmax_tasks(tasks, Sreg(j, 0, blk), t, u, base, "mx")
                nm = [Task(valu(f"v_sub_f32 v{NEGM[blk] + r}, 0, v{t}"), "V", rel=chain_first[(j, 1)] + 6,
                           dl=chain_first[(j + (1 if blk < 2 else 2), 0)] - 3, deps=[(last, 0)], name="negm") for r in range(4)]
                tasks += nm
                for kt in range(2):
                    for r in range(4):
                        s = Sreg(j, kt, blk) + r
                        x = Task(valu(f"v_sub_f32 v{s}, v{s}, v{t}"), "V", rel=chain_last[(j, kt, blk)] + MLAT, deps=[(last, 0)], name="sfix")
                        tasks.append(x)
                        fix[(kt, blk, r)] = x
                        econs.setdefault(t - ET, []).append(x)
                econs.setdefault(t - ET, []).extend(nm)
                econs.setdefault(u - ET, []).append(last)
        for kt in range(2):
            for blk in blks:
                ts = TS[j & 1][blk]
                for pr in range(2):
                    es = []
                    for r in (2 * pr, 2 * pr + 1):
                        e = ecount % 8
                        ecount += 1
                        deps = [(x, 0) for x in econs.get(e, [])] + ([(prev_branch, 0)] if prev_branch else [])
                        if (kt, blk, r) in fix:
                            deps.append((fix[(kt, blk, r)], 1))
                        t = Task(valu(f"v_exp_f32 v{ET + e}, v{Sreg(j, kt, blk) + r}"), "E", rel=chain_last[(j, kt, blk)] + MLAT, deps=deps, name=f"exp{j}.{kt}")
                        tasks.append(t)
                        econs[e] = []
                        es.append((e, t))
                    (e0, t0), (e1, t1) = es
                    cv = Task(valu(f"v_cvt_pk_bf16_f32 v{Preg(j, blk) + 2 * kt + pr}, v{ET + e0}, v{ET + e1}"), "V", deps=[(t0, 1), (t1, 1)], name="cvt")
                    tasks.append(cv)
                    allcv.append(cv)
                    if blk not in tsdep:
                        ad = Task(valu(f"v_add_f32 v{ts}, v{ET + e0}, v{ET + e1}"), "V",
                                  deps=[(t0, 1), (t1, 1)] + ([(prev_ladd[(j & 1, blk)], 0)] if (j & 1, blk) in prev_ladd else []), name="add")
                        tasks.append(ad)
                        econs[e0] += [cv, ad]
                        econs[e1] += [cv, ad]
                        tsdep[blk] = ad
                    else:
                        a0 = Task(valu(f"v_add_f32 v{ts}, v{ET + e0}, v{ts}"), "V", deps=[(t0, 1), (tsdep[blk], 1)], name="add")
                        a1 = Task(valu(f"v_add_f32 v{ts}, v{ET + e1}, v{ts}"), "V", deps=[(t1, 1), (a0, 1)], name="add")
                        tasks += [a0, a1]
                        econs[e0] += [cv, a0]
                        econs[e1] += [cv, a1]
                        tsdep[blk] = a1
        tsr = [TS[j & 1][b] for b in blks]
        mx = Task(valu(f"v_max3_f32 v{vC}, v{tsr[0]}, v{tsr[1]}, v{tsr[2]}") if len(tsr) == 3 else valu(f"v_max_f32 v{vC}, v{tsr[0]}, v{tsr[1]}"),
                  "V", deps=[(t, 1) for t in tsdep.values()], name="mx")
        cmp_ = Task(valu(f"v_cmp_lt_f32 vcc, s{sThr}, v{vC}"), "V", deps=[(mx, 1)], name="cmp")
        br = Task([I(f"s_cbranch_vccnz L_slow_@{j}", "BR", [("vcc", 0)], [], tag=("site", j)), I(f"L_ret_@{j}:", "LAB", tag=("ret", j))],
                  "S", dl=dl_chk, deps=[(cmp_, 1)] + [(t, 0) for t in allcv] + [(t, 0) for t in prev_ladd.values()], name=f"br{j}")
        tasks += [mx, cmp_, br]
        for blk in blks:
            la = Task(valu(f"v_add_f32 v{LS[blk]}, v{TS[j & 1][blk]}, v{LS[blk]}"), "V", deps=[(br, 0)], dl=dl_chk + 12, name="ladd")
            tasks.append(la)
            prev_ladd[(j & 1, blk)] = la
        prev_branch = br
        sites.append(dict(j=j, task=br, blks=blks))
    last = None
    for blk in (1, 2, 0):
        xs = []
        xsum(xs, LS[blk], vT1)
        for i in xs:
            last = Task(i, "V", deps=[(t, 0) for t in prev_ladd.values()] + ([(last, 1 if i.kind == "P" else 0)] if last else []), name="xsum")
            tasks.append(last)
        if blk == 1:
            m0_ = Task(valu(f"v_mov_b32 v{ET}, v{NEGM[1]}"), "V", deps=[(last, 0)], name="st")
            m1_ = Task(valu(f"v_mov_b32 v{ET + 1}, v{LS[1]}"), "V", deps=[(last, 0)], name="st")
            stt = Task(bstore(2, ("v", ET), vT2, sWS, sT3, 0, STF), "D", deps=[(m0_, 1), (m1_, 1), (prev, 0)], name="st")
            tasks += [m0_, m1_, stt]
    pcv = {}
    for T in range(16):
        done = start[34] + 3 * T + 1
        tmp = SB + 4 * (T & 3)
        ars = [Task(AR(tmp + r, OB[1] + 4 * T + r), "V", rel=done + MLAT, deps=[(prev_branch, 0)] + [(x, 0) for x in pcv.get(T & 3, [])], name="ar") for r in range(4)]
        cv = [Task(valu(f"v_cvt_pk_bf16_f32 v{FSB + 2 * T + h}, v{tmp + 2 * h}, v{tmp + 2 * h + 1}"), "V", deps=[(ars[2 * h], 0), (ars[2 * h + 1], 0)], name="cv") for h in range(2)]
        tasks += ars + cv
        if T & 1:
            kb = T >> 1
            tasks.append(Task(bstore(4, ("v", FSB + 4 * kb), vST, sWS, sE4 if kb < 4 else sE5, (kb & 3) * 1024, STF), "D",
                              deps=[(x, 1) for x in cv + pcv[(T - 1) & 3]] + [(prev, 0)], name="fst"))
        pcv[T & 3] = cv
    gaps = schedule(mf, tasks, verbose=True)
    for s in sites:
        j, g = s["j"], s["task"].gap
        s["later_blk"] = {}
        for (jj, kt), idx in chain_first.items():
            if jj > j:
                for blk in ((0, 1, 2) if jj & 1 else (0, 1)):
                    if idx + blk <= g:
                        s["later_blk"].setdefault(blk, []).append(Sreg(jj, kt, blk))
        s["pend"] = [jj for jj in range(max(0, j - 3), j) if start[jj + 4] - 1 > g]
    for j in range(NS):
        mf[start[j]].mark = ("M", j)
    return linearize(mf, gaps)


def slow_path(s, name):
    c = []
    V = lambda t: c.append(valu(t))
    j = s["j"]
    c.append(I(f"L_slow_{name}:", "LAB"))
    c.append(nop(15))
    t, u, x, y = ET, ET + 1, ET + 2, ET + 3
    for blk in range(3):
        if blk not in s["blks"]:
            V(f"v_mov_b32 v{vF[blk]}, 1.0")
            continue
        s0, s1 = Sreg(j, 0, blk), Sreg(j, 1, blk)
        V(f"v_max3_f32 v{t}, v{s0}, v{s0 + 1}, v{s0 + 2}")
        V(f"v_max3_f32 v{t}, v{t}, v{s0 + 3}, v{s1}")
        V(f"v_max3_f32 v{t}, v{t}, v{s1 + 1}, v{s1 + 2}")
        V(f"v_max_f32 v{t}, v{t}, v{s1 + 3}")
        for sw in ("v_permlane32_swap_b32", "v_permlane16_swap_b32"):
            V(f"v_mov_b32 v{u}, v{t}")
            V(f"{sw} v{t}, v{u}")
            V(f"v_max_f32 v{t}, v{t}, v{u}")
        V(f"v_ceil_f32 v{t}, v{t}")
        V(f"v_max_f32 v{t}, 0, v{t}")
        V(f"v_exp_f32 v{vF[blk]}, -v{t}")
        for base in [NEGM[blk], s0, s1] + s["later_blk"].get(blk, []):
            for r in range(4):
                V(f"v_sub_f32 v{base + r}, v{base + r}, v{t}")
        for jj in s["pend"]:
            if blk == 2 and not (jj & 1):
                continue
            for r in range(4):
                p = Preg(jj, blk) + r
                V(f"v_lshlrev_b32 v{x}, 16, v{p}")
                V(f"v_and_b32 v{y}, 0xffff0000, v{p}")
                V(f"v_mul_f32 v{x}, v{x}, v{vF[blk]}")
                V(f"v_mul_f32 v{y}, v{y}, v{vF[blk]}")
                V(f"v_cvt_pk_bf16_f32 v{p}, v{x}, v{y}")
        ts = TS[j & 1][blk]
        V(f"v_mov_b32 v{ts}, 0")
        for kt in range(2):
            for pr in range(2):
                sr = Sreg(j, kt, blk) + 2 * pr
                V(f"v_exp_f32 v{x}, v{sr}")
                V(f"v_exp_f32 v{y}, v{sr + 1}")
                V(f"v_cvt_pk_bf16_f32 v{Preg(j, blk) + 2 * kt + pr}, v{x}, v{y}")
                V(f"v_add_f32 v{ts}, v{x}, v{ts}")
                V(f"v_add_f32 v{ts}, v{y}, v{ts}")
    return c


def slow_tail(names):
    c = []
    V = lambda t: c.append(valu(t))
    c.append(I("L_slow_tail:", "LAB"))
    for blk in range(3):
        V(f"v_mul_f32 v{LS[blk]}, v{LS[blk]}, v{vF[blk]}")
        for r in range(0, 64, 4):
            for k in range(4):
                c.append(AR(ET + k, OB[blk] + r + k))
            for k in range(4):
                V(f"v_mul_f32 v{ET + k}, v{ET + k}, v{vF[blk]}")
            for k in range(4):
                c.append(I(f"v_accvgpr_write_b32 a{OB[blk] + r + k}, v{ET + k}", "V", [("v", ET + k)], [("a", OB[blk] + r + k)]))
    c.append(nop(3))
    for k, nm in enumerate(names):
        c.append(salu(f"s_cmp_eq_u32 s{sSite}, {k}"))
        c.append(I(f"s_cbranch_scc1 L_ret_{nm}", "BR"))
    c.append(I(f"s_branch L_ret_{names[-1]}", "BR"))
    return c


def xsum(c, r, u):
    for sw in ("v_permlane32_swap_b32", "v_permlane16_swap_b32"):
        c += [valu(f"v_mov_b32 v{u}, v{r}"), valu(f"{sw} v{r}, v{u}"), valu(f"v_add_f32 v{r}, v{r}, v{u}")]


WFR = [("v", 32), ("v", 64), ("a", 96), ("a", 128), ("a", 160), ("a", 192), ("a", 224)]
WSL = [2, 4, 0, 2, 3, 1, 4]
FSB = 96
RI, RA, RB = [QA[0], QA[1]], [QA[2], vU[0]], [vU[1], vX]


def OFR(blk, kb):
    n = blk * 8 + kb
    return ("a", 4 * n) if n < 24 else ("v", 128 + 4 * (n - 24))


def wfrag_reads(c, o):
    off = WSL[o] * SLOT
    a = vU[2] if off < 65536 else (vU[3] if off < 131072 else vU[4])
    off &= 65535
    k, b = WFR[o]
    for kb in range(8):
        for e in range(2):
            c.append(ds_rtr((k, b + 4 * kb + 2 * e), a, off + kb * 4096 + e * 2048))


def tail_setup(c):
    S = lambda t: c.append(salu(t))
    V = lambda t: c.append(valu(t))
    srd(c, sOUT, 10, 8 * 160 * 448 * 2)
    S(f"s_mul_i32 s{sE0}, s{sID}, {EX_WG}")
    S(f"s_xor_b32 s{sT1}, s{sID}, 16")
    S(f"s_mul_i32 s{sE1}, s{sT1}, {EX_WG}")
    S(f"s_add_u32 s{sE4}, s{sE0}, s{sE6}")
    S(f"s_add_u32 s{sE5}, s{sE4}, 4096")
    S(f"s_lshl_b32 s{sT3}, s{sW}, 9")
    S(f"s_add_u32 s{sT2}, s{sT3}, {4 * SLOT}")
    S(f"s_add_u32 s{sT3}, s{sT3}, s{sE0}")
    S(f"s_add_u32 s{sT3}, s{sT3}, 40960")
    V(f"v_lshlrev_b32 v{vT2}, 3, v{vLANE}")
    V(f"v_add_u32 v{XA[0]}, s{sT2}, v{vT2}")
    V(f"v_xor_b32 v{XA[1]}, 1024, v{XA[0]}")
    S(f"s_lshl_b32 s{sT1}, s{sW}, 5")
    V(f"v_xor_b32 v{vU[2]}, s{sT1}, v{LV[0]}")
    V(f"v_add_u32 v{vU[3]}, 0x10000, v{vU[2]}")
    V(f"v_add_u32 v{vU[4]}, 0x20000, v{vU[2]}")


def merge_coef(c, nm_o, l_o, pst_, co, cp, t):
    V = lambda x: c.append(valu(x))
    V(f"v_min_f32 v{t}, v{nm_o}, v{pst_}")
    V(f"v_sub_f32 v{co}, v{t}, v{nm_o}")
    V(f"v_sub_f32 v{cp}, v{t}, v{pst_}")
    V(f"v_exp_f32 v{co}, v{co}")
    V(f"v_exp_f32 v{cp}, v{cp}")
    V(f"v_mul_f32 v{t}, v{co}, v{l_o}")
    V(f"v_fmac_f32 v{t}, v{cp}, v{pst_ + 1}")
    V(f"v_rcp_f32 v{t}, v{t}")
    V(f"v_mul_f32 v{co}, v{co}, v{t}")
    V(f"v_mul_f32 v{cp}, v{cp}, v{t}")
    V(f"v_mov_b32 v{co + 1}, v{co}")
    V(f"v_mov_b32 v{cp + 1}, v{cp}")


def pk(op, d, *src):
    return valu(f"{op} v[{d}:{d + 1}], " + ", ".join(f"v[{x}:{x + 1}]" for x in src))


def decode(c):
    S = lambda t: c.append(salu(t))
    V = lambda t: c.append(valu(t))
    S(f"s_mul_i32 s{sC1}, s{sH}, 288")
    S(f"s_mul_i32 s{sT1}, s{sW}, 72")
    S(f"s_add_u32 s{sC1}, s{sC1}, s{sT1}")
    S(f"s_lshr_b32 s{sT1}, s{sH}, 2")
    S(f"s_mul_i32 s{sT2}, s{sT1}, 18")
    S(f"s_lshl_b32 s{sT1}, s{sT1}, 5")
    S(f"s_mul_i32 s{sT3}, s{sB}, 160")
    S(f"s_lshl_b32 s{sD}, s{sSP}, 4")
    S(f"s_add_u32 s{sT3}, s{sT3}, s{sD}")
    S(f"s_mul_i32 s{sT3}, s{sT3}, 896")
    S(f"s_add_u32 s{sT3}, s{sT3}, s{sT1}")
    S(f"s_mov_b32 s{sD}, {PART_WG}")
    S(f"s_mul_i32 s{sC2}, s{sSP}, {4 * OPT['rot']}")
    for n in range(2):
        g, k, x, y = vK0, vK1, vV, vT0
        if n == 0:
            V(f"v_add_u32 v{g}, s{sC1}, v{vLANE}")
            V(f"v_lshlrev_b32 v{RI[n]}, 4, v{g}")
        else:
            V(f"v_and_b32 v{g}, 7, v{vLANE}")
            V(f"v_add_u32 v{g}, s{sC1}, v{g}")
            V(f"v_add_u32 v{g}, 64, v{g}")
            V(f"v_lshrrev_b32 v{k}, 3, v{vLANE}")
            V(f"v_mul_lo_u32 v{k}, v{k}, s{sD}")
            V(f"v_lshl_add_u32 v{RI[n]}, v{g}, 4, v{k}")
        V(f"v_lshrrev_b32 v{k}, 6, v{g}")
        V(f"v_subrev_u32 v{k}, s{sT2}, v{k}")
        V(f"v_and_b32 v{x}, 15, v{g}")
        V(f"v_mul_u32_u24 v{x}, 896, v{x}")
        V(f"v_bfe_u32 v{y}, v{g}, 4, 2")
        V(f"v_lshl_add_u32 v{x}, v{y}, 3, v{x}")
        V(f"v_add_u32 v{x}, s{sT3}, v{x}")
        z = VA[1]
        V(f"v_lshrrev_b32 v{y}, 1, v{k}")
        V(f"v_lshlrev_b32 v{g}, 1, v{k}")
        V(f"v_subrev_u32 v{g}, 28, v{g}")
        V(f"v_cmp_gt_u32 vcc, 14, v{k}")
        V(f"v_cndmask_b32 v{y}, v{g}, v{y}, vcc")
        V(f"v_add_u32 v{g}, 1, v{y}")
        V(f"v_cndmask_b32 v{z}, v{g}, v{y}, vcc")
        V(f"v_and_b32 v{g}, 1, v{k}")
        V(f"v_mul_u32_u24 v{g}, {64 * 896}, v{g}")
        V(f"v_mov_b32 v{RB[n]}, {128 * 896}")
        V(f"v_cndmask_b32 v{g}, v{RB[n]}, v{g}, vcc")
        V(f"v_add_u32 v{RA[n]}, v{x}, v{g}")
        V(f"v_mov_b32 v{g}, {32 * 896}")
        V(f"v_cndmask_b32 v{g}, 0, v{g}, vcc")
        V(f"v_add_u32 v{RB[n]}, v{RA[n]}, v{g}")
        for pz, dst in ((y, RA[n]), (z, RB[n])):
            V(f"v_add_u32 v{pz}, s{sC2}, v{pz}")
            V(f"v_subrev_u32 v{g}, 7, v{pz}")
            V(f"v_min_u32 v{pz}, v{pz}, v{g}")
            V(f"v_lshl_add_u32 v{dst}, v{pz}, 7, v{dst}")
        V(f"v_mov_b32 v{g}, {OOB:#x}")
        V(f"v_cmp_eq_u32 vcc, 17, v{k}")
        V(f"v_cndmask_b32 v{RB[n]}, v{RB[n]}, v{g}, vcc")
        if n:
            V(f"v_cmp_gt_u32 vcc, 8, v{vLANE}")
            for r in (RA[1], RB[1]):
                V(f"v_cndmask_b32 v{r}, v{g}, v{r}, vcc")


def tail():
    c = []
    S = lambda t: c.append(salu(t))
    V = lambda t: c.append(valu(t))
    W = lambda t: c.append(I(f"s_waitcnt {t}", "W"))
    BAR = lambda: c.append(I("s_barrier", "B"))
    HK, OWN, HSB, PH = 192, 128, 160, 224
    hs, fs_p, hs_p, own_nm = 246, 240, 242, 244
    c += pst()
    V(f"v_and_b32 v{vT0}, 7, v{vLANE}")
    V(f"v_lshlrev_b32 v{vT0}, 2, v{vT0}")
    S(f"s_lshl_b32 s{sC1}, s{sB}, 5")
    S(f"s_mov_b32 s{sC2}, 0x01010101")
    c.append(bload(1, ("v", vT1), vT0, sDBG, sC1, 0, " sc0 sc1"))
    V(f"v_add_u32 v{KA[0]}, s{sE6}, v{vST}")
    V(f"v_xor_b32 v{KA[1]}, 16384, v{KA[0]}")
    V(f"v_mov_b32 v{hs}, v{NEGM[2]}")
    V(f"v_mov_b32 v{hs + 1}, v{LS[2]}")
    V(f"v_mov_b32 v{own_nm}, v{NEGM[0]}")
    c.append(ds_w64(XA[0], ("v", hs), 0))
    S(f"s_cmp_eq_u32 s{sXW}, 0")
    c.append(I("s_cbranch_scc1 L_h0", "BR"))
    for half, lab, nxt in ((1, None, "L_h1"), (0, "L_h0", None)):
        if lab:
            c.append(I(f"{lab}:", "LAB"))
        for T in range(8):
            i = ds_w128(KA[0], ("a", OB[2] + 32 * (1 - half) + 4 * T), SLOT + T * 1024)
            if half == 1:
                i.kind = "X"
            c.append(i)
        for r in range(32):
            c.append(AR(HK + r, OB[2] + 32 * half + r))
        if nxt:
            c.append(I(f"s_branch {nxt}", "BR"))
    c.append(I("L_h1:", "LAB"))
    S(f"s_lshl_b32 s{sT0}, s{sXW}, 12")
    S(f"s_add_u32 s{sT0}, s{sT0}, 32768")
    S(f"s_lshl_b32 s{sT1}, s{sXW}, 9")
    S(f"s_add_u32 s{sT1}, s{sT1}, 43008")
    S(f"s_cmp_eq_u32 s{sHW}, 1")
    S(f"s_cselect_b32 s{sT2}, s{sE0}, {OOB:#x}")
    S(f"s_cselect_b32 s{sT3}, {OOB:#x}, s{sE1}")
    S(f"s_add_u32 s{sE2}, s{sT3}, s{sT0}")
    S(f"s_add_u32 s{sE3}, s{sT3}, s{sT1}")
    S(f"s_add_u32 s{sE4}, s{sT2}, s{sT0}")
    S(f"s_add_u32 s{sE5}, s{sT2}, s{sT1}")
    W("lgkmcnt(0)")
    BAR()
    c += pst()
    c.append(ds_r64(("v", hs_p), XA[1], 0))
    for T in range(8):
        c.append(ds_r128(("v", OWN + 4 * T), KA[1], SLOT + T * 1024))
    nm, a_o, a_p = 253, 248, 236
    V(f"v_min_f32 v{nm}, v{hs}, v{hs_p}")
    V(f"v_sub_f32 v{a_o}, v{nm}, v{hs}")
    V(f"v_sub_f32 v{a_p}, v{nm}, v{hs_p}")
    V(f"v_exp_f32 v{a_o}, v{a_o}")
    V(f"v_exp_f32 v{a_p}, v{a_p}")
    V(f"v_mov_b32 v{hs}, v{nm}")
    V(f"v_mul_f32 v{hs + 1}, v{a_o}, v{hs + 1}")
    V(f"v_fmac_f32 v{hs + 1}, v{a_p}, v{hs_p + 1}")
    V(f"v_mov_b32 v{a_o + 1}, v{a_o}")
    V(f"v_mov_b32 v{a_p + 1}, v{a_p}")
    c.append(bstore(2, ("v", hs), vT2, sWS, sE5, 0, STF))
    for r in range(0, 32, 2):
        c.append(pk("v_pk_mul_f32", HK + r, HK + r, a_o))
    for T in range(8):
        for r in (0, 2):
            c.append(pk("v_pk_fma_f32", HK + 4 * T + r, OWN + 4 * T + r, a_p, HK + 4 * T + r))
        V(f"v_cvt_pk_bf16_f32 v{HSB + 2 * T}, v{HK + 4 * T}, v{HK + 4 * T + 1}")
        V(f"v_cvt_pk_bf16_f32 v{HSB + 2 * T + 1}, v{HK + 4 * T + 2}, v{HK + 4 * T + 3}")
        if T & 1:
            c.append(bstore(4, ("v", HSB + 2 * (T - 1)), vST, sWS, sE4, (T >> 1) * 1024, STF))
    c += pst()
    c += [AR(OWN + r, OB[0] + r) for r in range(64)]
    c += pst()
    W("vmcnt(0)")
    S(f"s_mov_b32 s{sCnt}, 0")
    c.append(I("L_an:", "LAB"))
    V(f"v_cmp_ne_u32 vcc, s{sC2}, v{vT1}")
    S(f"s_add_u32 s{sCnt}, s{sCnt}, 1")
    c.append(I("s_cbranch_vccz L_and", "BR", [("vcc", 0)]))
    c.append(raw(f"buffer_load_dword v{vT1}, v{vT0}, s[{sDBG}:{sDBG + 3}], s{sC1} offen sc0 sc1", "X"))
    c.append(raw("s_waitcnt vmcnt(0)", "X"))
    S(f"s_cmp_lt_u32 s{sCnt}, 2000000")
    c.append(I("s_cbranch_scc1 L_an", "BR"))
    c.append(I("L_and:", "LAB"))
    S(f"s_xor_b32 s{sT0}, s{sIN}, {16 << ISH}")
    S(f"s_lshl_b32 s{sT1}, s{sW}, 2")
    S(f"s_add_u32 s{sT0}, s{sT0}, s{sT1}")
    V(f"v_mov_b32 v{vT0}, 1")
    V(f"v_mov_b32 v{vT1}, 0")
    c.append(bstore(1, ("v", vT0), vT1, sWS, sT0, 64, FLF))
    BAR()
    c += pst()
    wfrag_reads(c, 2)
    wfrag_reads(c, 3)
    decode(c)
    S(f"s_add_u32 s{sT1}, s{sE1}, s{sE6}")
    S(f"s_add_u32 s{sT2}, s{sT1}, 4096")
    S(f"s_lshl_b32 s{sT3}, s{sW}, 9")
    S(f"s_add_u32 s{sT3}, s{sT3}, s{sE1}")
    S(f"s_add_u32 s{sT3}, s{sT3}, 40960")
    S(f"s_lshl_b32 s{sT0}, s{sXW}, 3")
    S(f"s_add_u32 s{sT0}, s{sT0}, s{sIN}")
    c += pst()
    S(f"s_mov_b32 s{sCnt}, 0")
    c.append(I("L_p1:", "LAB"))
    if OPT.get("slp"):
        c.append(raw(f"s_sleep {OPT['slp']}"))
    c.append(raw(f"buffer_load_dwordx2 v[{fs_p}:{fs_p + 1}], v{vT1}, s[{sWS}:{sWS + 3}], s{sT0} offen offset:64{FLF}", "X"))
    S(f"s_add_u32 s{sCnt}, s{sCnt}, 1")
    c.append(raw("s_waitcnt vmcnt(0)", "X"))
    V(f"v_and_b32 v{fs_p}, v{fs_p}, v{fs_p + 1}")
    S(f"s_cmp_gt_u32 s{sCnt}, 2000000")
    V(f"v_readfirstlane_b32 s{sD}, v{fs_p}")
    c.append(I("s_cbranch_scc1 L_p1d", "BR"))
    S(f"s_cmp_eq_u32 s{sD}, 0")
    c.append(I("s_cbranch_scc1 L_p1", "BR"))
    c.append(I("L_p1d:", "LAB"))
    c += pst()
    c.append(bload(2, ("v", fs_p), vT2, sWS, sT3, 0, LDF))
    c.append(bload(2, ("v", hs_p), vT2, sWS, sE3, 0, LDF))
    for kb in range(8):
        c.append(bload(4, ("v", FSB + 4 * kb), vST, sWS, sT1 if kb < 4 else sT2, (kb & 3) * 1024, LDF))
    for kb in range(4):
        c.append(bload(4, ("v", PH + 4 * kb), vST, sWS, sE2, kb * 1024, LDF))
    W("lgkmcnt(0)")
    BAR()
    S(f"s_lshl_b32 s{sT0}, s{sXW}, 12")
    S(f"s_lshl_b32 s{sT1}, s{sHW}, 13")
    S(f"s_add_u32 s{sT0}, s{sT0}, s{sT1}")
    S(f"s_add_u32 s{sT0}, s{sT0}, {2 * SLOT}")
    V(f"v_add_u32 v{KA[1]}, s{sT0}, v{vST}")
    S(f"s_mul_i32 s{sE0}, s{sID}, {PART_WG}")
    S(f"s_mul_i32 s{sT0}, s{sW}, {18 * 1024}")
    S(f"s_add_u32 s{sE0}, s{sE0}, s{sT0}")
    S(f"s_add_u32 s{sE0}, s{sE0}, {PART0}")
    S(f"s_add_u32 s{sE1}, s{sE0}, {14 * 1024}")
    V(f"v_add_u32 v{XA[0]}, {2 * SLOT}, v{vST}")
    W("vmcnt(12)")
    c += pst()
    co, cp, ch, cq = 248, 254, vK0, VA[0]
    merge_coef(c, own_nm, LS[0], fs_p, co, cp, 253)
    merge_coef(c, hs, hs + 1, hs_p, ch, cq, 253)
    for r in range(0, 64, 2):
        c.append(pk("v_pk_mul_f32", OWN + r, OWN + r, co))
    for r in range(0, 32, 2):
        c.append(pk("v_pk_mul_f32", HK + r, HK + r, ch))
    u = [240, 242]
    dm = [x for o in (4, 5, 6) for x in wo_dma(o, WSL[o])[0]]
    left, nd = 12, 0
    for own, pay, n, cc, addr in ((OWN, FSB, 8, cp, KA[0]), (HK, PH, 4, cq, KA[1])):
        for kb in range(n):
            left -= 1
            W(f"vmcnt({left + nd})")
            for r in range(4):
                p, o, t = pay + 4 * kb + r, own + 8 * kb + 2 * r, u[r & 1]
                V(f"v_lshlrev_b32 v{t}, 16, v{p}")
                V(f"v_and_b32 v{t + 1}, 0xffff0000, v{p}")
                c.append(pk("v_pk_fma_f32", o, t, cc, o))
                V(f"v_cvt_pk_bf16_f32 v{p}, v{o}, v{o + 1}")
                if r & 1:
                    pre, d = dm.pop(0)
                    c += pre + [d]
                    nd += 1
            c.append(ds_w128(addr, ("v", pay + 4 * kb), kb * 1024))
    assert not dm
    W("lgkmcnt(0)")
    BAR()
    return c


def o_phase():
    mf, tasks = [], []
    ACC = [192, 212]
    PK = [[232, 236], [240, 244]]
    HST = 248
    prev = None
    for kb in range(8):
        for blk in range(5):
            c0 = kb * 5 + blk
            i = ds_r128(OFR(blk, kb), vST, blk * 8192 + kb * 1024) if blk < 4 else ds_r128(OFR(blk, kb), XA[0], kb * 1024)
            prev = Task(i, "L", rel=-1, dl=-1 if c0 < 10 else c0 - 8, deps=[(prev, 0)] if prev else [], name="ord")
            tasks.append(prev)
    lb = Task(wait_bar([("WO", 6)], None), "BAR", rel=OPT.get("lb", 70), deps=[(prev, 0)], name="latebar")
    tasks.append(lb)
    prev = lb
    for o in (4, 5, 6):
        cc = []
        wfrag_reads(cc, o)
        for k, i in enumerate(cc):
            prev = Task(i, "L", dl=40 * o + (k >> 1) * 5 - 8, deps=[(prev, 0)], name="wrd")
            tasks.append(prev)
    prev_st, prev_inc = {}, None
    for o in range(7):
        p = o & 1
        firstm = len(mf)
        for kb in range(8):
            for blk in range(5):
                d = ("v", ACC[p] + 4 * blk)
                mf.append(mfma(d, (WFR[o][0], WFR[o][1] + 4 * kb), OFR(blk, kb), 0 if kb == 0 else d))
        dl = firstm + 80 - 3
        cvs = {}
        for blk in range(5):
            for h in range(2):
                dst, key = (HST + 2 * p + h, "H") if blk == 4 else (PK[p][blk >> 1] + 2 * (blk & 1) + h, (p, blk >> 1))
                s = ACC[p] + 4 * blk + 2 * h
                t = Task(valu(f"v_cvt_pk_bf16_f32 v{dst}, v{s}, v{s + 1}"), "V", rel=firstm + 35 + blk + MLAT, dl=dl,
                         deps=[(prev_st[key], 2)] if key in prev_st else [], name="cvt")
                tasks.append(t)
                cvs.setdefault(key, []).append(t)
        sts = []
        for pr in range(2):
            st = Task(bstore(4, ("v", PK[p][pr]), vST, sWS, sE0, p * 2048 + pr * 1024, STF), "D",
                      deps=[(t, 1) for t in cvs[(p, pr)]] + ([(prev_inc, 0)] if prev_inc else []), name="st")
            tasks.append(st)
            prev_st[(p, pr)] = st
            sts.append(st)
        if p == 0:
            hcv, sts0 = cvs["H"], sts
        if p == 1 or o == 6:
            st = Task(bstore(4, ("v", HST), vST, sWS, sE1, (o >> 1) * 1024, STF), "D", deps=[(t, 1) for t in hcv + cvs["H"]], name="stH")
            tasks.append(st)
            prev_st["H"] = st
            prev_inc = Task(salu(f"s_add_u32 s{sE0}, s{sE0}, 4096"), "S", deps=[(t, 0) for t in sts + sts0], name="inc")
            tasks.append(prev_inc)
    gaps = schedule(mf, tasks, verbose=True)
    for o in range(7):
        mf[40 * o].mark = ("N", o)
    return linearize(mf, gaps)


def final():
    c = []
    S = lambda t: c.append(salu(t))
    V = lambda t: c.append(valu(t))
    W = lambda t: c.append(I(f"s_waitcnt {t}", "W"))
    S(f"s_and_b32 s{sT0}, s{sID}, 0xf0")
    S(f"s_mul_i32 s{sE2}, s{sT0}, {PART_WG}")
    S(f"s_add_u32 s{sE2}, s{sE2}, {PART0}")
    S(f"s_add_u32 s{sE3}, s{sE2}, {8 * PART_WG}")
    S(f"s_lshl_b32 s{sT1}, s{sW}, 2")
    S(f"s_add_u32 s{sT1}, s{sT1}, s{sT0}")
    S(f"s_lshl_b32 s{sT1}, s{sT1}, {ISH}")
    S(f"s_lshl_b32 s{sT2}, s{sH}, 2")
    S(f"s_add_u32 s{sT1}, s{sT1}, s{sT2}")
    S(f"s_add_u32 s{sT1}, s{sT1}, {INBOX}")
    V(f"v_and_b32 v{vK0}, 3, v{vLANE}")
    V(f"v_lshlrev_b32 v{vK0}, {ISH}, v{vK0}")
    V(f"v_and_b32 v{vK1}, 15, v{vLANE}")
    V(f"v_lshlrev_b32 v{vK1}, 2, v{vK1}")
    V(f"v_mov_b32 v{vT0}, 1")
    c += pst()
    W("vmcnt(0)")
    c += pst()
    c.append(bstore(1, ("v", vT0), vK0, sWS, sT1, 0, FLF))
    S(f"s_mov_b32 s{sCnt}, 0")
    c.append(I("L_p2:", "LAB"))
    if OPT.get("slp"):
        c.append(raw(f"s_sleep {OPT['slp']}"))
    c.append(raw(f"buffer_load_dword v{vV}, v{vK1}, s[{sWS}:{sWS + 3}], s{sIN} offen{FLF}", "X"))
    S(f"s_add_u32 s{sCnt}, s{sCnt}, 1")
    c.append(raw("s_waitcnt vmcnt(0)", "X"))
    V(f"v_cmp_eq_u32 vcc, 0, v{vV}")
    S(f"s_cmp_gt_u32 s{sCnt}, 2000000")
    c.append(I("s_cbranch_scc1 L_p2d", "BR"))
    c.append(I("s_cbranch_vccnz L_p2", "BR", [("vcc", 0)]))
    c.append(I("L_p2d:", "LAB"))
    c += stamp(7) + pst()
    c.append(bload(4, ("v", 96), RI[1], sWS, sE2, 0, LDF))
    c.append(bload(4, ("v", 100), RI[1], sWS, sE3, 0, LDF))
    for p in range(16):
        c.append(bload(4, ("v", 32 + p * 4), RI[0], sWS, sE2, 0, LDF))
        S(f"s_add_u32 s{sE2}, s{sE2}, {PART_WG}")
    A0, A1, U = 192, 200, [208, 210]
    c += pst()

    def acc(a, x, first):
        for r in range(4):
            t = a + 2 * r if first else U[r & 1]
            V(f"v_lshlrev_b32 v{t}, 16, v{x + r}")
            V(f"v_and_b32 v{t + 1}, 0xffff0000, v{x + r}")
            if not first:
                c.append(pk("v_pk_add_f32", a + 2 * r, a + 2 * r, t))

    W("vmcnt(16)")
    c += pst()
    acc(A1, 96, True)
    acc(A1, 100, False)
    for sw in ("v_permlane32_swap_b32", "v_permlane16_swap_b32"):
        for r in range(8):
            V(f"v_mov_b32 v{212 + r}, v{A1 + r}")
        for r in range(8):
            V(f"{sw} v{A1 + r}, v{212 + r}")
        for r in range(0, 8, 2):
            c.append(pk("v_pk_add_f32", A1 + r, A1 + r, 212 + r))
    c.append(nop(1))
    for r in range(8):
        c.append(I(f"v_add_f32_dpp v{A1 + r}, v{A1 + r}, v{A1 + r} row_ror:8 row_mask:0xf bank_mask:0xf", "V", [("v", A1 + r)], [("v", A1 + r)]))
    for p in range(16):
        W(f"vmcnt({15 - p})")
        acc(A0, 32 + 4 * p, p == 0)
    for n, a in enumerate((A0, A1)):
        for r in range(4):
            V(f"v_cvt_pk_bf16_f32 v{220 + n * 4 + r}, v{a + 2 * r}, v{a + 2 * r + 1}")
        c.append(bstore(2, ("v", 220 + n * 4), RA[n], sOUT, "0", 0))
        c.append(bstore(2, ("v", 220 + n * 4 + 2), RB[n], sOUT, "0", 0))
    c += pst() + pst()
    return c


def norm(ins):
    t = ins.text
    if "@" in t:
        a, b = t.split("@")
        if b.startswith("CODE"):
            return t
        return f"{a}@{int(b.rstrip(':')) % 4}"
    return t


def fold(code):
    segs, cur, keys, key = [], [], [], None
    for ins in code:
        if ins.kind == "M" and ins.mark is not None:
            segs.append(cur)
            keys.append(key)
            cur, key = [], ins.mark
        if ins.kind == "LAB" and ins.tag and ins.tag[0] == "cut":
            segs.append(cur)
            keys.append(key)
            cur, key = [], None
            continue
        cur.append(ins)
    segs.append(cur)
    keys.append(key)
    print("; est cycles/seg:", [gap_cost(s) for s in segs])
    txt = [tuple(norm(i) for i in s) for s in segs]
    out, i, nloop, n = [], 0, 0, len(segs)
    sitekey = lambda s: (s["j"] % 4, tuple(sorted((b, tuple(v)) for b, v in s["later_blk"].items())), tuple(x % 4 for x in s["pend"]), s["blks"])
    sinfo = {s["j"]: s for s in sites}
    sites_in = lambda seg: [sitekey(sinfo[x.tag[1]]) for x in seg if x.kind == "BR" and x.tag and x.tag[0] == "site"]
    while i < n:
        k = 1
        if keys[i] is not None:
            p = {"M": 4, "Q": 2}.get(keys[i][0], 1)
            while i + (k + 1) * p <= n and all(keys[i + k * p + r] is not None and txt[i + k * p + r] == txt[i + r] and
                                               sites_in(segs[i + k * p + r]) == sites_in(segs[i + r]) for r in range(p)):
                k += 1
        if k >= 2:
            out.append(salu(f"s_mov_b32 s{sCnt}, {k}"))
            out.append(I(f"L_loop{nloop}:", "LAB"))
            for r in range(p):
                out += segs[i + r]
            out += [salu(f"s_sub_u32 s{sCnt}, s{sCnt}, 1"), salu(f"s_cmp_lg_u32 s{sCnt}, 0"), I(f"s_cbranch_scc1 L_loop{nloop}", "BR")]
            nloop += 1
            i += p * k
        else:
            out += segs[i]
            i += 1
    return out


def cut():
    return I("", "LAB", tag=("cut",))


def build():
    code = prologue() + stamp(1) + q_phase() + [cut()] + stamp(2) + q_finish() + stamp(3) + main_phase() + [cut()] + stamp(4)
    code += tail() + stamp(6) + o_phase() + [cut()] + final()
    if STAMP:
        nc = []
        for ins in code:
            nc.append(ins)
            if ins.kind == "M" and ins.mark is not None:
                if ins.mark[0] == "N" and ins.mark[1] not in (0,):
                    continue
                nc += pst()[1:]
        code = [raw("s_mov_b64 s[80:81], 1"), raw("s_mov_b32 s96, 0")] + nc
    code = insert_lgkm_waits(code, age=OPT["age"])
    code = resolve_vm_waits(code)
    code, nf = check_hazards(code)
    code = fold(code)
    names, slow = [], []
    sinfo = {s["j"]: s for s in sites}
    for ins in code:
        ins.text = ins.text.replace("@CODEMAX", str(OPT.get("codemax", 45056))).replace("@", "")
        if ins.kind == "BR" and ins.tag and ins.tag[0] == "site":
            j = ins.tag[1]
            sp = slow_path(sinfo[j], str(j)) + [salu(f"s_mov_b32 s{sSite}, {len(names)}"), I("s_branch L_slow_tail", "BR")]
            names.append(str(j))
            slow += check_hazards(sp)[0]
    slow += check_hazards(slow_tail(names))[0]
    fin = []
    if STAMP:
        fin.append(I("s_waitcnt vmcnt(0) lgkmcnt(0)", "W"))
        fin += [raw(f"s_memtime s[100:101]"), raw(f"s_memrealtime s[96:97]"), I("s_waitcnt lgkmcnt(0)", "W")]
        for t in (f"s_lshl_b32 s{sT0}, s2, 2", f"s_add_u32 s{sT0}, s{sT0}, s{sW}", f"s_lshl_b32 s{sT0}, s{sT0}, 6",
                  f"s_lshl_b32 s{sT1}, s{sT0}, 2", f"s_add_u32 s{sT0}, s{sT0}, {128 << 20}", f"s_add_u32 s{sT1}, s{sT1}, {132 << 20}"):
            fin.append(salu(t))
        fin.append(valu(f"v_mov_b32 v{vT0}, 0"))
        for k in range(8):
            fin.append(valu(f"v_mov_b32 v{128 + k}, s{84 + 2 * min(k, 1)}"))
        fin += [valu("v_mov_b32 v136, s100"), valu("v_mov_b32 v137, s96"), valu("v_mov_b32 v138, s98")]
        for k in range(0, 12, 4):
            fin.append(bstore(4, ("v", 128 + k), vT0, sWS, sT0, k * 4))
        fin.append(valu(f"v_lshlrev_b32 v{vT1}, 2, v{vLANE}"))
        fin.append(bstore(1, ("v", 0), vT1, sWS, sT1, 0))
    NAME = "standalone__gqa_block_cached__near_ridge_kernel"
    hdr = open("standalone__gqa_block_cached__near_ridge.s.ref").read().split("; Override launch")[0]
    L = [hdr.rstrip()]
    A = L.append
    A("; @launch grid=(256,1,1) block=(256,1,1) lds=163840")
    A('.amdgcn_target "amdgcn-amd-amdhsa--gfx950"')
    A(".text")
    A(f".globl {NAME}")
    A(".p2align 8")
    A(f".type {NAME},@function")
    A(f"{NAME}:")
    A("s_cmp_ge_u32 s2, 256")
    A("s_cbranch_scc1 L_end")
    L += [i.text for i in code if i.text]
    L += [i.text for i in fin]
    A("L_end:")
    A("s_endpgm")
    L += [i.text for i in slow]
    A('.section .rodata,"a"')
    A(".p2align 6")
    A(f".amdhsa_kernel {NAME}")
    for t in ("next_free_vgpr 512", "next_free_sgpr 102", "accum_offset 256", "group_segment_fixed_size 0", "kernarg_size 64",
              "user_sgpr_count 2", "user_sgpr_kernarg_segment_ptr 1", "system_sgpr_workgroup_id_x 1"):
        A(f"  .amdhsa_{t}")
    A(".end_amdhsa_kernel")
    return "\n".join(L) + "\n"


if __name__ == "__main__":
    out = [a for a in sys.argv[1:] if a.endswith(".s")]
    open(out[0] if out else "k2.s", "w").write(build())
```

```python
import re


def R(kind, base, n=1):
    return [(kind, base + i) for i in range(n)]


def rtxt(kind, base, n):
    return f"{kind}{base}" if n == 1 else f"{kind}[{base}:{base + n - 1}]"


class I:
    __slots__ = ("text", "kind", "rd", "wr", "srcc", "tag", "mark")

    def __init__(self, text, kind, rd=(), wr=(), srcc=(), tag=None):
        self.text, self.kind, self.rd, self.wr, self.srcc, self.tag = text, kind, list(rd), list(wr), list(srcc), tag
        self.mark = None

    def __repr__(self):
        return self.text


def mfma(d, a, b, c):
    ct = "0" if c == 0 else rtxt(c[0], c[1], 4)
    rd = R(a[0], a[1], 4) + R(b[0], b[1], 4)
    sc = [] if c == 0 else R(c[0], c[1], 4)
    return I(f"v_mfma_f32_16x16x32_bf16 {rtxt(d[0], d[1], 4)}, {rtxt(a[0], a[1], 4)}, {rtxt(b[0], b[1], 4)}, {ct}",
             "M", rd + sc, R(d[0], d[1], 4), sc)


def ds_r128(d, addr, off):
    return I(f"ds_read_b128 {rtxt(d[0], d[1], 4)}, v{addr} offset:{off}", "L", [("v", addr)], R(d[0], d[1], 4))


def ds_rtr(d, addr, off):
    return I(f"ds_read_b64_tr_b16 {rtxt(d[0], d[1], 2)}, v{addr} offset:{off}", "L", [("v", addr)], R(d[0], d[1], 2))


def ds_r64(d, addr, off):
    return I(f"ds_read_b64 {rtxt(d[0], d[1], 2)}, v{addr} offset:{off}", "L", [("v", addr)], R(d[0], d[1], 2))


def ds_w128(addr, s, off):
    return I(f"ds_write_b128 v{addr}, {rtxt(s[0], s[1], 4)} offset:{off}", "LW", [("v", addr)] + R(s[0], s[1], 4), [])


def ds_w64(addr, s, off):
    return I(f"ds_write_b64 v{addr}, {rtxt(s[0], s[1], 2)} offset:{off}", "LW", [("v", addr)] + R(s[0], s[1], 2), [])


_opnd = re.compile(r"^-?(?:abs\()?([vsa])(\d+)\)?$")
_opndr = re.compile(r"^([vsa])\[(\d+):(\d+)\]$")


def _regs_of(tok):
    tok = tok.strip()
    m = _opnd.match(tok)
    if m:
        return [(m.group(1), int(m.group(2)))]
    m = _opndr.match(tok)
    if m:
        return R(m.group(1), int(m.group(2)), int(m.group(3)) - int(m.group(2)) + 1)
    if tok in ("vcc", "m0", "exec"):
        return [(tok, 0)]
    return []


TRANS = ("v_exp_f32", "v_rcp_f32", "v_log_f32", "v_rsq_f32", "v_sqrt_f32")


def valu(text):
    op, rest = text.split(None, 1)
    toks = [t for t in rest.split(",")]
    dst = _regs_of(toks[0])
    src = [r for t in toks[1:] for r in _regs_of(t.split()[0] if t.split() else t)]
    if op.startswith("v_permlane") or op.startswith("v_swap"):
        return I(text, "P", dst + src, dst + src)
    if op.startswith("v_fmac") or op.startswith("v_pk_fmac"):
        src = src + dst
    if op.startswith("v_cndmask") and len(toks) == 3:
        src = src + [("vcc", 0)]
    return I(text, "E" if op in TRANS else "V", src, dst)


def salu(text):
    op, *rest = text.split(None, 1)
    toks = rest[0].split(",") if rest else []
    if op.startswith("s_cmp"):
        return I(text, "S", [r for t in toks for r in _regs_of(t)], [("scc", 0)])
    dst = _regs_of(toks[0]) if toks else []
    src = [r for t in toks[1:] for r in _regs_of(t)]
    if op.startswith("s_cselect") or op.startswith("s_addc"):
        src.append(("scc", 0))
    if not op.startswith("s_mov") and not op.startswith("s_cselect") and not op.startswith("s_mul"):
        dst = dst + [("scc", 0)]
    return I(text, "S", src, dst)


def dma(voff, srd, soff, imm, nt=False, tag=None):
    so = f"s{soff}" if isinstance(soff, int) else soff
    t = f"buffer_load_dwordx4 v{voff}, s[{srd}:{srd + 3}], {so} offen offset:{imm}" + (" nt" if nt else "") + " lds"
    rd = [("v", voff), ("m0", 0)] + R("s", srd, 4) + ([("s", soff)] if isinstance(soff, int) else [])
    return I(t, "D", rd, [], tag=tag)


def bstore(n, src, voff, srd, soff, imm, flags="", tag=None):
    so = f"s{soff}" if isinstance(soff, int) else soff
    suf = {1: "dword", 2: "dwordx2", 4: "dwordx4"}[n]
    t = f"buffer_store_{suf} {rtxt(src[0], src[1], n)}, v{voff}, s[{srd}:{srd + 3}], {so} offen offset:{imm}{flags}"
    rd = [("v", voff)] + R(src[0], src[1], n) + R("s", srd, 4) + ([("s", soff)] if isinstance(soff, int) else [])
    return I(t, "D", rd, [], tag="store")


def nop(n):
    return I(f"s_nop {n}", "N")


def raw(text, kind="S"):
    return I(text, kind)


SOPT = dict(dshare=1, barshare=1)


class Task:
    __slots__ = ("ins", "cls", "rel", "dl", "deps", "gap", "prio", "name", "seq")
    _n = 0

    def __init__(self, ins, cls, rel=0, dl=10 ** 9, deps=(), prio=0, name=""):
        self.ins = ins if isinstance(ins, list) else [ins]
        self.cls, self.rel, self.dl, self.deps, self.prio, self.name = cls, rel, dl, list(deps), prio, name
        self.gap = None
        Task._n += 1
        self.seq = Task._n


def schedule(mf, tasks, pre_gap=True, verbose=False):
    n = len(mf)
    order = sorted(tasks, key=lambda t: -t.seq)
    changed = True
    while changed:
        changed = False
        for t in order:
            for d, delta in t.deps:
                if t.dl - delta < d.dl:
                    d.dl = t.dl - delta
                    changed = True
    pending = sorted(tasks, key=lambda t: (t.rel, t.seq))
    gaps = []
    over = 0

    def ready(t, g):
        if t.rel > g:
            return False
        for d, delta in t.deps:
            if d.gap is None or d.gap + delta > g:
                return False
        return True

    for g in range(-1, n):
        placed = []

        def pick(classes, maxdl=None):
            c = [t for t in pending if t.cls in classes and ready(t, g) and (maxdl is None or t.dl <= maxdl)]
            if not c:
                return None
            return min(c, key=lambda t: (t.dl - t.prio, t.seq))

        def put(t):
            t.gap = g
            pending.remove(t)
            placed.append(t)

        if g == -1:
            while True:
                t = pick(("L", "V", "E", "S", "D", "BAR"), maxdl=-1)
                if t is None:
                    break
                put(t)
            gaps.append(placed)
            continue
        tb = pick(("BAR",))
        tl = pick(("L",))
        te = pick(("E", "D"))
        if tb is not None:
            put(tb)
            t = pick(("V", "S")) if SOPT["barshare"] else None
            if t is not None:
                put(t)
        elif tl is not None and not (te is not None and te.dl <= g and tl.dl > g):
            put(tl)
            t = pick(("V",)) or pick(("S",))
            ts = pick(("S",))
            if ts is not None and t is not None and ts.dl < t.dl:
                t = ts
            if t is not None:
                put(t)
        elif te is not None:
            if te.cls == "E":
                ts = pick(("S",))
                if ts is not None:
                    put(ts)
                put(te)
            else:
                if SOPT["dshare"] == 2:
                    ts = pick(("S",))
                    if ts is not None:
                        put(ts)
                put(te)
                t = pick(("V", "S")) if SOPT["dshare"] == 1 else (pick(("S",)) if SOPT["dshare"] == 3 else None)
                if t is not None:
                    put(t)
        else:
            ts = pick(("S",))
            if ts is not None:
                put(ts)
            k = 0
            while k < 2:
                t = pick(("V",)) or pick(("S",))
                if t is None:
                    break
                put(t)
                k += 1
        while True:
            t = pick(("L", "V", "E", "S", "D", "BAR"), maxdl=g)
            if t is None:
                break
            put(t)
            over += 1
        for t in pending:
            if t.dl <= g:
                raise RuntimeError(f"deadline miss: {t.name} {t.ins} dl={t.dl} gap={g} rel={t.rel} deps={[(d.name, d.gap, de) for d, de in t.deps]}")
        gaps.append(placed)
    left = sorted(pending, key=lambda t: t.seq)
    for t in left:
        t.gap = n
    gaps.append(left)
    if verbose:
        print(f"; schedule: {n} mfma, {len(tasks)} tasks, forced {over}, leftover {len(left)}")
    return gaps


def linearize(mf, gaps):
    out = []
    for t in gaps[0]:
        out += t.ins
    for g, m in enumerate(mf):
        out.append(m)
        for t in gaps[g + 1]:
            out += t.ins
    for t in gaps[len(mf) + 1]:
        out += t.ins
    return out


def insert_lgkm_waits(code, age=7, lookback=6):
    out = list(code)
    i = 0
    lds = []
    covered = 0
    pend = {}
    mcount_at = {}
    mcount = 0
    res = []

    def good_slot(pos):
        j = pos + 1
        if j < len(res) and res[j].kind in ("S", "W", "B", "BR", "LAB", "N"):
            return False
        while j < len(res) and res[j].kind != "M":
            if res[j].kind in ("L", "LW", "D", "B", "LAB", "BR"):
                return False
            j += 1
        return True

    for ins in out:
        need = -1
        if ins.kind == "W" and ins.tag and ins.tag[0] == "resolve":
            key = ins.tag[2]
            k = -1
            for idx, l in enumerate(lds):
                if key is not None and l.tag == key:
                    k = idx
            if k >= covered:
                nn = len(lds) - 1 - k
                ins.mark = min(nn, 15)
                covered = max(covered, len(lds) - ins.mark)
            else:
                ins.mark = None
            res.append(ins)
            continue
        if ins.kind == "W":
            m = re.search(r"lgkmcnt\((\d+)\)", ins.text)
            if m:
                covered = max(covered, len(lds) - int(m.group(1)))
            res.append(ins)
            continue
        for r in ins.rd + ins.wr:
            if r in pend and pend[r] >= covered:
                need = max(need, pend[r])
        if need >= 0:
            pos = len(res) - 1
            seen = 0
            placed = False
            nl_after = 0
            while pos >= 0 and seen < lookback:
                x = res[pos]
                if x is lds[need] or x.kind in ("LAB", "BR") :
                    break
                if x.kind in ("L", "LW"):
                    nl_after += 1
                if x.kind == "M":
                    seen += 1
                    if good_slot(pos):
                        issued = len(lds) - nl_after
                        k = need
                        mc = mcount - (seen - 1)
                        while k + 1 < issued and mc - mcount_at[id(lds[k + 1])] >= age:
                            k += 1
                        nn = min(issued - 1 - k, 15)
                        res.insert(pos + 1, I(f"s_waitcnt lgkmcnt({nn})", "W"))
                        covered = max(covered, issued - nn)
                        placed = True
                        break
                pos -= 1
            if not placed:
                k = need
                while k + 1 < len(lds) and mcount - mcount_at[id(lds[k + 1])] >= age:
                    k += 1
                nn = min(len(lds) - 1 - k, 15)
                res.append(I(f"s_waitcnt lgkmcnt({nn})", "W"))
                covered = max(covered, len(lds) - nn)
        if ins.kind in ("L", "LW"):
            mcount_at[id(ins)] = mcount
            lds.append(ins)
            for r in ins.wr:
                pend[r] = len(lds) - 1
        else:
            for r in ins.wr:
                pend.pop(r, None)
        if ins.kind == "M":
            mcount += 1
        res.append(ins)
    return res


def resolve_vm_waits(code):
    vm = []
    out = []
    for ins in code:
        if ins.kind == "D":
            vm.append(ins)
        if ins.kind == "W" and ins.tag and ins.tag[0] == "resolve":
            keys = ins.tag[1]
            parts = []
            if keys:
                k = -1
                for idx, d in enumerate(vm):
                    if d.tag in keys:
                        k = idx
                assert k >= 0, f"no vmem op with tag {keys}"
                parts.append(f"vmcnt({min(len(vm) - 1 - k, 63)})")
            if ins.mark is not None:
                parts.append(f"lgkmcnt({ins.mark})")
            if not parts:
                continue
            ins.text = "s_waitcnt " + " ".join(parts)
        out.append(ins)
    return out


def check_hazards(code, fix=True):
    out = []
    nfix = 0

    def states(ins):
        if ins.kind == "N":
            return int(ins.text.split()[1]) + 1
        if ins.kind == "LAB":
            return 0
        return 1

    for ins in code:
        need = 0
        dist = 0
        for p in reversed(out[-24:]):
            req = 0
            pw, pr = set(p.wr), set(p.rd)
            ir, iw = set(ins.rd), set(ins.wr)
            isv = ins.kind in ("V", "E", "P")
            if p.kind in ("V", "E", "P"):
                vw = {r for r in pw if r[0] in ("v", "a")}
                if ins.kind == "M" and vw & ir:
                    req = max(req, 2)
                if ins.kind == "P" and vw & ir:
                    req = max(req, 2)
                if p.kind == "E" and isv and ins.kind != "E" and vw & ir:
                    req = max(req, 1)
                if isv and ("readfirstlane" in ins.text or "readlane" in ins.text) and vw & ir:
                    req = max(req, 1)
                sw = {r for r in pw if r[0] in ("s", "vcc")}
                if sw & ir:
                    if isv:
                        req = max(req, 2)
                    if ins.kind == "D":
                        req = max(req, 5)
                    if ins.kind in ("S", "BR"):
                        req = max(req, 1)
            if p.kind == "M":
                if ins.kind == "M":
                    ab = ir - set(ins.srcc)
                    if pw & ab:
                        req = max(req, 8)
                    if pw & set(ins.srcc) and set(ins.srcc) != pw:
                        req = max(req, 6)
                    if pw & iw and set(ins.srcc) != pw:
                        req = max(req, 6)
                elif isv or ins.kind in ("L", "LW", "D"):
                    if pw & (ir | iw):
                        req = max(req, 8)
                    if isv and set(p.srcc) & iw:
                        req = max(req, 3)
            if p.kind == "S" and ("m0", 0) in pw and ins.kind == "D" and ("m0", 0) in ir:
                req = max(req, 1)
            if p.kind == "D" and p.tag == "store" and (isv or ins.kind == "L") and {r for r in pr if r[0] in ("v", "a")} & iw:
                req = max(req, 2)
            if req > dist:
                need = max(need, req - dist)
            dist += states(p)
        if need:
            if not fix:
                raise RuntimeError(f"hazard before {ins.text}")
            out.append(nop(need - 1))
            nfix += 1
        out.append(ins)
    return out, nfix


def gap_cost(code):
    tot = 0
    i = 0
    n = len(code)
    while i < n and code[i].kind != "M":
        tot += 4
        i += 1
    while i < n:
        j = i + 1
        c = 4
        first = True
        while j < n and code[j].kind != "M":
            k = code[j].kind
            if k == "LAB":
                j += 1
                continue
            if k in ("V", "P", "E") and first:
                c += 4
            c += {"E": 8, "L": 8, "LW": 12, "D": 8}.get(k, 4)
            if k == "N":
                c += 4 * int(code[j].text.split()[1])
            first = False
            j += 1
        tot += max(16, c)
        i = j
    return tot
```

```python
import sys
from sched import *

OPT = dict(debug=None, stamp=0, dist=15, age=7, stf="sc1", ldf="sc1", pref=0, rot=1, cpf=1, barlag=3, ish=8, flf="sc1", codemax=49000)
for a in sys.argv[1:]:
    if "=" in a:
        k, v = a.split("=")
        OPT[k] = int(v) if v.lstrip("-").isdigit() else v
    elif a == "stamp":
        OPT["stamp"] = 1
import sched as _sc
for _k in _sc.SOPT:
    if _k in OPT:
        _sc.SOPT[_k] = OPT[_k]
STAMP, DEBUG = OPT["stamp"], OPT["debug"]
STF = " " + OPT["stf"].replace("+", " ") if OPT["stf"] else ""
LDF = " " + OPT["ldf"].replace("+", " ") if OPT["ldf"] else ""

sID = 3
sX, sK, sV, sWQ, sWO, sWS = 8, 12, 16, 20, 24, 28
sDBG, sOUT = 4, 20
INBOX = 48 << 20
sIN = 82
sRot, sXlim, sK3 = 88, 89, 90
sW, sXW, sHW, sB, sH, sSP = 32, 33, 34, 35, 36, 37
sKoff, sVoff, sDst, sDstLim, sDst0 = 38, 39, 40, 41, 42
sHalf, sC1, sC2, sD, sK2 = 43, 44, 45, 46, 47
sPat = 48
sT0, sT1, sT2, sT3 = 50, 51, 52, 53
sThr, sCnt, sSite = 54, 55, 56
sWoff, sXoff, sWdst, sXdst, sWrd, sXrd, sDX = 57, 58, 59, 60, 61, 62, 63
sE0, sE1, sE2, sE3, sE4, sE5, sE6 = 57, 58, 59, 60, 61, 62, 63
sArg = 64
sSt = 80

vLANE, vK0, vK1, vV, vWt, vX, vST = 1, 2, 3, 4, 5, 6, 7
KA = [8, 9]
XA = [10, 11]
VA = [12, 13, 14, 15]
QA = [16, 17, 18]
vU = [19, 20, 21, 22, 23]
LV = [24, 25, 26, 27]
LK0 = 28
vT0, vT1, vT2 = 29, 30, 31
QB = [32, 64, 96]
SB, PB = 128, 176
NEGM = [224, 228, 232]
ET = 236
TS = [[244, 245, 246], [247, 248, 249]]
LS = [250, 251, 252]
vC = 253
vF = [253, 254, 255]
OB = [0, 64, 128]
FB = 192
SLOT = 32768
XBASE, XSL = 3 * SLOT, 20480
EX_WG = 49152
PART0, PART_WG = 16 << 20, 73728
OOB = 0x7ff00000
QSCALE = 0x3DB8AA3B
ISH = OPT.get("ish", 7)
FLF = " " + OPT.get("flf", "sc0+sc1").replace("+", " ")
DIST, MLAT = OPT["dist"], 5


def Sreg(j, kt, blk):
    return SB + ((2 * j + kt) % 4) * 12 + blk * 4


def Preg(j, blk):
    return PB + (j % 4) * 12 + blk * 4


def waitr(vm_keys, lg_key):
    return I("s_waitcnt <resolve>", "W", tag=("resolve", vm_keys, lg_key))


def wait_bar(vm_keys, lg_key):
    return [waitr(vm_keys, lg_key), I("s_barrier", "B")]


def stamp(k):
    return [raw(f"s_memtime s[{84 + 2 * k}:{85 + 2 * k}]")] if STAMP and k < 2 else []


def pst():
    if not STAMP:
        return []
    return [raw("s_waitcnt lgkmcnt(0)", "W"), raw("s_mov_b32 s100, s96"), I("v_mov_b32 v28, s100", "V"), I("v_cndmask_b32 v0, v0, v28, s[80:81]", "V"),
            raw("s_memrealtime s[96:97]" if OPT.get("rt") else "s_memtime s[96:97]"), raw("s_lshl_b64 s[80:81], s[80:81], 1")]


def AR(v, a):
    return I(f"v_accvgpr_read_b32 v{v}, a{a}", "V", [("a", a)], [("v", v)])


def bload(n, dst, voff, srd, soff, imm, flags="", tag=None):
    suf = {1: "dword", 2: "dwordx2", 4: "dwordx4"}[n]
    t = f"buffer_load_{suf} {rtxt(dst[0], dst[1], n)}, v{voff}, s[{srd}:{srd + 3}], s{soff} offen offset:{imm}{flags}"
    return I(t, "D", [("v", voff), ("s", soff)] + R("s", srd, 4), R(dst[0], dst[1], n), tag=tag)


def srd(c, d, arg, size):
    for t in (f"s_mov_b32 s{d}, s{sArg + arg}", f"s_mov_b32 s{d + 1}, s{sArg + arg + 1}", f"s_mov_b32 s{d + 2}, {size}",
              f"s_mov_b32 s{d + 3}, 0x20000"):
        c.append(salu(t))


def qw_dma(cidx):
    g = []
    for x in range(2):
        for t in range(4):
            rows = 32 * x + 16 * (t & 1) + 4 * (t >> 1)
            pre = [salu(f"s_add_u32 m0, s{sWdst}, {x * 16384}")] if t == 0 else []
            pre.append(salu(f"s_add_u32 s{sT0}, s{sWoff}, {rows * 8192 - t * 1024}"))
            g.append((pre, dma(vWt, sWQ, sT0, t * 1024, tag=("QW", cidx))))
    adv = [[salu(f"s_add_u32 s{sWoff}, s{sWoff}, {64 * 8192}")],
           [salu(f"s_cmp_ge_u32 s{sWoff}, {448 * 8192}"), salu(f"s_cselect_b32 s{sT1}, {448 * 8192}, 0")],
           [salu(f"s_sub_u32 s{sWoff}, s{sWoff}, s{sT1}")],
           [salu(f"s_cmp_lt_u32 s{sWdst}, {SLOT}"), salu(f"s_cselect_b32 s{sT1}, {3 * SLOT}, 0")],
           [salu(f"s_add_u32 s{sWdst}, s{sWdst}, s{sT1}")], [salu(f"s_sub_u32 s{sWdst}, s{sWdst}, {SLOT}")]]
    return g, adv


def qx_dma(cidx):
    g = []
    for k in range(5):
        pre = [salu(f"s_add_u32 m0, s{sXdst}, {k * 4096}"), salu(f"s_add_u32 s{sT0}, s{sXoff}, {k * 32 * 896}")]
        g.append((pre, dma(vX, sX, sT0, 0, tag=("QX", cidx))))
    adv = [[salu(f"s_add_u32 s{sXoff}, s{sXoff}, 128")],
           [salu(f"s_cmp_eq_u32 s{sXoff}, s{sXlim}"), salu(f"s_cselect_b32 s{sT1}, 896, 0")],
           [salu(f"s_sub_u32 s{sXoff}, s{sXoff}, s{sT1}")],
           [salu(f"s_cmp_ge_u32 s{sXdst}, {XBASE + 2 * XSL}"), salu(f"s_cselect_b32 s{sT1}, {3 * XSL}, 0")],
           [salu(f"s_sub_u32 s{sXdst}, s{sXdst}, s{sT1}")], [salu(f"s_add_u32 s{sXdst}, s{sXdst}, {XSL}")]]
    return g, adv


def dst_adv():
    return [[salu(f"s_add_u32 s{sDst}, s{sDst}, {SLOT}")],
            [salu(f"s_cmp_eq_u32 s{sDst}, s{sDstLim}"), salu(f"s_cselect_b32 s{sDst}, s{sDst0}, s{sDst}")]]


def kv_dma(kind, tag):
    g = []
    r, off = (sK, sKoff) if kind == "K" else (sV, sVoff)
    for x in range(2):
        for t in range(4):
            pre = []
            if t == 0:
                pre.append(salu(f"s_add_u32 m0, s{sDst}, {x * 16384}") if x else salu(f"s_mov_b32 m0, s{sDst}"))
                if x:
                    pre.append(salu(f"s_add_u32 s{off}, s{off}, 16384"))
            vo = (vK1 if t & 1 else vK0) if kind == "K" else vV
            g.append((pre, dma(vo, r, off, t * 1024, nt=OPT.get("nt", 1), tag=tag)))
    return g, [[salu(f"s_add_u32 s{off}, s{off}, 16384")]] + dst_adv()


def wo_dma(o, slot):
    g = []
    for kk in range(2):
        for t in range(4):
            rows = 32 * kk + 16 * (t >> 1) + 8 * (t & 1)
            pre = [salu(f"s_add_u32 m0, s{sE6}, {slot * SLOT + kk * 4096}")] if t == 0 else []
            if kk == 0 and t == 0 and o > 0:
                pre = [salu(f"s_add_u32 s{sK2}, s{sK2}, 128"),
                       I(f"s_cmp_eq_u32 s{sK2}, s{sK3}\ns_cselect_b32 s{sT0}, 896, 0", "S", [], [("scc", 0), ("s", sT0)]),
                       salu(f"s_sub_u32 s{sK2}, s{sK2}, s{sT0}")] + pre
            pre.append(salu(f"s_add_u32 s{sT0}, s{sK2}, {rows * 896 - t * 1024}"))
            g.append((pre, dma(vWt, sWO, sT0, t * 1024, tag=("WO", o))))
    return g, []


def add_dma(tasks, g, adv, first, rel, dl, spread, gapmin=0):
    prev = first
    pd = None
    n = len(g)
    for k, (pre, d) in enumerate(g):
        ddl = dl - (n - 1 - k) * 3
        for p in pre:
            t = Task(p, "S", rel=rel, dl=ddl, deps=[(prev, 0)], name="dmapre")
            tasks.append(t)
            prev = t
        t = Task(d, "D", rel=rel + k * spread, dl=ddl, deps=[(prev, 1 if (prev.cls == "S" and prev.ins) else 0)] + ([(pd, gapmin)] if pd and gapmin else []), name="dma")
        tasks.append(t)
        prev = pd = t
    for a in adv:
        t = Task(a, "S", rel=rel, dl=dl + 8, deps=[(prev, 0)], name="dmaadv")
        tasks.append(t)
        prev = t
    return prev


def emit_serial(c, g, adv, fill=None):
    for pre, d in g:
        c += pre
        c.append(d)
        if fill:
            for _ in range(6):
                if fill:
                    c.append(fill.pop(0))
    for a in adv:
        c += a


def prologue():
    c = []
    S = lambda t: c.append(salu(t))
    V = lambda t: c.append(valu(t))
    c.append(raw(f"s_load_dwordx16 s[{sArg}:{sArg + 15}], s[0:1], 0"))
    c += stamp(0)
    if STAMP or OPT.get("diag"):
        c.append(raw("s_memrealtime s[98:99]"))
    V(f"v_lshrrev_b32 v{vT0}, 6, v0")
    V(f"v_and_b32 v{vLANE}, 63, v0")
    V(f"v_readfirstlane_b32 s{sW}, v{vT0}")
    if OPT.get("cpf"):
        c.append(raw(f"s_getpc_b64 s[{sT2}:{sT3}]"))
        S(f"s_lshr_b32 s{sT1}, s2, 3")
        S(f"s_and_b32 s{sT1}, s{sT1}, 1")
        S(f"s_lshl_b32 s{sT1}, s{sT1}, 15")
        V(f"v_lshlrev_b32 v{vT1}, 7, v0")
        V(f"v_add_u32 v{vT1}, s{sT1}, v{vT1}")
        V(f"v_min_u32 v{vT1}, @CODEMAX, v{vT1}")
        c.append(I(f"global_load_dword v{vU[4]}, v{vT1}, s[{sT2}:{sT3}]", "D", [("v", vT1)], [("v", vU[4])]))
    S(f"s_lshr_b32 s{sT1}, s2, 3")
    S(f"s_and_b32 s{sT3}, s2, 1")
    S(f"s_lshl_b32 s{sT3}, s{sT3}, 2")
    S(f"s_and_b32 s{sT2}, s{sT1}, 3")
    S(f"s_add_u32 s{sT3}, s{sT3}, s{sT2}")
    S(f"s_and_b32 s{sB}, s2, 6")
    S(f"s_bfe_u32 s{sT2}, s{sT1}, 0x10002")
    S(f"s_add_u32 s{sB}, s{sB}, s{sT2}")
    S(f"s_bfe_u32 s{sH}, s{sT1}, 0x10003")
    S(f"s_lshl_b32 s{sT2}, s{sT3}, 1")
    S(f"s_add_u32 s{sH}, s{sH}, s{sT2}")
    S(f"s_lshr_b32 s{sSP}, s{sT1}, 4")
    S(f"s_lshr_b32 s{sXW}, s{sW}, 1")
    S(f"s_and_b32 s{sHW}, s{sW}, 1")
    S(f"s_lshl_b32 s{sKoff}, s{sB}, 3")
    S(f"s_add_u32 s{sKoff}, s{sKoff}, s{sT3}")
    V(f"v_lshrrev_b32 v{vT0}, 3, v{vLANE}")
    V(f"v_and_b32 v{vT1}, 7, v{vLANE}")
    V(f"v_lshrrev_b32 v{vT2}, 1, v{vT0}")
    V(f"v_xor_b32 v{vK0}, v{vT1}, v{vT2}")
    V(f"v_lshlrev_b32 v{vK0}, 4, v{vK0}")
    V(f"v_lshlrev_b32 v{vV}, 1, v{vT2}")
    V(f"v_xor_b32 v{vV}, v{vT1}, v{vV}")
    V(f"v_lshlrev_b32 v{vV}, 4, v{vV}")
    S(f"s_lshl_b32 s{sT2}, s{sHW}, 6")
    V(f"v_xor_b32 v{vX}, s{sT2}, v{vK0}")
    V(f"v_mul_u32_u24 v{vST}, 896, v{vT0}")
    V(f"v_add_u32 v{vX}, v{vX}, v{vST}")
    V(f"v_and_b32 v{vWt}, 3, v{vT0}")
    V(f"v_lshrrev_b32 v{vST}, 2, v{vT0}")
    V(f"v_lshl_add_u32 v{vWt}, v{vST}, 3, v{vWt}")
    V(f"v_lshlrev_b32 v{vWt}, 13, v{vWt}")
    V(f"v_add_u32 v{vWt}, v{vWt}, v{vV}")
    S(f"s_lshl_b32 s{sT3}, s{sW}, 7")
    V(f"v_add_u32 v{vWt}, s{sT3}, v{vWt}")
    S(f"s_lshl_b32 s{sWoff}, s{sH}, 9")
    S(f"s_mul_i32 s{sXoff}, s{sB}, {160 * 896}")
    S(f"s_mul_i32 s{sT2}, s{sW}, {8 * 896}")
    S(f"s_add_u32 s{sXoff}, s{sXoff}, s{sT2}")
    S(f"s_add_u32 s{sXlim}, s{sXoff}, 896")
    if OPT["rot"]:
        S(f"s_and_b32 s{sT2}, s{sB}, 1")
        S(f"s_lshl_b32 s{sT1}, s{sSP}, 1")
        S(f"s_add_u32 s{sT2}, s{sT2}, s{sT1}")
        S(f"s_lshl_b32 s{sT2}, s{sT2}, 1")
        S(f"s_and_b32 s{sT1}, s{sH}, 3")
        S(f"s_add_u32 s{sT2}, s{sT2}, s{sT1}")
        S(f"s_cmp_ge_u32 s{sT2}, 7")
        S(f"s_cselect_b32 s{sT1}, 7, 0")
        S(f"s_sub_u32 s{sT2}, s{sT2}, s{sT1}")
        S(f"s_lshl_b32 s{sT1}, s{sT2}, 19")
        S(f"s_add_u32 s{sWoff}, s{sWoff}, s{sT1}")
        S(f"s_lshl_b32 s{sT1}, s{sT2}, 7")
        S(f"s_add_u32 s{sXoff}, s{sXoff}, s{sT1}")
    S(f"s_lshl_b32 s{sDst0}, s{sW}, 12")
    S(f"s_add_u32 s{sWdst}, s{sDst0}, {SLOT}")
    S(f"s_lshl_b32 s{sXdst}, s{sW}, 10")
    S(f"s_add_u32 s{sXdst}, s{sXdst}, {XBASE}")
    c.append(I("s_waitcnt lgkmcnt(0)", "W"))
    srd(c, sWQ, 6, 448 * 4096 * 2)
    srd(c, sX, 0, 8 * 160 * 448 * 2)
    f = []
    c2, c = c, f
    S = lambda t: f.append(salu(t))
    V = lambda t: f.append(valu(t))
    V(f"v_and_b32 v{vST}, 1, v{vT0}")
    V(f"v_lshl_add_u32 v{vST}, v{vT2}, 3, v{vST}")
    V(f"v_lshlrev_b32 v{vST}, 9, v{vST}")
    V(f"v_add_u32 v{vST}, s{sT3}, v{vST}")
    V(f"v_add_u32 v{vK0}, v{vK0}, v{vST}")
    V(f"v_add_u32 v{vV}, v{vV}, v{vST}")
    V(f"v_xor_b32 v{vK1}, 64, v{vK0}")
    srd(f, sK, 2, 0x4000000)
    srd(f, sV, 4, 0x4000000)
    srd(f, sWO, 8, 448 * 4096 * 2)
    srd(f, sWS, 14, 0x10000000)
    S(f"s_lshl_b32 s{sKoff}, s{sKoff}, 20")
    S(f"s_lshl_b32 s{sVoff}, s{sSP}, 19")
    S(f"s_add_u32 s{sKoff}, s{sKoff}, s{sVoff}")
    S(f"s_mov_b32 s{sVoff}, s{sKoff}")
    S(f"s_lshl_b32 s{sID}, s{sB}, 1")
    S(f"s_add_u32 s{sID}, s{sID}, s{sSP}")
    S(f"s_lshl_b32 s{sID}, s{sID}, 4")
    S(f"s_add_u32 s{sID}, s{sID}, s{sH}")
    srd(f, sDBG, 12, 256)
    S(f"s_lshl_b32 s{sIN}, s{sID}, {ISH}")
    S(f"s_add_u32 s{sIN}, s{sIN}, {INBOX}")
    f.append(I(f"s_cmp_eq_u32 s{sW}, 0\ns_cselect_b32 s{sT2}, s{sIN}, {OOB:#x}\ns_cselect_b32 s{sIN + 1}, s{sID}, {OOB:#x}", "S"))
    V(f"v_and_b32 v{vT0}, 31, v{vLANE}")
    V(f"v_lshlrev_b32 v{vT0}, 2, v{vT0}")
    V(f"v_mov_b32 v{vU[2]}, 0")
    V(f"v_mov_b32 v{vU[3]}, 1")
    f.append(bstore(1, ("v", vU[2]), vT0, sWS, sT2, 0, " sc0 sc1"))
    f.append(nop(1))
    V(f"v_and_b32 v{vT0}, 15, v{vLANE}")
    V(f"v_lshrrev_b32 v{vT1}, 4, v{vLANE}")
    V(f"v_lshrrev_b32 v{vT2}, 1, v{vT0}")
    V(f"v_xor_b32 v{LK0}, v{vT1}, v{vT2}")
    V(f"v_lshlrev_b32 v{LK0}, 4, v{LK0}")
    V(f"v_lshl_add_u32 v{LK0}, v{vT0}, 7, v{LK0}")
    V(f"v_lshrrev_b32 v{vT0}, 2, v{vLANE}")
    V(f"v_and_b32 v{vT1}, 6, v{vT0}")
    V(f"v_bfe_u32 v{vT2}, v{vLANE}, 1, 1")
    V(f"v_xor_b32 v{vT1}, v{vT1}, v{vT2}")
    V(f"v_lshlrev_b32 v{vT1}, 4, v{vT1}")
    V(f"v_lshl_add_u32 v{vT1}, v{vT0}, 7, v{vT1}")
    V(f"v_and_b32 v{vT2}, 1, v{vLANE}")
    V(f"v_lshl_add_u32 v{LV[0]}, v{vT2}, 3, v{vT1}")
    for k in range(1, 4):
        V(f"v_xor_b32 v{LV[k]}, {32 * k}, v{LV[0]}")
    S(f"s_add_u32 s{sT2}, s{sDst0}, {SLOT}")
    for k in range(4):
        V(f"v_add_u32 v{VA[k]}, s{sT2}, v{LV[k]}")
    V(f"v_add_u32 v{XA[0]}, {XBASE}, v{LK0}")
    V(f"v_xor_b32 v{XA[1]}, 64, v{XA[0]}")
    S(f"s_mov_b32 s{sWrd}, {SLOT}")
    S(f"s_mov_b32 s{sXrd}, 0")
    S(f"s_add_u32 s{sDstLim}, s{sDst0}, {5 * SLOT}")
    S(f"s_mov_b32 s{sDst}, s{sDst0}")
    S(f"s_lshl_b32 s{sHalf}, s{sXW}, 15")
    S(f"s_sub_u32 s{sHalf}, s{sHalf}, 16384")
    S(f"s_sub_u32 s{sC1}, {2 * SLOT}, s{sHalf}")
    S(f"s_sub_u32 s{sC2}, {(-3 * SLOT) & 0xffffffff}, s{sHalf}")
    S(f"s_mov_b32 s{sThr}, 0x53800000")
    pat = 0
    for j in range(40):
        if (j + 1) % 5 < (j - 1) % 5:
            pat |= 1 << j
    S(f"s_mov_b32 s{sPat}, {pat & 0xffffffff:#x}")
    S(f"s_mov_b32 s{sPat + 1}, {pat >> 32:#x}")
    S(f"s_lshl_b32 s{sT2}, s{sXW}, 14")
    S(f"s_sub_u32 s{sT2}, 16384, s{sT2}")
    V(f"v_add_u32 v{KA[0]}, s{sT2}, v{LK0}")
    V(f"v_xor_b32 v{KA[1]}, 64, v{KA[0]}")
    V(f"v_and_b32 v{vT0}, 15, v{vLANE}")
    V(f"v_lshlrev_b32 v{vT0}, 4, v{vT0}")
    V(f"v_lshrrev_b32 v{vT1}, 5, v{vLANE}")
    V(f"v_lshl_add_u32 v{vT0}, v{vT1}, 8, v{vT0}")
    V(f"v_bfe_u32 v{vT1}, v{vLANE}, 4, 1")
    V(f"v_lshl_add_u32 v{vT0}, v{vT1}, 3, v{vT0}")
    S(f"s_lshl_b32 s{sT2}, s{sW}, 11")
    S(f"s_add_u32 s{sT3}, s{sT2}, {XBASE}")
    V(f"v_add_u32 v{vU[0]}, s{sT3}, v{vT0}")
    S(f"s_add_u32 s{sT3}, s{sT2}, {SLOT}")
    V(f"v_add_u32 v{vU[1]}, s{sT3}, v{vT0}")
    V(f"v_lshlrev_b32 v{vST}, 4, v{vLANE}")
    S(f"s_lshl_b32 s{sT2}, s{sW}, 1")
    S(f"s_add_u32 s{sT2}, s{sT2}, s{sSP}")
    S(f"s_lshl_b32 s{sT2}, s{sT2}, 13")
    S(f"s_add_u32 s{sT2}, s{sT2}, {XBASE}")
    V(f"v_add_u32 v{QA[0]}, s{sT2}, v{vST}")
    V(f"v_xor_b32 v{QA[1]}, 8192, v{QA[0]}")
    S(f"s_xor_b32 s{sT2}, s{sHW}, s{sSP}")
    S(f"s_lshl_b32 s{sT2}, s{sT2}, 13")
    S(f"s_add_u32 s{sT2}, s{sT2}, {SLOT}")
    V(f"v_add_u32 v{QA[2]}, s{sT2}, v{vST}")
    S(f"s_lshl_b32 s{sK2}, s{sH}, 2")
    S(f"s_add_u32 s{sK2}, s{sK2}, s{sW}")
    S(f"s_mul_i32 s{sK2}, s{sK2}, {64 * 896}")
    S(f"s_add_u32 s{sK3}, s{sK2}, 896")
    S(f"s_and_b32 s{sRot}, s{sB}, 1")
    S(f"s_lshl_b32 s{sT2}, s{sSP}, 1")
    S(f"s_add_u32 s{sRot}, s{sRot}, s{sT2}")
    S(f"s_mul_i32 s{sRot}, s{sRot}, {2 * OPT['rot']}")
    S(f"s_lshl_b32 s{sT2}, s{sRot}, 7")
    S(f"s_add_u32 s{sK2}, s{sK2}, s{sT2}")
    c = c2
    for fn, cidx in ((qw_dma, 0), (qx_dma, 0), (qw_dma, 1)):
        g, adv = fn(cidx)
        emit_serial(c, g, adv, f)
    c += f
    if OPT["pref"]:
        S = lambda t: c.append(salu(t))
        V = lambda t: c.append(valu(t))
        S(f"s_and_b32 s{sT0}, s{sB}, 1")
        S(f"s_lshl_b32 s{sT0}, s{sT0}, 1")
        S(f"s_add_u32 s{sT0}, s{sT0}, s{sSP}")
        S(f"s_lshl_b32 s{sT0}, s{sT0}, 2")
        S(f"s_add_u32 s{sT0}, s{sT0}, s{sW}")
        V(f"v_lshrrev_b32 v{vT0}, 2, v{vLANE}")
        V(f"v_lshlrev_b32 v{vT0}, 13, v{vT0}")
        V(f"v_and_b32 v{vT1}, 3, v{vLANE}")
        V(f"v_lshl_add_u32 v{vT0}, v{vT1}, 7, v{vT0}")
        S(f"s_lshl_b32 s{sT1}, s{sT0}, 17")
        S(f"s_add_u32 s{sT1}, s{sT1}, s{sWoff}")
        c.append(bload(1, ("v", 32), vT0, sWQ, sT1, 0))
        S(f"s_lshr_b32 s{sT1}, s2, 3")
        S(f"s_and_b32 s{sT2}, s{sT1}, 3")
        S(f"s_lshr_b32 s{sT1}, s{sT1}, 3")
        S(f"s_lshl_b32 s{sT1}, s{sT1}, 2")
        S(f"s_add_u32 s{sT1}, s{sT1}, s{sT2}")
        S(f"s_lshl_b32 s{sT1}, s{sT1}, 2")
        S(f"s_add_u32 s{sT1}, s{sT1}, s{sW}")
        S(f"s_mul_i32 s{sT1}, s{sT1}, {18 * 128}")
        S(f"s_mul_i32 s{sT2}, s{sB}, {160 * 896}")
        S(f"s_add_u32 s{sT1}, s{sT1}, s{sT2}")
        V(f"v_min_u32 v{vT1}, 17, v{vLANE}")
        V(f"v_lshlrev_b32 v{vT1}, 7, v{vT1}")
        c.append(bload(1, ("v", 33), vT1, sX, sT1, 0))
        c.append(raw(f"s_getpc_b64 s[{sT2}:{sT3}]"))
        S(f"s_and_b32 s{sT1}, s{sT0}, 7")
        S(f"s_lshl_b32 s{sT1}, s{sT1}, 13")
        V(f"v_lshlrev_b32 v{vT1}, 7, v{vLANE}")
        V(f"v_add_u32 v{vT1}, s{sT1}, v{vT1}")
        V(f"v_min_u32 v{vT1}, @CODEMAX, v{vT1}")
        c.append(I(f"global_load_dword v34, v{vT1}, s[{sT2}:{sT3}]", "D", [("v", vT1)], [("v", 34)]))
        S(f"s_mul_i32 s{sT1}, s{sH}, {256 * 896}")
        S(f"s_mul_i32 s{sT0}, s{sT0}, {112 * 128}")
        S(f"s_add_u32 s{sT1}, s{sT1}, s{sT0}")
        V(f"v_lshlrev_b32 v{vT1}, 7, v{vLANE}")
        if OPT["pref"] > 1:
            c.append(bload(1, ("v", 35), vT1, sWO, sT1, 0))
            S(f"s_add_u32 s{sT1}, s{sT1}, {48 * 128}")
            c.append(bload(1, ("v", 36), vT1, sWO, sT1, 0))
    return c


def qacc(blk, t):
    return 96 + (blk * 4 + t) * 4


def q_phase():
    mf, tasks, marks = [], [], []
    WF = lambda c, ks, t: (c & 1) * 32 + (ks * 4 + t) * 4
    XF = lambda blk, ks: 64 + (blk * 2 + ks) * 4
    bar, lastx, lastaddr, xuse, wuse = {}, {}, {}, {}, {}
    prev_dma, prev_aups = None, []
    allreads = []
    for cidx in range(7):
        start = 80 * cidx
        marks.append(start)
        if cidx == 0:
            bar[0] = Task(wait_bar([("QX", 0)], None), "BAR", rel=-1, dl=-1, name="bar0")
            wready = bar[0]
        else:
            bar[cidx] = Task(wait_bar([("QX", cidx)], ("XR", cidx - 1)), "BAR", rel=start - 20, dl=start - 10, deps=[(lastx[cidx - 1], 4)], name=f"bar{cidx}")
            wready = Task(waitr([("QW", cidx)], None), "S", rel=start - 44, name="wready")
            tasks.append(wready)
        tasks.append(bar[cidx])
        aup = {}
        if cidx > 0:
            sd = [Task([salu(f"s_cmp_eq_u32 s{sWrd}, 0"), salu(f"s_cselect_b32 s{sD}, {3 * SLOT}, 0")], "S", rel=start - 76, deps=[(t, 0) for t in prev_aups], name="sd")]
            for t in (f"s_sub_u32 s{sD}, s{sD}, {SLOT}", f"s_add_u32 s{sWrd}, s{sWrd}, s{sD}"):
                sd.append(Task(salu(t), "S", deps=[(sd[-1], 0)], name="sd"))
            sd.append(Task([salu(f"s_cmp_eq_u32 s{sXrd}, {2 * XSL}"), salu(f"s_cselect_b32 s{sDX}, {3 * XSL}, 0")], "S", deps=[(sd[-1], 0)], name="sd"))
            for t in (f"s_sub_u32 s{sDX}, {XSL}, s{sDX}", f"s_add_u32 s{sXrd}, s{sXrd}, s{sDX}"):
                sd.append(Task(salu(t), "S", deps=[(sd[-1], 0)], name="sd"))
            tasks += sd
            for r in VA:
                aup[r] = Task(valu(f"v_add_u32 v{r}, s{sD}, v{r}"), "V", deps=[(sd[-1], 1), (lastaddr[r], 0)], name="aup")
            for r in XA:
                aup[r] = Task(valu(f"v_add_u32 v{r}, s{sDX}, v{r}"), "V", deps=[(sd[-1], 1), (lastaddr[r], 0)], name="aup")
            tasks += list(aup.values())
            prev_aups = list(aup.values())

        def rd(ins, consumer, gate, tag, rel, war):
            ins.tag = tag
            a = ins.rd[0][1]
            deps = [(gate, 0)] + ([(aup[a], 1)] if a in aup else []) + ([(lastaddr[a], 0)] if a in lastaddr else [])
            first = cidx == 0 and consumer < 12
            t = Task(ins, "L", rel=-1 if first else max(rel, war), dl=-1 if first else consumer - 6, deps=deps, name="rd")
            tasks.append(t)
            lastaddr[a] = t
            allreads.append(t)
            return t

        for ks in range(2):
            for t in range(4):
                for e in range(2):
                    rd(ds_rtr(("a", WF(cidx, ks, t) + 2 * e), VA[t], ks * 16384 + e * 2048), start + ks * 4 + t, wready, ("WR", cidx),
                       start - 42, wuse.get(cidx & 1, -1))
        early = 60 if cidx == 6 else 22
        for blk in range(10):
            for ks in range(2):
                c0 = len(mf)
                lastx[cidx] = rd(ds_r128(("a", XF(blk, ks)), XA[ks], blk * 2048), c0, bar[cidx], ("XR", cidx), c0 - early, xuse.get((blk, ks), -1))
                for t in range(4):
                    d = ("v", qacc(blk, t))
                    mf.append(mfma(d, ("a", WF(cidx, ks, t)), ("a", XF(blk, ks)), 0 if (cidx == 0 and ks == 0) else d))
                xuse[(blk, ks)] = len(mf) - 1
        wuse[cidx & 1] = len(mf) - 1
    q = []
    for cidx in range(1, 7):
        q.append((qx_dma(cidx), bar[max(cidx - 2, 0)], max(0, 80 * (cidx - 2) - 10), 80 * (cidx - 1) + (30 if cidx > 1 else 16)))
        if cidx + 1 <= 6:
            q.append((qw_dma(cidx + 1), bar[0], max(0, 80 * (cidx - 2) + 10), 80 * (cidx - 1) + 62))
    g, adv = kv_dma("K", ("T", -1))
    q.append(((g, adv + dst_adv()), bar[0], 80 * 4 + 10, 80 * 5 + 40))
    q.append((kv_dma("K", ("T", 1)), bar[0], 80 * 5 + 10, 80 * 6 + 20))
    for (g, adv), gate, r0, d0 in q:
        first = Task([], "S", rel=r0, deps=[(gate, 0)] + ([(prev_dma, 0)] if prev_dma else []), name="dmastart")
        tasks.append(first)
        prev_dma = add_dma(tasks, g, adv, first, r0, d0, spread=0, gapmin=OPT.get("qgap", 3))
    an = I(f"buffer_store_byte v{vU[3]}, v{vU[2]}, s[{sDBG}:{sDBG + 3}], s{sIN + 1} offen sc0 sc1", "D", [("v", vU[3]), ("v", vU[2])], [], tag="store")
    seq = [an]
    if OPT.get("tlb", 1):
        seq += [bload(1, ("v", vX), vU[2], sV, sVoff, 0), bload(1, ("v", vX), vU[2], sWO, sK2, 0),
                salu(f"s_mul_i32 s{sT0}, s{sID}, {EX_WG}"), bload(1, ("v", vX), vU[2], sWS, sT0, 0),
                salu(f"s_xor_b32 s{sT0}, s{sID}, 16"), salu(f"s_mul_i32 s{sT0}, s{sT0}, {EX_WG}"), bload(1, ("v", vX), vU[2], sWS, sT0, 0),
                salu(f"s_and_b32 s{sT0}, s{sID}, 0xf0"), salu(f"s_lshl_b32 s{sT1}, s{sW}, 2"), salu(f"s_add_u32 s{sT0}, s{sT0}, s{sT1}"),
                salu(f"s_mul_i32 s{sT0}, s{sT0}, {PART_WG}"), salu(f"s_add_u32 s{sT0}, s{sT0}, {PART0}"), bload(1, ("v", vX), vU[2], sWS, sT0, 0)]
    for i in seq:
        prev_dma = Task(i, i.kind, deps=[(prev_dma, 1)], dl=80 * 6 + 60, name="warm")
        tasks.append(prev_dma)
    start = 480
    dead = Task(wait_bar([], ("XR", 6)), "BAR", deps=[(lastx[6], 4)], name="dead")
    tasks.append(dead)
    sc = Task([salu(f"s_mov_b32 s{sT2}, {QSCALE:#x}"), salu(f"s_mov_b32 s{sT3}, {QSCALE:#x}")], "S", rel=start, name="sc")
    tasks.append(sc)
    for blk in range(10):
        for t in range(4):
            s = qacc(blk, t)
            done = start + blk * 8 + 4 + t
            if blk < OPT.get("pkfrom", 4):
                ms = [Task(valu(f"v_mul_f32 v{s + r}, s{sT3}, v{s + r}"), "V", rel=done + MLAT, deps=[(sc, 1)], name="qmul") for r in range(4)]
            else:
                m2 = [Task(valu(f"v_pk_mul_f32 v[{s + r}:{s + r + 1}], v[{s + r}:{s + r + 1}], s[{sT2}:{sT3}]"), "V", rel=done + MLAT, deps=[(sc, 1)], name="qmul") for r in (0, 2)]
                ms = [m2[0], m2[0], m2[1], m2[1]]
            c0 = Task(valu(f"v_cvt_pk_bf16_f32 v{s}, v{s}, v{s + 1}"), "V", deps=[(ms[0], 0), (ms[1], 0)], name="qcv")
            c1 = Task(valu(f"v_cvt_pk_bf16_f32 v{s + 1}, v{s + 2}, v{s + 3}"), "V", deps=[(ms[2], 0), (ms[3], 0), (c0, 0)], name="qcv")
            w = ds_w64(vU[0] if blk < 8 else vU[1], ("v", s), (blk & 7) * 8192 + (t >> 1) * 1024 + (t & 1) * 512)
            wt = Task(w, "L", deps=[(c1, 0), (dead, 0)], name="qwr")
            tasks += list(dict.fromkeys(ms)) + [c0, c1, wt]
    gaps = schedule(mf, tasks, verbose=True)
    for k, m in enumerate(marks):
        mf[m].mark = ("Q", k)
    return linearize(mf, gaps)


def q_finish():
    c = []
    S = lambda t: c.append(salu(t))
    V = lambda t: c.append(valu(t))
    S(f"s_lshl_b32 s{sT0}, s{sXW}, 14")
    S(f"s_sub_u32 s{sT0}, {3 * SLOT + 16384}, s{sT0}")
    for k in range(4):
        V(f"v_add_u32 v{VA[k]}, s{sT0}, v{LV[k]}")
    V(f"v_lshrrev_b32 v{vT0}, 3, v{vLANE}")
    V(f"v_mul_u32_u24 v{vT0}, 896, v{vT0}")
    V(f"v_and_b32 v{vWt}, 0x70, v{vV}")
    V(f"v_add_u32 v{vWt}, v{vWt}, v{vT0}")
    S(f"s_lshl_b32 s{sE6}, s{sW}, 13")
    c.append(I("s_waitcnt lgkmcnt(0)", "W"))
    for r in list(range(NEGM[0], NEGM[0] + 12)) + LS:
        V(f"v_mov_b32 v{r}, 0")
    c += wait_bar([("T", -1)], None)
    return c


sites = []


def rowmax_tasks(tasks, src, t, u, dep, name):
    seq = [f"v_max3_f32 v{t}, v{src}, v{src + 1}, v{src + 2}", f"v_max_f32 v{t}, v{t}, v{src + 3}", f"v_mov_b32 v{u}, v{t}",
           f"v_permlane32_swap_b32 v{t}, v{u}", f"v_max_f32 v{t}, v{t}, v{u}", f"v_mov_b32 v{u}, v{t}",
           f"v_permlane16_swap_b32 v{t}, v{u}", f"v_max_f32 v{t}, v{t}, v{u}", f"v_ceil_f32 v{t}, v{t}"]
    prev = dep
    for x in seq:
        i = valu(x)
        tk = Task(i, "V", deps=[(prev, 1 if i.kind == "P" else 0)], name=name)
        tasks.append(tk)
        prev = tk
    return prev


def main_phase():
    NS = 35
    mf, tasks = [], []
    nfrag = 0
    start, chain_first, chain_last, plan, qfirst = {}, {}, {}, [], {}
    for j in range(NS):
        start[j] = len(mf)
        for gam in range(16):
            kt, ks = gam >> 3, gam & 7
            if j <= 31:
                f = FB + (nfrag % 16) * 4
                nfrag += 1
                plan.append(("K", j, gam, f, len(mf)))
                for blk in ((0, 1, 2) if j & 1 else (0, 1)):
                    d = ("v", Sreg(j, kt, blk))
                    qfirst.setdefault((blk, ks), len(mf))
                    mf.append(mfma(d, ("a", f), ("v", QB[blk] + 4 * ks), ("v", NEGM[blk]) if ks == 0 else d))
                    chain_first.setdefault((j, kt), len(mf) - 1)
                    chain_last[(j, kt, blk)] = len(mf) - 1
            if j >= 3:
                f = FB + (nfrag % 16) * 4
                nfrag += 1
                plan.append(("V", j, gam, f, len(mf)))
                for blk in ((0, 1, 2) if (j & 1) == 0 else (0, 1)):
                    d = ("a", OB[blk] + 4 * gam)
                    mf.append(mfma(d, ("a", f), ("v", Preg(j - 3, blk)), 0 if j == (3 if blk < 2 else 4) else d))
    start[NS] = start[NS + 1] = len(mf)
    bar, aup, lastread, lastaddr = {}, {}, {}, {}
    qlast = None
    for (blk, ks), c0 in sorted(qfirst.items(), key=lambda x: x[1]):
        i = ds_r128(("v", QB[blk] + 4 * ks), QA[blk], ks * 1024)
        i.tag = ("QS", 0)
        first = c0 < 8
        qlast = Task(i, "L", rel=-1, dl=-1 if first else min(c0 - 6, 22), deps=[(qlast, 0)] if qlast else [], name="qrd")
        tasks.append(qlast)
    bar[0] = Task(wait_bar([], ("QS", 0)), "BAR", deps=[(qlast, 4)], name="barq")
    tasks.append(bar[0])
    st = dict(sd=None, aups=[])
    done_steps = set()

    def tile_of(kind, j):
        return ("K", j >> 1) if kind == "K" else ("V", (j - 3) >> 1)

    def add_wreads(o, gate, rel, dl):
        c = []
        wfrag_reads(c, o)
        prev = gate
        for i in c:
            prev = Task(i, "L", rel=rel, dl=dl, deps=[(prev, 0), (setup_done, 1)], prio=-40, name="wrd")
            tasks.append(prev)
        return prev

    su = []
    tail_setup(su)
    setup_done = None
    for i in su:
        setup_done = Task(i, i.kind if i.kind in ("S", "D") else "V", rel=start[29], dl=start[32] - 30, deps=[(setup_done, 0)] if setup_done else [], name="su")
        tasks.append(setup_done)

    def enter(j):
        done_steps.add(j)
        sw = "K" if j % 2 == 0 else "V"
        old = tile_of(sw, j - 1)
        newvalid = (sw == "K" and j <= 30) or (sw == "V" and 3 <= j <= 33)
        vm = [("T", j - 1)] if newvalid else []
        deps, lg = [], None
        if old in lastread:
            deps.append((lastread[old], OPT["barlag"]))
            lg = old
        if j == 32:
            vm = [("WO", 0)]
        if j == 33:
            vm = vm + [("WO", 1)]
        if j in (33, 34):
            wl = add_wreads(j - 33, bar[j - 1], start[j - 1], start[j] - DIST)
            deps = [(wl, 3)] + deps
            lg = ("ANY", j)
            for t in [wl] + ([lastread[old]] if old in lastread else []):
                t.ins[0].tag = ("ANY", j)
        if vm or lg:
            pb = max(k for k in bar)
            bar[j] = Task(wait_bar(vm, lg), "BAR", rel=start[j] - DIST + 1 + OPT["barlag"], dl=start[j] - 8, deps=deps + [(bar[pb], 1)], name=f"bar{j}")
            tasks.append(bar[j])
        sd0 = Task([salu(f"s_bitcmp1_b64 s[{sPat}:{sPat + 1}], 0"), salu(f"s_cselect_b32 s{sD}, s{sC2}, s{sC1}")], "S", rel=start[j - 1] + 8,
                   deps=[(t, 0) for t in st["aups"]] + ([(st["sd"], 0)] if st["sd"] else []), name="sd")
        sd0.ins[0].wr = [("scc", 0)]
        sd = Task(salu(f"s_lshr_b64 s[{sPat}:{sPat + 1}], s[{sPat}:{sPat + 1}], 1"), "S", deps=[(sd0, 0)], name="sd")
        tasks.extend([sd0, sd])
        st["sd"], st["aups"] = sd, []
        for kind, regs in (("K", KA), ("V", VA)):
            if not ((kind == "K" and 1 <= j <= 31) or (kind == "V" and 4 <= j <= 34)):
                continue
            for r in regs:
                t = Task(valu(f"v_add_u32 v{r}, s{sD if kind == sw else sHalf}, v{r}"), "V", deps=[(sd0, 1), (lastaddr[r], 0)], name="aup")
                aup[(j, r)] = t
                tasks.append(t)
                st["aups"].append(t)

    for kind, j, gam, f, c0 in plan:
        if j >= 1 and j not in done_steps:
            enter(j)
        kt, ks = gam >> 3, gam & 7
        if kind == "K":
            a = KA[ks & 1]
            ins = [ds_r128(("a", f), a, (ks >> 1) * 4096 + kt * 2048)]
        else:
            a = VA[gam & 3]
            ins = [ds_rtr(("a", f), a, (gam >> 2) * 4096), ds_rtr(("a", f + 2), a, (gam >> 2) * 4096 + 2048)]
        tl = tile_of(kind, j)
        for i in ins:
            i.tag = tl
            deps = []
            swj = j if (kind == "K") == (j % 2 == 0) else j - 1
            if swj in bar and swj > 0:
                deps.append((bar[swj], 0))
            if (j, a) in aup:
                deps.append((aup[(j, a)], 1))
            if a in lastaddr:
                deps.append((lastaddr[a], 0))
            first = c0 < 8
            t = Task(i, "L", rel=-1 if first else c0 - DIST, dl=-1 if first else c0 - 5, deps=deps, name=f"rd{kind}{j}.{gam}")
            tasks.append(t)
            lastread[tl] = t
            lastaddr[a] = t
    prev = None
    for j in range(NS):
        n = j + 2
        if n <= 32 and n != 31:
            g, adv = kv_dma("K" if n & 1 else "V", ("T", n))
        elif n in (31, 33):
            g, adv = wo_dma((n - 31) // 2, (n + 1) % 5)
            adv = dst_adv()
        elif n in (34, 35):
            g, adv = wo_dma(n - 32, WSL[n - 32])
        else:
            continue
        pb = max(k for k in bar if k <= j)
        first = Task([], "S", rel=start[j] - 6, deps=[(bar[pb], 0)] + ([(prev, 0)] if prev else []), name="dmastart")
        tasks.append(first)
        L = start[j + 1] - start[j]
        dl = start[j + 1] - DIST if 3 <= j < 32 else start[j + 2] - DIST
        prev = add_dma(tasks, g, adv, first, start[j] - 6, dl, spread=max(3, (L - DIST) // 9))
    ecount, econs, prev_branch, prev_ladd = 0, {}, None, {}
    for j in range(32):
        blks = (0, 1, 2) if j & 1 else (0, 1)
        dl_chk = chain_first[(j + 2, 0)] - 1 if j + 2 <= 31 else start[j + 3] - 4
        allcv, tsdep, fix = [], {}, {}
        for blk in blks:
            if (j == 0 and blk < 2) or (j == 1 and blk == 2):
                t, u = ET + 2 * (blk & 1), ET + 2 * (blk & 1) + 1
                base = Task([], "V", rel=chain_last[(j, 0, blk)] + MLAT, deps=[(prev_branch, 0)] if prev_branch else [], name="mx0")
                tasks.append(base)
                last = rowmax_tasks(tasks, Sreg(j, 0, blk), t, u, base, "mx")
                nm = [Task(valu(f"v_sub_f32 v{NEGM[blk] + r}, 0, v{t}"), "V", rel=chain_first[(j, 1)] + 6,
                           dl=chain_first[(j + (1 if blk < 2 else 2), 0)] - 3, deps=[(last, 0)], name="negm") for r in range(4)]
                tasks += nm
                for kt in range(2):
                    for r in range(4):
                        s = Sreg(j, kt, blk) + r
                        x = Task(valu(f"v_sub_f32 v{s}, v{s}, v{t}"), "V", rel=chain_last[(j, kt, blk)] + MLAT, deps=[(last, 0)], name="sfix")
                        tasks.append(x)
                        fix[(kt, blk, r)] = x
                        econs.setdefault(t - ET, []).append(x)
                econs.setdefault(t - ET, []).extend(nm)
                econs.setdefault(u - ET, []).append(last)
        for kt in range(2):
            for blk in blks:
                ts = TS[j & 1][blk]
                for pr in range(2):
                    es = []
                    for r in (2 * pr, 2 * pr + 1):
                        e = ecount % 8
                        ecount += 1
                        deps = [(x, 0) for x in econs.get(e, [])] + ([(prev_branch, 0)] if prev_branch else [])
                        if (kt, blk, r) in fix:
                            deps.append((fix[(kt, blk, r)], 1))
                        t = Task(valu(f"v_exp_f32 v{ET + e}, v{Sreg(j, kt, blk) + r}"), "E", rel=chain_last[(j, kt, blk)] + MLAT, deps=deps, name=f"exp{j}.{kt}")
                        tasks.append(t)
                        econs[e] = []
                        es.append((e, t))
                    (e0, t0), (e1, t1) = es
                    cv = Task(valu(f"v_cvt_pk_bf16_f32 v{Preg(j, blk) + 2 * kt + pr}, v{ET + e0}, v{ET + e1}"), "V", deps=[(t0, 1), (t1, 1)], name="cvt")
                    tasks.append(cv)
                    allcv.append(cv)
                    if blk not in tsdep:
                        ad = Task(valu(f"v_add_f32 v{ts}, v{ET + e0}, v{ET + e1}"), "V",
                                  deps=[(t0, 1), (t1, 1)] + ([(prev_ladd[(j & 1, blk)], 0)] if (j & 1, blk) in prev_ladd else []), name="add")
                        tasks.append(ad)
                        econs[e0] += [cv, ad]
                        econs[e1] += [cv, ad]
                        tsdep[blk] = ad
                    else:
                        a0 = Task(valu(f"v_add_f32 v{ts}, v{ET + e0}, v{ts}"), "V", deps=[(t0, 1), (tsdep[blk], 1)], name="add")
                        a1 = Task(valu(f"v_add_f32 v{ts}, v{ET + e1}, v{ts}"), "V", deps=[(t1, 1), (a0, 1)], name="add")
                        tasks += [a0, a1]
                        econs[e0] += [cv, a0]
                        econs[e1] += [cv, a1]
                        tsdep[blk] = a1
        tsr = [TS[j & 1][b] for b in blks]
        mx = Task(valu(f"v_max3_f32 v{vC}, v{tsr[0]}, v{tsr[1]}, v{tsr[2]}") if len(tsr) == 3 else valu(f"v_max_f32 v{vC}, v{tsr[0]}, v{tsr[1]}"),
                  "V", deps=[(t, 1) for t in tsdep.values()], name="mx")
        cmp_ = Task(valu(f"v_cmp_lt_f32 vcc, s{sThr}, v{vC}"), "V", deps=[(mx, 1)], name="cmp")
        br = Task([I(f"s_cbranch_vccnz L_slow_@{j}", "BR", [("vcc", 0)], [], tag=("site", j)), I(f"L_ret_@{j}:", "LAB", tag=("ret", j))],
                  "S", dl=dl_chk, deps=[(cmp_, 1)] + [(t, 0) for t in allcv] + [(t, 0) for t in prev_ladd.values()], name=f"br{j}")
        tasks += [mx, cmp_, br]
        for blk in blks:
            la = Task(valu(f"v_add_f32 v{LS[blk]}, v{TS[j & 1][blk]}, v{LS[blk]}"), "V", deps=[(br, 0)], dl=dl_chk + 12, name="ladd")
            tasks.append(la)
            prev_ladd[(j & 1, blk)] = la
        prev_branch = br
        sites.append(dict(j=j, task=br, blks=blks))
    last = None
    for blk in (1, 2, 0):
        xs = []
        xsum(xs, LS[blk], vT1)
        for i in xs:
            last = Task(i, "V", deps=[(t, 0) for t in prev_ladd.values()] + ([(last, 1 if i.kind == "P" else 0)] if last else []), name="xsum")
            tasks.append(last)
        if blk == 1:
            m0_ = Task(valu(f"v_mov_b32 v{ET}, v{NEGM[1]}"), "V", deps=[(last, 0)], name="st")
            m1_ = Task(valu(f"v_mov_b32 v{ET + 1}, v{LS[1]}"), "V", deps=[(last, 0)], name="st")
            stt = Task(bstore(2, ("v", ET), vT2, sWS, sT3, 0, STF), "D", deps=[(m0_, 1), (m1_, 1), (prev, 0)], name="st")
            tasks += [m0_, m1_, stt]
    pcv = {}
    for T in range(16):
        done = start[34] + 3 * T + 1
        tmp = SB + 4 * (T & 3)
        ars = [Task(AR(tmp + r, OB[1] + 4 * T + r), "V", rel=done + MLAT, deps=[(prev_branch, 0)] + [(x, 0) for x in pcv.get(T & 3, [])], name="ar") for r in range(4)]
        cv = [Task(valu(f"v_cvt_pk_bf16_f32 v{FSB + 2 * T + h}, v{tmp + 2 * h}, v{tmp + 2 * h + 1}"), "V", deps=[(ars[2 * h], 0), (ars[2 * h + 1], 0)], name="cv") for h in range(2)]
        tasks += ars + cv
        if T & 1:
            kb = T >> 1
            tasks.append(Task(bstore(4, ("v", FSB + 4 * kb), vST, sWS, sE4 if kb < 4 else sE5, (kb & 3) * 1024, STF), "D",
                              deps=[(x, 1) for x in cv + pcv[(T - 1) & 3]] + [(prev, 0)], name="fst"))
        pcv[T & 3] = cv
    gaps = schedule(mf, tasks, verbose=True)
    for s in sites:
        j, g = s["j"], s["task"].gap
        s["later_blk"] = {}
        for (jj, kt), idx in chain_first.items():
            if jj > j:
                for blk in ((0, 1, 2) if jj & 1 else (0, 1)):
                    if idx + blk <= g:
                        s["later_blk"].setdefault(blk, []).append(Sreg(jj, kt, blk))
        s["pend"] = [jj for jj in range(max(0, j - 3), j) if start[jj + 4] - 1 > g]
    for j in range(NS):
        mf[start[j]].mark = ("M", j)
    return linearize(mf, gaps)


def slow_path(s, name):
    c = []
    V = lambda t: c.append(valu(t))
    j = s["j"]
    c.append(I(f"L_slow_{name}:", "LAB"))
    c.append(nop(15))
    t, u, x, y = ET, ET + 1, ET + 2, ET + 3
    for blk in range(3):
        if blk not in s["blks"]:
            V(f"v_mov_b32 v{vF[blk]}, 1.0")
            continue
        s0, s1 = Sreg(j, 0, blk), Sreg(j, 1, blk)
        V(f"v_max3_f32 v{t}, v{s0}, v{s0 + 1}, v{s0 + 2}")
        V(f"v_max3_f32 v{t}, v{t}, v{s0 + 3}, v{s1}")
        V(f"v_max3_f32 v{t}, v{t}, v{s1 + 1}, v{s1 + 2}")
        V(f"v_max_f32 v{t}, v{t}, v{s1 + 3}")
        for sw in ("v_permlane32_swap_b32", "v_permlane16_swap_b32"):
            V(f"v_mov_b32 v{u}, v{t}")
            V(f"{sw} v{t}, v{u}")
            V(f"v_max_f32 v{t}, v{t}, v{u}")
        V(f"v_ceil_f32 v{t}, v{t}")
        V(f"v_max_f32 v{t}, 0, v{t}")
        V(f"v_exp_f32 v{vF[blk]}, -v{t}")
        for base in [NEGM[blk], s0, s1] + s["later_blk"].get(blk, []):
            for r in range(4):
                V(f"v_sub_f32 v{base + r}, v{base + r}, v{t}")
        for jj in s["pend"]:
            if blk == 2 and not (jj & 1):
                continue
            for r in range(4):
                p = Preg(jj, blk) + r
                V(f"v_lshlrev_b32 v{x}, 16, v{p}")
                V(f"v_and_b32 v{y}, 0xffff0000, v{p}")
                V(f"v_mul_f32 v{x}, v{x}, v{vF[blk]}")
                V(f"v_mul_f32 v{y}, v{y}, v{vF[blk]}")
                V(f"v_cvt_pk_bf16_f32 v{p}, v{x}, v{y}")
        ts = TS[j & 1][blk]
        V(f"v_mov_b32 v{ts}, 0")
        for kt in range(2):
            for pr in range(2):
                sr = Sreg(j, kt, blk) + 2 * pr
                V(f"v_exp_f32 v{x}, v{sr}")
                V(f"v_exp_f32 v{y}, v{sr + 1}")
                V(f"v_cvt_pk_bf16_f32 v{Preg(j, blk) + 2 * kt + pr}, v{x}, v{y}")
                V(f"v_add_f32 v{ts}, v{x}, v{ts}")
                V(f"v_add_f32 v{ts}, v{y}, v{ts}")
    return c


def slow_tail(names):
    c = []
    V = lambda t: c.append(valu(t))
    c.append(I("L_slow_tail:", "LAB"))
    for blk in range(3):
        V(f"v_mul_f32 v{LS[blk]}, v{LS[blk]}, v{vF[blk]}")
        for r in range(0, 64, 4):
            for k in range(4):
                c.append(AR(ET + k, OB[blk] + r + k))
            for k in range(4):
                V(f"v_mul_f32 v{ET + k}, v{ET + k}, v{vF[blk]}")
            for k in range(4):
                c.append(I(f"v_accvgpr_write_b32 a{OB[blk] + r + k}, v{ET + k}", "V", [("v", ET + k)], [("a", OB[blk] + r + k)]))
    c.append(nop(3))
    for k, nm in enumerate(names):
        c.append(salu(f"s_cmp_eq_u32 s{sSite}, {k}"))
        c.append(I(f"s_cbranch_scc1 L_ret_{nm}", "BR"))
    c.append(I(f"s_branch L_ret_{names[-1]}", "BR"))
    return c


def xsum(c, r, u):
    for sw in ("v_permlane32_swap_b32", "v_permlane16_swap_b32"):
        c += [valu(f"v_mov_b32 v{u}, v{r}"), valu(f"{sw} v{r}, v{u}"), valu(f"v_add_f32 v{r}, v{r}, v{u}")]


WFR = [("v", 32), ("v", 64), ("a", 96), ("a", 128), ("a", 160), ("a", 192), ("a", 224)]
WSL = [2, 4, 0, 2, 3, 1, 4]
FSB = 96
RI, RA, RB = [QA[0], QA[1]], [QA[2], vU[0]], [vU[1], vX]


def OFR(blk, kb):
    n = blk * 8 + kb
    return ("a", 4 * n) if n < 24 else ("v", 128 + 4 * (n - 24))


def wfrag_reads(c, o):
    off = WSL[o] * SLOT
    a = vU[2] if off < 65536 else (vU[3] if off < 131072 else vU[4])
    off &= 65535
    k, b = WFR[o]
    for kb in range(8):
        for e in range(2):
            c.append(ds_rtr((k, b + 4 * kb + 2 * e), a, off + kb * 4096 + e * 2048))


def tail_setup(c):
    S = lambda t: c.append(salu(t))
    V = lambda t: c.append(valu(t))
    if OPT.get("cpf2", 1):
        c.append(raw(f"s_getpc_b64 s[{sT2}:{sT3}]"))
        S(f"s_lshl_b32 s{sT1}, s{sW}, 13")
        V(f"v_lshlrev_b32 v{vT2}, 7, v{vLANE}")
        V(f"v_add_u32 v{vT2}, s{sT1}, v{vT2}")
        V(f"v_min_u32 v{vT2}, {OPT.get('cpf2max', 20000)}, v{vT2}")
        c.append(I(f"global_load_dword v{vX}, v{vT2}, s[{sT2}:{sT3}]", "D", [("v", vT2)], [("v", vX)]))
    srd(c, sOUT, 10, 8 * 160 * 448 * 2)
    S(f"s_mul_i32 s{sE0}, s{sID}, {EX_WG}")
    S(f"s_xor_b32 s{sT1}, s{sID}, 16")
    S(f"s_mul_i32 s{sE1}, s{sT1}, {EX_WG}")
    S(f"s_add_u32 s{sE4}, s{sE0}, s{sE6}")
    S(f"s_add_u32 s{sE5}, s{sE4}, 4096")
    S(f"s_lshl_b32 s{sT3}, s{sW}, 9")
    S(f"s_add_u32 s{sT2}, s{sT3}, {4 * SLOT}")
    S(f"s_add_u32 s{sT3}, s{sT3}, s{sE0}")
    S(f"s_add_u32 s{sT3}, s{sT3}, 40960")
    V(f"v_lshlrev_b32 v{vT2}, 3, v{vLANE}")
    V(f"v_add_u32 v{XA[0]}, s{sT2}, v{vT2}")
    V(f"v_xor_b32 v{XA[1]}, 1024, v{XA[0]}")
    S(f"s_lshl_b32 s{sT1}, s{sW}, 5")
    V(f"v_xor_b32 v{vU[2]}, s{sT1}, v{LV[0]}")
    V(f"v_add_u32 v{vU[3]}, 0x10000, v{vU[2]}")
    V(f"v_add_u32 v{vU[4]}, 0x20000, v{vU[2]}")


def merge_coef(c, nm_o, l_o, pst_, co, cp, t):
    V = lambda x: c.append(valu(x))
    V(f"v_min_f32 v{t}, v{nm_o}, v{pst_}")
    V(f"v_sub_f32 v{co}, v{t}, v{nm_o}")
    V(f"v_sub_f32 v{cp}, v{t}, v{pst_}")
    V(f"v_exp_f32 v{co}, v{co}")
    V(f"v_exp_f32 v{cp}, v{cp}")
    V(f"v_mul_f32 v{t}, v{co}, v{l_o}")
    V(f"v_fmac_f32 v{t}, v{cp}, v{pst_ + 1}")
    V(f"v_rcp_f32 v{t}, v{t}")
    V(f"v_mul_f32 v{co}, v{co}, v{t}")
    V(f"v_mul_f32 v{cp}, v{cp}, v{t}")
    V(f"v_mov_b32 v{co + 1}, v{co}")
    V(f"v_mov_b32 v{cp + 1}, v{cp}")


def pk(op, d, *src):
    return valu(f"{op} v[{d}:{d + 1}], " + ", ".join(f"v[{x}:{x + 1}]" for x in src))


def decode(c):
    S = lambda t: c.append(salu(t))
    V = lambda t: c.append(valu(t))
    S(f"s_mul_i32 s{sC1}, s{sH}, 288")
    S(f"s_mul_i32 s{sT1}, s{sW}, 72")
    S(f"s_add_u32 s{sC1}, s{sC1}, s{sT1}")
    S(f"s_lshr_b32 s{sT1}, s{sH}, 2")
    S(f"s_mul_i32 s{sT2}, s{sT1}, 18")
    S(f"s_lshl_b32 s{sT1}, s{sT1}, 5")
    S(f"s_mul_i32 s{sT3}, s{sB}, 160")
    S(f"s_lshl_b32 s{sD}, s{sSP}, 4")
    S(f"s_add_u32 s{sT3}, s{sT3}, s{sD}")
    S(f"s_mul_i32 s{sT3}, s{sT3}, 896")
    S(f"s_add_u32 s{sT3}, s{sT3}, s{sT1}")
    S(f"s_mov_b32 s{sD}, {PART_WG}")
    for n in range(2):
        g, k, x, y = vK0, vK1, vV, vT0
        if n == 0:
            V(f"v_add_u32 v{g}, s{sC1}, v{vLANE}")
            V(f"v_lshlrev_b32 v{RI[n]}, 4, v{g}")
        else:
            V(f"v_and_b32 v{g}, 7, v{vLANE}")
            V(f"v_add_u32 v{g}, s{sC1}, v{g}")
            V(f"v_add_u32 v{g}, 64, v{g}")
            V(f"v_lshrrev_b32 v{k}, 3, v{vLANE}")
            V(f"v_mul_lo_u32 v{k}, v{k}, s{sD}")
            V(f"v_lshl_add_u32 v{RI[n]}, v{g}, 4, v{k}")
        V(f"v_lshrrev_b32 v{k}, 6, v{g}")
        V(f"v_subrev_u32 v{k}, s{sT2}, v{k}")
        V(f"v_and_b32 v{x}, 15, v{g}")
        V(f"v_mul_u32_u24 v{x}, 896, v{x}")
        V(f"v_bfe_u32 v{y}, v{g}, 4, 2")
        V(f"v_lshl_add_u32 v{x}, v{y}, 3, v{x}")
        V(f"v_add_u32 v{x}, s{sT3}, v{x}")
        z = VA[1]
        V(f"v_lshrrev_b32 v{y}, 1, v{k}")
        V(f"v_lshlrev_b32 v{g}, 1, v{k}")
        V(f"v_subrev_u32 v{g}, 28, v{g}")
        V(f"v_cmp_gt_u32 vcc, 14, v{k}")
        V(f"v_cndmask_b32 v{y}, v{g}, v{y}, vcc")
        V(f"v_add_u32 v{g}, 1, v{y}")
        V(f"v_cndmask_b32 v{z}, v{g}, v{y}, vcc")
        V(f"v_and_b32 v{g}, 1, v{k}")
        V(f"v_mul_u32_u24 v{g}, {64 * 896}, v{g}")
        V(f"v_mov_b32 v{RB[n]}, {128 * 896}")
        V(f"v_cndmask_b32 v{g}, v{RB[n]}, v{g}, vcc")
        V(f"v_add_u32 v{RA[n]}, v{x}, v{g}")
        V(f"v_mov_b32 v{g}, {32 * 896}")
        V(f"v_cndmask_b32 v{g}, 0, v{g}, vcc")
        V(f"v_add_u32 v{RB[n]}, v{RA[n]}, v{g}")
        for pz, dst in ((y, RA[n]), (z, RB[n])):
            V(f"v_add_u32 v{pz}, s{sRot}, v{pz}")
            V(f"v_subrev_u32 v{g}, 7, v{pz}")
            V(f"v_min_u32 v{pz}, v{pz}, v{g}")
            V(f"v_lshl_add_u32 v{dst}, v{pz}, 7, v{dst}")
        V(f"v_mov_b32 v{g}, {OOB:#x}")
        V(f"v_cmp_eq_u32 vcc, 17, v{k}")
        V(f"v_cndmask_b32 v{RB[n]}, v{RB[n]}, v{g}, vcc")
        if n:
            V(f"v_cmp_gt_u32 vcc, 8, v{vLANE}")
            for r in (RA[1], RB[1]):
                V(f"v_cndmask_b32 v{r}, v{g}, v{r}, vcc")


def tail():
    c = []
    S = lambda t: c.append(salu(t))
    V = lambda t: c.append(valu(t))
    W = lambda t: c.append(I(f"s_waitcnt {t}", "W"))
    BAR = lambda: c.append(I("s_barrier", "B"))
    HK, OWN, HSB, PH = 192, 128, 160, 224
    hs, fs_p, hs_p, own_nm = 246, 240, 242, 244
    c += pst()
    V(f"v_and_b32 v{vT0}, 7, v{vLANE}")
    V(f"v_lshlrev_b32 v{vT0}, 2, v{vT0}")
    S(f"s_lshl_b32 s{sC1}, s{sB}, 5")
    S(f"s_mov_b32 s{sC2}, 0x01010101")
    c.append(bload(1, ("v", vT1), vT0, sDBG, sC1, 0, " sc0 sc1"))
    V(f"v_add_u32 v{KA[0]}, s{sE6}, v{vST}")
    V(f"v_xor_b32 v{KA[1]}, 16384, v{KA[0]}")
    V(f"v_mov_b32 v{hs}, v{NEGM[2]}")
    V(f"v_mov_b32 v{hs + 1}, v{LS[2]}")
    V(f"v_mov_b32 v{own_nm}, v{NEGM[0]}")
    c.append(ds_w64(XA[0], ("v", hs), 0))
    S(f"s_cmp_eq_u32 s{sXW}, 0")
    c.append(I("s_cbranch_scc1 L_h0", "BR"))
    for half, lab, nxt in ((1, None, "L_h1"), (0, "L_h0", None)):
        if lab:
            c.append(I(f"{lab}:", "LAB"))
        for T in range(8):
            i = ds_w128(KA[0], ("a", OB[2] + 32 * (1 - half) + 4 * T), SLOT + T * 1024)
            if half == 1:
                i.kind = "X"
            c.append(i)
        for r in range(32):
            c.append(AR(HK + r, OB[2] + 32 * half + r))
        if nxt:
            c.append(I(f"s_branch {nxt}", "BR"))
    c.append(I("L_h1:", "LAB"))
    S(f"s_lshl_b32 s{sT0}, s{sXW}, 12")
    S(f"s_add_u32 s{sT0}, s{sT0}, 32768")
    S(f"s_lshl_b32 s{sT1}, s{sXW}, 9")
    S(f"s_add_u32 s{sT1}, s{sT1}, 43008")
    S(f"s_cmp_eq_u32 s{sHW}, 1")
    S(f"s_cselect_b32 s{sT2}, s{sE0}, {OOB:#x}")
    S(f"s_cselect_b32 s{sT3}, {OOB:#x}, s{sE1}")
    S(f"s_add_u32 s{sE2}, s{sT3}, s{sT0}")
    S(f"s_add_u32 s{sE3}, s{sT3}, s{sT1}")
    S(f"s_add_u32 s{sE4}, s{sT2}, s{sT0}")
    S(f"s_add_u32 s{sE5}, s{sT2}, s{sT1}")
    W("lgkmcnt(0)")
    BAR()
    c += pst()
    c.append(ds_r64(("v", hs_p), XA[1], 0))
    for T in range(8):
        c.append(ds_r128(("v", OWN + 4 * T), KA[1], SLOT + T * 1024))
    nm, a_o, a_p = 253, 248, 236
    V(f"v_min_f32 v{nm}, v{hs}, v{hs_p}")
    V(f"v_sub_f32 v{a_o}, v{nm}, v{hs}")
    V(f"v_sub_f32 v{a_p}, v{nm}, v{hs_p}")
    V(f"v_exp_f32 v{a_o}, v{a_o}")
    V(f"v_exp_f32 v{a_p}, v{a_p}")
    V(f"v_mov_b32 v{hs}, v{nm}")
    V(f"v_mul_f32 v{hs + 1}, v{a_o}, v{hs + 1}")
    V(f"v_fmac_f32 v{hs + 1}, v{a_p}, v{hs_p + 1}")
    V(f"v_mov_b32 v{a_o + 1}, v{a_o}")
    V(f"v_mov_b32 v{a_p + 1}, v{a_p}")
    c.append(bstore(2, ("v", hs), vT2, sWS, sE5, 0, STF))
    for r in range(0, 32, 2):
        c.append(pk("v_pk_mul_f32", HK + r, HK + r, a_o))
    for T in range(8):
        for r in (0, 2):
            c.append(pk("v_pk_fma_f32", HK + 4 * T + r, OWN + 4 * T + r, a_p, HK + 4 * T + r))
        V(f"v_cvt_pk_bf16_f32 v{HSB + 2 * T}, v{HK + 4 * T}, v{HK + 4 * T + 1}")
        V(f"v_cvt_pk_bf16_f32 v{HSB + 2 * T + 1}, v{HK + 4 * T + 2}, v{HK + 4 * T + 3}")
        if T & 1:
            c.append(bstore(4, ("v", HSB + 2 * (T - 1)), vST, sWS, sE4, (T >> 1) * 1024, STF))
    c += pst()
    f = [AR(OWN + r, OB[0] + r) for r in range(64)]
    for pre, d in wo_dma(4, WSL[4])[0]:
        c += [f.pop(0) for _ in range(8)] + pre + [d]
    c += pst()
    W("vmcnt(8)")
    S(f"s_mov_b32 s{sCnt}, 0")
    c.append(I("L_an:", "LAB"))
    V(f"v_cmp_ne_u32 vcc, s{sC2}, v{vT1}")
    S(f"s_add_u32 s{sCnt}, s{sCnt}, 1")
    c.append(I("s_cbranch_vccz L_and", "BR", [("vcc", 0)]))
    c.append(raw(f"buffer_load_dword v{vT1}, v{vT0}, s[{sDBG}:{sDBG + 3}], s{sC1} offen sc0 sc1", "X"))
    c.append(raw("s_waitcnt vmcnt(0)", "X"))
    S(f"s_cmp_lt_u32 s{sCnt}, 2000000")
    c.append(I("s_cbranch_scc1 L_an", "BR"))
    c.append(I("L_and:", "LAB"))
    S(f"s_xor_b32 s{sT0}, s{sIN}, {16 << ISH}")
    S(f"s_lshl_b32 s{sT1}, s{sW}, 2")
    S(f"s_add_u32 s{sT0}, s{sT0}, s{sT1}")
    V(f"v_mov_b32 v{vT0}, 1")
    V(f"v_mov_b32 v{vT1}, 0")
    c.append(bstore(1, ("v", vT0), vT1, sWS, sT0, 64, FLF))
    BAR()
    c += pst()
    f = []
    wfrag_reads(f, 2)
    wfrag_reads(f, 3)
    decode(f)
    for o in (5, 6):
        for pre, d in wo_dma(o, WSL[o])[0]:
            c += pre + [d] + [f.pop(0) for _ in range(min(8, len(f)))]
    c += f
    S(f"s_add_u32 s{sT1}, s{sE1}, s{sE6}")
    S(f"s_add_u32 s{sT2}, s{sT1}, 4096")
    S(f"s_lshl_b32 s{sT3}, s{sW}, 9")
    S(f"s_add_u32 s{sT3}, s{sT3}, s{sE1}")
    S(f"s_add_u32 s{sT3}, s{sT3}, 40960")
    S(f"s_lshl_b32 s{sT0}, s{sXW}, 3")
    S(f"s_add_u32 s{sT0}, s{sT0}, s{sIN}")
    c += pst()
    S(f"s_mov_b32 s{sCnt}, 0")
    c.append(I("L_p1:", "LAB"))
    if OPT.get("slp"):
        c.append(raw(f"s_sleep {OPT['slp']}"))
    c.append(raw(f"buffer_load_dwordx2 v[{fs_p}:{fs_p + 1}], v{vT1}, s[{sWS}:{sWS + 3}], s{sT0} offen offset:64{FLF}", "X"))
    S(f"s_add_u32 s{sCnt}, s{sCnt}, 1")
    c.append(raw("s_waitcnt vmcnt(0)", "X"))
    V(f"v_and_b32 v{fs_p}, v{fs_p}, v{fs_p + 1}")
    S(f"s_cmp_gt_u32 s{sCnt}, 2000000")
    V(f"v_readfirstlane_b32 s{sD}, v{fs_p}")
    c.append(I("s_cbranch_scc1 L_p1d", "BR"))
    S(f"s_cmp_eq_u32 s{sD}, 0")
    c.append(I("s_cbranch_scc1 L_p1", "BR"))
    c.append(I("L_p1d:", "LAB"))
    c += pst()
    c.append(bload(2, ("v", fs_p), vT2, sWS, sT3, 0, LDF))
    c.append(bload(2, ("v", hs_p), vT2, sWS, sE3, 0, LDF))
    for kb in range(8):
        c.append(bload(4, ("v", FSB + 4 * kb), vST, sWS, sT1 if kb < 4 else sT2, (kb & 3) * 1024, LDF))
    for kb in range(4):
        c.append(bload(4, ("v", PH + 4 * kb), vST, sWS, sE2, kb * 1024, LDF))
    W("lgkmcnt(0)")
    BAR()
    S(f"s_lshl_b32 s{sT0}, s{sXW}, 12")
    S(f"s_lshl_b32 s{sT1}, s{sHW}, 13")
    S(f"s_add_u32 s{sT0}, s{sT0}, s{sT1}")
    S(f"s_add_u32 s{sT0}, s{sT0}, {2 * SLOT}")
    V(f"v_add_u32 v{KA[1]}, s{sT0}, v{vST}")
    S(f"s_mul_i32 s{sE0}, s{sID}, {PART_WG}")
    S(f"s_mul_i32 s{sT0}, s{sW}, {18 * 1024}")
    S(f"s_add_u32 s{sE0}, s{sE0}, s{sT0}")
    S(f"s_add_u32 s{sE0}, s{sE0}, {PART0}")
    S(f"s_add_u32 s{sE1}, s{sE0}, {14 * 1024}")
    V(f"v_add_u32 v{XA[0]}, {2 * SLOT}, v{vST}")
    W("vmcnt(12)")
    c += pst()
    co, cp, ch, cq = 248, 254, vK0, VA[0]
    merge_coef(c, own_nm, LS[0], fs_p, co, cp, 253)
    merge_coef(c, hs, hs + 1, hs_p, ch, cq, 253)
    for r in range(0, 64, 2):
        c.append(pk("v_pk_mul_f32", OWN + r, OWN + r, co))
    for r in range(0, 32, 2):
        c.append(pk("v_pk_mul_f32", HK + r, HK + r, ch))
    u = [240, 242]
    left, nd = 12, 0
    for own, pay, n, cc, addr in ((OWN, FSB, 8, cp, KA[0]), (HK, PH, 4, cq, KA[1])):
        for kb in range(n):
            left -= 1
            W(f"vmcnt({left + nd})")
            for r in range(4):
                p, o, t = pay + 4 * kb + r, own + 8 * kb + 2 * r, u[r & 1]
                V(f"v_lshlrev_b32 v{t}, 16, v{p}")
                V(f"v_and_b32 v{t + 1}, 0xffff0000, v{p}")
                c.append(pk("v_pk_fma_f32", o, t, cc, o))
                V(f"v_cvt_pk_bf16_f32 v{p}, v{o}, v{o + 1}")
            c.append(ds_w128(addr, ("v", pay + 4 * kb), kb * 1024))
    W("lgkmcnt(0)")
    BAR()
    return c


def o_phase():
    mf, tasks = [], []
    ACC = [192, 212]
    PK = [[232, 236], [240, 244]]
    HST = 248
    prev = None
    for kb in range(8):
        for blk in range(5):
            c0 = kb * 5 + blk
            i = ds_r128(OFR(blk, kb), vST, blk * 8192 + kb * 1024) if blk < 4 else ds_r128(OFR(blk, kb), XA[0], kb * 1024)
            prev = Task(i, "L", rel=-1, dl=-1 if c0 < 10 else c0 - 8, deps=[(prev, 0)] if prev else [], name="ord")
            tasks.append(prev)
    for o in (4, 5, 6):
        cc = []
        wfrag_reads(cc, o)
        for k, i in enumerate(cc):
            prev = Task(i, "L", dl=40 * o + (k >> 1) * 5 - 8, deps=[(prev, 0)], name="wrd")
            tasks.append(prev)
    prev_st, prev_inc = {}, None
    for o in range(7):
        p = o & 1
        firstm = len(mf)
        for kb in range(8):
            for blk in range(5):
                d = ("v", ACC[p] + 4 * blk)
                mf.append(mfma(d, (WFR[o][0], WFR[o][1] + 4 * kb), OFR(blk, kb), 0 if kb == 0 else d))
        dl = firstm + 80 - 3
        cvs = {}
        for blk in range(5):
            for h in range(2):
                dst, key = (HST + 2 * p + h, "H") if blk == 4 else (PK[p][blk >> 1] + 2 * (blk & 1) + h, (p, blk >> 1))
                s = ACC[p] + 4 * blk + 2 * h
                t = Task(valu(f"v_cvt_pk_bf16_f32 v{dst}, v{s}, v{s + 1}"), "V", rel=firstm + 35 + blk + MLAT, dl=dl,
                         deps=[(prev_st[key], 2)] if key in prev_st else [], name="cvt")
                tasks.append(t)
                cvs.setdefault(key, []).append(t)
        sts = []
        for pr in range(2):
            st = Task(bstore(4, ("v", PK[p][pr]), vST, sWS, sE0, p * 2048 + pr * 1024, STF), "D",
                      deps=[(t, 1) for t in cvs[(p, pr)]] + ([(prev_inc, 0)] if prev_inc else []), name="st")
            tasks.append(st)
            prev_st[(p, pr)] = st
            sts.append(st)
        if p == 0:
            hcv, sts0 = cvs["H"], sts
        if p == 1 or o == 6:
            st = Task(bstore(4, ("v", HST), vST, sWS, sE1, (o >> 1) * 1024, STF), "D", deps=[(t, 1) for t in hcv + cvs["H"]], name="stH")
            tasks.append(st)
            prev_st["H"] = st
            prev_inc = Task(salu(f"s_add_u32 s{sE0}, s{sE0}, 4096"), "S", deps=[(t, 0) for t in sts + sts0], name="inc")
            tasks.append(prev_inc)
    gaps = schedule(mf, tasks, verbose=True)
    for o in range(7):
        mf[40 * o].mark = ("N", o)
    return linearize(mf, gaps)


def final():
    c = []
    S = lambda t: c.append(salu(t))
    V = lambda t: c.append(valu(t))
    W = lambda t: c.append(I(f"s_waitcnt {t}", "W"))
    S(f"s_and_b32 s{sT0}, s{sID}, 0xf0")
    S(f"s_mul_i32 s{sE2}, s{sT0}, {PART_WG}")
    S(f"s_add_u32 s{sE2}, s{sE2}, {PART0}")
    S(f"s_add_u32 s{sE3}, s{sE2}, {8 * PART_WG}")
    S(f"s_lshl_b32 s{sT1}, s{sW}, 2")
    S(f"s_add_u32 s{sT1}, s{sT1}, s{sT0}")
    S(f"s_lshl_b32 s{sT1}, s{sT1}, {ISH}")
    S(f"s_lshl_b32 s{sT2}, s{sH}, 2")
    S(f"s_add_u32 s{sT1}, s{sT1}, s{sT2}")
    S(f"s_add_u32 s{sT1}, s{sT1}, {INBOX}")
    V(f"v_and_b32 v{vK0}, 3, v{vLANE}")
    V(f"v_lshlrev_b32 v{vK0}, {ISH}, v{vK0}")
    V(f"v_and_b32 v{vK1}, 15, v{vLANE}")
    V(f"v_lshlrev_b32 v{vK1}, 2, v{vK1}")
    V(f"v_mov_b32 v{vT0}, 1")
    c += pst()
    c.append(raw(f"buffer_load_dword v{vV}, v{vK1}, s[{sWS}:{sWS + 3}], s{sIN} offen{FLF}", "X"))
    W("vmcnt(0)")
    c += pst()
    c.append(bstore(1, ("v", vT0), vK0, sWS, sT1, 0, FLF))
    S(f"s_mov_b32 s{sCnt}, 0")
    S(f"s_mov_b32 s{sT2}, 0")
    c.append(I("L_p2:", "LAB"))
    V(f"v_cmp_ne_u32 vcc, 0, v{vV}")
    S(f"s_add_u32 s{sCnt}, s{sCnt}, 1")
    c.append(I(f"s_and_b32 s{sT3}, vcc_lo, 0xffff", "S", [("vcc", 0)], [("s", sT3)]))
    S(f"s_cmp_gt_u32 s{sCnt}, 2000000")
    S(f"s_cselect_b32 s{sT3}, 0xffff, s{sT3}")
    S(f"s_andn2_b32 s{sT1}, s{sT3}, s{sT2}")
    S(f"s_mov_b32 s{sT2}, s{sT3}")
    for p in range(16):
        c.append(raw(f"s_bitcmp1_b32 s{sT1}, {p}"))
        c.append(I(f"s_cbranch_scc0 L_g{p}", "BR"))
        S(f"s_add_u32 s{sD}, s{sE2}, {p * PART_WG}")
        i = bload(4, ("v", 32 + p * 4), RI[0], sWS, sD, 0, LDF)
        i.kind = "X"
        c.append(i)
        c.append(I(f"L_g{p}:", "LAB"))
    S(f"s_cmp_eq_u32 s{sT2}, 0xffff")
    c.append(I("s_cbranch_scc1 L_p2d", "BR"))
    c.append(raw(f"buffer_load_dword v{vV}, v{vK1}, s[{sWS}:{sWS + 3}], s{sIN} offen{FLF}", "X"))
    c.append(raw("s_waitcnt vmcnt(0)", "X"))
    c.append(I("s_branch L_p2", "BR"))
    c.append(I("L_p2d:", "LAB"))
    c += pst()
    c.append(bload(4, ("v", 96), RI[1], sWS, sE2, 0, LDF))
    c.append(bload(4, ("v", 100), RI[1], sWS, sE3, 0, LDF))
    A0, A1, U = 192, 200, [208, 210]
    c += pst()

    def acc(a, x, first):
        for r in range(4):
            t = a + 2 * r if first else U[r & 1]
            V(f"v_lshlrev_b32 v{t}, 16, v{x + r}")
            V(f"v_and_b32 v{t + 1}, 0xffff0000, v{x + r}")
            if not first:
                c.append(pk("v_pk_add_f32", a + 2 * r, a + 2 * r, t))

    W("vmcnt(2)")
    c += pst()
    for p in range(16):
        acc(A0, 32 + 4 * p, p == 0)
    W("vmcnt(0)")
    acc(A1, 96, True)
    acc(A1, 100, False)
    for sw in ("v_permlane32_swap_b32", "v_permlane16_swap_b32"):
        for r in range(8):
            V(f"v_mov_b32 v{212 + r}, v{A1 + r}")
        for r in range(8):
            V(f"{sw} v{A1 + r}, v{212 + r}")
        for r in range(0, 8, 2):
            c.append(pk("v_pk_add_f32", A1 + r, A1 + r, 212 + r))
    c.append(nop(1))
    for r in range(8):
        c.append(I(f"v_add_f32_dpp v{A1 + r}, v{A1 + r}, v{A1 + r} row_ror:8 row_mask:0xf bank_mask:0xf", "V", [("v", A1 + r)], [("v", A1 + r)]))
    for n, a in enumerate((A0, A1)):
        for r in range(4):
            V(f"v_cvt_pk_bf16_f32 v{220 + n * 4 + r}, v{a + 2 * r}, v{a + 2 * r + 1}")
        c.append(bstore(2, ("v", 220 + n * 4), RA[n], sOUT, "0", 0))
        c.append(bstore(2, ("v", 220 + n * 4 + 2), RB[n], sOUT, "0", 0))
    c += pst() + pst()
    return c


def norm(ins):
    t = ins.text
    if "@" in t:
        a, b = t.split("@")
        if b.startswith("CODE"):
            return t
        return f"{a}@{int(b.rstrip(':')) % 4}"
    return t


def fold(code):
    segs, cur, keys, key = [], [], [], None
    for ins in code:
        if ins.kind == "M" and ins.mark is not None:
            segs.append(cur)
            keys.append(key)
            cur, key = [], ins.mark
        if ins.kind == "LAB" and ins.tag and ins.tag[0] == "cut":
            segs.append(cur)
            keys.append(key)
            cur, key = [], None
            continue
        cur.append(ins)
    segs.append(cur)
    keys.append(key)
    print("; est cycles/seg:", [gap_cost(s) for s in segs])
    txt = [tuple(norm(i) for i in s) for s in segs]
    out, i, nloop, n = [], 0, 0, len(segs)
    sitekey = lambda s: (s["j"] % 4, tuple(sorted((b, tuple(v)) for b, v in s["later_blk"].items())), tuple(x % 4 for x in s["pend"]), s["blks"])
    sinfo = {s["j"]: s for s in sites}
    sites_in = lambda seg: [sitekey(sinfo[x.tag[1]]) for x in seg if x.kind == "BR" and x.tag and x.tag[0] == "site"]
    while i < n:
        k = 1
        if keys[i] is not None:
            p = {"M": 4, "Q": 2}.get(keys[i][0], 1)
            while i + (k + 1) * p <= n and all(keys[i + k * p + r] is not None and txt[i + k * p + r] == txt[i + r] and
                                               sites_in(segs[i + k * p + r]) == sites_in(segs[i + r]) for r in range(p)):
                k += 1
        if k >= 2:
            out.append(salu(f"s_mov_b32 s{sCnt}, {k}"))
            out.append(I(f"L_loop{nloop}:", "LAB"))
            for r in range(p):
                out += segs[i + r]
            out += [salu(f"s_sub_u32 s{sCnt}, s{sCnt}, 1"), salu(f"s_cmp_lg_u32 s{sCnt}, 0"), I(f"s_cbranch_scc1 L_loop{nloop}", "BR")]
            nloop += 1
            i += p * k
        else:
            out += segs[i]
            i += 1
    return out


def cut():
    return I("", "LAB", tag=("cut",))


def build():
    code = prologue() + stamp(1) + q_phase() + [cut()] + stamp(2) + q_finish() + stamp(3) + main_phase() + [cut()] + stamp(4)
    code += tail() + stamp(6) + o_phase() + [cut()] + final()
    if STAMP:
        nc = []
        for ins in code:
            nc.append(ins)
            if ins.kind == "M" and ins.mark is not None:
                if ins.mark[0] == "N" and ins.mark[1] not in (0,):
                    continue
                nc += pst()[1:]
        code = [raw("s_mov_b64 s[80:81], 1"), raw("s_mov_b32 s96, 0")] + nc
    code = insert_lgkm_waits(code, age=OPT["age"])
    code = resolve_vm_waits(code)
    code, nf = check_hazards(code)
    code = fold(code)
    names, slow = [], []
    sinfo = {s["j"]: s for s in sites}
    for ins in code:
        ins.text = ins.text.replace("@CODEMAX", str(OPT.get("codemax", 45056))).replace("@", "")
        if ins.kind == "BR" and ins.tag and ins.tag[0] == "site":
            j = ins.tag[1]
            sp = slow_path(sinfo[j], str(j)) + [salu(f"s_mov_b32 s{sSite}, {len(names)}"), I("s_branch L_slow_tail", "BR")]
            names.append(str(j))
            slow += check_hazards(sp)[0]
    slow += check_hazards(slow_tail(names))[0]
    fin = []
    if STAMP:
        fin.append(I("s_waitcnt vmcnt(0) lgkmcnt(0)", "W"))
        fin += [raw(f"s_memtime s[100:101]"), raw(f"s_memrealtime s[96:97]"), I("s_waitcnt lgkmcnt(0)", "W")]
        for t in (f"s_lshl_b32 s{sT0}, s2, 2", f"s_add_u32 s{sT0}, s{sT0}, s{sW}", f"s_lshl_b32 s{sT0}, s{sT0}, 6",
                  f"s_lshl_b32 s{sT1}, s{sT0}, 2", f"s_add_u32 s{sT0}, s{sT0}, {128 << 20}", f"s_add_u32 s{sT1}, s{sT1}, {132 << 20}"):
            fin.append(salu(t))
        fin.append(valu(f"v_mov_b32 v{vT0}, 0"))
        for k in range(8):
            fin.append(valu(f"v_mov_b32 v{128 + k}, s{84 + 2 * min(k, 1)}"))
        fin += [valu("v_mov_b32 v136, s100"), valu("v_mov_b32 v137, s96"), valu("v_mov_b32 v138, s98")]
        for k in range(0, 12, 4):
            fin.append(bstore(4, ("v", 128 + k), vT0, sWS, sT0, k * 4))
        fin.append(valu(f"v_lshlrev_b32 v{vT1}, 2, v{vLANE}"))
        fin.append(bstore(1, ("v", 0), vT1, sWS, sT1, 0))
    NAME = "standalone__gqa_block_cached__near_ridge_kernel"
    hdr = open("standalone__gqa_block_cached__near_ridge.s.ref").read().split("; Override launch")[0]
    L = [hdr.rstrip()]
    A = L.append
    A("; @launch grid=(256,1,1) block=(256,1,1) lds=163840")
    A('.amdgcn_target "amdgcn-amd-amdhsa--gfx950"')
    A(".text")
    A(f".globl {NAME}")
    A(".p2align 8")
    A(f".type {NAME},@function")
    A(f"{NAME}:")
    A("s_cmp_ge_u32 s2, 256")
    A("s_cbranch_scc1 L_end")
    L += [i.text for i in code if i.text]
    L += [i.text for i in fin]
    A("L_end:")
    A("s_endpgm")
    L += [i.text for i in slow]
    A('.section .rodata,"a"')
    A(".p2align 6")
    A(f".amdhsa_kernel {NAME}")
    for t in ("next_free_vgpr 512", "next_free_sgpr 102", "accum_offset 256", "group_segment_fixed_size 0", "kernarg_size 64",
              "user_sgpr_count 2", "user_sgpr_kernarg_segment_ptr 1", "system_sgpr_workgroup_id_x 1"):
        A(f"  .amdhsa_{t}")
    A(".end_amdhsa_kernel")
    return "\n".join(L) + "\n"


if __name__ == "__main__":
    out = [a for a in sys.argv[1:] if a.endswith(".s")]
    open(out[0] if out else "k2.s", "w").write(build())
```

```python
import sys
from sched import *

OPT = dict(debug=None, stamp=0, dist=15, age=7, stf="sc1", ldf="sc1", pref=0, rot=1, cpf=1, barlag=3, ish=8, flf="sc1", codemax=49000)
for a in sys.argv[1:]:
    if "=" in a:
        k, v = a.split("=")
        OPT[k] = int(v) if v.lstrip("-").isdigit() else v
    elif a == "stamp":
        OPT["stamp"] = 1
import sched as _sc
for _k in _sc.SOPT:
    if _k in OPT:
        _sc.SOPT[_k] = OPT[_k]
STAMP, DEBUG = OPT["stamp"], OPT["debug"]
STF = " " + OPT["stf"].replace("+", " ") if OPT["stf"] else ""
LDF = " " + OPT["ldf"].replace("+", " ") if OPT["ldf"] else ""

sID = 3
sX, sK, sV, sWQ, sWO, sWS = 8, 12, 16, 20, 24, 28
sDBG, sOUT = 4, 20
INBOX = 48 << 20
sIN = 82
sRot, sXlim, sK3 = 88, 89, 90
sW, sXW, sHW, sB, sH, sSP = 32, 33, 34, 35, 36, 37
sKoff, sVoff, sDst, sDstLim, sDst0 = 38, 39, 40, 41, 42
sHalf, sC1, sC2, sD, sK2 = 43, 44, 45, 46, 47
sPat = 48
sT0, sT1, sT2, sT3 = 50, 51, 52, 53
sThr, sCnt, sSite = 54, 55, 56
sWoff, sXoff, sWdst, sXdst, sWrd, sXrd, sDX = 57, 58, 59, 60, 61, 62, 63
sE0, sE1, sE2, sE3, sE4, sE5, sE6 = 57, 58, 59, 60, 61, 62, 63
sArg = 64
sSt = 80

vLANE, vK0, vK1, vV, vWt, vX, vST = 1, 2, 3, 4, 5, 6, 7
KA = [8, 9]
XA = [10, 11]
VA = [12, 13, 14, 15]
QA = [16, 17, 18]
vU = [19, 20, 21, 22, 23]
LV = [24, 25, 26, 27]
LK0 = 28
vT0, vT1, vT2 = 29, 30, 31
QB = [32, 64, 96]
SB, PB = 128, 176
NEGM = [224, 228, 232]
ET = 236
TS = [[244, 245, 246], [247, 248, 249]]
LS = [250, 251, 252]
vC = 253
vF = [253, 254, 255]
OB = [0, 64, 128]
FB = 192
SLOT = 32768
XBASE, XSL = 3 * SLOT, 20480
EX_WG = 49152
PART0, PART_WG = 16 << 20, 73728
OOB = 0x7ff00000
QSCALE = 0x3DB8AA3B
ISH = OPT.get("ish", 7)
FLF = " " + OPT.get("flf", "sc0+sc1").replace("+", " ")
DIST, MLAT = OPT["dist"], 5


def Sreg(j, kt, blk):
    return SB + ((2 * j + kt) % 4) * 12 + blk * 4


def Preg(j, blk):
    return PB + (j % 4) * 12 + blk * 4


def waitr(vm_keys, lg_key):
    return I("s_waitcnt <resolve>", "W", tag=("resolve", vm_keys, lg_key))


def wait_bar(vm_keys, lg_key):
    return [waitr(vm_keys, lg_key), I("s_barrier", "B")]


def stamp(k):
    return [raw(f"s_memtime s[{84 + 2 * k}:{85 + 2 * k}]")] if STAMP and k < 1 else []


def pst():
    if not STAMP:
        return []
    return [raw("s_waitcnt lgkmcnt(0)", "W"), raw("s_mov_b32 s100, s96"), I("v_mov_b32 v28, s100", "V"), I("v_cndmask_b32 v0, v0, v28, s[80:81]", "V"),
            raw("s_memrealtime s[96:97]" if OPT.get("rt") else "s_memtime s[96:97]"), raw("s_lshl_b64 s[80:81], s[80:81], 1")]


def AR(v, a):
    return I(f"v_accvgpr_read_b32 v{v}, a{a}", "V", [("a", a)], [("v", v)])


def bload(n, dst, voff, srd, soff, imm, flags="", tag=None):
    suf = {1: "dword", 2: "dwordx2", 4: "dwordx4"}[n]
    t = f"buffer_load_{suf} {rtxt(dst[0], dst[1], n)}, v{voff}, s[{srd}:{srd + 3}], s{soff} offen offset:{imm}{flags}"
    return I(t, "D", [("v", voff), ("s", soff)] + R("s", srd, 4), R(dst[0], dst[1], n), tag=tag)


def srd(c, d, arg, size):
    for t in (f"s_mov_b32 s{d}, s{sArg + arg}", f"s_mov_b32 s{d + 1}, s{sArg + arg + 1}", f"s_mov_b32 s{d + 2}, {size}",
              f"s_mov_b32 s{d + 3}, 0x20000"):
        c.append(salu(t))


def qw_dma(cidx):
    g = []
    for x in range(2):
        for t in range(4):
            rows = 32 * x + 16 * (t & 1) + 4 * (t >> 1)
            pre = [salu(f"s_add_u32 m0, s{sWdst}, {x * 16384}")] if t == 0 else []
            pre.append(salu(f"s_add_u32 s{sT0}, s{sWoff}, {rows * 8192 - t * 1024}"))
            g.append((pre, dma(vWt, sWQ, sT0, t * 1024, tag=("QW", cidx))))
    adv = [[salu(f"s_add_u32 s{sWoff}, s{sWoff}, {64 * 8192}")],
           [salu(f"s_cmp_ge_u32 s{sWoff}, {448 * 8192}"), salu(f"s_cselect_b32 s{sT1}, {448 * 8192}, 0")],
           [salu(f"s_sub_u32 s{sWoff}, s{sWoff}, s{sT1}")],
           [salu(f"s_cmp_lt_u32 s{sWdst}, {SLOT}"), salu(f"s_cselect_b32 s{sT1}, {3 * SLOT}, 0")],
           [salu(f"s_add_u32 s{sWdst}, s{sWdst}, s{sT1}")], [salu(f"s_sub_u32 s{sWdst}, s{sWdst}, {SLOT}")]]
    return g, adv


def qx_dma(cidx):
    g = []
    for k in range(5):
        pre = [salu(f"s_add_u32 m0, s{sXdst}, {k * 4096}"), salu(f"s_add_u32 s{sT0}, s{sXoff}, {k * 32 * 896}")]
        g.append((pre, dma(vX, sX, sT0, 0, tag=("QX", cidx))))
    adv = [[salu(f"s_add_u32 s{sXoff}, s{sXoff}, 128")],
           [salu(f"s_cmp_eq_u32 s{sXoff}, s{sXlim}"), salu(f"s_cselect_b32 s{sT1}, 896, 0")],
           [salu(f"s_sub_u32 s{sXoff}, s{sXoff}, s{sT1}")],
           [salu(f"s_cmp_ge_u32 s{sXdst}, {XBASE + 2 * XSL}"), salu(f"s_cselect_b32 s{sT1}, {3 * XSL}, 0")],
           [salu(f"s_sub_u32 s{sXdst}, s{sXdst}, s{sT1}")], [salu(f"s_add_u32 s{sXdst}, s{sXdst}, {XSL}")]]
    return g, adv


def dst_adv():
    return [[salu(f"s_add_u32 s{sDst}, s{sDst}, {SLOT}")],
            [salu(f"s_cmp_eq_u32 s{sDst}, s{sDstLim}"), salu(f"s_cselect_b32 s{sDst}, s{sDst0}, s{sDst}")]]


def kv_dma(kind, tag):
    g = []
    r, off = (sK, sKoff) if kind == "K" else (sV, sVoff)
    for x in range(2):
        for t in range(4):
            pre = []
            if t == 0:
                pre.append(salu(f"s_add_u32 m0, s{sDst}, {x * 16384}") if x else salu(f"s_mov_b32 m0, s{sDst}"))
                if x:
                    pre.append(salu(f"s_add_u32 s{off}, s{off}, 16384"))
            vo = (vK1 if t & 1 else vK0) if kind == "K" else vV
            g.append((pre, dma(vo, r, off, t * 1024, nt=OPT.get("nt", 1), tag=tag)))
    return g, [[salu(f"s_add_u32 s{off}, s{off}, 16384")]] + dst_adv()


def wo_dma(o, slot):
    g = []
    for kk in range(2):
        for t in range(4):
            rows = 32 * kk + 16 * (t >> 1) + 8 * (t & 1)
            pre = [salu(f"s_add_u32 m0, s{sE6}, {slot * SLOT + kk * 4096}")] if t == 0 else []
            if kk == 0 and t == 0 and o > 0:
                pre = [salu(f"s_add_u32 s{sK2}, s{sK2}, 128"),
                       I(f"s_cmp_eq_u32 s{sK2}, s{sK3}\ns_cselect_b32 s{sT0}, 896, 0", "S", [], [("scc", 0), ("s", sT0)]),
                       salu(f"s_sub_u32 s{sK2}, s{sK2}, s{sT0}")] + pre
            pre.append(salu(f"s_add_u32 s{sT0}, s{sK2}, {rows * 896 - t * 1024}"))
            g.append((pre, dma(vWt, sWO, sT0, t * 1024, tag=("WO", o))))
    return g, []


def add_dma(tasks, g, adv, first, rel, dl, spread, gapmin=0):
    prev = first
    pd = None
    n = len(g)
    for k, (pre, d) in enumerate(g):
        ddl = dl - (n - 1 - k) * 3
        for p in pre:
            t = Task(p, "S", rel=rel, dl=ddl, deps=[(prev, 0)], name="dmapre")
            tasks.append(t)
            prev = t
        t = Task(d, "D", rel=rel + k * spread, dl=ddl, deps=[(prev, 1 if (prev.cls == "S" and prev.ins) else 0)] + ([(pd, gapmin)] if pd and gapmin else []), name="dma")
        tasks.append(t)
        prev = pd = t
    for a in adv:
        t = Task(a, "S", rel=rel, dl=dl + 8, deps=[(prev, 0)], name="dmaadv")
        tasks.append(t)
        prev = t
    return prev


def emit_serial(c, g, adv, fill=None):
    for pre, d in g:
        c += pre
        c.append(d)
        if fill:
            for _ in range(6):
                if fill:
                    c.append(fill.pop(0))
    for a in adv:
        c += a


def prologue():
    c = []
    S = lambda t: c.append(salu(t))
    V = lambda t: c.append(valu(t))
    c.append(raw(f"s_load_dwordx16 s[{sArg}:{sArg + 15}], s[0:1], 0"))
    c += stamp(0)
    if STAMP or OPT.get("diag"):
        c.append(raw("s_memrealtime s[98:99]"))
    V(f"v_lshrrev_b32 v{vT0}, 6, v0")
    V(f"v_and_b32 v{vLANE}, 63, v0")
    V(f"v_readfirstlane_b32 s{sW}, v{vT0}")
    def code_prefetch(c):
        c.append(raw(f"s_getpc_b64 s[{sPat}:{sPat + 1}]"))
        c.append(salu(f"s_lshr_b32 s{sD}, s2, 3"))
        c.append(salu(f"s_and_b32 s{sD}, s{sD}, 1"))
        c.append(salu(f"s_lshl_b32 s{sD}, s{sD}, 15"))
        c.append(valu(f"v_lshlrev_b32 v{vU[4]}, 7, v0"))
        c.append(valu(f"v_add_u32 v{vU[4]}, s{sD}, v{vU[4]}"))
        c.append(valu(f"v_min_u32 v{vU[4]}, @CODEMAX, v{vU[4]}"))
        c.append(I(f"global_load_dword v{vU[4]}, v{vU[4]}, s[{sPat}:{sPat + 1}]", "D", [("v", vU[4])], [("v", vU[4])]))

    if OPT.get("cpf") == 1:
        code_prefetch(c)
    S(f"s_lshr_b32 s{sT1}, s2, 3")
    S(f"s_and_b32 s{sT3}, s2, 1")
    S(f"s_lshl_b32 s{sT3}, s{sT3}, 2")
    S(f"s_and_b32 s{sT2}, s{sT1}, 3")
    S(f"s_add_u32 s{sT3}, s{sT3}, s{sT2}")
    S(f"s_and_b32 s{sB}, s2, 6")
    S(f"s_bfe_u32 s{sT2}, s{sT1}, 0x10002")
    S(f"s_add_u32 s{sB}, s{sB}, s{sT2}")
    S(f"s_bfe_u32 s{sH}, s{sT1}, 0x10003")
    S(f"s_lshl_b32 s{sT2}, s{sT3}, 1")
    S(f"s_add_u32 s{sH}, s{sH}, s{sT2}")
    S(f"s_lshr_b32 s{sSP}, s{sT1}, 4")
    S(f"s_lshr_b32 s{sXW}, s{sW}, 1")
    S(f"s_and_b32 s{sHW}, s{sW}, 1")
    S(f"s_lshl_b32 s{sKoff}, s{sB}, 3")
    S(f"s_add_u32 s{sKoff}, s{sKoff}, s{sT3}")
    V(f"v_lshrrev_b32 v{vT0}, 3, v{vLANE}")
    V(f"v_and_b32 v{vT1}, 7, v{vLANE}")
    V(f"v_lshrrev_b32 v{vT2}, 1, v{vT0}")
    V(f"v_xor_b32 v{vK0}, v{vT1}, v{vT2}")
    V(f"v_lshlrev_b32 v{vK0}, 4, v{vK0}")
    V(f"v_lshlrev_b32 v{vV}, 1, v{vT2}")
    V(f"v_xor_b32 v{vV}, v{vT1}, v{vV}")
    V(f"v_lshlrev_b32 v{vV}, 4, v{vV}")
    S(f"s_lshl_b32 s{sT2}, s{sHW}, 6")
    V(f"v_xor_b32 v{vX}, s{sT2}, v{vK0}")
    V(f"v_mul_u32_u24 v{vST}, 896, v{vT0}")
    V(f"v_add_u32 v{vX}, v{vX}, v{vST}")
    V(f"v_and_b32 v{vWt}, 3, v{vT0}")
    V(f"v_lshrrev_b32 v{vST}, 2, v{vT0}")
    V(f"v_lshl_add_u32 v{vWt}, v{vST}, 3, v{vWt}")
    V(f"v_lshlrev_b32 v{vWt}, 13, v{vWt}")
    V(f"v_add_u32 v{vWt}, v{vWt}, v{vV}")
    S(f"s_lshl_b32 s{sT3}, s{sW}, 7")
    V(f"v_add_u32 v{vWt}, s{sT3}, v{vWt}")
    S(f"s_lshl_b32 s{sWoff}, s{sH}, 9")
    S(f"s_mul_i32 s{sXoff}, s{sB}, {160 * 896}")
    S(f"s_mul_i32 s{sT2}, s{sW}, {8 * 896}")
    S(f"s_add_u32 s{sXoff}, s{sXoff}, s{sT2}")
    S(f"s_add_u32 s{sXlim}, s{sXoff}, 896")
    if OPT["rot"]:
        S(f"s_and_b32 s{sT2}, s{sB}, 1")
        S(f"s_lshl_b32 s{sT1}, s{sSP}, 1")
        S(f"s_add_u32 s{sT2}, s{sT2}, s{sT1}")
        S(f"s_lshl_b32 s{sT2}, s{sT2}, 1")
        S(f"s_and_b32 s{sT1}, s{sH}, 3")
        S(f"s_add_u32 s{sT2}, s{sT2}, s{sT1}")
        S(f"s_cmp_ge_u32 s{sT2}, 7")
        S(f"s_cselect_b32 s{sT1}, 7, 0")
        S(f"s_sub_u32 s{sT2}, s{sT2}, s{sT1}")
        S(f"s_lshl_b32 s{sT1}, s{sT2}, 19")
        S(f"s_add_u32 s{sWoff}, s{sWoff}, s{sT1}")
        S(f"s_lshl_b32 s{sT1}, s{sT2}, 7")
        S(f"s_add_u32 s{sXoff}, s{sXoff}, s{sT1}")
    S(f"s_lshl_b32 s{sDst0}, s{sW}, 12")
    S(f"s_add_u32 s{sWdst}, s{sDst0}, {SLOT}")
    S(f"s_lshl_b32 s{sXdst}, s{sW}, 10")
    S(f"s_add_u32 s{sXdst}, s{sXdst}, {XBASE}")
    c.append(I("s_waitcnt lgkmcnt(0)", "W"))
    if STAMP:
        c.append(raw("s_memrealtime s[92:93]"))
    if OPT.get("swarm", 1):
        S(f"s_lshl_b32 s{sT1}, s{sKoff}, 20")
        c.append(raw(f"s_load_dword s91, s[{sArg}:{sArg + 1}], s{sXoff}"))
        c.append(raw(f"s_load_dword s91, s[{sArg + 2}:{sArg + 3}], s{sT1}"))
        c.append(raw(f"s_load_dword s91, s[{sArg + 4}:{sArg + 5}], s{sT1}"))
        c.append(raw(f"s_load_dword s91, s[{sArg + 6}:{sArg + 7}], 0"))
        c.append(raw(f"s_load_dword s91, s[{sArg + 6}:{sArg + 7}], 0xffffc"))
        S(f"s_mov_b32 s{sT1}, {448 * 4096 * 2 - 4}")
        c.append(raw(f"s_load_dword s91, s[{sArg + 6}:{sArg + 7}], s{sT1}"))
    srd(c, sWQ, 6, 448 * 4096 * 2)
    srd(c, sX, 0, 8 * 160 * 448 * 2)
    f = []
    c2, c = c, f
    S = lambda t: f.append(salu(t))
    V = lambda t: f.append(valu(t))
    V(f"v_and_b32 v{vST}, 1, v{vT0}")
    V(f"v_lshl_add_u32 v{vST}, v{vT2}, 3, v{vST}")
    V(f"v_lshlrev_b32 v{vST}, 9, v{vST}")
    V(f"v_add_u32 v{vST}, s{sT3}, v{vST}")
    V(f"v_add_u32 v{vK0}, v{vK0}, v{vST}")
    V(f"v_add_u32 v{vV}, v{vV}, v{vST}")
    V(f"v_xor_b32 v{vK1}, 64, v{vK0}")
    srd(f, sK, 2, 0x4000000)
    srd(f, sV, 4, 0x4000000)
    srd(f, sWO, 8, 448 * 4096 * 2)
    srd(f, sWS, 14, 0x10000000)
    S(f"s_lshl_b32 s{sKoff}, s{sKoff}, 20")
    S(f"s_lshl_b32 s{sVoff}, s{sSP}, 19")
    S(f"s_add_u32 s{sKoff}, s{sKoff}, s{sVoff}")
    S(f"s_mov_b32 s{sVoff}, s{sKoff}")
    S(f"s_lshl_b32 s{sID}, s{sB}, 1")
    S(f"s_add_u32 s{sID}, s{sID}, s{sSP}")
    S(f"s_lshl_b32 s{sID}, s{sID}, 4")
    S(f"s_add_u32 s{sID}, s{sID}, s{sH}")
    srd(f, sDBG, 12, 256)
    S(f"s_lshl_b32 s{sIN}, s{sID}, {ISH}")
    S(f"s_add_u32 s{sIN}, s{sIN}, {INBOX}")
    f.append(I(f"s_cmp_eq_u32 s{sW}, 0\ns_cselect_b32 s{sT2}, s{sIN}, {OOB:#x}\ns_cselect_b32 s{sIN + 1}, s{sID}, {OOB:#x}", "S"))
    V(f"v_and_b32 v{vT0}, 31, v{vLANE}")
    V(f"v_lshlrev_b32 v{vT0}, 2, v{vT0}")
    V(f"v_mov_b32 v{vU[2]}, 0")
    V(f"v_mov_b32 v{vU[3]}, 1")
    f.append(bstore(1, ("v", vU[2]), vT0, sWS, sT2, 0, " sc0 sc1"))
    f.append(nop(1))
    V(f"v_and_b32 v{vT0}, 15, v{vLANE}")
    V(f"v_lshrrev_b32 v{vT1}, 4, v{vLANE}")
    V(f"v_lshrrev_b32 v{vT2}, 1, v{vT0}")
    V(f"v_xor_b32 v{LK0}, v{vT1}, v{vT2}")
    V(f"v_lshlrev_b32 v{LK0}, 4, v{LK0}")
    V(f"v_lshl_add_u32 v{LK0}, v{vT0}, 7, v{LK0}")
    V(f"v_lshrrev_b32 v{vT0}, 2, v{vLANE}")
    V(f"v_and_b32 v{vT1}, 6, v{vT0}")
    V(f"v_bfe_u32 v{vT2}, v{vLANE}, 1, 1")
    V(f"v_xor_b32 v{vT1}, v{vT1}, v{vT2}")
    V(f"v_lshlrev_b32 v{vT1}, 4, v{vT1}")
    V(f"v_lshl_add_u32 v{vT1}, v{vT0}, 7, v{vT1}")
    V(f"v_and_b32 v{vT2}, 1, v{vLANE}")
    V(f"v_lshl_add_u32 v{LV[0]}, v{vT2}, 3, v{vT1}")
    for k in range(1, 4):
        V(f"v_xor_b32 v{LV[k]}, {32 * k}, v{LV[0]}")
    S(f"s_add_u32 s{sT2}, s{sDst0}, {SLOT}")
    for k in range(4):
        V(f"v_add_u32 v{VA[k]}, s{sT2}, v{LV[k]}")
    V(f"v_add_u32 v{XA[0]}, {XBASE}, v{LK0}")
    V(f"v_xor_b32 v{XA[1]}, 64, v{XA[0]}")
    S(f"s_mov_b32 s{sWrd}, {SLOT}")
    S(f"s_mov_b32 s{sXrd}, 0")
    S(f"s_add_u32 s{sDstLim}, s{sDst0}, {5 * SLOT}")
    S(f"s_mov_b32 s{sDst}, s{sDst0}")
    S(f"s_lshl_b32 s{sHalf}, s{sXW}, 15")
    S(f"s_sub_u32 s{sHalf}, s{sHalf}, 16384")
    S(f"s_sub_u32 s{sC1}, {2 * SLOT}, s{sHalf}")
    S(f"s_sub_u32 s{sC2}, {(-3 * SLOT) & 0xffffffff}, s{sHalf}")
    S(f"s_mov_b32 s{sThr}, 0x53800000")
    pat = 0
    for j in range(40):
        if (j + 1) % 5 < (j - 1) % 5:
            pat |= 1 << j
    S(f"s_mov_b32 s{sPat}, {pat & 0xffffffff:#x}")
    S(f"s_mov_b32 s{sPat + 1}, {pat >> 32:#x}")
    S(f"s_lshl_b32 s{sT2}, s{sXW}, 14")
    S(f"s_sub_u32 s{sT2}, 16384, s{sT2}")
    V(f"v_add_u32 v{KA[0]}, s{sT2}, v{LK0}")
    V(f"v_xor_b32 v{KA[1]}, 64, v{KA[0]}")
    V(f"v_and_b32 v{vT0}, 15, v{vLANE}")
    V(f"v_lshlrev_b32 v{vT0}, 4, v{vT0}")
    V(f"v_lshrrev_b32 v{vT1}, 5, v{vLANE}")
    V(f"v_lshl_add_u32 v{vT0}, v{vT1}, 8, v{vT0}")
    V(f"v_bfe_u32 v{vT1}, v{vLANE}, 4, 1")
    V(f"v_lshl_add_u32 v{vT0}, v{vT1}, 3, v{vT0}")
    S(f"s_lshl_b32 s{sT2}, s{sW}, 11")
    S(f"s_add_u32 s{sT3}, s{sT2}, {XBASE}")
    V(f"v_add_u32 v{vU[0]}, s{sT3}, v{vT0}")
    S(f"s_add_u32 s{sT3}, s{sT2}, {SLOT}")
    V(f"v_add_u32 v{vU[1]}, s{sT3}, v{vT0}")
    V(f"v_lshlrev_b32 v{vST}, 4, v{vLANE}")
    S(f"s_lshl_b32 s{sT2}, s{sW}, 1")
    S(f"s_add_u32 s{sT2}, s{sT2}, s{sSP}")
    S(f"s_lshl_b32 s{sT2}, s{sT2}, 13")
    S(f"s_add_u32 s{sT2}, s{sT2}, {XBASE}")
    V(f"v_add_u32 v{QA[0]}, s{sT2}, v{vST}")
    V(f"v_xor_b32 v{QA[1]}, 8192, v{QA[0]}")
    S(f"s_xor_b32 s{sT2}, s{sHW}, s{sSP}")
    S(f"s_lshl_b32 s{sT2}, s{sT2}, 13")
    S(f"s_add_u32 s{sT2}, s{sT2}, {SLOT}")
    V(f"v_add_u32 v{QA[2]}, s{sT2}, v{vST}")
    S(f"s_lshl_b32 s{sK2}, s{sH}, 2")
    S(f"s_add_u32 s{sK2}, s{sK2}, s{sW}")
    S(f"s_mul_i32 s{sK2}, s{sK2}, {64 * 896}")
    S(f"s_add_u32 s{sK3}, s{sK2}, 896")
    S(f"s_and_b32 s{sRot}, s{sB}, 1")
    S(f"s_lshl_b32 s{sT2}, s{sSP}, 1")
    S(f"s_add_u32 s{sRot}, s{sRot}, s{sT2}")
    S(f"s_mul_i32 s{sRot}, s{sRot}, {2 * OPT['rot']}")
    S(f"s_lshl_b32 s{sT2}, s{sRot}, 7")
    S(f"s_add_u32 s{sK2}, s{sK2}, s{sT2}")
    c = c2
    for fn, cidx in ((qw_dma, 0), (qx_dma, 0), (qw_dma, 1)):
        g, adv = fn(cidx)
        emit_serial(c, g, adv, f if (OPT.get("ilv", 1) or cidx == 1) else None)
        if STAMP and fn is qx_dma:
            c.append(raw("s_memrealtime s[94:95]"))
        if fn is qx_dma and OPT.get("cpf") == 2:
            code_prefetch(c)
    c += f
    if STAMP:
        c.append(raw("s_memrealtime s[86:87]"))
    c.append(I("s_waitcnt lgkmcnt(0)", "W"))
    if OPT["pref"]:
        S = lambda t: c.append(salu(t))
        V = lambda t: c.append(valu(t))
        S(f"s_and_b32 s{sT0}, s{sB}, 1")
        S(f"s_lshl_b32 s{sT0}, s{sT0}, 1")
        S(f"s_add_u32 s{sT0}, s{sT0}, s{sSP}")
        S(f"s_lshl_b32 s{sT0}, s{sT0}, 2")
        S(f"s_add_u32 s{sT0}, s{sT0}, s{sW}")
        V(f"v_lshrrev_b32 v{vT0}, 2, v{vLANE}")
        V(f"v_lshlrev_b32 v{vT0}, 13, v{vT0}")
        V(f"v_and_b32 v{vT1}, 3, v{vLANE}")
        V(f"v_lshl_add_u32 v{vT0}, v{vT1}, 7, v{vT0}")
        S(f"s_lshl_b32 s{sT1}, s{sT0}, 17")
        S(f"s_add_u32 s{sT1}, s{sT1}, s{sWoff}")
        c.append(bload(1, ("v", 32), vT0, sWQ, sT1, 0))
        S(f"s_lshr_b32 s{sT1}, s2, 3")
        S(f"s_and_b32 s{sT2}, s{sT1}, 3")
        S(f"s_lshr_b32 s{sT1}, s{sT1}, 3")
        S(f"s_lshl_b32 s{sT1}, s{sT1}, 2")
        S(f"s_add_u32 s{sT1}, s{sT1}, s{sT2}")
        S(f"s_lshl_b32 s{sT1}, s{sT1}, 2")
        S(f"s_add_u32 s{sT1}, s{sT1}, s{sW}")
        S(f"s_mul_i32 s{sT1}, s{sT1}, {18 * 128}")
        S(f"s_mul_i32 s{sT2}, s{sB}, {160 * 896}")
        S(f"s_add_u32 s{sT1}, s{sT1}, s{sT2}")
        V(f"v_min_u32 v{vT1}, 17, v{vLANE}")
        V(f"v_lshlrev_b32 v{vT1}, 7, v{vT1}")
        c.append(bload(1, ("v", 33), vT1, sX, sT1, 0))
        c.append(raw(f"s_getpc_b64 s[{sT2}:{sT3}]"))
        S(f"s_and_b32 s{sT1}, s{sT0}, 7")
        S(f"s_lshl_b32 s{sT1}, s{sT1}, 13")
        V(f"v_lshlrev_b32 v{vT1}, 7, v{vLANE}")
        V(f"v_add_u32 v{vT1}, s{sT1}, v{vT1}")
        V(f"v_min_u32 v{vT1}, @CODEMAX, v{vT1}")
        c.append(I(f"global_load_dword v34, v{vT1}, s[{sT2}:{sT3}]", "D", [("v", vT1)], [("v", 34)]))
        S(f"s_mul_i32 s{sT1}, s{sH}, {256 * 896}")
        S(f"s_mul_i32 s{sT0}, s{sT0}, {112 * 128}")
        S(f"s_add_u32 s{sT1}, s{sT1}, s{sT0}")
        V(f"v_lshlrev_b32 v{vT1}, 7, v{vLANE}")
        if OPT["pref"] > 1:
            c.append(bload(1, ("v", 35), vT1, sWO, sT1, 0))
            S(f"s_add_u32 s{sT1}, s{sT1}, {48 * 128}")
            c.append(bload(1, ("v", 36), vT1, sWO, sT1, 0))
    return c


def qacc(blk, t):
    return 96 + (blk * 4 + t) * 4


def q_phase():
    mf, tasks, marks = [], [], []
    WF = lambda c, ks, t: (c & 1) * 32 + (ks * 4 + t) * 4
    XF = lambda blk, ks: 64 + (blk * 2 + ks) * 4
    bar, lastx, lastaddr, xuse, wuse = {}, {}, {}, {}, {}
    prev_dma, prev_aups = None, []
    allreads = []
    for cidx in range(7):
        start = 80 * cidx
        marks.append(start)
        if cidx == 0:
            bar[0] = Task(wait_bar([("QX", 0)], None), "BAR", rel=-1, dl=-1, name="bar0")
            wready = bar[0]
        else:
            bar[cidx] = Task(wait_bar([("QX", cidx)], ("XR", cidx - 1)), "BAR", rel=start - 20, dl=start - 10, deps=[(lastx[cidx - 1], 4)], name=f"bar{cidx}")
            wready = Task(waitr([("QW", cidx)], None), "S", rel=start - 44, name="wready")
            tasks.append(wready)
        tasks.append(bar[cidx])
        aup = {}
        if cidx > 0:
            sd = [Task([salu(f"s_cmp_eq_u32 s{sWrd}, 0"), salu(f"s_cselect_b32 s{sD}, {3 * SLOT}, 0")], "S", rel=start - 76, deps=[(t, 0) for t in prev_aups], name="sd")]
            for t in (f"s_sub_u32 s{sD}, s{sD}, {SLOT}", f"s_add_u32 s{sWrd}, s{sWrd}, s{sD}"):
                sd.append(Task(salu(t), "S", deps=[(sd[-1], 0)], name="sd"))
            sd.append(Task([salu(f"s_cmp_eq_u32 s{sXrd}, {2 * XSL}"), salu(f"s_cselect_b32 s{sDX}, {3 * XSL}, 0")], "S", deps=[(sd[-1], 0)], name="sd"))
            for t in (f"s_sub_u32 s{sDX}, {XSL}, s{sDX}", f"s_add_u32 s{sXrd}, s{sXrd}, s{sDX}"):
                sd.append(Task(salu(t), "S", deps=[(sd[-1], 0)], name="sd"))
            tasks += sd
            for r in VA:
                aup[r] = Task(valu(f"v_add_u32 v{r}, s{sD}, v{r}"), "V", deps=[(sd[-1], 1), (lastaddr[r], 0)], name="aup")
            for r in XA:
                aup[r] = Task(valu(f"v_add_u32 v{r}, s{sDX}, v{r}"), "V", deps=[(sd[-1], 1), (lastaddr[r], 0)], name="aup")
            tasks += list(aup.values())
            prev_aups = list(aup.values())

        def rd(ins, consumer, gate, tag, rel, war):
            ins.tag = tag
            a = ins.rd[0][1]
            deps = [(gate, 0)] + ([(aup[a], 1)] if a in aup else []) + ([(lastaddr[a], 0)] if a in lastaddr else [])
            first = cidx == 0 and consumer < 12
            t = Task(ins, "L", rel=-1 if first else max(rel, war), dl=-1 if first else consumer - 6, deps=deps, name="rd")
            tasks.append(t)
            lastaddr[a] = t
            allreads.append(t)
            return t

        for ks in range(2):
            for t in range(4):
                for e in range(2):
                    rd(ds_rtr(("a", WF(cidx, ks, t) + 2 * e), VA[t], ks * 16384 + e * 2048), start + ks * 4 + t, wready, ("WR", cidx),
                       start - 42, wuse.get(cidx & 1, -1))
        early = 60 if cidx == 6 else 22
        for blk in range(10):
            for ks in range(2):
                c0 = len(mf)
                lastx[cidx] = rd(ds_r128(("a", XF(blk, ks)), XA[ks], blk * 2048), c0, bar[cidx], ("XR", cidx), c0 - early, xuse.get((blk, ks), -1))
                for t in range(4):
                    d = ("v", qacc(blk, t))
                    mf.append(mfma(d, ("a", WF(cidx, ks, t)), ("a", XF(blk, ks)), 0 if (cidx == 0 and ks == 0) else d))
                xuse[(blk, ks)] = len(mf) - 1
        wuse[cidx & 1] = len(mf) - 1
    q = []
    for cidx in range(1, 7):
        q.append((qx_dma(cidx), bar[max(cidx - 2, 0)], max(0, 80 * (cidx - 2) - 10), 80 * (cidx - 1) + (30 if cidx > 1 else 16)))
        if cidx + 1 <= 6:
            q.append((qw_dma(cidx + 1), bar[0], max(0, 80 * (cidx - 2) + 10), 80 * (cidx - 1) + 62))
    g, adv = kv_dma("K", ("T", -1))
    q.append(((g, adv + dst_adv()), bar[0], 80 * 4 + 10, 80 * 5 + 40))
    q.append((kv_dma("K", ("T", 1)), bar[0], 80 * 5 + 10, 80 * 6 + 20))
    for (g, adv), gate, r0, d0 in q:
        first = Task([], "S", rel=r0, deps=[(gate, 0)] + ([(prev_dma, 0)] if prev_dma else []), name="dmastart")
        tasks.append(first)
        prev_dma = add_dma(tasks, g, adv, first, r0, d0, spread=0, gapmin=OPT.get("qgap", 3))
    an = I(f"buffer_store_byte v{vU[3]}, v{vU[2]}, s[{sDBG}:{sDBG + 3}], s{sIN + 1} offen sc0 sc1", "D", [("v", vU[3]), ("v", vU[2])], [], tag="store")
    seq = [an]
    if OPT.get("tlb", 1):
        seq += [bload(1, ("v", vX), vU[2], sV, sVoff, 0), bload(1, ("v", vX), vU[2], sWO, sK2, 0)]
    for i in seq:
        prev_dma = Task(i, i.kind, deps=[(prev_dma, 1)], dl=80 * 6 + 60, name="warm")
        tasks.append(prev_dma)
    start = 480
    dead = Task(wait_bar([], ("XR", 6)), "BAR", deps=[(lastx[6], 4)], name="dead")
    tasks.append(dead)
    sc = Task([salu(f"s_mov_b32 s{sT2}, {QSCALE:#x}"), salu(f"s_mov_b32 s{sT3}, {QSCALE:#x}")], "S", rel=start, name="sc")
    tasks.append(sc)
    for blk in range(10):
        for t in range(4):
            s = qacc(blk, t)
            done = start + blk * 8 + 4 + t
            if blk < OPT.get("pkfrom", 4):
                ms = [Task(valu(f"v_mul_f32 v{s + r}, s{sT3}, v{s + r}"), "V", rel=done + MLAT, deps=[(sc, 1)], name="qmul") for r in range(4)]
            else:
                m2 = [Task(valu(f"v_pk_mul_f32 v[{s + r}:{s + r + 1}], v[{s + r}:{s + r + 1}], s[{sT2}:{sT3}]"), "V", rel=done + MLAT, deps=[(sc, 1)], name="qmul") for r in (0, 2)]
                ms = [m2[0], m2[0], m2[1], m2[1]]
            c0 = Task(valu(f"v_cvt_pk_bf16_f32 v{s}, v{s}, v{s + 1}"), "V", deps=[(ms[0], 0), (ms[1], 0)], name="qcv")
            c1 = Task(valu(f"v_cvt_pk_bf16_f32 v{s + 1}, v{s + 2}, v{s + 3}"), "V", deps=[(ms[2], 0), (ms[3], 0), (c0, 0)], name="qcv")
            w = ds_w64(vU[0] if blk < 8 else vU[1], ("v", s), (blk & 7) * 8192 + (t >> 1) * 1024 + (t & 1) * 512)
            wt = Task(w, "L", deps=[(c1, 0), (dead, 0)], name="qwr")
            tasks += list(dict.fromkeys(ms)) + [c0, c1, wt]
    gaps = schedule(mf, tasks, verbose=True)
    for k, m in enumerate(marks):
        mf[m].mark = ("Q", k)
    return linearize(mf, gaps)


def q_finish():
    c = []
    S = lambda t: c.append(salu(t))
    V = lambda t: c.append(valu(t))
    S(f"s_lshl_b32 s{sT0}, s{sXW}, 14")
    S(f"s_sub_u32 s{sT0}, {3 * SLOT + 16384}, s{sT0}")
    for k in range(4):
        V(f"v_add_u32 v{VA[k]}, s{sT0}, v{LV[k]}")
    V(f"v_lshrrev_b32 v{vT0}, 3, v{vLANE}")
    V(f"v_mul_u32_u24 v{vT0}, 896, v{vT0}")
    V(f"v_and_b32 v{vWt}, 0x70, v{vV}")
    V(f"v_add_u32 v{vWt}, v{vWt}, v{vT0}")
    S(f"s_lshl_b32 s{sE6}, s{sW}, 13")
    c.append(I("s_waitcnt lgkmcnt(0)", "W"))
    for r in list(range(NEGM[0], NEGM[0] + 12)) + LS:
        V(f"v_mov_b32 v{r}, 0")
    c += wait_bar([("T", -1)], None)
    return c


sites = []


def rowmax_tasks(tasks, src, t, u, dep, name):
    seq = [f"v_max3_f32 v{t}, v{src}, v{src + 1}, v{src + 2}", f"v_max_f32 v{t}, v{t}, v{src + 3}", f"v_mov_b32 v{u}, v{t}",
           f"v_permlane32_swap_b32 v{t}, v{u}", f"v_max_f32 v{t}, v{t}, v{u}", f"v_mov_b32 v{u}, v{t}",
           f"v_permlane16_swap_b32 v{t}, v{u}", f"v_max_f32 v{t}, v{t}, v{u}", f"v_ceil_f32 v{t}, v{t}"]
    prev = dep
    for x in seq:
        i = valu(x)
        tk = Task(i, "V", deps=[(prev, 1 if i.kind == "P" else 0)], name=name)
        tasks.append(tk)
        prev = tk
    return prev


def main_phase():
    NS = 35
    mf, tasks = [], []
    nfrag = 0
    start, chain_first, chain_last, plan, qfirst = {}, {}, {}, [], {}
    for j in range(NS):
        start[j] = len(mf)
        for gam in range(16):
            kt, ks = gam >> 3, gam & 7
            if j <= 31:
                f = FB + (nfrag % 16) * 4
                nfrag += 1
                plan.append(("K", j, gam, f, len(mf)))
                for blk in ((0, 1, 2) if j & 1 else (0, 1)):
                    d = ("v", Sreg(j, kt, blk))
                    qfirst.setdefault((blk, ks), len(mf))
                    mf.append(mfma(d, ("a", f), ("v", QB[blk] + 4 * ks), ("v", NEGM[blk]) if ks == 0 else d))
                    chain_first.setdefault((j, kt), len(mf) - 1)
                    chain_last[(j, kt, blk)] = len(mf) - 1
            if j >= 3:
                f = FB + (nfrag % 16) * 4
                nfrag += 1
                plan.append(("V", j, gam, f, len(mf)))
                for blk in ((0, 1, 2) if (j & 1) == 0 else (0, 1)):
                    d = ("a", OB[blk] + 4 * gam)
                    mf.append(mfma(d, ("a", f), ("v", Preg(j - 3, blk)), 0 if j == (3 if blk < 2 else 4) else d))
    start[NS] = start[NS + 1] = len(mf)
    bar, aup, lastread, lastaddr = {}, {}, {}, {}
    qlast = None
    for (blk, ks), c0 in sorted(qfirst.items(), key=lambda x: x[1]):
        i = ds_r128(("v", QB[blk] + 4 * ks), QA[blk], ks * 1024)
        i.tag = ("QS", 0)
        first = c0 < 8
        qlast = Task(i, "L", rel=-1, dl=-1 if first else min(c0 - 6, 22), deps=[(qlast, 0)] if qlast else [], name="qrd")
        tasks.append(qlast)
    bar[0] = Task(wait_bar([], ("QS", 0)), "BAR", deps=[(qlast, 4)], name="barq")
    tasks.append(bar[0])
    st = dict(sd=None, aups=[])
    done_steps = set()

    def tile_of(kind, j):
        return ("K", j >> 1) if kind == "K" else ("V", (j - 3) >> 1)

    def add_wreads(o, gate, rel, dl):
        c = []
        wfrag_reads(c, o)
        prev = gate
        for i in c:
            prev = Task(i, "L", rel=rel, dl=dl, deps=[(prev, 0), (setup_done, 1)], prio=-40, name="wrd")
            tasks.append(prev)
        return prev

    su = []
    tail_setup(su)
    setup_done = None
    for i in su:
        setup_done = Task(i, i.kind if i.kind in ("S", "D") else "V", rel=start[29], dl=start[32] - 30, deps=[(setup_done, 0)] if setup_done else [], name="su")
        tasks.append(setup_done)

    def enter(j):
        done_steps.add(j)
        sw = "K" if j % 2 == 0 else "V"
        old = tile_of(sw, j - 1)
        newvalid = (sw == "K" and j <= 30) or (sw == "V" and 3 <= j <= 33)
        vm = [("T", j - 1)] if newvalid else []
        deps, lg = [], None
        if old in lastread:
            deps.append((lastread[old], OPT["barlag"]))
            lg = old
        if j == 32:
            vm = [("WO", 0)]
        if j == 33:
            vm = vm + [("WO", 1)]
        if j in (33, 34):
            wl = add_wreads(j - 33, bar[j - 1], start[j - 1], start[j] - DIST)
            deps = [(wl, 3)] + deps
            lg = ("ANY", j)
            for t in [wl] + ([lastread[old]] if old in lastread else []):
                t.ins[0].tag = ("ANY", j)
        if vm or lg:
            pb = max(k for k in bar)
            bar[j] = Task(wait_bar(vm, lg), "BAR", rel=start[j] - DIST + 1 + OPT["barlag"], dl=start[j] - 8, deps=deps + [(bar[pb], 1)], name=f"bar{j}")
            tasks.append(bar[j])
        sd0 = Task([salu(f"s_bitcmp1_b64 s[{sPat}:{sPat + 1}], 0"), salu(f"s_cselect_b32 s{sD}, s{sC2}, s{sC1}")], "S", rel=start[j - 1] + 8,
                   deps=[(t, 0) for t in st["aups"]] + ([(st["sd"], 0)] if st["sd"] else []), name="sd")
        sd0.ins[0].wr = [("scc", 0)]
        sd = Task(salu(f"s_lshr_b64 s[{sPat}:{sPat + 1}], s[{sPat}:{sPat + 1}], 1"), "S", deps=[(sd0, 0)], name="sd")
        tasks.extend([sd0, sd])
        st["sd"], st["aups"] = sd, []
        for kind, regs in (("K", KA), ("V", VA)):
            if not ((kind == "K" and 1 <= j <= 31) or (kind == "V" and 4 <= j <= 34)):
                continue
            for r in regs:
                t = Task(valu(f"v_add_u32 v{r}, s{sD if kind == sw else sHalf}, v{r}"), "V", deps=[(sd0, 1), (lastaddr[r], 0)], name="aup")
                aup[(j, r)] = t
                tasks.append(t)
                st["aups"].append(t)

    for kind, j, gam, f, c0 in plan:
        if j >= 1 and j not in done_steps:
            enter(j)
        kt, ks = gam >> 3, gam & 7
        if kind == "K":
            a = KA[ks & 1]
            ins = [ds_r128(("a", f), a, (ks >> 1) * 4096 + kt * 2048)]
        else:
            a = VA[gam & 3]
            ins = [ds_rtr(("a", f), a, (gam >> 2) * 4096), ds_rtr(("a", f + 2), a, (gam >> 2) * 4096 + 2048)]
        tl = tile_of(kind, j)
        for i in ins:
            i.tag = tl
            deps = []
            swj = j if (kind == "K") == (j % 2 == 0) else j - 1
            if swj in bar and swj > 0:
                deps.append((bar[swj], 0))
            if (j, a) in aup:
                deps.append((aup[(j, a)], 1))
            if a in lastaddr:
                deps.append((lastaddr[a], 0))
            first = c0 < 8
            t = Task(i, "L", rel=-1 if first else c0 - DIST, dl=-1 if first else c0 - 5, deps=deps, name=f"rd{kind}{j}.{gam}")
            tasks.append(t)
            lastread[tl] = t
            lastaddr[a] = t
    prev = None
    for j in range(NS):
        n = j + 2
        if n <= 32 and n != 31:
            g, adv = kv_dma("K" if n & 1 else "V", ("T", n))
        elif n in (31, 33):
            g, adv = wo_dma((n - 31) // 2, (n + 1) % 5)
            adv = dst_adv()
        elif n in (34, 35):
            g, adv = wo_dma(n - 32, WSL[n - 32])
        else:
            continue
        pb = max(k for k in bar if k <= j)
        first = Task([], "S", rel=start[j] - 6, deps=[(bar[pb], 0)] + ([(prev, 0)] if prev else []), name="dmastart")
        tasks.append(first)
        L = start[j + 1] - start[j]
        dl = start[j + 1] - DIST if 3 <= j < 32 else start[j + 2] - DIST
        prev = add_dma(tasks, g, adv, first, start[j] - 6, dl, spread=max(3, (L - DIST) // 9))
    ecount, econs, prev_branch, prev_ladd = 0, {}, None, {}
    for j in range(32):
        blks = (0, 1, 2) if j & 1 else (0, 1)
        dl_chk = chain_first[(j + 2, 0)] - 1 if j + 2 <= 31 else start[j + 3] - 4
        allcv, tsdep, fix = [], {}, {}
        for blk in blks:
            if (j == 0 and blk < 2) or (j == 1 and blk == 2):
                t, u = ET + 2 * (blk & 1), ET + 2 * (blk & 1) + 1
                base = Task([], "V", rel=chain_last[(j, 0, blk)] + MLAT, deps=[(prev_branch, 0)] if prev_branch else [], name="mx0")
                tasks.append(base)
                last = rowmax_tasks(tasks, Sreg(j, 0, blk), t, u, base, "mx")
                nm = [Task(valu(f"v_sub_f32 v{NEGM[blk] + r}, 0, v{t}"), "V", rel=chain_first[(j, 1)] + 6,
                           dl=chain_first[(j + (1 if blk < 2 else 2), 0)] - 3, deps=[(last, 0)], name="negm") for r in range(4)]
                tasks += nm
                for kt in range(2):
                    for r in range(4):
                        s = Sreg(j, kt, blk) + r
                        x = Task(valu(f"v_sub_f32 v{s}, v{s}, v{t}"), "V", rel=chain_last[(j, kt, blk)] + MLAT, deps=[(last, 0)], name="sfix")
                        tasks.append(x)
                        fix[(kt, blk, r)] = x
                        econs.setdefault(t - ET, []).append(x)
                econs.setdefault(t - ET, []).extend(nm)
                econs.setdefault(u - ET, []).append(last)
        for kt in range(2):
            for blk in blks:
                ts = TS[j & 1][blk]
                for pr in range(2):
                    es = []
                    for r in (2 * pr, 2 * pr + 1):
                        e = ecount % 8
                        ecount += 1
                        deps = [(x, 0) for x in econs.get(e, [])] + ([(prev_branch, 0)] if prev_branch else [])
                        if (kt, blk, r) in fix:
                            deps.append((fix[(kt, blk, r)], 1))
                        t = Task(valu(f"v_exp_f32 v{ET + e}, v{Sreg(j, kt, blk) + r}"), "E", rel=chain_last[(j, kt, blk)] + MLAT, deps=deps, name=f"exp{j}.{kt}")
                        tasks.append(t)
                        econs[e] = []
                        es.append((e, t))
                    (e0, t0), (e1, t1) = es
                    cv = Task(valu(f"v_cvt_pk_bf16_f32 v{Preg(j, blk) + 2 * kt + pr}, v{ET + e0}, v{ET + e1}"), "V", deps=[(t0, 1), (t1, 1)], name="cvt")
                    tasks.append(cv)
                    allcv.append(cv)
                    if blk not in tsdep:
                        ad = Task(valu(f"v_add_f32 v{ts}, v{ET + e0}, v{ET + e1}"), "V",
                                  deps=[(t0, 1), (t1, 1)] + ([(prev_ladd[(j & 1, blk)], 0)] if (j & 1, blk) in prev_ladd else []), name="add")
                        tasks.append(ad)
                        econs[e0] += [cv, ad]
                        econs[e1] += [cv, ad]
                        tsdep[blk] = ad
                    else:
                        a0 = Task(valu(f"v_add_f32 v{ts}, v{ET + e0}, v{ts}"), "V", deps=[(t0, 1), (tsdep[blk], 1)], name="add")
                        a1 = Task(valu(f"v_add_f32 v{ts}, v{ET + e1}, v{ts}"), "V", deps=[(t1, 1), (a0, 1)], name="add")
                        tasks += [a0, a1]
                        econs[e0] += [cv, a0]
                        econs[e1] += [cv, a1]
                        tsdep[blk] = a1
        tsr = [TS[j & 1][b] for b in blks]
        mx = Task(valu(f"v_max3_f32 v{vC}, v{tsr[0]}, v{tsr[1]}, v{tsr[2]}") if len(tsr) == 3 else valu(f"v_max_f32 v{vC}, v{tsr[0]}, v{tsr[1]}"),
                  "V", deps=[(t, 1) for t in tsdep.values()], name="mx")
        cmp_ = Task(valu(f"v_cmp_lt_f32 vcc, s{sThr}, v{vC}"), "V", deps=[(mx, 1)], name="cmp")
        br = Task([I(f"s_cbranch_vccnz L_slow_@{j}", "BR", [("vcc", 0)], [], tag=("site", j)), I(f"L_ret_@{j}:", "LAB", tag=("ret", j))],
                  "S", dl=dl_chk, deps=[(cmp_, 1)] + [(t, 0) for t in allcv] + [(t, 0) for t in prev_ladd.values()], name=f"br{j}")
        tasks += [mx, cmp_, br]
        for blk in blks:
            la = Task(valu(f"v_add_f32 v{LS[blk]}, v{TS[j & 1][blk]}, v{LS[blk]}"), "V", deps=[(br, 0)], dl=dl_chk + 12, name="ladd")
            tasks.append(la)
            prev_ladd[(j & 1, blk)] = la
        prev_branch = br
        sites.append(dict(j=j, task=br, blks=blks))
    last = None
    for blk in (1, 2, 0):
        xs = []
        xsum(xs, LS[blk], vT1)
        for i in xs:
            last = Task(i, "V", deps=[(t, 0) for t in prev_ladd.values()] + ([(last, 1 if i.kind == "P" else 0)] if last else []), name="xsum")
            tasks.append(last)
        if blk == 1:
            m0_ = Task(valu(f"v_mov_b32 v{ET}, v{NEGM[1]}"), "V", deps=[(last, 0)], name="st")
            m1_ = Task(valu(f"v_mov_b32 v{ET + 1}, v{LS[1]}"), "V", deps=[(last, 0)], name="st")
            stt = Task(bstore(2, ("v", ET), vT2, sWS, sT3, 0, STF), "D", deps=[(m0_, 1), (m1_, 1), (prev, 0)], name="st")
            tasks += [m0_, m1_, stt]
    pcv = {}
    for T in range(16):
        done = start[34] + 3 * T + 1
        tmp = SB + 4 * (T & 3)
        ars = [Task(AR(tmp + r, OB[1] + 4 * T + r), "V", rel=done + MLAT, deps=[(prev_branch, 0)] + [(x, 0) for x in pcv.get(T & 3, [])], name="ar") for r in range(4)]
        cv = [Task(valu(f"v_cvt_pk_bf16_f32 v{FSB + 2 * T + h}, v{tmp + 2 * h}, v{tmp + 2 * h + 1}"), "V", deps=[(ars[2 * h], 0), (ars[2 * h + 1], 0)], name="cv") for h in range(2)]
        tasks += ars + cv
        if T & 1:
            kb = T >> 1
            tasks.append(Task(bstore(4, ("v", FSB + 4 * kb), vST, sWS, sE4 if kb < 4 else sE5, (kb & 3) * 1024, STF), "D",
                              deps=[(x, 1) for x in cv + pcv[(T - 1) & 3]] + [(prev, 0)], name="fst"))
        pcv[T & 3] = cv
    gaps = schedule(mf, tasks, verbose=True)
    for s in sites:
        j, g = s["j"], s["task"].gap
        s["later_blk"] = {}
        for (jj, kt), idx in chain_first.items():
            if jj > j:
                for blk in ((0, 1, 2) if jj & 1 else (0, 1)):
                    if idx + blk <= g:
                        s["later_blk"].setdefault(blk, []).append(Sreg(jj, kt, blk))
        s["pend"] = [jj for jj in range(max(0, j - 3), j) if start[jj + 4] - 1 > g]
    for j in range(NS):
        mf[start[j]].mark = ("M", j)
    return linearize(mf, gaps)


def slow_path(s, name):
    c = []
    V = lambda t: c.append(valu(t))
    j = s["j"]
    c.append(I(f"L_slow_{name}:", "LAB"))
    c.append(nop(15))
    t, u, x, y = ET, ET + 1, ET + 2, ET + 3
    for blk in range(3):
        if blk not in s["blks"]:
            V(f"v_mov_b32 v{vF[blk]}, 1.0")
            continue
        s0, s1 = Sreg(j, 0, blk), Sreg(j, 1, blk)
        V(f"v_max3_f32 v{t}, v{s0}, v{s0 + 1}, v{s0 + 2}")
        V(f"v_max3_f32 v{t}, v{t}, v{s0 + 3}, v{s1}")
        V(f"v_max3_f32 v{t}, v{t}, v{s1 + 1}, v{s1 + 2}")
        V(f"v_max_f32 v{t}, v{t}, v{s1 + 3}")
        for sw in ("v_permlane32_swap_b32", "v_permlane16_swap_b32"):
            V(f"v_mov_b32 v{u}, v{t}")
            V(f"{sw} v{t}, v{u}")
            V(f"v_max_f32 v{t}, v{t}, v{u}")
        V(f"v_ceil_f32 v{t}, v{t}")
        V(f"v_max_f32 v{t}, 0, v{t}")
        V(f"v_exp_f32 v{vF[blk]}, -v{t}")
        for base in [NEGM[blk], s0, s1] + s["later_blk"].get(blk, []):
            for r in range(4):
                V(f"v_sub_f32 v{base + r}, v{base + r}, v{t}")
        for jj in s["pend"]:
            if blk == 2 and not (jj & 1):
                continue
            for r in range(4):
                p = Preg(jj, blk) + r
                V(f"v_lshlrev_b32 v{x}, 16, v{p}")
                V(f"v_and_b32 v{y}, 0xffff0000, v{p}")
                V(f"v_mul_f32 v{x}, v{x}, v{vF[blk]}")
                V(f"v_mul_f32 v{y}, v{y}, v{vF[blk]}")
                V(f"v_cvt_pk_bf16_f32 v{p}, v{x}, v{y}")
        ts = TS[j & 1][blk]
        V(f"v_mov_b32 v{ts}, 0")
        for kt in range(2):
            for pr in range(2):
                sr = Sreg(j, kt, blk) + 2 * pr
                V(f"v_exp_f32 v{x}, v{sr}")
                V(f"v_exp_f32 v{y}, v{sr + 1}")
                V(f"v_cvt_pk_bf16_f32 v{Preg(j, blk) + 2 * kt + pr}, v{x}, v{y}")
                V(f"v_add_f32 v{ts}, v{x}, v{ts}")
                V(f"v_add_f32 v{ts}, v{y}, v{ts}")
    return c


def slow_tail(names):
    c = []
    V = lambda t: c.append(valu(t))
    c.append(I("L_slow_tail:", "LAB"))
    for blk in range(3):
        V(f"v_mul_f32 v{LS[blk]}, v{LS[blk]}, v{vF[blk]}")
        for r in range(0, 64, 4):
            for k in range(4):
                c.append(AR(ET + k, OB[blk] + r + k))
            for k in range(4):
                V(f"v_mul_f32 v{ET + k}, v{ET + k}, v{vF[blk]}")
            for k in range(4):
                c.append(I(f"v_accvgpr_write_b32 a{OB[blk] + r + k}, v{ET + k}", "V", [("v", ET + k)], [("a", OB[blk] + r + k)]))
    c.append(nop(3))
    for k, nm in enumerate(names):
        c.append(salu(f"s_cmp_eq_u32 s{sSite}, {k}"))
        c.append(I(f"s_cbranch_scc1 L_ret_{nm}", "BR"))
    c.append(I(f"s_branch L_ret_{names[-1]}", "BR"))
    return c


def xsum(c, r, u):
    for sw in ("v_permlane32_swap_b32", "v_permlane16_swap_b32"):
        c += [valu(f"v_mov_b32 v{u}, v{r}"), valu(f"{sw} v{r}, v{u}"), valu(f"v_add_f32 v{r}, v{r}, v{u}")]


WFR = [("v", 32), ("v", 64), ("a", 96), ("a", 128), ("a", 160), ("a", 192), ("a", 224)]
WSL = [2, 4, 0, 2, 3, 1, 4]
FSB = 96
RI, RA, RB = [QA[0], QA[1]], [QA[2], vU[0]], [vU[1], vX]


def OFR(blk, kb):
    n = blk * 8 + kb
    return ("a", 4 * n) if n < 24 else ("v", 128 + 4 * (n - 24))


def wfrag_reads(c, o):
    off = WSL[o] * SLOT
    a = vU[2] if off < 65536 else (vU[3] if off < 131072 else vU[4])
    off &= 65535
    k, b = WFR[o]
    for kb in range(8):
        for e in range(2):
            c.append(ds_rtr((k, b + 4 * kb + 2 * e), a, off + kb * 4096 + e * 2048))


def tail_setup(c):
    S = lambda t: c.append(salu(t))
    V = lambda t: c.append(valu(t))
    if OPT.get("cpf2", 1):
        c.append(raw(f"s_getpc_b64 s[{sT2}:{sT3}]"))
        S(f"s_lshl_b32 s{sT1}, s{sW}, 13")
        V(f"v_lshlrev_b32 v{vT2}, 7, v{vLANE}")
        V(f"v_add_u32 v{vT2}, s{sT1}, v{vT2}")
        V(f"v_min_u32 v{vT2}, {OPT.get('cpf2max', 20000)}, v{vT2}")
        c.append(I(f"global_load_dword v{vX}, v{vT2}, s[{sT2}:{sT3}]", "D", [("v", vT2)], [("v", vX)]))
    V(f"v_and_b32 v{vU[1]}, 7, v{vLANE}")
    V(f"v_lshlrev_b32 v{vU[1]}, 2, v{vU[1]}")
    S(f"s_lshl_b32 s91, s{sB}, 5")
    S(f"s_mov_b32 s{sIN + 1}, 0x01010101")
    c.append(bload(1, ("v", vU[0]), vU[1], sDBG, 91, 0, " sc0 sc1"))
    srd(c, sOUT, 10, 8 * 160 * 448 * 2)
    S(f"s_mul_i32 s{sE0}, s{sID}, {EX_WG}")
    S(f"s_xor_b32 s{sT1}, s{sID}, 16")
    S(f"s_mul_i32 s{sE1}, s{sT1}, {EX_WG}")
    S(f"s_add_u32 s{sE4}, s{sE0}, s{sE6}")
    S(f"s_add_u32 s{sE5}, s{sE4}, 4096")
    S(f"s_lshl_b32 s{sT3}, s{sW}, 9")
    S(f"s_add_u32 s{sT2}, s{sT3}, {4 * SLOT}")
    S(f"s_add_u32 s{sT3}, s{sT3}, s{sE0}")
    S(f"s_add_u32 s{sT3}, s{sT3}, 40960")
    V(f"v_lshlrev_b32 v{vT2}, 3, v{vLANE}")
    V(f"v_add_u32 v{XA[0]}, s{sT2}, v{vT2}")
    V(f"v_xor_b32 v{XA[1]}, 1024, v{XA[0]}")
    S(f"s_lshl_b32 s{sT1}, s{sW}, 5")
    V(f"v_xor_b32 v{vU[2]}, s{sT1}, v{LV[0]}")
    V(f"v_add_u32 v{vU[3]}, 0x10000, v{vU[2]}")
    V(f"v_add_u32 v{vU[4]}, 0x20000, v{vU[2]}")


def merge_coef(c, nm_o, l_o, pst_, co, cp, t):
    V = lambda x: c.append(valu(x))
    V(f"v_min_f32 v{t}, v{nm_o}, v{pst_}")
    V(f"v_sub_f32 v{co}, v{t}, v{nm_o}")
    V(f"v_sub_f32 v{cp}, v{t}, v{pst_}")
    V(f"v_exp_f32 v{co}, v{co}")
    V(f"v_exp_f32 v{cp}, v{cp}")
    V(f"v_mul_f32 v{t}, v{co}, v{l_o}")
    V(f"v_fmac_f32 v{t}, v{cp}, v{pst_ + 1}")
    V(f"v_rcp_f32 v{t}, v{t}")
    V(f"v_mul_f32 v{co}, v{co}, v{t}")
    V(f"v_mul_f32 v{cp}, v{cp}, v{t}")
    V(f"v_mov_b32 v{co + 1}, v{co}")
    V(f"v_mov_b32 v{cp + 1}, v{cp}")


def pk(op, d, *src):
    return valu(f"{op} v[{d}:{d + 1}], " + ", ".join(f"v[{x}:{x + 1}]" for x in src))


def decode(c):
    S = lambda t: c.append(salu(t))
    V = lambda t: c.append(valu(t))
    S(f"s_mul_i32 s{sC1}, s{sH}, 288")
    S(f"s_mul_i32 s{sT1}, s{sW}, 72")
    S(f"s_add_u32 s{sC1}, s{sC1}, s{sT1}")
    S(f"s_lshr_b32 s{sT1}, s{sH}, 2")
    S(f"s_mul_i32 s{sT2}, s{sT1}, 18")
    S(f"s_lshl_b32 s{sT1}, s{sT1}, 5")
    S(f"s_mul_i32 s{sT3}, s{sB}, 160")
    S(f"s_lshl_b32 s{sD}, s{sSP}, 4")
    S(f"s_add_u32 s{sT3}, s{sT3}, s{sD}")
    S(f"s_mul_i32 s{sT3}, s{sT3}, 896")
    S(f"s_add_u32 s{sT3}, s{sT3}, s{sT1}")
    S(f"s_mov_b32 s{sD}, {PART_WG}")
    for n in range(2):
        g, k, x, y = vK0, vK1, vV, vT0
        if n == 0:
            V(f"v_add_u32 v{g}, s{sC1}, v{vLANE}")
            V(f"v_lshlrev_b32 v{RI[n]}, 4, v{g}")
        else:
            V(f"v_and_b32 v{g}, 7, v{vLANE}")
            V(f"v_add_u32 v{g}, s{sC1}, v{g}")
            V(f"v_add_u32 v{g}, 64, v{g}")
            V(f"v_lshrrev_b32 v{k}, 3, v{vLANE}")
            V(f"v_mul_lo_u32 v{k}, v{k}, s{sD}")
            V(f"v_lshl_add_u32 v{RI[n]}, v{g}, 4, v{k}")
        V(f"v_lshrrev_b32 v{k}, 6, v{g}")
        V(f"v_subrev_u32 v{k}, s{sT2}, v{k}")
        V(f"v_and_b32 v{x}, 15, v{g}")
        V(f"v_mul_u32_u24 v{x}, 896, v{x}")
        V(f"v_bfe_u32 v{y}, v{g}, 4, 2")
        V(f"v_lshl_add_u32 v{x}, v{y}, 3, v{x}")
        V(f"v_add_u32 v{x}, s{sT3}, v{x}")
        z = VA[1]
        V(f"v_lshrrev_b32 v{y}, 1, v{k}")
        V(f"v_lshlrev_b32 v{g}, 1, v{k}")
        V(f"v_subrev_u32 v{g}, 28, v{g}")
        V(f"v_cmp_gt_u32 vcc, 14, v{k}")
        V(f"v_cndmask_b32 v{y}, v{g}, v{y}, vcc")
        V(f"v_add_u32 v{g}, 1, v{y}")
        V(f"v_cndmask_b32 v{z}, v{g}, v{y}, vcc")
        V(f"v_and_b32 v{g}, 1, v{k}")
        V(f"v_mul_u32_u24 v{g}, {64 * 896}, v{g}")
        V(f"v_mov_b32 v{RB[n]}, {128 * 896}")
        V(f"v_cndmask_b32 v{g}, v{RB[n]}, v{g}, vcc")
        V(f"v_add_u32 v{RA[n]}, v{x}, v{g}")
        V(f"v_mov_b32 v{g}, {32 * 896}")
        V(f"v_cndmask_b32 v{g}, 0, v{g}, vcc")
        V(f"v_add_u32 v{RB[n]}, v{RA[n]}, v{g}")
        for pz, dst in ((y, RA[n]), (z, RB[n])):
            V(f"v_add_u32 v{pz}, s{sRot}, v{pz}")
            V(f"v_subrev_u32 v{g}, 7, v{pz}")
            V(f"v_min_u32 v{pz}, v{pz}, v{g}")
            V(f"v_lshl_add_u32 v{dst}, v{pz}, 7, v{dst}")
        V(f"v_mov_b32 v{g}, {OOB:#x}")
        V(f"v_cmp_eq_u32 vcc, 17, v{k}")
        V(f"v_cndmask_b32 v{RB[n]}, v{RB[n]}, v{g}, vcc")
        if n:
            V(f"v_cmp_gt_u32 vcc, 8, v{vLANE}")
            for r in (RA[1], RB[1]):
                V(f"v_cndmask_b32 v{r}, v{g}, v{r}, vcc")


def tail():
    c = []
    S = lambda t: c.append(salu(t))
    V = lambda t: c.append(valu(t))
    W = lambda t: c.append(I(f"s_waitcnt {t}", "W"))
    BAR = lambda: c.append(I("s_barrier", "B"))
    HK, OWN, HSB, PH = 192, 128, 160, 224
    hs, fs_p, hs_p, own_nm = 246, 240, 242, 244
    c += pst()
    V(f"v_add_u32 v{KA[0]}, s{sE6}, v{vST}")
    V(f"v_xor_b32 v{KA[1]}, 16384, v{KA[0]}")
    V(f"v_mov_b32 v{hs}, v{NEGM[2]}")
    V(f"v_mov_b32 v{hs + 1}, v{LS[2]}")
    V(f"v_mov_b32 v{own_nm}, v{NEGM[0]}")
    c.append(ds_w64(XA[0], ("v", hs), 0))
    S(f"s_cmp_eq_u32 s{sXW}, 0")
    c.append(I("s_cbranch_scc1 L_h0", "BR"))
    for half, lab, nxt in ((1, None, "L_h1"), (0, "L_h0", None)):
        if lab:
            c.append(I(f"{lab}:", "LAB"))
        for T in range(8):
            i = ds_w128(KA[0], ("a", OB[2] + 32 * (1 - half) + 4 * T), SLOT + T * 1024)
            if half == 1:
                i.kind = "X"
            c.append(i)
        for r in range(32):
            c.append(AR(HK + r, OB[2] + 32 * half + r))
        if nxt:
            c.append(I(f"s_branch {nxt}", "BR"))
    c.append(I("L_h1:", "LAB"))
    S(f"s_lshl_b32 s{sT0}, s{sXW}, 12")
    S(f"s_add_u32 s{sT0}, s{sT0}, 32768")
    S(f"s_lshl_b32 s{sT1}, s{sXW}, 9")
    S(f"s_add_u32 s{sT1}, s{sT1}, 43008")
    S(f"s_cmp_eq_u32 s{sHW}, 1")
    S(f"s_cselect_b32 s{sT2}, s{sE0}, {OOB:#x}")
    S(f"s_cselect_b32 s{sT3}, {OOB:#x}, s{sE1}")
    S(f"s_add_u32 s{sE2}, s{sT3}, s{sT0}")
    S(f"s_add_u32 s{sE3}, s{sT3}, s{sT1}")
    S(f"s_add_u32 s{sE4}, s{sT2}, s{sT0}")
    S(f"s_add_u32 s{sE5}, s{sT2}, s{sT1}")
    W("lgkmcnt(0)")
    BAR()
    c += pst()
    c.append(ds_r64(("v", hs_p), XA[1], 0))
    for T in range(8):
        c.append(ds_r128(("v", OWN + 4 * T), KA[1], SLOT + T * 1024))
    W("vmcnt(0)")
    S(f"s_mov_b32 s{sCnt}, 0")
    c.append(I("L_an:", "LAB"))
    V(f"v_cmp_ne_u32 vcc, s{sIN + 1}, v{vU[0]}")
    S(f"s_add_u32 s{sCnt}, s{sCnt}, 1")
    c.append(I("s_cbranch_vccz L_and", "BR", [("vcc", 0)]))
    c.append(raw(f"buffer_load_dword v{vU[0]}, v{vU[1]}, s[{sDBG}:{sDBG + 3}], s91 offen sc0 sc1", "X"))
    c.append(raw("s_waitcnt vmcnt(0)", "X"))
    S(f"s_cmp_lt_u32 s{sCnt}, 300000")
    c.append(I("s_cbranch_scc1 L_an", "BR"))
    c.append(I("L_and:", "LAB"))
    S(f"s_xor_b32 s{sC1}, s{sIN}, {16 << ISH}")
    S(f"s_lshl_b32 s{sT1}, s{sW}, 2")
    S(f"s_add_u32 s{sC1}, s{sC1}, s{sT1}")
    V(f"v_mov_b32 v{vT0}, 1")
    V(f"v_mov_b32 v{vT1}, 0")
    c.append(bstore(1, ("v", vT0), vT1, sWS, sC1, 64, FLF))
    nm, a_o, a_p = 253, 248, 236
    V(f"v_min_f32 v{nm}, v{hs}, v{hs_p}")
    V(f"v_sub_f32 v{a_o}, v{nm}, v{hs}")
    V(f"v_sub_f32 v{a_p}, v{nm}, v{hs_p}")
    V(f"v_exp_f32 v{a_o}, v{a_o}")
    V(f"v_exp_f32 v{a_p}, v{a_p}")
    V(f"v_mov_b32 v{hs}, v{nm}")
    V(f"v_mul_f32 v{hs + 1}, v{a_o}, v{hs + 1}")
    V(f"v_fmac_f32 v{hs + 1}, v{a_p}, v{hs_p + 1}")
    V(f"v_mov_b32 v{a_o + 1}, v{a_o}")
    V(f"v_mov_b32 v{a_p + 1}, v{a_p}")
    c.append(bstore(2, ("v", hs), vT2, sWS, sE5, 0, STF))
    for r in range(0, 32, 2):
        c.append(pk("v_pk_mul_f32", HK + r, HK + r, a_o))
    for T in range(8):
        for r in (0, 2):
            c.append(pk("v_pk_fma_f32", HK + 4 * T + r, OWN + 4 * T + r, a_p, HK + 4 * T + r))
        V(f"v_cvt_pk_bf16_f32 v{HSB + 2 * T}, v{HK + 4 * T}, v{HK + 4 * T + 1}")
        V(f"v_cvt_pk_bf16_f32 v{HSB + 2 * T + 1}, v{HK + 4 * T + 2}, v{HK + 4 * T + 3}")
        if T & 1:
            c.append(bstore(4, ("v", HSB + 2 * (T - 1)), vST, sWS, sE4, (T >> 1) * 1024, STF))
    c += pst()
    f = [AR(OWN + r, OB[0] + r) for r in range(64)]
    for pre, d in wo_dma(4, WSL[4])[0]:
        c += [f.pop(0) for _ in range(8)] + pre + [d]
    c += pst()
    W("vmcnt(8)")
    c.append(bstore(1, ("v", vT0), vT1, sWS, sC1, 80, FLF))
    BAR()
    c += pst()
    f = []
    wfrag_reads(f, 2)
    wfrag_reads(f, 3)
    decode(f)
    for o in (5, 6):
        for pre, d in wo_dma(o, WSL[o])[0]:
            c += pre + [d] + [f.pop(0) for _ in range(min(8, len(f)))]
    c += f
    S(f"s_add_u32 s{sT1}, s{sE1}, s{sE6}")
    S(f"s_add_u32 s{sT2}, s{sT1}, 4096")
    S(f"s_lshl_b32 s{sT3}, s{sW}, 9")
    S(f"s_add_u32 s{sT3}, s{sT3}, s{sE1}")
    S(f"s_add_u32 s{sT3}, s{sT3}, 40960")
    S(f"s_lshl_b32 s{sT0}, s{sW}, 2")
    S(f"s_add_u32 s{sT0}, s{sT0}, s{sIN}")
    S(f"s_or_b32 s{sC1}, s{sT0}, 4")
    c += pst()

    def poll(lab, sreg, off):
        S(f"s_mov_b32 s{sCnt}, 0")
        c.append(I(f"{lab}:", "LAB"))
        c.append(raw(f"buffer_load_dword v{vT0}, v{vT1}, s[{sWS}:{sWS + 3}], s{sreg} offen offset:{off}{FLF}", "X"))
        S(f"s_add_u32 s{sCnt}, s{sCnt}, 1")
        c.append(raw("s_waitcnt vmcnt(0)", "X"))
        V(f"v_readfirstlane_b32 s{sD}, v{vT0}")
        S(f"s_cmp_gt_u32 s{sCnt}, 300000")
        c.append(I(f"s_cbranch_scc1 {lab}d", "BR"))
        S(f"s_cmp_eq_u32 s{sD}, 0")
        c.append(I(f"s_cbranch_scc1 {lab}", "BR"))
        c.append(I(f"{lab}d:", "LAB"))

    poll("L_p1", sT0, 64)
    c += pst()
    c.append(bload(2, ("v", fs_p), vT2, sWS, sT3, 0, LDF))
    for kb in range(8):
        c.append(bload(4, ("v", FSB + 4 * kb), vST, sWS, sT1 if kb < 4 else sT2, (kb & 3) * 1024, LDF))
    poll("L_p1h", sC1, 80)
    c.append(bload(2, ("v", hs_p), vT2, sWS, sE3, 0, LDF))
    for kb in range(4):
        c.append(bload(4, ("v", PH + 4 * kb), vST, sWS, sE2, kb * 1024, LDF))
    W("lgkmcnt(0)")
    BAR()
    S(f"s_lshl_b32 s{sT0}, s{sXW}, 12")
    S(f"s_lshl_b32 s{sT1}, s{sHW}, 13")
    S(f"s_add_u32 s{sT0}, s{sT0}, s{sT1}")
    S(f"s_add_u32 s{sT0}, s{sT0}, {2 * SLOT}")
    V(f"v_add_u32 v{KA[1]}, s{sT0}, v{vST}")
    S(f"s_mul_i32 s{sE0}, s{sID}, {PART_WG}")
    S(f"s_mul_i32 s{sT0}, s{sW}, {18 * 1024}")
    S(f"s_add_u32 s{sE0}, s{sE0}, s{sT0}")
    S(f"s_add_u32 s{sE0}, s{sE0}, {PART0}")
    S(f"s_add_u32 s{sE1}, s{sE0}, {14 * 1024}")
    V(f"v_add_u32 v{XA[0]}, {2 * SLOT}, v{vST}")
    c += pst()
    co, cp, ch, cq = 248, 254, vK0, VA[0]
    u = [vU[2] + 1, 252]
    u = [240, 244]
    for own_, pay, n, cc, cs, addr in ((OWN, FSB, 8, cp, co, KA[0]), (HK, PH, 4, cq, ch, KA[1])):
        if own_ == OWN:
            merge_coef(c, own_nm, LS[0], fs_p, co, cp, 253)
        else:
            W("vmcnt(0)")
            merge_coef(c, hs, hs + 1, hs_p, ch, cq, 253)
        for kb in range(n):
            for r in range(4):
                p, o, t = pay + 4 * kb + r, own_ + 8 * kb + 2 * r, u[r & 1]
                c.append(pk("v_pk_mul_f32", o, o, cs))
                V(f"v_lshlrev_b32 v{t}, 16, v{p}")
                V(f"v_and_b32 v{t + 1}, 0xffff0000, v{p}")
                c.append(pk("v_pk_fma_f32", o, t, cc, o))
                V(f"v_cvt_pk_bf16_f32 v{p}, v{o}, v{o + 1}")
            c.append(ds_w128(addr, ("v", pay + 4 * kb), kb * 1024))
    W("lgkmcnt(0)")
    BAR()
    return c


def o_phase():
    mf, tasks = [], []
    ACC = [192, 212]
    PK = [[232, 236], [240, 244]]
    HST = 248
    prev = None
    for kb in range(8):
        for blk in range(5):
            c0 = kb * 5 + blk
            i = ds_r128(OFR(blk, kb), vST, blk * 8192 + kb * 1024) if blk < 4 else ds_r128(OFR(blk, kb), XA[0], kb * 1024)
            prev = Task(i, "L", rel=-1, dl=-1 if c0 < 10 else c0 - 8, deps=[(prev, 0)] if prev else [], name="ord")
            tasks.append(prev)
    for o in (4, 5, 6):
        cc = []
        wfrag_reads(cc, o)
        for k, i in enumerate(cc):
            prev = Task(i, "L", dl=40 * o + (k >> 1) * 5 - 8, deps=[(prev, 0)], name="wrd")
            tasks.append(prev)
    prev_st, prev_inc = {}, None
    for o in range(7):
        p = o & 1
        firstm = len(mf)
        for kb in range(8):
            for blk in range(5):
                d = ("v", ACC[p] + 4 * blk)
                mf.append(mfma(d, (WFR[o][0], WFR[o][1] + 4 * kb), OFR(blk, kb), 0 if kb == 0 else d))
        dl = firstm + 80 - 3
        cvs = {}
        for blk in range(5):
            for h in range(2):
                dst, key = (HST + 2 * p + h, "H") if blk == 4 else (PK[p][blk >> 1] + 2 * (blk & 1) + h, (p, blk >> 1))
                s = ACC[p] + 4 * blk + 2 * h
                t = Task(valu(f"v_cvt_pk_bf16_f32 v{dst}, v{s}, v{s + 1}"), "V", rel=firstm + 35 + blk + MLAT, dl=dl,
                         deps=[(prev_st[key], 2)] if key in prev_st else [], name="cvt")
                tasks.append(t)
                cvs.setdefault(key, []).append(t)
        sts = []
        for pr in range(2):
            st = Task(bstore(4, ("v", PK[p][pr]), vST, sWS, sE0, p * 2048 + pr * 1024, STF), "D",
                      deps=[(t, 1) for t in cvs[(p, pr)]] + ([(prev_inc, 0)] if prev_inc else []), name="st")
            tasks.append(st)
            prev_st[(p, pr)] = st
            sts.append(st)
        if p == 0:
            hcv, sts0 = cvs["H"], sts
        if p == 1 or o == 6:
            st = Task(bstore(4, ("v", HST), vST, sWS, sE1, (o >> 1) * 1024, STF), "D", deps=[(t, 1) for t in hcv + cvs["H"]], name="stH")
            tasks.append(st)
            prev_st["H"] = st
            prev_inc = Task(salu(f"s_add_u32 s{sE0}, s{sE0}, 4096"), "S", deps=[(t, 0) for t in sts + sts0], name="inc")
            tasks.append(prev_inc)
    gaps = schedule(mf, tasks, verbose=True)
    for o in range(7):
        mf[40 * o].mark = ("N", o)
    return linearize(mf, gaps)


def final():
    c = []
    S = lambda t: c.append(salu(t))
    V = lambda t: c.append(valu(t))
    W = lambda t: c.append(I(f"s_waitcnt {t}", "W"))
    S(f"s_and_b32 s{sT0}, s{sID}, 0xf0")
    S(f"s_mul_i32 s{sE2}, s{sT0}, {PART_WG}")
    S(f"s_add_u32 s{sE2}, s{sE2}, {PART0}")
    S(f"s_add_u32 s{sE3}, s{sE2}, {8 * PART_WG}")
    S(f"s_lshl_b32 s{sT1}, s{sW}, 2")
    S(f"s_add_u32 s{sT1}, s{sT1}, s{sT0}")
    S(f"s_lshl_b32 s{sT1}, s{sT1}, {ISH}")
    S(f"s_lshl_b32 s{sT2}, s{sH}, 2")
    S(f"s_add_u32 s{sT1}, s{sT1}, s{sT2}")
    S(f"s_add_u32 s{sT1}, s{sT1}, {INBOX}")
    V(f"v_and_b32 v{vK0}, 3, v{vLANE}")
    V(f"v_lshlrev_b32 v{vK0}, {ISH}, v{vK0}")
    V(f"v_and_b32 v{vK1}, 15, v{vLANE}")
    V(f"v_lshlrev_b32 v{vK1}, 2, v{vK1}")
    V(f"v_mov_b32 v{vT0}, 1")
    c += pst()
    c.append(raw(f"buffer_load_dword v{vV}, v{vK1}, s[{sWS}:{sWS + 3}], s{sIN} offen{FLF}", "X"))
    W("vmcnt(0)")
    c += pst()
    c.append(bstore(1, ("v", vT0), vK0, sWS, sT1, 0, FLF))
    S(f"s_mov_b32 s{sCnt}, 0")
    S(f"s_mov_b32 s{sT2}, 0")
    c.append(I("L_p2:", "LAB"))
    V(f"v_cmp_ne_u32 vcc, 0, v{vV}")
    S(f"s_add_u32 s{sCnt}, s{sCnt}, 1")
    c.append(I(f"s_and_b32 s{sT3}, vcc_lo, 0xffff", "S", [("vcc", 0)], [("s", sT3)]))
    S(f"s_cmp_gt_u32 s{sCnt}, 300000")
    S(f"s_cselect_b32 s{sT3}, 0xffff, s{sT3}")
    S(f"s_andn2_b32 s{sT1}, s{sT3}, s{sT2}")
    S(f"s_mov_b32 s{sT2}, s{sT3}")
    for p in range(16):
        c.append(raw(f"s_bitcmp1_b32 s{sT1}, {p}"))
        c.append(I(f"s_cbranch_scc0 L_g{p}", "BR"))
        S(f"s_add_u32 s{sD}, s{sE2}, {p * PART_WG}")
        i = bload(4, ("v", 32 + p * 4), RI[0], sWS, sD, 0, LDF)
        i.kind = "X"
        c.append(i)
        c.append(I(f"L_g{p}:", "LAB"))
    S(f"s_cmp_eq_u32 s{sT2}, 0xffff")
    c.append(I("s_cbranch_scc1 L_p2d", "BR"))
    c.append(raw(f"buffer_load_dword v{vV}, v{vK1}, s[{sWS}:{sWS + 3}], s{sIN} offen{FLF}", "X"))
    c.append(raw("s_waitcnt vmcnt(0)", "X"))
    c.append(I("s_branch L_p2", "BR"))
    c.append(I("L_p2d:", "LAB"))
    c += pst()
    c.append(bload(4, ("v", 96), RI[1], sWS, sE2, 0, LDF))
    c.append(bload(4, ("v", 100), RI[1], sWS, sE3, 0, LDF))
    A0, A1, U = 192, 200, [208, 210]
    c += pst()

    def acc(a, x, first):
        for r in range(4):
            t = a + 2 * r if first else U[r & 1]
            V(f"v_lshlrev_b32 v{t}, 16, v{x + r}")
            V(f"v_and_b32 v{t + 1}, 0xffff0000, v{x + r}")
            if not first:
                c.append(pk("v_pk_add_f32", a + 2 * r, a + 2 * r, t))

    W("vmcnt(2)")
    c += pst()
    for p in range(16):
        acc(A0, 32 + 4 * p, p == 0)
    W("vmcnt(0)")
    acc(A1, 96, True)
    acc(A1, 100, False)
    for sw in ("v_permlane32_swap_b32", "v_permlane16_swap_b32"):
        for r in range(8):
            V(f"v_mov_b32 v{212 + r}, v{A1 + r}")
        for r in range(8):
            V(f"{sw} v{A1 + r}, v{212 + r}")
        for r in range(0, 8, 2):
            c.append(pk("v_pk_add_f32", A1 + r, A1 + r, 212 + r))
    c.append(nop(1))
    for r in range(8):
        c.append(I(f"v_add_f32_dpp v{A1 + r}, v{A1 + r}, v{A1 + r} row_ror:8 row_mask:0xf bank_mask:0xf", "V", [("v", A1 + r)], [("v", A1 + r)]))
    for n, a in enumerate((A0, A1)):
        for r in range(4):
            V(f"v_cvt_pk_bf16_f32 v{220 + n * 4 + r}, v{a + 2 * r}, v{a + 2 * r + 1}")
        c.append(bstore(2, ("v", 220 + n * 4), RA[n], sOUT, "0", 0))
        c.append(bstore(2, ("v", 220 + n * 4 + 2), RB[n], sOUT, "0", 0))
    c += pst() + pst()
    return c


def norm(ins):
    t = ins.text
    if "@" in t:
        a, b = t.split("@")
        if b.startswith("CODE"):
            return t
        return f"{a}@{int(b.rstrip(':')) % 4}"
    return t


def fold(code):
    segs, cur, keys, key = [], [], [], None
    for ins in code:
        if ins.kind == "M" and ins.mark is not None:
            segs.append(cur)
            keys.append(key)
            cur, key = [], ins.mark
        if ins.kind == "LAB" and ins.tag and ins.tag[0] == "cut":
            segs.append(cur)
            keys.append(key)
            cur, key = [], None
            continue
        cur.append(ins)
    segs.append(cur)
    keys.append(key)
    print("; est cycles/seg:", [gap_cost(s) for s in segs])
    txt = [tuple(norm(i) for i in s) for s in segs]
    out, i, nloop, n = [], 0, 0, len(segs)
    sitekey = lambda s: (s["j"] % 4, tuple(sorted((b, tuple(v)) for b, v in s["later_blk"].items())), tuple(x % 4 for x in s["pend"]), s["blks"])
    sinfo = {s["j"]: s for s in sites}
    sites_in = lambda seg: [sitekey(sinfo[x.tag[1]]) for x in seg if x.kind == "BR" and x.tag and x.tag[0] == "site"]
    while i < n:
        k = 1
        if keys[i] is not None:
            p = {"M": 4, "Q": 2}.get(keys[i][0], 1)
            while i + (k + 1) * p <= n and all(keys[i + k * p + r] is not None and txt[i + k * p + r] == txt[i + r] and
                                               sites_in(segs[i + k * p + r]) == sites_in(segs[i + r]) for r in range(p)):
                k += 1
        if k >= 2:
            out.append(salu(f"s_mov_b32 s{sCnt}, {k}"))
            out.append(I(f"L_loop{nloop}:", "LAB"))
            for r in range(p):
                out += segs[i + r]
            out += [salu(f"s_sub_u32 s{sCnt}, s{sCnt}, 1"), salu(f"s_cmp_lg_u32 s{sCnt}, 0"), I(f"s_cbranch_scc1 L_loop{nloop}", "BR")]
            nloop += 1
            i += p * k
        else:
            out += segs[i]
            i += 1
    return out


def cut():
    return I("", "LAB", tag=("cut",))


def build():
    code = prologue() + stamp(1) + q_phase() + [cut()] + stamp(2) + q_finish() + stamp(3) + main_phase() + [cut()] + stamp(4)
    code += tail() + stamp(6) + o_phase() + [cut()] + final()
    if STAMP:
        nc = []
        for ins in code:
            nc.append(ins)
            if ins.kind == "M" and ins.mark is not None:
                if ins.mark[0] == "N" and ins.mark[1] not in (0,):
                    continue
                nc += pst()[1:]
        code = [raw("s_mov_b64 s[80:81], 1"), raw("s_mov_b32 s96, 0")] + nc
    code = insert_lgkm_waits(code, age=OPT["age"])
    code = resolve_vm_waits(code)
    code, nf = check_hazards(code)
    code = fold(code)
    names, slow = [], []
    sinfo = {s["j"]: s for s in sites}
    for ins in code:
        ins.text = ins.text.replace("@CODEMAX", str(OPT.get("codemax", 45056))).replace("@", "")
        if ins.kind == "BR" and ins.tag and ins.tag[0] == "site":
            j = ins.tag[1]
            sp = slow_path(sinfo[j], str(j)) + [salu(f"s_mov_b32 s{sSite}, {len(names)}"), I("s_branch L_slow_tail", "BR")]
            names.append(str(j))
            slow += check_hazards(sp)[0]
    slow += check_hazards(slow_tail(names))[0]
    fin = []
    if STAMP:
        fin.append(I("s_waitcnt vmcnt(0) lgkmcnt(0)", "W"))
        fin += [raw(f"s_memtime s[100:101]"), raw(f"s_memrealtime s[96:97]"), I("s_waitcnt lgkmcnt(0)", "W")]
        for t in (f"s_lshl_b32 s{sT0}, s2, 2", f"s_add_u32 s{sT0}, s{sT0}, s{sW}", f"s_lshl_b32 s{sT0}, s{sT0}, 6",
                  f"s_lshl_b32 s{sT1}, s{sT0}, 2", f"s_add_u32 s{sT0}, s{sT0}, {128 << 20}", f"s_add_u32 s{sT1}, s{sT1}, {132 << 20}"):
            fin.append(salu(t))
        fin.append(valu(f"v_mov_b32 v{vT0}, 0"))
        for k in range(8):
            fin.append(valu(f"v_mov_b32 v{128 + k}, s{[84, 84, 92, 94, 86, 84, 84, 84][k]}"))
        fin += [valu("v_mov_b32 v136, s100"), valu("v_mov_b32 v137, s96"), valu("v_mov_b32 v138, s98")]
        for k in range(0, 12, 4):
            fin.append(bstore(4, ("v", 128 + k), vT0, sWS, sT0, k * 4))
        fin.append(valu(f"v_lshlrev_b32 v{vT1}, 2, v{vLANE}"))
        fin.append(bstore(1, ("v", 0), vT1, sWS, sT1, 0))
    NAME = "standalone__gqa_block_cached__near_ridge_kernel"
    hdr = open("standalone__gqa_block_cached__near_ridge.s.ref").read().split("; Override launch")[0]
    L = [hdr.rstrip()]
    A = L.append
    A("; @launch grid=(256,1,1) block=(256,1,1) lds=163840")
    A('.amdgcn_target "amdgcn-amd-amdhsa--gfx950"')
    A(".text")
    A(f".globl {NAME}")
    A(".p2align 8")
    A(f".type {NAME},@function")
    A(f"{NAME}:")
    A("s_cmp_ge_u32 s2, 256")
    A("s_cbranch_scc1 L_end")
    if OPT.get("delay"):
        L += ["s_memrealtime s[8:9]", "s_waitcnt lgkmcnt(0)", f"s_add_u32 s10, s8, {OPT['delay'] * 100}", "L_dly:", "s_memrealtime s[8:9]", "s_waitcnt lgkmcnt(0)",
              "s_sub_u32 s11, s10, s8", "s_cmp_gt_i32 s11, 0", "s_cbranch_scc1 L_dly"]
    L += [i.text for i in code if i.text]
    L += [i.text for i in fin]
    A("L_end:")
    A("s_endpgm")
    L += [i.text for i in slow]
    A('.section .rodata,"a"')
    A(".p2align 6")
    A(f".amdhsa_kernel {NAME}")
    for t in ("next_free_vgpr 512", "next_free_sgpr 102", "accum_offset 256", "group_segment_fixed_size 0", "kernarg_size 64",
              "user_sgpr_count 2", "user_sgpr_kernarg_segment_ptr 1", "system_sgpr_workgroup_id_x 1"):
        A(f"  .amdhsa_{t}")
    A(".end_amdhsa_kernel")
    return "\n".join(L) + "\n"


if __name__ == "__main__":
    out = [a for a in sys.argv[1:] if a.endswith(".s")]
    open(out[0] if out else "k2.s", "w").write(build())
```

```python
import sys
from sched import *

OPT = dict(debug=None, stamp=0, dist=15, age=7, stf="sc1", ldf="sc1", pref=0, rot=1, cpf=1, fill=3, dmadl=10, barlag=3, ish=8, flf="sc1", codemax=45500)
for a in sys.argv[1:]:
    if "=" in a:
        k, v = a.split("=")
        OPT[k] = int(v) if v.lstrip("-").isdigit() else v
    elif a == "stamp":
        OPT["stamp"] = 1
import sched as _sc
for _k in _sc.SOPT:
    if _k in OPT:
        _sc.SOPT[_k] = OPT[_k]
STAMP, DEBUG = OPT["stamp"], OPT["debug"]
STF = " " + OPT["stf"].replace("+", " ") if OPT["stf"] else ""
LDF = " " + OPT["ldf"].replace("+", " ") if OPT["ldf"] else ""

sID = 3
sX, sK, sV, sWQ, sWO, sWS = 8, 12, 16, 20, 24, 28
sDBG, sOUT = 4, 20
INBOX = 48 << 20
sIN = 82
sRot, sXlim, sK3 = 88, 89, 90
sW, sXW, sHW, sB, sH, sSP = 32, 33, 34, 35, 36, 37
sKoff, sVoff, sDst, sDstLim, sDst0 = 38, 39, 40, 41, 42
sHalf, sC1, sC2, sD, sK2 = 43, 44, 45, 46, 47
sPat = 48
sT0, sT1, sT2, sT3 = 50, 51, 52, 53
sThr, sCnt, sSite = 54, 55, 56
sWoff, sXoff, sWdst, sXdst, sWrd, sXrd, sDX = 57, 58, 59, 60, 61, 62, 63
sE0, sE1, sE2, sE3, sE4, sE5, sE6 = 57, 58, 59, 60, 61, 62, 63
sArg = 64
sSt = 80

vLANE, vK0, vK1, vV, vWt, vX, vST = 1, 2, 3, 4, 5, 6, 7
KA = [8, 9]
XA = [10, 11]
VA = [12, 13, 14, 15]
QA = [16, 17, 18]
vU = [19, 20, 21, 22, 23]
LV = [24, 25, 26, 27]
LK0 = 28
vT0, vT1, vT2 = 29, 30, 31
QB = [32, 64, 96]
SB, PB = 128, 176
NEGM = [224, 228, 232]
ET = 236
TS = [[244, 245, 246], [247, 248, 249]]
LS = [250, 251, 252]
vC = 253
vF = [253, 254, 255]
OB = [0, 64, 128]
FB = 192
SLOT = 32768
XBASE, XSL = 3 * SLOT, 20480
EX_WG = 49152
PART0, PART_WG = 16 << 20, 73728
OOB = 0x7ff00000
QSCALE = 0x3DB8AA3B
ISH = OPT.get("ish", 7)
FLF = " " + OPT.get("flf", "sc0+sc1").replace("+", " ")
LEAD = OPT.get("lead", 0)
DIST, MLAT = OPT["dist"], 5


def Sreg(j, kt, blk):
    return SB + ((2 * j + kt) % 4) * 12 + blk * 4


def Preg(j, blk):
    return PB + (j % 4) * 12 + blk * 4


def waitr(vm_keys, lg_key):
    return I("s_waitcnt <resolve>", "W", tag=("resolve", vm_keys, lg_key))


def wait_bar(vm_keys, lg_key):
    return [waitr(vm_keys, lg_key), I("s_barrier", "B")]


def stamp(k):
    return [raw(f"s_memtime s[{84 + 2 * k}:{85 + 2 * k}]")] if STAMP and k < 1 else []


def pst():
    if not STAMP:
        return []
    return [raw("s_waitcnt lgkmcnt(0)", "W"), raw("s_mov_b32 s100, s96"), I("v_mov_b32 v28, s100", "V"), I("v_cndmask_b32 v0, v0, v28, s[80:81]", "V"),
            raw("s_memrealtime s[96:97]" if OPT.get("rt") else "s_memtime s[96:97]"), raw("s_lshl_b64 s[80:81], s[80:81], 1")]


def AR(v, a):
    return I(f"v_accvgpr_read_b32 v{v}, a{a}", "V", [("a", a)], [("v", v)])


def bload(n, dst, voff, srd, soff, imm, flags="", tag=None):
    suf = {1: "dword", 2: "dwordx2", 4: "dwordx4"}[n]
    t = f"buffer_load_{suf} {rtxt(dst[0], dst[1], n)}, v{voff}, s[{srd}:{srd + 3}], s{soff} offen offset:{imm}{flags}"
    return I(t, "D", [("v", voff), ("s", soff)] + R("s", srd, 4), R(dst[0], dst[1], n), tag=tag)


def srd(c, d, arg, size):
    for t in (f"s_mov_b32 s{d}, s{sArg + arg}", f"s_mov_b32 s{d + 1}, s{sArg + arg + 1}", f"s_mov_b32 s{d + 2}, {size}",
              f"s_mov_b32 s{d + 3}, 0x20000"):
        c.append(salu(t))


def qw_dma(cidx):
    g = []
    for x in range(2):
        for t in range(4):
            rows = 32 * x + 16 * (t & 1) + 4 * (t >> 1)
            pre = [salu(f"s_add_u32 m0, s{sWdst}, {x * 16384}")] if t == 0 else []
            pre.append(salu(f"s_add_u32 s{sT0}, s{sWoff}, {rows * 8192 - t * 1024}"))
            g.append((pre, dma(vWt, sWQ, sT0, t * 1024, tag=("QW", cidx))))
    adv = [[salu(f"s_add_u32 s{sWoff}, s{sWoff}, {64 * 8192}")],
           [salu(f"s_cmp_ge_u32 s{sWoff}, {448 * 8192}"), salu(f"s_cselect_b32 s{sT1}, {448 * 8192}, 0")],
           [salu(f"s_sub_u32 s{sWoff}, s{sWoff}, s{sT1}")],
           [salu(f"s_cmp_lt_u32 s{sWdst}, {SLOT}"), salu(f"s_cselect_b32 s{sT1}, {3 * SLOT}, 0")],
           [salu(f"s_add_u32 s{sWdst}, s{sWdst}, s{sT1}")], [salu(f"s_sub_u32 s{sWdst}, s{sWdst}, {SLOT}")]]
    return g, adv


def qx_dma(cidx):
    g = []
    for k in range(5):
        pre = [salu(f"s_add_u32 m0, s{sXdst}, {k * 4096}"), salu(f"s_add_u32 s{sT0}, s{sXoff}, {k * 32 * 896}")]
        g.append((pre, dma(vX, sX, sT0, 0, tag=("QX", cidx))))
    adv = [[salu(f"s_add_u32 s{sXoff}, s{sXoff}, 128")],
           [salu(f"s_cmp_eq_u32 s{sXoff}, s{sXlim}"), salu(f"s_cselect_b32 s{sT1}, 896, 0")],
           [salu(f"s_sub_u32 s{sXoff}, s{sXoff}, s{sT1}")],
           [salu(f"s_cmp_ge_u32 s{sXdst}, {XBASE + 2 * XSL}"), salu(f"s_cselect_b32 s{sT1}, {3 * XSL}, 0")],
           [salu(f"s_sub_u32 s{sXdst}, s{sXdst}, s{sT1}")], [salu(f"s_add_u32 s{sXdst}, s{sXdst}, {XSL}")]]
    return g, adv


def dst_adv():
    return [[salu(f"s_add_u32 s{sDst}, s{sDst}, {SLOT}")],
            [salu(f"s_cmp_eq_u32 s{sDst}, s{sDstLim}"), salu(f"s_cselect_b32 s{sDst}, s{sDst0}, s{sDst}")]]


def kv_dma(kind, tag):
    g = []
    r, off = (sK, sKoff) if kind == "K" else (sV, sVoff)
    for x in range(2):
        for t in range(4):
            pre = []
            if t == 0:
                pre.append(salu(f"s_add_u32 m0, s{sDst}, {x * 16384}") if x else salu(f"s_mov_b32 m0, s{sDst}"))
                if x:
                    pre.append(salu(f"s_add_u32 s{off}, s{off}, 16384"))
            vo = (vK1 if t & 1 else vK0) if kind == "K" else vV
            g.append((pre, dma(vo, r, off, t * 1024, nt=OPT.get("nt", 1), tag=tag)))
    return g, [[salu(f"s_add_u32 s{off}, s{off}, 16384")]] + dst_adv()


def wo_dma(o, slot):
    g = []
    for kk in range(2):
        for t in range(4):
            rows = 32 * kk + 16 * (t >> 1) + 8 * (t & 1)
            pre = [salu(f"s_add_u32 m0, s{sE6}, {slot * SLOT + kk * 4096}")] if t == 0 else []
            if kk == 0 and t == 0 and o > 0:
                pre = [salu(f"s_add_u32 s{sK2}, s{sK2}, 128"),
                       I(f"s_cmp_eq_u32 s{sK2}, s{sK3}\ns_cselect_b32 s{sT0}, 896, 0", "S", [], [("scc", 0), ("s", sT0)]),
                       salu(f"s_sub_u32 s{sK2}, s{sK2}, s{sT0}")] + pre
            pre.append(salu(f"s_add_u32 s{sT0}, s{sK2}, {rows * 896 - t * 1024}"))
            g.append((pre, dma(vWt, sWO, sT0, t * 1024, tag=("WO", o))))
    return g, []


def add_dma(tasks, g, adv, first, rel, dl, spread, gapmin=0):
    prev = first
    pd = None
    n = len(g)
    for k, (pre, d) in enumerate(g):
        ddl = dl - (n - 1 - k) * max(3, gapmin)
        for p in pre:
            t = Task(p, "S", rel=rel, dl=ddl, deps=[(prev, 0)], name="dmapre")
            tasks.append(t)
            prev = t
        t = Task(d, "D", rel=rel + k * spread, dl=ddl, deps=[(prev, 1 if (prev.cls == "S" and prev.ins) else 0)] + ([(pd, gapmin)] if pd and gapmin else []), name="dma")
        tasks.append(t)
        prev = pd = t
    for a in adv:
        t = Task(a, "S", rel=rel, dl=dl + 8, deps=[(prev, 0)], name="dmaadv")
        tasks.append(t)
        prev = t
    return prev


def emit_serial(c, g, adv, fill=None):
    for pre, d in g:
        c += pre
        c.append(d)
        if fill:
            for _ in range(6):
                if fill:
                    c.append(fill.pop(0))
    for a in adv:
        c += a


def prologue():
    c = []
    S = lambda t: c.append(salu(t))
    V = lambda t: c.append(valu(t))
    c.append(raw(f"s_load_dwordx16 s[{sArg}:{sArg + 15}], s[0:1], 0"))
    c += stamp(0)
    if STAMP or OPT.get("diag") or OPT.get("padto"):
        c.append(raw("s_memrealtime s[98:99]"))
    V(f"v_lshrrev_b32 v{vT0}, 6, v0")
    V(f"v_and_b32 v{vLANE}, 63, v0")
    V(f"v_readfirstlane_b32 s{sW}, v{vT0}")
    def code_prefetch(c):
        c.append(raw(f"s_getpc_b64 s[{sPat}:{sPat + 1}]"))
        c.append(salu(f"s_lshr_b32 s{sD}, s2, 3"))
        c.append(salu(f"s_and_b32 s{sD}, s{sD}, 1"))
        c.append(salu(f"s_lshl_b32 s{sD}, s{sD}, 15"))
        c.append(valu(f"v_lshlrev_b32 v{vU[4]}, 7, v0"))
        c.append(valu(f"v_add_u32 v{vU[4]}, s{sD}, v{vU[4]}"))
        c.append(valu(f"v_min_u32 v{vU[4]}, @CODEMAX, v{vU[4]}"))
        c.append(I(f"global_load_dword v{vU[4]}, v{vU[4]}, s[{sPat}:{sPat + 1}]", "D", [("v", vU[4])], [("v", vU[4])]))

    if OPT.get("cpf") == 1:
        code_prefetch(c)
    S(f"s_lshr_b32 s{sT1}, s2, 3")
    S(f"s_and_b32 s{sT3}, s2, 1")
    S(f"s_lshl_b32 s{sT3}, s{sT3}, 2")
    S(f"s_and_b32 s{sT2}, s{sT1}, 3")
    S(f"s_add_u32 s{sT3}, s{sT3}, s{sT2}")
    S(f"s_and_b32 s{sB}, s2, 6")
    S(f"s_bfe_u32 s{sT2}, s{sT1}, 0x10002")
    S(f"s_add_u32 s{sB}, s{sB}, s{sT2}")
    S(f"s_bfe_u32 s{sH}, s{sT1}, 0x10003")
    S(f"s_lshl_b32 s{sT2}, s{sT3}, 1")
    S(f"s_add_u32 s{sH}, s{sH}, s{sT2}")
    S(f"s_lshr_b32 s{sSP}, s{sT1}, 4")
    S(f"s_lshr_b32 s{sXW}, s{sW}, 1")
    S(f"s_and_b32 s{sHW}, s{sW}, 1")
    S(f"s_lshl_b32 s{sKoff}, s{sB}, 3")
    S(f"s_add_u32 s{sKoff}, s{sKoff}, s{sT3}")
    V(f"v_lshrrev_b32 v{vT0}, 3, v{vLANE}")
    V(f"v_and_b32 v{vT1}, 7, v{vLANE}")
    V(f"v_lshrrev_b32 v{vT2}, 1, v{vT0}")
    V(f"v_xor_b32 v{vK0}, v{vT1}, v{vT2}")
    V(f"v_lshlrev_b32 v{vK0}, 4, v{vK0}")
    V(f"v_lshlrev_b32 v{vV}, 1, v{vT2}")
    V(f"v_xor_b32 v{vV}, v{vT1}, v{vV}")
    V(f"v_lshlrev_b32 v{vV}, 4, v{vV}")
    S(f"s_lshl_b32 s{sT2}, s{sHW}, 6")
    V(f"v_xor_b32 v{vX}, s{sT2}, v{vK0}")
    V(f"v_mul_u32_u24 v{vST}, 896, v{vT0}")
    V(f"v_add_u32 v{vX}, v{vX}, v{vST}")
    V(f"v_and_b32 v{vWt}, 3, v{vT0}")
    V(f"v_lshrrev_b32 v{vST}, 2, v{vT0}")
    V(f"v_lshl_add_u32 v{vWt}, v{vST}, 3, v{vWt}")
    V(f"v_lshlrev_b32 v{vWt}, 13, v{vWt}")
    V(f"v_add_u32 v{vWt}, v{vWt}, v{vV}")
    S(f"s_lshl_b32 s{sT3}, s{sW}, 7")
    V(f"v_add_u32 v{vWt}, s{sT3}, v{vWt}")
    S(f"s_lshl_b32 s{sWoff}, s{sH}, 9")
    S(f"s_mul_i32 s{sXoff}, s{sB}, {160 * 896}")
    S(f"s_mul_i32 s{sT2}, s{sW}, {8 * 896}")
    S(f"s_add_u32 s{sXoff}, s{sXoff}, s{sT2}")
    S(f"s_add_u32 s{sXlim}, s{sXoff}, 896")
    if OPT["rot"]:
        S(f"s_and_b32 s{sT2}, s{sB}, 1")
        S(f"s_lshl_b32 s{sT1}, s{sSP}, 1")
        S(f"s_add_u32 s{sT2}, s{sT2}, s{sT1}")
        S(f"s_lshl_b32 s{sT2}, s{sT2}, 1")
        S(f"s_and_b32 s{sT1}, s{sH}, 3")
        S(f"s_add_u32 s{sT2}, s{sT2}, s{sT1}")
        S(f"s_cmp_ge_u32 s{sT2}, 7")
        S(f"s_cselect_b32 s{sT1}, 7, 0")
        S(f"s_sub_u32 s{sT2}, s{sT2}, s{sT1}")
        S(f"s_lshl_b32 s{sT1}, s{sT2}, 19")
        S(f"s_add_u32 s{sWoff}, s{sWoff}, s{sT1}")
        S(f"s_lshl_b32 s{sT1}, s{sT2}, 7")
        S(f"s_add_u32 s{sXoff}, s{sXoff}, s{sT1}")
    S(f"s_lshl_b32 s{sDst0}, s{sW}, 12")
    S(f"s_add_u32 s{sWdst}, s{sDst0}, {SLOT}")
    S(f"s_lshl_b32 s{sXdst}, s{sW}, 10")
    S(f"s_add_u32 s{sXdst}, s{sXdst}, {XBASE}")
    c.append(I("s_waitcnt lgkmcnt(0)", "W"))
    if STAMP:
        c.append(raw("s_memrealtime s[92:93]"))
    if OPT.get("swarm", 1):
        S(f"s_lshl_b32 s{sT1}, s{sKoff}, 20")
        c.append(raw(f"s_load_dword s91, s[{sArg}:{sArg + 1}], s{sXoff}"))
        c.append(raw(f"s_load_dword s91, s[{sArg + 2}:{sArg + 3}], s{sT1}"))
        c.append(raw(f"s_load_dword s91, s[{sArg + 4}:{sArg + 5}], s{sT1}"))
        c.append(raw(f"s_load_dword s91, s[{sArg + 6}:{sArg + 7}], 0"))
        c.append(raw(f"s_load_dword s91, s[{sArg + 6}:{sArg + 7}], 0xffffc"))
        S(f"s_mov_b32 s{sT1}, {448 * 4096 * 2 - 4}")
        c.append(raw(f"s_load_dword s91, s[{sArg + 6}:{sArg + 7}], s{sT1}"))
    srd(c, sWQ, 6, 448 * 4096 * 2)
    srd(c, sX, 0, 8 * 160 * 448 * 2)
    f = []
    c2, c = c, f
    S = lambda t: f.append(salu(t))
    V = lambda t: f.append(valu(t))
    V(f"v_and_b32 v{vST}, 1, v{vT0}")
    V(f"v_lshl_add_u32 v{vST}, v{vT2}, 3, v{vST}")
    V(f"v_lshlrev_b32 v{vST}, 9, v{vST}")
    V(f"v_add_u32 v{vST}, s{sT3}, v{vST}")
    V(f"v_add_u32 v{vK0}, v{vK0}, v{vST}")
    V(f"v_add_u32 v{vV}, v{vV}, v{vST}")
    V(f"v_xor_b32 v{vK1}, 64, v{vK0}")
    srd(f, sK, 2, 0x4000000)
    srd(f, sV, 4, 0x4000000)
    srd(f, sWO, 8, 448 * 4096 * 2)
    srd(f, sWS, 14, 0x10000000)
    S(f"s_lshl_b32 s{sKoff}, s{sKoff}, 20")
    S(f"s_lshl_b32 s{sVoff}, s{sSP}, 19")
    S(f"s_add_u32 s{sKoff}, s{sKoff}, s{sVoff}")
    S(f"s_mov_b32 s{sVoff}, s{sKoff}")
    S(f"s_lshl_b32 s{sID}, s{sB}, 1")
    S(f"s_add_u32 s{sID}, s{sID}, s{sSP}")
    S(f"s_lshl_b32 s{sID}, s{sID}, 4")
    S(f"s_add_u32 s{sID}, s{sID}, s{sH}")
    srd(f, sDBG, 12, 256)
    S(f"s_lshl_b32 s{sIN}, s{sID}, {ISH}")
    S(f"s_add_u32 s{sIN}, s{sIN}, {INBOX}")
    f.append(I(f"s_cmp_eq_u32 s{sW}, 0\ns_cselect_b32 s{sT2}, s{sIN}, {OOB:#x}\ns_cselect_b32 s{sIN + 1}, s{sID}, {OOB:#x}", "S"))
    V(f"v_and_b32 v{vT0}, 31, v{vLANE}")
    V(f"v_lshlrev_b32 v{vT0}, 2, v{vT0}")
    V(f"v_mov_b32 v{vU[2]}, 0")
    V(f"v_mov_b32 v{vU[3]}, 1")
    f.append(bstore(1, ("v", vU[2]), vT0, sWS, sT2, 0, " sc0 sc1"))
    f.append(nop(1))
    V(f"v_and_b32 v{vT0}, 15, v{vLANE}")
    V(f"v_lshrrev_b32 v{vT1}, 4, v{vLANE}")
    V(f"v_lshrrev_b32 v{vT2}, 1, v{vT0}")
    V(f"v_xor_b32 v{LK0}, v{vT1}, v{vT2}")
    V(f"v_lshlrev_b32 v{LK0}, 4, v{LK0}")
    V(f"v_lshl_add_u32 v{LK0}, v{vT0}, 7, v{LK0}")
    V(f"v_lshrrev_b32 v{vT0}, 2, v{vLANE}")
    V(f"v_and_b32 v{vT1}, 6, v{vT0}")
    V(f"v_bfe_u32 v{vT2}, v{vLANE}, 1, 1")
    V(f"v_xor_b32 v{vT1}, v{vT1}, v{vT2}")
    V(f"v_lshlrev_b32 v{vT1}, 4, v{vT1}")
    V(f"v_lshl_add_u32 v{vT1}, v{vT0}, 7, v{vT1}")
    V(f"v_and_b32 v{vT2}, 1, v{vLANE}")
    V(f"v_lshl_add_u32 v{LV[0]}, v{vT2}, 3, v{vT1}")
    for k in range(1, 4):
        V(f"v_xor_b32 v{LV[k]}, {32 * k}, v{LV[0]}")
    S(f"s_add_u32 s{sT2}, s{sDst0}, {SLOT}")
    for k in range(4):
        V(f"v_add_u32 v{VA[k]}, s{sT2}, v{LV[k]}")
    V(f"v_add_u32 v{XA[0]}, {XBASE}, v{LK0}")
    V(f"v_xor_b32 v{XA[1]}, 64, v{XA[0]}")
    S(f"s_mov_b32 s{sWrd}, {SLOT}")
    S(f"s_mov_b32 s{sXrd}, 0")
    S(f"s_add_u32 s{sDstLim}, s{sDst0}, {5 * SLOT}")
    S(f"s_mov_b32 s{sDst}, s{sDst0}")
    S(f"s_lshl_b32 s{sHalf}, s{sXW}, 15")
    S(f"s_sub_u32 s{sHalf}, s{sHalf}, 16384")
    S(f"s_sub_u32 s{sC1}, {2 * SLOT}, s{sHalf}")
    S(f"s_sub_u32 s{sC2}, {(-3 * SLOT) & 0xffffffff}, s{sHalf}")
    S(f"s_mov_b32 s{sThr}, 0x53800000")
    pat = 0
    for j in range(40):
        if (j + 1) % 5 < (j - 1) % 5:
            pat |= 1 << j
    S(f"s_mov_b32 s{sPat}, {pat & 0xffffffff:#x}")
    S(f"s_mov_b32 s{sPat + 1}, {pat >> 32:#x}")
    S(f"s_lshl_b32 s{sT2}, s{sXW}, 14")
    S(f"s_sub_u32 s{sT2}, 16384, s{sT2}")
    V(f"v_add_u32 v{KA[0]}, s{sT2}, v{LK0}")
    V(f"v_xor_b32 v{KA[1]}, 64, v{KA[0]}")
    V(f"v_and_b32 v{vT0}, 15, v{vLANE}")
    V(f"v_lshlrev_b32 v{vT0}, 4, v{vT0}")
    V(f"v_lshrrev_b32 v{vT1}, 5, v{vLANE}")
    V(f"v_lshl_add_u32 v{vT0}, v{vT1}, 8, v{vT0}")
    V(f"v_bfe_u32 v{vT1}, v{vLANE}, 4, 1")
    V(f"v_lshl_add_u32 v{vT0}, v{vT1}, 3, v{vT0}")
    S(f"s_lshl_b32 s{sT2}, s{sW}, 11")
    S(f"s_add_u32 s{sT3}, s{sT2}, {XBASE}")
    V(f"v_add_u32 v{vU[0]}, s{sT3}, v{vT0}")
    S(f"s_add_u32 s{sT3}, s{sT2}, {SLOT}")
    V(f"v_add_u32 v{vU[1]}, s{sT3}, v{vT0}")
    V(f"v_lshlrev_b32 v{vST}, 4, v{vLANE}")
    S(f"s_lshl_b32 s{sT2}, s{sW}, 1")
    S(f"s_add_u32 s{sT2}, s{sT2}, s{sSP}")
    S(f"s_lshl_b32 s{sT2}, s{sT2}, 13")
    S(f"s_add_u32 s{sT2}, s{sT2}, {XBASE}")
    V(f"v_add_u32 v{QA[0]}, s{sT2}, v{vST}")
    V(f"v_xor_b32 v{QA[1]}, 8192, v{QA[0]}")
    S(f"s_xor_b32 s{sT2}, s{sHW}, s{sSP}")
    S(f"s_lshl_b32 s{sT2}, s{sT2}, 13")
    S(f"s_add_u32 s{sT2}, s{sT2}, {SLOT}")
    V(f"v_add_u32 v{QA[2]}, s{sT2}, v{vST}")
    S(f"s_lshl_b32 s{sK2}, s{sH}, 2")
    S(f"s_add_u32 s{sK2}, s{sK2}, s{sW}")
    S(f"s_mul_i32 s{sK2}, s{sK2}, {64 * 896}")
    S(f"s_add_u32 s{sK3}, s{sK2}, 896")
    S(f"s_and_b32 s{sRot}, s{sB}, 1")
    S(f"s_lshl_b32 s{sT2}, s{sSP}, 1")
    S(f"s_add_u32 s{sRot}, s{sRot}, s{sT2}")
    S(f"s_mul_i32 s{sRot}, s{sRot}, {2 * OPT['rot']}")
    S(f"s_lshl_b32 s{sT2}, s{sRot}, 7")
    S(f"s_add_u32 s{sK2}, s{sK2}, s{sT2}")
    c = c2
    for fn, cidx in ((qw_dma, 0), (qx_dma, 0), (qw_dma, 1)):
        g, adv = fn(cidx)
        emit_serial(c, g, adv, f if (OPT.get("ilv", 1) or cidx == 1) else None)
        if STAMP and fn is qx_dma:
            c.append(raw("s_memrealtime s[94:95]"))
        if fn is qx_dma and OPT.get("cpf") == 2:
            code_prefetch(c)
    c += f
    if STAMP:
        c.append(raw("s_memrealtime s[86:87]"))
    c.append(I("s_waitcnt lgkmcnt(0)", "W"))
    if OPT["pref"]:
        S = lambda t: c.append(salu(t))
        V = lambda t: c.append(valu(t))
        S(f"s_and_b32 s{sT0}, s{sB}, 1")
        S(f"s_lshl_b32 s{sT0}, s{sT0}, 1")
        S(f"s_add_u32 s{sT0}, s{sT0}, s{sSP}")
        S(f"s_lshl_b32 s{sT0}, s{sT0}, 2")
        S(f"s_add_u32 s{sT0}, s{sT0}, s{sW}")
        V(f"v_lshrrev_b32 v{vT0}, 2, v{vLANE}")
        V(f"v_lshlrev_b32 v{vT0}, 13, v{vT0}")
        V(f"v_and_b32 v{vT1}, 3, v{vLANE}")
        V(f"v_lshl_add_u32 v{vT0}, v{vT1}, 7, v{vT0}")
        S(f"s_lshl_b32 s{sT1}, s{sT0}, 17")
        S(f"s_add_u32 s{sT1}, s{sT1}, s{sWoff}")
        c.append(bload(1, ("v", 32), vT0, sWQ, sT1, 0))
        S(f"s_lshr_b32 s{sT1}, s2, 3")
        S(f"s_and_b32 s{sT2}, s{sT1}, 3")
        S(f"s_lshr_b32 s{sT1}, s{sT1}, 3")
        S(f"s_lshl_b32 s{sT1}, s{sT1}, 2")
        S(f"s_add_u32 s{sT1}, s{sT1}, s{sT2}")
        S(f"s_lshl_b32 s{sT1}, s{sT1}, 2")
        S(f"s_add_u32 s{sT1}, s{sT1}, s{sW}")
        S(f"s_mul_i32 s{sT1}, s{sT1}, {18 * 128}")
        S(f"s_mul_i32 s{sT2}, s{sB}, {160 * 896}")
        S(f"s_add_u32 s{sT1}, s{sT1}, s{sT2}")
        V(f"v_min_u32 v{vT1}, 17, v{vLANE}")
        V(f"v_lshlrev_b32 v{vT1}, 7, v{vT1}")
        c.append(bload(1, ("v", 33), vT1, sX, sT1, 0))
        c.append(raw(f"s_getpc_b64 s[{sT2}:{sT3}]"))
        S(f"s_and_b32 s{sT1}, s{sT0}, 7")
        S(f"s_lshl_b32 s{sT1}, s{sT1}, 13")
        V(f"v_lshlrev_b32 v{vT1}, 7, v{vLANE}")
        V(f"v_add_u32 v{vT1}, s{sT1}, v{vT1}")
        V(f"v_min_u32 v{vT1}, @CODEMAX, v{vT1}")
        c.append(I(f"global_load_dword v34, v{vT1}, s[{sT2}:{sT3}]", "D", [("v", vT1)], [("v", 34)]))
        S(f"s_mul_i32 s{sT1}, s{sH}, {256 * 896}")
        S(f"s_mul_i32 s{sT0}, s{sT0}, {112 * 128}")
        S(f"s_add_u32 s{sT1}, s{sT1}, s{sT0}")
        V(f"v_lshlrev_b32 v{vT1}, 7, v{vLANE}")
        if OPT["pref"] > 1:
            c.append(bload(1, ("v", 35), vT1, sWO, sT1, 0))
            S(f"s_add_u32 s{sT1}, s{sT1}, {48 * 128}")
            c.append(bload(1, ("v", 36), vT1, sWO, sT1, 0))
    return c


def qacc(blk, t):
    return 96 + (blk * 4 + t) * 4


def q_phase():
    mf, tasks, marks = [], [], []
    WF = lambda c, ks, t: (c & 1) * 32 + (ks * 4 + t) * 4
    XF = lambda blk, ks: 64 + (blk * 2 + ks) * 4
    bar, lastx, lastaddr, xuse, wuse = {}, {}, {}, {}, {}
    prev_dma, prev_aups = None, []
    allreads = []
    for cidx in range(7):
        start = 80 * cidx
        marks.append(start)
        if cidx == 0:
            bar[0] = Task(wait_bar([("QX", 0)], None), "BAR", rel=-1, dl=-1, name="bar0")
            wready = bar[0]
        else:
            bar[cidx] = Task(wait_bar([("QX", cidx)], ("XR", cidx - 1)), "BAR", rel=start - 20, dl=start - 10, deps=[(lastx[cidx - 1], 4)], name=f"bar{cidx}")
            wready = Task(waitr([("QW", cidx)], None), "S", rel=start - 44, name="wready")
            tasks.append(wready)
        tasks.append(bar[cidx])
        aup = {}
        if cidx > 0:
            sd = [Task([salu(f"s_cmp_eq_u32 s{sWrd}, 0"), salu(f"s_cselect_b32 s{sD}, {3 * SLOT}, 0")], "S", rel=start - 76, deps=[(t, 0) for t in prev_aups], name="sd")]
            for t in (f"s_sub_u32 s{sD}, s{sD}, {SLOT}", f"s_add_u32 s{sWrd}, s{sWrd}, s{sD}"):
                sd.append(Task(salu(t), "S", deps=[(sd[-1], 0)], name="sd"))
            sd.append(Task([salu(f"s_cmp_eq_u32 s{sXrd}, {2 * XSL}"), salu(f"s_cselect_b32 s{sDX}, {3 * XSL}, 0")], "S", deps=[(sd[-1], 0)], name="sd"))
            for t in (f"s_sub_u32 s{sDX}, {XSL}, s{sDX}", f"s_add_u32 s{sXrd}, s{sXrd}, s{sDX}"):
                sd.append(Task(salu(t), "S", deps=[(sd[-1], 0)], name="sd"))
            tasks += sd
            for r in VA:
                aup[r] = Task(valu(f"v_add_u32 v{r}, s{sD}, v{r}"), "V", deps=[(sd[-1], 1), (lastaddr[r], 0)], name="aup")
            for r in XA:
                aup[r] = Task(valu(f"v_add_u32 v{r}, s{sDX}, v{r}"), "V", deps=[(sd[-1], 1), (lastaddr[r], 0)], name="aup")
            tasks += list(aup.values())
            prev_aups = list(aup.values())

        def rd(ins, consumer, gate, tag, rel, war):
            ins.tag = tag
            a = ins.rd[0][1]
            deps = [(gate, 0)] + ([(aup[a], 1)] if a in aup else []) + ([(lastaddr[a], 0)] if a in lastaddr else [])
            first = cidx == 0 and consumer < 12
            t = Task(ins, "L", rel=-1 if first else max(rel, war), dl=-1 if first else consumer - 6, deps=deps, name="rd")
            tasks.append(t)
            lastaddr[a] = t
            allreads.append(t)
            return t

        for ks in range(2):
            for t in range(4):
                for e in range(2):
                    rd(ds_rtr(("a", WF(cidx, ks, t) + 2 * e), VA[t], ks * 16384 + e * 2048), start + ks * 4 + t, wready, ("WR", cidx),
                       start - 42, wuse.get(cidx & 1, -1))
        early = 60 if cidx == 6 else 22
        for blk in range(10):
            for ks in range(2):
                c0 = len(mf)
                lastx[cidx] = rd(ds_r128(("a", XF(blk, ks)), XA[ks], blk * 2048), c0, bar[cidx], ("XR", cidx), c0 - early, xuse.get((blk, ks), -1))
                for t in range(4):
                    d = ("v", qacc(blk, t))
                    mf.append(mfma(d, ("a", WF(cidx, ks, t)), ("a", XF(blk, ks)), 0 if (cidx == 0 and ks == 0) else d))
                xuse[(blk, ks)] = len(mf) - 1
        wuse[cidx & 1] = len(mf) - 1
    q = []
    for cidx in range(1, 7):
        q.append((qx_dma(cidx), bar[max(cidx - 2, 0)], max(0, 80 * (cidx - 2) - 10), 80 * (cidx - 1) + (30 if cidx > 1 else 16)))
        if cidx + 1 <= 6:
            q.append((qw_dma(cidx + 1), bar[0], max(0, 80 * (cidx - 2) + 10), 80 * (cidx - 1) + 62))
    g, adv = kv_dma("K", ("T", -1))
    q.append(((g, adv + dst_adv()), bar[0], 80 * 4 + 10, 80 * 5 + 40))
    q.append((kv_dma("K", ("T", 1)), bar[0], 80 * 5 + 10, 80 * 6 + 20))
    for (g, adv), gate, r0, d0 in q:
        first = Task([], "S", rel=r0, deps=[(gate, 0)] + ([(prev_dma, 0)] if prev_dma else []), name="dmastart")
        tasks.append(first)
        prev_dma = add_dma(tasks, g, adv, first, r0, d0, spread=0, gapmin=OPT.get("qgap", 3))
    an = I(f"buffer_store_byte v{vU[3]}, v{vU[2]}, s[{sDBG}:{sDBG + 3}], s{sIN + 1} offen sc0 sc1", "D", [("v", vU[3]), ("v", vU[2])], [], tag="store")
    seq = [an]
    if OPT.get("tlb", 1):
        seq += [bload(1, ("v", vX), vU[2], sV, sVoff, 0), bload(1, ("v", vX), vU[2], sWO, sK2, 0)]
    for i in seq:
        prev_dma = Task(i, i.kind, deps=[(prev_dma, 1)], dl=80 * 6 + 60, name="warm")
        tasks.append(prev_dma)
    start = 480
    dead = Task(wait_bar([], ("XR", 6)), "BAR", deps=[(lastx[6], 4)], name="dead")
    tasks.append(dead)
    sc = Task([salu(f"s_mov_b32 s{sT2}, {QSCALE:#x}"), salu(f"s_mov_b32 s{sT3}, {QSCALE:#x}")], "S", rel=start, name="sc")
    tasks.append(sc)
    for blk in range(10):
        for t in range(4):
            s = qacc(blk, t)
            done = start + blk * 8 + 4 + t
            if blk < OPT.get("pkfrom", 4):
                ms = [Task(valu(f"v_mul_f32 v{s + r}, s{sT3}, v{s + r}"), "V", rel=done + MLAT, deps=[(sc, 1)], name="qmul") for r in range(4)]
            else:
                m2 = [Task(valu(f"v_pk_mul_f32 v[{s + r}:{s + r + 1}], v[{s + r}:{s + r + 1}], s[{sT2}:{sT3}]"), "V", rel=done + MLAT, deps=[(sc, 1)], name="qmul") for r in (0, 2)]
                ms = [m2[0], m2[0], m2[1], m2[1]]
            c0 = Task(valu(f"v_cvt_pk_bf16_f32 v{s}, v{s}, v{s + 1}"), "V", deps=[(ms[0], 0), (ms[1], 0)], name="qcv")
            c1 = Task(valu(f"v_cvt_pk_bf16_f32 v{s + 1}, v{s + 2}, v{s + 3}"), "V", deps=[(ms[2], 0), (ms[3], 0), (c0, 0)], name="qcv")
            w = ds_w64(vU[0] if blk < 8 else vU[1], ("v", s), (blk & 7) * 8192 + (t >> 1) * 1024 + (t & 1) * 512)
            wt = Task(w, "L", deps=[(c1, 0), (dead, 0)], name="qwr")
            tasks += list(dict.fromkeys(ms)) + [c0, c1, wt]
    gaps = schedule(mf, tasks, verbose=True)
    for k, m in enumerate(marks):
        mf[m].mark = ("Q", k)
    return linearize(mf, gaps)


def q_finish():
    c = []
    S = lambda t: c.append(salu(t))
    V = lambda t: c.append(valu(t))
    S(f"s_lshl_b32 s{sT0}, s{sXW}, 14")
    S(f"s_sub_u32 s{sT0}, {3 * SLOT + 16384}, s{sT0}")
    for k in range(4):
        V(f"v_add_u32 v{VA[k]}, s{sT0}, v{LV[k]}")
    V(f"v_lshrrev_b32 v{vT0}, 3, v{vLANE}")
    V(f"v_mul_u32_u24 v{vT0}, 896, v{vT0}")
    V(f"v_and_b32 v{vWt}, 0x70, v{vV}")
    V(f"v_add_u32 v{vWt}, v{vWt}, v{vT0}")
    S(f"s_lshl_b32 s{sE6}, s{sW}, 13")
    c.append(I("s_waitcnt lgkmcnt(0)", "W"))
    for r in list(range(NEGM[0], NEGM[0] + 12)) + LS:
        V(f"v_mov_b32 v{r}, 0")
    c += wait_bar([("T", -1)], None)
    return c


sites = []


def rowmax_tasks(tasks, src, t, u, dep, name):
    seq = [f"v_max3_f32 v{t}, v{src}, v{src + 1}, v{src + 2}", f"v_max_f32 v{t}, v{t}, v{src + 3}", f"v_mov_b32 v{u}, v{t}",
           f"v_permlane32_swap_b32 v{t}, v{u}", f"v_max_f32 v{t}, v{t}, v{u}", f"v_mov_b32 v{u}, v{t}",
           f"v_permlane16_swap_b32 v{t}, v{u}", f"v_max_f32 v{t}, v{t}, v{u}", f"v_ceil_f32 v{t}, v{t}"]
    prev = dep
    for x in seq:
        i = valu(x)
        tk = Task(i, "V", deps=[(prev, 1 if i.kind == "P" else 0)], name=name)
        tasks.append(tk)
        prev = tk
    return prev


def main_phase():
    NS = 35
    mf, tasks = [], []
    nfrag = 0
    start, chain_first, chain_last, plan, qfirst = {}, {}, {}, [], {}
    for j in range(NS):
        start[j] = len(mf)
        for gam in range(16):
            kt, ks = gam >> 3, gam & 7
            if j <= 31:
                f = FB + (nfrag % 16) * 4
                nfrag += 1
                plan.append(("K", j, gam, f, len(mf)))
                for blk in ((0, 1, 2) if j & 1 else (0, 1)):
                    d = ("v", Sreg(j, kt, blk))
                    qfirst.setdefault((blk, ks), len(mf))
                    mf.append(mfma(d, ("a", f), ("v", QB[blk] + 4 * ks), ("v", NEGM[blk]) if ks == 0 else d))
                    chain_first.setdefault((j, kt), len(mf) - 1)
                    chain_last[(j, kt, blk)] = len(mf) - 1
            if j >= 3:
                f = FB + (nfrag % 16) * 4
                nfrag += 1
                plan.append(("V", j, gam, f, len(mf)))
                for blk in ((0, 1, 2) if (j & 1) == 0 else (0, 1)):
                    d = ("a", OB[blk] + 4 * gam)
                    mf.append(mfma(d, ("a", f), ("v", Preg(j - 3, blk)), 0 if j == (3 if blk < 2 else 4) else d))
    start[NS] = start[NS + 1] = len(mf)
    bar, aup, lastread, lastaddr = {}, {}, {}, {}
    qlast = None
    for (blk, ks), c0 in sorted(qfirst.items(), key=lambda x: x[1]):
        i = ds_r128(("v", QB[blk] + 4 * ks), QA[blk], ks * 1024)
        i.tag = ("QS", 0)
        first = c0 < 8
        qlast = Task(i, "L", rel=-1, dl=-1 if first else min(c0 - 6, 22), deps=[(qlast, 0)] if qlast else [], name="qrd")
        tasks.append(qlast)
    bar[0] = Task(wait_bar([], ("QS", 0)), "BAR", deps=[(qlast, 4)], name="barq")
    tasks.append(bar[0])
    st = dict(sd=None, aups=[])
    done_steps = set()

    def tile_of(kind, j):
        return ("K", j >> 1) if kind == "K" else ("V", (j - 3) >> 1)

    def add_wreads(o, gate, rel, dl):
        c = []
        wfrag_reads(c, o)
        prev = gate
        for i in c:
            prev = Task(i, "L", rel=rel, dl=dl, deps=[(prev, 0), (setup_done, 1)], prio=-40, name="wrd")
            tasks.append(prev)
        return prev

    su = []
    tail_setup(su)
    setup_done = None
    for i in su:
        setup_done = Task(i, i.kind if i.kind in ("S", "D") else "V", rel=start[29], dl=start[32] - 30, deps=[(setup_done, 0)] if setup_done else [], name="su")
        tasks.append(setup_done)

    def enter(j):
        done_steps.add(j)
        sw = "K" if j % 2 == 0 else "V"
        old = tile_of(sw, j - 1)
        newvalid = (sw == "K" and j <= 30) or (sw == "V" and 3 <= j <= 33)
        vm = [("T", j - 1)] if newvalid else []
        deps, lg = [], None
        if old in lastread:
            deps.append((lastread[old], OPT["barlag"]))
            lg = old
        if j == 32:
            vm = [("WO", 0)]
        if j == 33:
            vm = vm + [("WO", 1)]
        if j in (33, 34):
            wl = add_wreads(j - 33, bar[j - 1], start[j - 1], start[j] - DIST)
            deps = [(wl, 3)] + deps
            lg = ("ANY", j)
            for t in [wl] + ([lastread[old]] if old in lastread else []):
                t.ins[0].tag = ("ANY", j)
        if vm or lg:
            pb = max(k for k in bar)
            bar[j] = Task(wait_bar(vm, lg), "BAR", rel=start[j] - DIST + 1 + OPT["barlag"], dl=start[j] - 8, deps=deps + [(bar[pb], 1)], name=f"bar{j}")
            tasks.append(bar[j])
        sd0 = Task([salu(f"s_bitcmp1_b64 s[{sPat}:{sPat + 1}], 0"), salu(f"s_cselect_b32 s{sD}, s{sC2}, s{sC1}")], "S", rel=start[j - 1] + 8,
                   deps=[(t, 0) for t in st["aups"]] + ([(st["sd"], 0)] if st["sd"] else []), name="sd")
        sd0.ins[0].wr = [("scc", 0)]
        sd = Task(salu(f"s_lshr_b64 s[{sPat}:{sPat + 1}], s[{sPat}:{sPat + 1}], 1"), "S", deps=[(sd0, 0)], name="sd")
        tasks.extend([sd0, sd])
        st["sd"], st["aups"] = sd, []
        for kind, regs in (("K", KA), ("V", VA)):
            if not ((kind == "K" and 1 <= j <= 31) or (kind == "V" and 4 <= j <= 34)):
                continue
            for r in regs:
                t = Task(valu(f"v_add_u32 v{r}, s{sD if kind == sw else sHalf}, v{r}"), "V", deps=[(sd0, 1), (lastaddr[r], 0)], name="aup")
                aup[(j, r)] = t
                tasks.append(t)
                st["aups"].append(t)

    for kind, j, gam, f, c0 in plan:
        if j >= 1 and j not in done_steps:
            enter(j)
        kt, ks = gam >> 3, gam & 7
        if kind == "K":
            a = KA[ks & 1]
            ins = [ds_r128(("a", f), a, (ks >> 1) * 4096 + kt * 2048)]
        else:
            a = VA[gam & 3]
            ins = [ds_rtr(("a", f), a, (gam >> 2) * 4096), ds_rtr(("a", f + 2), a, (gam >> 2) * 4096 + 2048)]
        tl = tile_of(kind, j)
        for i in ins:
            i.tag = tl
            deps = []
            swj = j if (kind == "K") == (j % 2 == 0) else j - 1
            if swj in bar and swj > 0:
                deps.append((bar[swj], 0))
            if (j, a) in aup:
                deps.append((aup[(j, a)], 1))
            if a in lastaddr:
                deps.append((lastaddr[a], 0))
            first = c0 < 8
            t = Task(i, "L", rel=-1 if first else c0 - DIST, dl=-1 if first else c0 - 5, deps=deps, name=f"rd{kind}{j}.{gam}")
            tasks.append(t)
            lastread[tl] = t
            lastaddr[a] = t
    prev = None
    for j in range(NS):
        n = j + 2
        if n <= 32 and n != 31:
            g, adv = kv_dma("K" if n & 1 else "V", ("T", n))
        elif n in (31, 33):
            g, adv = wo_dma((n - 31) // 2, (n + 1) % 5)
            adv = dst_adv()
        elif n in (34, 35):
            g, adv = wo_dma(n - 32, WSL[n - 32])
        else:
            continue
        pb = max(k for k in bar if k <= j)
        first = Task([], "S", rel=start[j] - LEAD, deps=[(bar[pb], 0)] + ([(prev, 0)] if prev else []), name="dmastart")
        tasks.append(first)
        L = start[j + 1] - start[j]
        dl = start[j + 1] - OPT.get("dmadl", DIST) if OPT.get("fill", 6) <= j < 32 else start[j + 2] - DIST
        if j == 0:
            dl = start[1] + 34
        prev = add_dma(tasks, g, adv, first, start[j] - LEAD, dl, spread=max(3, (L - DIST) // 9), gapmin=OPT.get("mgap", 4) if j < 32 else 0)
    ecount, econs, prev_branch, prev_ladd = 0, {}, None, {}
    for j in range(32):
        blks = (0, 1, 2) if j & 1 else (0, 1)
        dl_chk = chain_first[(j + 2, 0)] - 1 if j + 2 <= 31 else start[j + 3] - 4
        allcv, tsdep, fix = [], {}, {}
        for blk in blks:
            if (j == 0 and blk < 2) or (j == 1 and blk == 2):
                t, u = ET + 2 * (blk & 1), ET + 2 * (blk & 1) + 1
                base = Task([], "V", rel=chain_last[(j, 0, blk)] + MLAT, deps=[(prev_branch, 0)] if prev_branch else [], name="mx0")
                tasks.append(base)
                last = rowmax_tasks(tasks, Sreg(j, 0, blk), t, u, base, "mx")
                nm = [Task(valu(f"v_sub_f32 v{NEGM[blk] + r}, 0, v{t}"), "V", rel=chain_first[(j, 1)] + 6,
                           dl=chain_first[(j + (1 if blk < 2 else 2), 0)] - 3, deps=[(last, 0)], name="negm") for r in range(4)]
                tasks += nm
                for kt in range(2):
                    for r in range(4):
                        s = Sreg(j, kt, blk) + r
                        x = Task(valu(f"v_sub_f32 v{s}, v{s}, v{t}"), "V", rel=chain_last[(j, kt, blk)] + MLAT, deps=[(last, 0)], name="sfix")
                        tasks.append(x)
                        fix[(kt, blk, r)] = x
                        econs.setdefault(t - ET, []).append(x)
                econs.setdefault(t - ET, []).extend(nm)
                econs.setdefault(u - ET, []).append(last)
        for kt in range(2):
            for blk in blks:
                ts = TS[j & 1][blk]
                for pr in range(2):
                    es = []
                    for r in (2 * pr, 2 * pr + 1):
                        e = ecount % 8
                        ecount += 1
                        deps = [(x, 0) for x in econs.get(e, [])] + ([(prev_branch, 0)] if prev_branch else [])
                        if (kt, blk, r) in fix:
                            deps.append((fix[(kt, blk, r)], 1))
                        t = Task(valu(f"v_exp_f32 v{ET + e}, v{Sreg(j, kt, blk) + r}"), "E", rel=chain_last[(j, kt, blk)] + MLAT, deps=deps, name=f"exp{j}.{kt}")
                        tasks.append(t)
                        econs[e] = []
                        es.append((e, t))
                    (e0, t0), (e1, t1) = es
                    cv = Task(valu(f"v_cvt_pk_bf16_f32 v{Preg(j, blk) + 2 * kt + pr}, v{ET + e0}, v{ET + e1}"), "V", deps=[(t0, 1), (t1, 1)], name="cvt")
                    tasks.append(cv)
                    allcv.append(cv)
                    if blk not in tsdep:
                        ad = Task(valu(f"v_add_f32 v{ts}, v{ET + e0}, v{ET + e1}"), "V",
                                  deps=[(t0, 1), (t1, 1)] + ([(prev_ladd[(j & 1, blk)], 0)] if (j & 1, blk) in prev_ladd else []), name="add")
                        tasks.append(ad)
                        econs[e0] += [cv, ad]
                        econs[e1] += [cv, ad]
                        tsdep[blk] = ad
                    else:
                        a0 = Task(valu(f"v_add_f32 v{ts}, v{ET + e0}, v{ts}"), "V", deps=[(t0, 1), (tsdep[blk], 1)], name="add")
                        a1 = Task(valu(f"v_add_f32 v{ts}, v{ET + e1}, v{ts}"), "V", deps=[(t1, 1), (a0, 1)], name="add")
                        tasks += [a0, a1]
                        econs[e0] += [cv, a0]
                        econs[e1] += [cv, a1]
                        tsdep[blk] = a1
        tsr = [TS[j & 1][b] for b in blks]
        mx = Task(valu(f"v_max3_f32 v{vC}, v{tsr[0]}, v{tsr[1]}, v{tsr[2]}") if len(tsr) == 3 else valu(f"v_max_f32 v{vC}, v{tsr[0]}, v{tsr[1]}"),
                  "V", deps=[(t, 1) for t in tsdep.values()], name="mx")
        cmp_ = Task(valu(f"v_cmp_lt_f32 vcc, s{sThr}, v{vC}"), "V", deps=[(mx, 1)], name="cmp")
        br = Task([I(f"s_cbranch_vccnz L_slow_@{j}", "BR", [("vcc", 0)], [], tag=("site", j)), I(f"L_ret_@{j}:", "LAB", tag=("ret", j))],
                  "S", dl=dl_chk, deps=[(cmp_, 1)] + [(t, 0) for t in allcv] + [(t, 0) for t in prev_ladd.values()], name=f"br{j}")
        tasks += [mx, cmp_, br]
        for blk in blks:
            la = Task(valu(f"v_add_f32 v{LS[blk]}, v{TS[j & 1][blk]}, v{LS[blk]}"), "V", deps=[(br, 0)], dl=dl_chk + 12, name="ladd")
            tasks.append(la)
            prev_ladd[(j & 1, blk)] = la
        prev_branch = br
        sites.append(dict(j=j, task=br, blks=blks))
    last = None
    for blk in (1, 2, 0):
        xs = []
        xsum(xs, LS[blk], vT1)
        for i in xs:
            last = Task(i, "V", deps=[(t, 0) for t in prev_ladd.values()] + ([(last, 1 if i.kind == "P" else 0)] if last else []), name="xsum")
            tasks.append(last)
        if blk == 1:
            m0_ = Task(valu(f"v_mov_b32 v{ET}, v{NEGM[1]}"), "V", deps=[(last, 0)], name="st")
            m1_ = Task(valu(f"v_mov_b32 v{ET + 1}, v{LS[1]}"), "V", deps=[(last, 0)], name="st")
            stt = Task(bstore(2, ("v", ET), vT2, sWS, sT3, 0, STF), "D", deps=[(m0_, 1), (m1_, 1), (prev, 0)], name="st")
            tasks += [m0_, m1_, stt]
    pcv = {}
    for T in range(16):
        done = start[34] + 3 * T + 1
        tmp = SB + 4 * (T & 3)
        ars = [Task(AR(tmp + r, OB[1] + 4 * T + r), "V", rel=done + MLAT, deps=[(prev_branch, 0)] + [(x, 0) for x in pcv.get(T & 3, [])], name="ar") for r in range(4)]
        cv = [Task(valu(f"v_cvt_pk_bf16_f32 v{FSB + 2 * T + h}, v{tmp + 2 * h}, v{tmp + 2 * h + 1}"), "V", deps=[(ars[2 * h], 0), (ars[2 * h + 1], 0)], name="cv") for h in range(2)]
        tasks += ars + cv
        if T & 1:
            kb = T >> 1
            tasks.append(Task(bstore(4, ("v", FSB + 4 * kb), vST, sWS, sE4 if kb < 4 else sE5, (kb & 3) * 1024, STF), "D",
                              deps=[(x, 1) for x in cv + pcv[(T - 1) & 3]] + [(prev, 0)], name="fst"))
        pcv[T & 3] = cv
    gaps = schedule(mf, tasks, verbose=True)
    for s in sites:
        j, g = s["j"], s["task"].gap
        s["later_blk"] = {}
        for (jj, kt), idx in chain_first.items():
            if jj > j:
                for blk in ((0, 1, 2) if jj & 1 else (0, 1)):
                    if idx + blk <= g:
                        s["later_blk"].setdefault(blk, []).append(Sreg(jj, kt, blk))
        s["pend"] = [jj for jj in range(max(0, j - 3), j) if start[jj + 4] - 1 > g]
    for j in range(NS):
        mf[start[j]].mark = ("M", j)
    return linearize(mf, gaps)


def slow_path(s, name):
    c = []
    V = lambda t: c.append(valu(t))
    j = s["j"]
    c.append(I(f"L_slow_{name}:", "LAB"))
    c.append(nop(15))
    t, u, x, y = ET, ET + 1, ET + 2, ET + 3
    for blk in range(3):
        if blk not in s["blks"]:
            V(f"v_mov_b32 v{vF[blk]}, 1.0")
            continue
        s0, s1 = Sreg(j, 0, blk), Sreg(j, 1, blk)
        V(f"v_max3_f32 v{t}, v{s0}, v{s0 + 1}, v{s0 + 2}")
        V(f"v_max3_f32 v{t}, v{t}, v{s0 + 3}, v{s1}")
        V(f"v_max3_f32 v{t}, v{t}, v{s1 + 1}, v{s1 + 2}")
        V(f"v_max_f32 v{t}, v{t}, v{s1 + 3}")
        for sw in ("v_permlane32_swap_b32", "v_permlane16_swap_b32"):
            V(f"v_mov_b32 v{u}, v{t}")
            V(f"{sw} v{t}, v{u}")
            V(f"v_max_f32 v{t}, v{t}, v{u}")
        V(f"v_ceil_f32 v{t}, v{t}")
        V(f"v_max_f32 v{t}, 0, v{t}")
        V(f"v_exp_f32 v{vF[blk]}, -v{t}")
        for base in [NEGM[blk], s0, s1] + s["later_blk"].get(blk, []):
            for r in range(4):
                V(f"v_sub_f32 v{base + r}, v{base + r}, v{t}")
        for jj in s["pend"]:
            if blk == 2 and not (jj & 1):
                continue
            for r in range(4):
                p = Preg(jj, blk) + r
                V(f"v_lshlrev_b32 v{x}, 16, v{p}")
                V(f"v_and_b32 v{y}, 0xffff0000, v{p}")
                V(f"v_mul_f32 v{x}, v{x}, v{vF[blk]}")
                V(f"v_mul_f32 v{y}, v{y}, v{vF[blk]}")
                V(f"v_cvt_pk_bf16_f32 v{p}, v{x}, v{y}")
        ts = TS[j & 1][blk]
        V(f"v_mov_b32 v{ts}, 0")
        for kt in range(2):
            for pr in range(2):
                sr = Sreg(j, kt, blk) + 2 * pr
                V(f"v_exp_f32 v{x}, v{sr}")
                V(f"v_exp_f32 v{y}, v{sr + 1}")
                V(f"v_cvt_pk_bf16_f32 v{Preg(j, blk) + 2 * kt + pr}, v{x}, v{y}")
                V(f"v_add_f32 v{ts}, v{x}, v{ts}")
                V(f"v_add_f32 v{ts}, v{y}, v{ts}")
    return c


def slow_tail(names):
    c = []
    V = lambda t: c.append(valu(t))
    c.append(I("L_slow_tail:", "LAB"))
    for blk in range(3):
        V(f"v_mul_f32 v{LS[blk]}, v{LS[blk]}, v{vF[blk]}")
        for r in range(0, 64, 4):
            for k in range(4):
                c.append(AR(ET + k, OB[blk] + r + k))
            for k in range(4):
                V(f"v_mul_f32 v{ET + k}, v{ET + k}, v{vF[blk]}")
            for k in range(4):
                c.append(I(f"v_accvgpr_write_b32 a{OB[blk] + r + k}, v{ET + k}", "V", [("v", ET + k)], [("a", OB[blk] + r + k)]))
    c.append(nop(3))
    for k, nm in enumerate(names):
        c.append(salu(f"s_cmp_eq_u32 s{sSite}, {k}"))
        c.append(I(f"s_cbranch_scc1 L_ret_{nm}", "BR"))
    c.append(I(f"s_branch L_ret_{names[-1]}", "BR"))
    return c


def xsum(c, r, u):
    for sw in ("v_permlane32_swap_b32", "v_permlane16_swap_b32"):
        c += [valu(f"v_mov_b32 v{u}, v{r}"), valu(f"{sw} v{r}, v{u}"), valu(f"v_add_f32 v{r}, v{r}, v{u}")]


WFR = [("v", 32), ("v", 64), ("a", 96), ("a", 128), ("a", 160), ("a", 192), ("a", 224)]
WSL = [2, 4, 0, 2, 3, 1, 4]
FSB = 96
RI, RA, RB = [QA[0], QA[1]], [QA[2], vU[0]], [vU[1], vX]


def OFR(blk, kb):
    n = blk * 8 + kb
    return ("a", 4 * n) if n < 24 else ("v", 128 + 4 * (n - 24))


def wfrag_reads(c, o):
    off = WSL[o] * SLOT
    a = vU[2] if off < 65536 else (vU[3] if off < 131072 else vU[4])
    off &= 65535
    k, b = WFR[o]
    for kb in range(8):
        for e in range(2):
            c.append(ds_rtr((k, b + 4 * kb + 2 * e), a, off + kb * 4096 + e * 2048))


def tail_setup(c):
    S = lambda t: c.append(salu(t))
    V = lambda t: c.append(valu(t))
    if OPT.get("cpf2", 1):
        c.append(raw(f"s_getpc_b64 s[{sT2}:{sT3}]"))
        S(f"s_lshl_b32 s{sT1}, s{sW}, 13")
        V(f"v_lshlrev_b32 v{vT2}, 7, v{vLANE}")
        V(f"v_add_u32 v{vT2}, s{sT1}, v{vT2}")
        V(f"v_min_u32 v{vT2}, {OPT.get('cpf2max', 20000)}, v{vT2}")
        c.append(I(f"global_load_dword v{vX}, v{vT2}, s[{sT2}:{sT3}]", "D", [("v", vT2)], [("v", vX)]))
    V(f"v_and_b32 v{vU[1]}, 7, v{vLANE}")
    V(f"v_lshlrev_b32 v{vU[1]}, 2, v{vU[1]}")
    S(f"s_lshl_b32 s91, s{sB}, 5")
    S(f"s_mov_b32 s{sIN + 1}, 0x01010101")
    c.append(bload(1, ("v", vU[0]), vU[1], sDBG, 91, 0, " sc0 sc1"))
    srd(c, sOUT, 10, 8 * 160 * 448 * 2)
    S(f"s_mul_i32 s{sE0}, s{sID}, {EX_WG}")
    S(f"s_xor_b32 s{sT1}, s{sID}, 16")
    S(f"s_mul_i32 s{sE1}, s{sT1}, {EX_WG}")
    S(f"s_add_u32 s{sE4}, s{sE0}, s{sE6}")
    S(f"s_add_u32 s{sE5}, s{sE4}, 4096")
    S(f"s_lshl_b32 s{sT3}, s{sW}, 9")
    S(f"s_add_u32 s{sT2}, s{sT3}, {4 * SLOT}")
    S(f"s_add_u32 s{sT3}, s{sT3}, s{sE0}")
    S(f"s_add_u32 s{sT3}, s{sT3}, 40960")
    V(f"v_lshlrev_b32 v{vT2}, 3, v{vLANE}")
    V(f"v_add_u32 v{XA[0]}, s{sT2}, v{vT2}")
    V(f"v_xor_b32 v{XA[1]}, 1024, v{XA[0]}")
    S(f"s_lshl_b32 s{sT1}, s{sW}, 5")
    V(f"v_xor_b32 v{vU[2]}, s{sT1}, v{LV[0]}")
    V(f"v_add_u32 v{vU[3]}, 0x10000, v{vU[2]}")
    V(f"v_add_u32 v{vU[4]}, 0x20000, v{vU[2]}")


def merge_coef(c, nm_o, l_o, pst_, co, cp, t):
    V = lambda x: c.append(valu(x))
    V(f"v_min_f32 v{t}, v{nm_o}, v{pst_}")
    V(f"v_sub_f32 v{co}, v{t}, v{nm_o}")
    V(f"v_sub_f32 v{cp}, v{t}, v{pst_}")
    V(f"v_exp_f32 v{co}, v{co}")
    V(f"v_exp_f32 v{cp}, v{cp}")
    V(f"v_mul_f32 v{t}, v{co}, v{l_o}")
    V(f"v_fmac_f32 v{t}, v{cp}, v{pst_ + 1}")
    V(f"v_rcp_f32 v{t}, v{t}")
    V(f"v_mul_f32 v{co}, v{co}, v{t}")
    V(f"v_mul_f32 v{cp}, v{cp}, v{t}")
    V(f"v_mov_b32 v{co + 1}, v{co}")
    V(f"v_mov_b32 v{cp + 1}, v{cp}")


def pk(op, d, *src):
    return valu(f"{op} v[{d}:{d + 1}], " + ", ".join(f"v[{x}:{x + 1}]" for x in src))


def decode(c):
    S = lambda t: c.append(salu(t))
    V = lambda t: c.append(valu(t))
    S(f"s_mul_i32 s{sC1}, s{sH}, 288")
    S(f"s_mul_i32 s{sT1}, s{sW}, 72")
    S(f"s_add_u32 s{sC1}, s{sC1}, s{sT1}")
    S(f"s_lshr_b32 s{sT1}, s{sH}, 2")
    S(f"s_mul_i32 s{sT2}, s{sT1}, 18")
    S(f"s_lshl_b32 s{sT1}, s{sT1}, 5")
    S(f"s_mul_i32 s{sT3}, s{sB}, 160")
    S(f"s_lshl_b32 s{sD}, s{sSP}, 4")
    S(f"s_add_u32 s{sT3}, s{sT3}, s{sD}")
    S(f"s_mul_i32 s{sT3}, s{sT3}, 896")
    S(f"s_add_u32 s{sT3}, s{sT3}, s{sT1}")
    S(f"s_mov_b32 s{sD}, {PART_WG}")
    for n in range(2):
        g, k, x, y = vK0, vK1, vV, vT0
        if n == 0:
            V(f"v_add_u32 v{g}, s{sC1}, v{vLANE}")
            V(f"v_lshlrev_b32 v{RI[n]}, 4, v{g}")
        else:
            V(f"v_and_b32 v{g}, 7, v{vLANE}")
            V(f"v_add_u32 v{g}, s{sC1}, v{g}")
            V(f"v_add_u32 v{g}, 64, v{g}")
            V(f"v_lshrrev_b32 v{k}, 3, v{vLANE}")
            V(f"v_mul_lo_u32 v{k}, v{k}, s{sD}")
            V(f"v_lshl_add_u32 v{RI[n]}, v{g}, 4, v{k}")
        V(f"v_lshrrev_b32 v{k}, 6, v{g}")
        V(f"v_subrev_u32 v{k}, s{sT2}, v{k}")
        V(f"v_and_b32 v{x}, 15, v{g}")
        V(f"v_mul_u32_u24 v{x}, 896, v{x}")
        V(f"v_bfe_u32 v{y}, v{g}, 4, 2")
        V(f"v_lshl_add_u32 v{x}, v{y}, 3, v{x}")
        V(f"v_add_u32 v{x}, s{sT3}, v{x}")
        z = VA[1]
        V(f"v_lshrrev_b32 v{y}, 1, v{k}")
        V(f"v_lshlrev_b32 v{g}, 1, v{k}")
        V(f"v_subrev_u32 v{g}, 28, v{g}")
        V(f"v_cmp_gt_u32 vcc, 14, v{k}")
        V(f"v_cndmask_b32 v{y}, v{g}, v{y}, vcc")
        V(f"v_add_u32 v{g}, 1, v{y}")
        V(f"v_cndmask_b32 v{z}, v{g}, v{y}, vcc")
        V(f"v_and_b32 v{g}, 1, v{k}")
        V(f"v_mul_u32_u24 v{g}, {64 * 896}, v{g}")
        V(f"v_mov_b32 v{RB[n]}, {128 * 896}")
        V(f"v_cndmask_b32 v{g}, v{RB[n]}, v{g}, vcc")
        V(f"v_add_u32 v{RA[n]}, v{x}, v{g}")
        V(f"v_mov_b32 v{g}, {32 * 896}")
        V(f"v_cndmask_b32 v{g}, 0, v{g}, vcc")
        V(f"v_add_u32 v{RB[n]}, v{RA[n]}, v{g}")
        for pz, dst in ((y, RA[n]), (z, RB[n])):
            V(f"v_add_u32 v{pz}, s{sRot}, v{pz}")
            V(f"v_subrev_u32 v{g}, 7, v{pz}")
            V(f"v_min_u32 v{pz}, v{pz}, v{g}")
            V(f"v_lshl_add_u32 v{dst}, v{pz}, 7, v{dst}")
        V(f"v_mov_b32 v{g}, {OOB:#x}")
        V(f"v_cmp_eq_u32 vcc, 17, v{k}")
        V(f"v_cndmask_b32 v{RB[n]}, v{RB[n]}, v{g}, vcc")
        if n:
            V(f"v_cmp_gt_u32 vcc, 8, v{vLANE}")
            for r in (RA[1], RB[1]):
                V(f"v_cndmask_b32 v{r}, v{g}, v{r}, vcc")


def tail():
    c = []
    S = lambda t: c.append(salu(t))
    V = lambda t: c.append(valu(t))
    W = lambda t: c.append(I(f"s_waitcnt {t}", "W"))
    BAR = lambda: c.append(I("s_barrier", "B"))
    HK, OWN, HSB, PH = 192, 128, 160, 224
    hs, fs_p, hs_p, own_nm = 246, 240, 242, 244
    c += pst()
    V(f"v_add_u32 v{KA[0]}, s{sE6}, v{vST}")
    V(f"v_xor_b32 v{KA[1]}, 16384, v{KA[0]}")
    V(f"v_mov_b32 v{hs}, v{NEGM[2]}")
    V(f"v_mov_b32 v{hs + 1}, v{LS[2]}")
    V(f"v_mov_b32 v{own_nm}, v{NEGM[0]}")
    c.append(ds_w64(XA[0], ("v", hs), 0))
    S(f"s_cmp_eq_u32 s{sXW}, 0")
    c.append(I("s_cbranch_scc1 L_h0", "BR"))
    for half, lab, nxt in ((1, None, "L_h1"), (0, "L_h0", None)):
        if lab:
            c.append(I(f"{lab}:", "LAB"))
        for T in range(8):
            i = ds_w128(KA[0], ("a", OB[2] + 32 * (1 - half) + 4 * T), SLOT + T * 1024)
            if half == 1:
                i.kind = "X"
            c.append(i)
        for r in range(32):
            c.append(AR(HK + r, OB[2] + 32 * half + r))
        if nxt:
            c.append(I(f"s_branch {nxt}", "BR"))
    c.append(I("L_h1:", "LAB"))
    S(f"s_lshl_b32 s{sT0}, s{sXW}, 12")
    S(f"s_add_u32 s{sT0}, s{sT0}, 32768")
    S(f"s_lshl_b32 s{sT1}, s{sXW}, 9")
    S(f"s_add_u32 s{sT1}, s{sT1}, 43008")
    S(f"s_cmp_eq_u32 s{sHW}, 1")
    S(f"s_cselect_b32 s{sT2}, s{sE0}, {OOB:#x}")
    S(f"s_cselect_b32 s{sT3}, {OOB:#x}, s{sE1}")
    S(f"s_add_u32 s{sE2}, s{sT3}, s{sT0}")
    S(f"s_add_u32 s{sE3}, s{sT3}, s{sT1}")
    S(f"s_add_u32 s{sE4}, s{sT2}, s{sT0}")
    S(f"s_add_u32 s{sE5}, s{sT2}, s{sT1}")
    W("lgkmcnt(0)")
    BAR()
    c += pst()
    c.append(ds_r64(("v", hs_p), XA[1], 0))
    for T in range(8):
        c.append(ds_r128(("v", OWN + 4 * T), KA[1], SLOT + T * 1024))
    W("vmcnt(0)")
    S(f"s_mov_b32 s{sCnt}, 0")
    c.append(I("L_an:", "LAB"))
    V(f"v_cmp_ne_u32 vcc, s{sIN + 1}, v{vU[0]}")
    S(f"s_add_u32 s{sCnt}, s{sCnt}, 1")
    c.append(I("s_cbranch_vccz L_and", "BR", [("vcc", 0)]))
    c.append(raw(f"buffer_load_dword v{vU[0]}, v{vU[1]}, s[{sDBG}:{sDBG + 3}], s91 offen sc0 sc1", "X"))
    c.append(raw("s_waitcnt vmcnt(0)", "X"))
    S(f"s_cmp_lt_u32 s{sCnt}, 300000")
    c.append(I("s_cbranch_scc1 L_an", "BR"))
    c.append(I("L_and:", "LAB"))
    S(f"s_xor_b32 s{sC1}, s{sIN}, {16 << ISH}")
    S(f"s_lshl_b32 s{sT1}, s{sW}, 2")
    S(f"s_add_u32 s{sC1}, s{sC1}, s{sT1}")
    V(f"v_mov_b32 v{vT0}, 1")
    V(f"v_mov_b32 v{vT1}, 0")
    c.append(bstore(1, ("v", vT0), vT1, sWS, sC1, 64, FLF))
    nm, a_o, a_p = 253, 248, 236
    V(f"v_min_f32 v{nm}, v{hs}, v{hs_p}")
    V(f"v_sub_f32 v{a_o}, v{nm}, v{hs}")
    V(f"v_sub_f32 v{a_p}, v{nm}, v{hs_p}")
    V(f"v_exp_f32 v{a_o}, v{a_o}")
    V(f"v_exp_f32 v{a_p}, v{a_p}")
    V(f"v_mov_b32 v{hs}, v{nm}")
    V(f"v_mul_f32 v{hs + 1}, v{a_o}, v{hs + 1}")
    V(f"v_fmac_f32 v{hs + 1}, v{a_p}, v{hs_p + 1}")
    V(f"v_mov_b32 v{a_o + 1}, v{a_o}")
    V(f"v_mov_b32 v{a_p + 1}, v{a_p}")
    c.append(bstore(2, ("v", hs), vT2, sWS, sE5, 0, STF))
    for r in range(0, 32, 2):
        c.append(pk("v_pk_mul_f32", HK + r, HK + r, a_o))
    for T in range(8):
        for r in (0, 2):
            c.append(pk("v_pk_fma_f32", HK + 4 * T + r, OWN + 4 * T + r, a_p, HK + 4 * T + r))
        V(f"v_cvt_pk_bf16_f32 v{HSB + 2 * T}, v{HK + 4 * T}, v{HK + 4 * T + 1}")
        V(f"v_cvt_pk_bf16_f32 v{HSB + 2 * T + 1}, v{HK + 4 * T + 2}, v{HK + 4 * T + 3}")
        if T & 1:
            c.append(bstore(4, ("v", HSB + 2 * (T - 1)), vST, sWS, sE4, (T >> 1) * 1024, STF))
    c += pst()
    f = [AR(OWN + r, OB[0] + r) for r in range(64)]
    for pre, d in wo_dma(4, WSL[4])[0]:
        c += [f.pop(0) for _ in range(8)] + pre + [d]
    c += pst()
    W("vmcnt(8)")
    c.append(bstore(1, ("v", vT0), vT1, sWS, sC1, 80, FLF))
    BAR()
    c += pst()
    f = []
    wfrag_reads(f, 2)
    wfrag_reads(f, 3)
    decode(f)
    for o in (5, 6):
        for pre, d in wo_dma(o, WSL[o])[0]:
            c += pre + [d] + [f.pop(0) for _ in range(min(8, len(f)))]
    c += f
    S(f"s_add_u32 s{sT1}, s{sE1}, s{sE6}")
    S(f"s_add_u32 s{sT2}, s{sT1}, 4096")
    S(f"s_lshl_b32 s{sT3}, s{sW}, 9")
    S(f"s_add_u32 s{sT3}, s{sT3}, s{sE1}")
    S(f"s_add_u32 s{sT3}, s{sT3}, 40960")
    S(f"s_lshl_b32 s{sT0}, s{sW}, 2")
    S(f"s_add_u32 s{sT0}, s{sT0}, s{sIN}")
    S(f"s_or_b32 s{sC1}, s{sT0}, 4")
    c += pst()

    def poll(lab, sreg, off):
        S(f"s_mov_b32 s{sCnt}, 0")
        c.append(I(f"{lab}:", "LAB"))
        c.append(raw(f"buffer_load_dword v{vT0}, v{vT1}, s[{sWS}:{sWS + 3}], s{sreg} offen offset:{off}{FLF}", "X"))
        S(f"s_add_u32 s{sCnt}, s{sCnt}, 1")
        c.append(raw("s_waitcnt vmcnt(0)", "X"))
        V(f"v_readfirstlane_b32 s{sD}, v{vT0}")
        S(f"s_cmp_gt_u32 s{sCnt}, 300000")
        c.append(I(f"s_cbranch_scc1 {lab}d", "BR"))
        S(f"s_cmp_eq_u32 s{sD}, 0")
        c.append(I(f"s_cbranch_scc1 {lab}", "BR"))
        c.append(I(f"{lab}d:", "LAB"))

    poll("L_p1", sT0, 64)
    c += pst()
    c.append(bload(2, ("v", fs_p), vT2, sWS, sT3, 0, LDF))
    for kb in range(8):
        c.append(bload(4, ("v", FSB + 4 * kb), vST, sWS, sT1 if kb < 4 else sT2, (kb & 3) * 1024, LDF))
    poll("L_p1h", sC1, 80)
    c.append(bload(2, ("v", hs_p), vT2, sWS, sE3, 0, LDF))
    for kb in range(4):
        c.append(bload(4, ("v", PH + 4 * kb), vST, sWS, sE2, kb * 1024, LDF))
    W("lgkmcnt(0)")
    BAR()
    S(f"s_lshl_b32 s{sT0}, s{sXW}, 12")
    S(f"s_lshl_b32 s{sT1}, s{sHW}, 13")
    S(f"s_add_u32 s{sT0}, s{sT0}, s{sT1}")
    S(f"s_add_u32 s{sT0}, s{sT0}, {2 * SLOT}")
    V(f"v_add_u32 v{KA[1]}, s{sT0}, v{vST}")
    S(f"s_mul_i32 s{sE0}, s{sID}, {PART_WG}")
    S(f"s_mul_i32 s{sT0}, s{sW}, {18 * 1024}")
    S(f"s_add_u32 s{sE0}, s{sE0}, s{sT0}")
    S(f"s_add_u32 s{sE0}, s{sE0}, {PART0}")
    S(f"s_add_u32 s{sE1}, s{sE0}, {14 * 1024}")
    V(f"v_add_u32 v{XA[0]}, {2 * SLOT}, v{vST}")
    c += pst()
    co, cp, ch, cq = 248, 254, vK0, VA[0]
    u = [vU[2] + 1, 252]
    u = [240, 244]
    for own_, pay, n, cc, cs, addr in ((OWN, FSB, 8, cp, co, KA[0]), (HK, PH, 4, cq, ch, KA[1])):
        if own_ == OWN:
            merge_coef(c, own_nm, LS[0], fs_p, co, cp, 253)
        else:
            W("vmcnt(0)")
            merge_coef(c, hs, hs + 1, hs_p, ch, cq, 253)
        for kb in range(n):
            for r in range(4):
                p, o, t = pay + 4 * kb + r, own_ + 8 * kb + 2 * r, u[r & 1]
                c.append(pk("v_pk_mul_f32", o, o, cs))
                V(f"v_lshlrev_b32 v{t}, 16, v{p}")
                V(f"v_and_b32 v{t + 1}, 0xffff0000, v{p}")
                c.append(pk("v_pk_fma_f32", o, t, cc, o))
                V(f"v_cvt_pk_bf16_f32 v{p}, v{o}, v{o + 1}")
            c.append(ds_w128(addr, ("v", pay + 4 * kb), kb * 1024))
    W("lgkmcnt(0)")
    BAR()
    return c


def o_phase():
    mf, tasks = [], []
    ACC = [192, 212]
    PK = [[232, 236], [240, 244]]
    HST = 248
    prev = None
    for kb in range(8):
        for blk in range(5):
            c0 = kb * 5 + blk
            i = ds_r128(OFR(blk, kb), vST, blk * 8192 + kb * 1024) if blk < 4 else ds_r128(OFR(blk, kb), XA[0], kb * 1024)
            prev = Task(i, "L", rel=-1, dl=-1 if c0 < 10 else c0 - 8, deps=[(prev, 0)] if prev else [], name="ord")
            tasks.append(prev)
    for o in (4, 5, 6):
        cc = []
        wfrag_reads(cc, o)
        for k, i in enumerate(cc):
            prev = Task(i, "L", dl=40 * o + (k >> 1) * 5 - 8, deps=[(prev, 0)], name="wrd")
            tasks.append(prev)
    prev_st, prev_inc = {}, None
    for o in range(7):
        p = o & 1
        firstm = len(mf)
        for kb in range(8):
            for blk in range(5):
                d = ("v", ACC[p] + 4 * blk)
                mf.append(mfma(d, (WFR[o][0], WFR[o][1] + 4 * kb), OFR(blk, kb), 0 if kb == 0 else d))
        dl = firstm + 80 - 3
        cvs = {}
        for blk in range(5):
            for h in range(2):
                dst, key = (HST + 2 * p + h, "H") if blk == 4 else (PK[p][blk >> 1] + 2 * (blk & 1) + h, (p, blk >> 1))
                s = ACC[p] + 4 * blk + 2 * h
                t = Task(valu(f"v_cvt_pk_bf16_f32 v{dst}, v{s}, v{s + 1}"), "V", rel=firstm + 35 + blk + MLAT, dl=dl,
                         deps=[(prev_st[key], 2)] if key in prev_st else [], name="cvt")
                tasks.append(t)
                cvs.setdefault(key, []).append(t)
        sts = []
        for pr in range(2):
            st = Task(bstore(4, ("v", PK[p][pr]), vST, sWS, sE0, p * 2048 + pr * 1024, STF), "D",
                      deps=[(t, 1) for t in cvs[(p, pr)]] + ([(prev_inc, 0)] if prev_inc else []), name="st")
            tasks.append(st)
            prev_st[(p, pr)] = st
            sts.append(st)
        if p == 0:
            hcv, sts0 = cvs["H"], sts
        if p == 1 or o == 6:
            st = Task(bstore(4, ("v", HST), vST, sWS, sE1, (o >> 1) * 1024, STF), "D", deps=[(t, 1) for t in hcv + cvs["H"]], name="stH")
            tasks.append(st)
            prev_st["H"] = st
            prev_inc = Task(salu(f"s_add_u32 s{sE0}, s{sE0}, 4096"), "S", deps=[(t, 0) for t in sts + sts0], name="inc")
            tasks.append(prev_inc)
    gaps = schedule(mf, tasks, verbose=True)
    for o in range(7):
        mf[40 * o].mark = ("N", o)
    return linearize(mf, gaps)


def final():
    c = []
    S = lambda t: c.append(salu(t))
    V = lambda t: c.append(valu(t))
    W = lambda t: c.append(I(f"s_waitcnt {t}", "W"))
    S(f"s_and_b32 s{sT0}, s{sID}, 0xf0")
    S(f"s_mul_i32 s{sE2}, s{sT0}, {PART_WG}")
    S(f"s_add_u32 s{sE2}, s{sE2}, {PART0}")
    S(f"s_add_u32 s{sE3}, s{sE2}, {8 * PART_WG}")
    S(f"s_lshl_b32 s{sT1}, s{sW}, 2")
    S(f"s_add_u32 s{sT1}, s{sT1}, s{sT0}")
    S(f"s_lshl_b32 s{sT1}, s{sT1}, {ISH}")
    S(f"s_lshl_b32 s{sT2}, s{sH}, 2")
    S(f"s_add_u32 s{sT1}, s{sT1}, s{sT2}")
    S(f"s_add_u32 s{sT1}, s{sT1}, {INBOX}")
    V(f"v_and_b32 v{vK0}, 3, v{vLANE}")
    V(f"v_lshlrev_b32 v{vK0}, {ISH}, v{vK0}")
    V(f"v_and_b32 v{vK1}, 15, v{vLANE}")
    V(f"v_lshlrev_b32 v{vK1}, 2, v{vK1}")
    V(f"v_mov_b32 v{vT0}, 1")
    c += pst()
    c.append(raw(f"buffer_load_dword v{vV}, v{vK1}, s[{sWS}:{sWS + 3}], s{sIN} offen{FLF}", "X"))
    W("vmcnt(0)")
    c += pst()
    c.append(bstore(1, ("v", vT0), vK0, sWS, sT1, 0, FLF))
    S(f"s_mov_b32 s{sCnt}, 0")
    S(f"s_mov_b32 s{sT2}, 0")
    c.append(I("L_p2:", "LAB"))
    V(f"v_cmp_ne_u32 vcc, 0, v{vV}")
    S(f"s_add_u32 s{sCnt}, s{sCnt}, 1")
    c.append(I(f"s_and_b32 s{sT3}, vcc_lo, 0xffff", "S", [("vcc", 0)], [("s", sT3)]))
    S(f"s_cmp_gt_u32 s{sCnt}, 300000")
    S(f"s_cselect_b32 s{sT3}, 0xffff, s{sT3}")
    S(f"s_andn2_b32 s{sT1}, s{sT3}, s{sT2}")
    S(f"s_mov_b32 s{sT2}, s{sT3}")
    for p in range(16):
        c.append(raw(f"s_bitcmp1_b32 s{sT1}, {p}"))
        c.append(I(f"s_cbranch_scc0 L_g{p}", "BR"))
        S(f"s_add_u32 s{sD}, s{sE2}, {p * PART_WG}")
        i = bload(4, ("v", 32 + p * 4), RI[0], sWS, sD, 0, LDF)
        i.kind = "X"
        c.append(i)
        c.append(I(f"L_g{p}:", "LAB"))
    S(f"s_cmp_eq_u32 s{sT2}, 0xffff")
    c.append(I("s_cbranch_scc1 L_p2d", "BR"))
    c.append(raw(f"buffer_load_dword v{vV}, v{vK1}, s[{sWS}:{sWS + 3}], s{sIN} offen{FLF}", "X"))
    c.append(raw("s_waitcnt vmcnt(0)", "X"))
    c.append(I("s_branch L_p2", "BR"))
    c.append(I("L_p2d:", "LAB"))
    c += pst()
    c.append(bload(4, ("v", 96), RI[1], sWS, sE2, 0, LDF))
    c.append(bload(4, ("v", 100), RI[1], sWS, sE3, 0, LDF))
    A0, A1, U = 192, 200, [208, 210]
    c += pst()

    def acc(a, x, first):
        for r in range(4):
            t = a + 2 * r if first else U[r & 1]
            V(f"v_lshlrev_b32 v{t}, 16, v{x + r}")
            V(f"v_and_b32 v{t + 1}, 0xffff0000, v{x + r}")
            if not first:
                c.append(pk("v_pk_add_f32", a + 2 * r, a + 2 * r, t))

    W("vmcnt(2)")
    c += pst()
    for p in range(16):
        acc(A0, 32 + 4 * p, p == 0)
    W("vmcnt(0)")
    acc(A1, 96, True)
    acc(A1, 100, False)
    for sw in ("v_permlane32_swap_b32", "v_permlane16_swap_b32"):
        for r in range(8):
            V(f"v_mov_b32 v{212 + r}, v{A1 + r}")
        for r in range(8):
            V(f"{sw} v{A1 + r}, v{212 + r}")
        for r in range(0, 8, 2):
            c.append(pk("v_pk_add_f32", A1 + r, A1 + r, 212 + r))
    c.append(nop(1))
    for r in range(8):
        c.append(I(f"v_add_f32_dpp v{A1 + r}, v{A1 + r}, v{A1 + r} row_ror:8 row_mask:0xf bank_mask:0xf", "V", [("v", A1 + r)], [("v", A1 + r)]))
    for n, a in enumerate((A0, A1)):
        for r in range(4):
            V(f"v_cvt_pk_bf16_f32 v{220 + n * 4 + r}, v{a + 2 * r}, v{a + 2 * r + 1}")
        c.append(bstore(2, ("v", 220 + n * 4), RA[n], sOUT, "0", 0))
        c.append(bstore(2, ("v", 220 + n * 4 + 2), RB[n], sOUT, "0", 0))
    c += pst() + pst()
    return c


def norm(ins):
    t = ins.text
    if "@" in t:
        a, b = t.split("@")
        if b.startswith("CODE"):
            return t
        return f"{a}@{int(b.rstrip(':')) % 4}"
    return t


def fold(code):
    segs, cur, keys, key = [], [], [], None
    for ins in code:
        if ins.kind == "M" and ins.mark is not None:
            segs.append(cur)
            keys.append(key)
            cur, key = [], ins.mark
        if ins.kind == "LAB" and ins.tag and ins.tag[0] == "cut":
            segs.append(cur)
            keys.append(key)
            cur, key = [], None
            continue
        cur.append(ins)
    segs.append(cur)
    keys.append(key)
    print("; est cycles/seg:", [gap_cost(s) for s in segs])
    txt = [tuple(norm(i) for i in s) for s in segs]
    out, i, nloop, n = [], 0, 0, len(segs)
    sitekey = lambda s: (s["j"] % 4, tuple(sorted((b, tuple(v)) for b, v in s["later_blk"].items())), tuple(x % 4 for x in s["pend"]), s["blks"])
    sinfo = {s["j"]: s for s in sites}
    sites_in = lambda seg: [sitekey(sinfo[x.tag[1]]) for x in seg if x.kind == "BR" and x.tag and x.tag[0] == "site"]
    while i < n:
        k = 1
        if keys[i] is not None:
            p = {"M": 4, "Q": 2}.get(keys[i][0], 1)
            while i + (k + 1) * p <= n and all(keys[i + k * p + r] is not None and txt[i + k * p + r] == txt[i + r] and
                                               sites_in(segs[i + k * p + r]) == sites_in(segs[i + r]) for r in range(p)):
                k += 1
        if k >= 2:
            x = 0
            while x < p - 1 and i + k * p + x < n and keys[i + k * p + x] is not None and txt[i + k * p + x] == txt[i + x] and \
                    sites_in(segs[i + k * p + x]) == sites_in(segs[i + x]):
                x += 1
            out.append(salu(f"s_mov_b32 s{sCnt}, {k + (1 if x else 0)}"))
            out.append(I(f"L_loop{nloop}:", "LAB"))
            for r in range(p):
                out += segs[i + r]
                if x and r == x - 1:
                    out += [salu(f"s_sub_u32 s{sCnt}, s{sCnt}, 1"), salu(f"s_cmp_eq_u32 s{sCnt}, 0"), I(f"s_cbranch_scc1 L_exit{nloop}", "BR")]
            if x:
                out += [I(f"s_branch L_loop{nloop}", "BR"), I(f"L_exit{nloop}:", "LAB")]
            else:
                out += [salu(f"s_sub_u32 s{sCnt}, s{sCnt}, 1"), salu(f"s_cmp_lg_u32 s{sCnt}, 0"), I(f"s_cbranch_scc1 L_loop{nloop}", "BR")]
            nloop += 1
            i += p * k + x
        else:
            out += segs[i]
            i += 1
    return out


def cut():
    return I("", "LAB", tag=("cut",))


def build():
    code = prologue() + stamp(1) + q_phase() + [cut()] + stamp(2) + q_finish() + stamp(3) + main_phase() + [cut()] + stamp(4)
    code += tail() + stamp(6) + o_phase() + [cut()] + final()
    if STAMP:
        nc = []
        for ins in code:
            nc.append(ins)
            if ins.kind == "M" and ins.mark is not None:
                if ins.mark[0] == "N" and ins.mark[1] not in (0,):
                    continue
                if OPT.get("light") and ins.mark[0] == "M" and 4 <= ins.mark[1] <= 27:
                    continue
                nc += pst()[1:]
        code = [raw("s_mov_b64 s[80:81], 1"), raw("s_mov_b32 s96, 0")] + nc
    code = insert_lgkm_waits(code, age=OPT["age"])
    code = resolve_vm_waits(code)
    code, nf = check_hazards(code)
    code = fold(code)
    names, slow = [], []
    sinfo = {s["j"]: s for s in sites}
    for ins in code:
        ins.text = ins.text.replace("@CODEMAX", str(OPT.get("codemax", 45056))).replace("@", "")
        if ins.kind == "BR" and ins.tag and ins.tag[0] == "site":
            j = ins.tag[1]
            sp = slow_path(sinfo[j], str(j)) + [salu(f"s_mov_b32 s{sSite}, {len(names)}"), I("s_branch L_slow_tail", "BR")]
            names.append(str(j))
            slow += check_hazards(sp)[0]
    slow += check_hazards(slow_tail(names))[0]
    fin = []
    if STAMP:
        fin.append(I("s_waitcnt vmcnt(0) lgkmcnt(0)", "W"))
        fin += [raw(f"s_memtime s[100:101]"), raw(f"s_memrealtime s[96:97]"), I("s_waitcnt lgkmcnt(0)", "W")]
        for t in (f"s_lshl_b32 s{sT0}, s2, 2", f"s_add_u32 s{sT0}, s{sT0}, s{sW}", f"s_lshl_b32 s{sT0}, s{sT0}, 6",
                  f"s_lshl_b32 s{sT1}, s{sT0}, 2", f"s_add_u32 s{sT0}, s{sT0}, {128 << 20}", f"s_add_u32 s{sT1}, s{sT1}, {132 << 20}"):
            fin.append(salu(t))
        fin.append(valu(f"v_mov_b32 v{vT0}, 0"))
        for k in range(8):
            fin.append(valu(f"v_mov_b32 v{128 + k}, s{[84, 84, 92, 94, 86, 84, 84, 84][k]}"))
        fin += [valu("v_mov_b32 v136, s100"), valu("v_mov_b32 v137, s96"), valu("v_mov_b32 v138, s98")]
        for k in range(0, 12, 4):
            fin.append(bstore(4, ("v", 128 + k), vT0, sWS, sT0, k * 4))
        fin.append(valu(f"v_lshlrev_b32 v{vT1}, 2, v{vLANE}"))
        fin.append(bstore(1, ("v", 0), vT1, sWS, sT1, 0))
    NAME = "standalone__gqa_block_cached__near_ridge_kernel"
    hdr = open("standalone__gqa_block_cached__near_ridge.s.ref").read().split("; Override launch")[0]
    L = [hdr.rstrip()]
    A = L.append
    A("; @launch grid=(256,1,1) block=(256,1,1) lds=163840")
    A('.amdgcn_target "amdgcn-amd-amdhsa--gfx950"')
    A(".text")
    A(f".globl {NAME}")
    A(".p2align 8")
    A(f".type {NAME},@function")
    A(f"{NAME}:")
    A("s_cmp_ge_u32 s2, 256")
    A("s_cbranch_scc1 L_end")
    if OPT.get("delay"):
        L += ["s_memrealtime s[8:9]", "s_waitcnt lgkmcnt(0)", f"s_add_u32 s10, s8, {OPT['delay'] * 100}", "L_dly:", "s_memrealtime s[8:9]", "s_waitcnt lgkmcnt(0)",
              "s_sub_u32 s11, s10, s8", "s_cmp_gt_i32 s11, 0", "s_cbranch_scc1 L_dly"]
    L += [i.text for i in code if i.text]
    L += [i.text for i in fin]
    if OPT.get("padto"):
        L += [f"s_add_u32 s10, s98, {OPT['padto'] * 100}", "L_pad:", "s_memrealtime s[8:9]", "s_waitcnt lgkmcnt(0)",
              "s_sub_u32 s11, s10, s8", "s_cmp_gt_i32 s11, 0", "s_cbranch_scc1 L_pad"]
    A("L_end:")
    A("s_endpgm")
    L += [i.text for i in slow]
    A('.section .rodata,"a"')
    A(".p2align 6")
    A(f".amdhsa_kernel {NAME}")
    for t in ("next_free_vgpr 512", "next_free_sgpr 102", "accum_offset 256", "group_segment_fixed_size 0", "kernarg_size 64",
              "user_sgpr_count 2", "user_sgpr_kernarg_segment_ptr 1", "system_sgpr_workgroup_id_x 1"):
        A(f"  .amdhsa_{t}")
    A(".end_amdhsa_kernel")
    return "\n".join(L) + "\n"


if __name__ == "__main__":
    out = [a for a in sys.argv[1:] if a.endswith(".s")]
    open(out[0] if out else "k2.s", "w").write(build())
```

```python
import sys
from sched import *

OPT = dict(debug=None, stamp=0, dist=15, age=7, stf="sc1", ldf="sc1", pref=0, rot=1, cpf=1, fill=3, dmadl=10, barlag=3, ish=8, flf="sc1", codemax=45500)
for a in sys.argv[1:]:
    if "=" in a:
        k, v = a.split("=")
        OPT[k] = int(v) if v.lstrip("-").isdigit() else v
    elif a == "stamp":
        OPT["stamp"] = 1
import sched as _sc
for _k in _sc.SOPT:
    if _k in OPT:
        _sc.SOPT[_k] = OPT[_k]
STAMP, DEBUG = OPT["stamp"], OPT["debug"]
STF = " " + OPT["stf"].replace("+", " ") if OPT["stf"] else ""
LDF = " " + OPT["ldf"].replace("+", " ") if OPT["ldf"] else ""

sID = 3
sX, sK, sV, sWQ, sWO, sWS = 8, 12, 16, 20, 24, 28
sDBG, sOUT = 4, 20
INBOX = 48 << 20
sIN = 82
sRot, sXlim, sK3 = 88, 89, 90
sW, sXW, sHW, sB, sH, sSP = 32, 33, 34, 35, 36, 37
sKoff, sVoff, sDst, sDstLim, sDst0 = 38, 39, 40, 41, 42
sHalf, sC1, sC2, sD, sK2 = 43, 44, 45, 46, 47
sPat = 48
sT0, sT1, sT2, sT3 = 50, 51, 52, 53
sThr, sCnt, sSite = 54, 55, 56
sWoff, sXoff, sWdst, sXdst, sWrd, sXrd, sDX = 57, 58, 59, 60, 61, 62, 63
sE0, sE1, sE2, sE3, sE4, sE5, sE6 = 57, 58, 59, 60, 61, 62, 63
sArg = 64
sSt = 80

vLANE, vK0, vK1, vV, vWt, vX, vST = 1, 2, 3, 4, 5, 6, 7
KA = [8, 9]
XA = [10, 11]
VA = [12, 13, 14, 15]
QA = [16, 17, 18]
vU = [19, 20, 21, 22, 23]
LV = [24, 25, 26, 27]
LK0 = 28
vT0, vT1, vT2 = 29, 30, 31
QB = [32, 64, 96]
SB, PB = 128, 176
NEGM = [224, 228, 232]
ET = 236
TS = [[244, 245, 246], [247, 248, 249]]
LS = [250, 251, 252]
vC = 253
vF = [253, 254, 255]
OB = [0, 64, 128]
FB = 192
SLOT = 32768
XBASE, XSL = 3 * SLOT, 20480
EX_WG = 49152
PART0, PART_WG = 16 << 20, 73728
OOB = 0x7ff00000
QSCALE = 0x3DB8AA3B
ISH = OPT.get("ish", 7)
FLF = " " + OPT.get("flf", "sc0+sc1").replace("+", " ")
LEAD = OPT.get("lead", 0)
DIST, MLAT = OPT["dist"], 5


def Sreg(j, kt, blk):
    return SB + ((2 * j + kt) % 4) * 12 + blk * 4


def Preg(j, blk):
    return PB + (j % 4) * 12 + blk * 4


def waitr(vm_keys, lg_key):
    return I("s_waitcnt <resolve>", "W", tag=("resolve", vm_keys, lg_key))


def wait_bar(vm_keys, lg_key):
    return [waitr(vm_keys, lg_key), I("s_barrier", "B")]


def stamp(k):
    return [raw(f"s_memtime s[{84 + 2 * k}:{85 + 2 * k}]")] if STAMP and k < 1 else []


def pst():
    if not STAMP:
        return []
    return [raw("s_waitcnt lgkmcnt(0)", "W"), raw("s_mov_b32 s100, s96"), I("v_mov_b32 v28, s100", "V"), I("v_cndmask_b32 v0, v0, v28, s[80:81]", "V"),
            raw("s_memrealtime s[96:97]" if OPT.get("rt") else "s_memtime s[96:97]"), raw("s_lshl_b64 s[80:81], s[80:81], 1")]


def AR(v, a):
    return I(f"v_accvgpr_read_b32 v{v}, a{a}", "V", [("a", a)], [("v", v)])


def bload(n, dst, voff, srd, soff, imm, flags="", tag=None):
    suf = {1: "dword", 2: "dwordx2", 4: "dwordx4"}[n]
    t = f"buffer_load_{suf} {rtxt(dst[0], dst[1], n)}, v{voff}, s[{srd}:{srd + 3}], s{soff} offen offset:{imm}{flags}"
    return I(t, "D", [("v", voff), ("s", soff)] + R("s", srd, 4), R(dst[0], dst[1], n), tag=tag)


def srd(c, d, arg, size):
    for t in (f"s_mov_b32 s{d}, s{sArg + arg}", f"s_mov_b32 s{d + 1}, s{sArg + arg + 1}", f"s_mov_b32 s{d + 2}, {size}",
              f"s_mov_b32 s{d + 3}, 0x20000"):
        c.append(salu(t))


def qw_dma(cidx):
    g = []
    for x in range(2):
        for t in range(4):
            rows = 32 * x + 16 * (t & 1) + 4 * (t >> 1)
            pre = [salu(f"s_add_u32 m0, s{sWdst}, {x * 16384}")] if t == 0 else []
            pre.append(salu(f"s_add_u32 s{sT0}, s{sWoff}, {rows * 8192 - t * 1024}"))
            g.append((pre, dma(vWt, sWQ, sT0, t * 1024, tag=("QW", cidx))))
    adv = [[salu(f"s_add_u32 s{sWoff}, s{sWoff}, {64 * 8192}")],
           [salu(f"s_cmp_ge_u32 s{sWoff}, {448 * 8192}"), salu(f"s_cselect_b32 s{sT1}, {448 * 8192}, 0")],
           [salu(f"s_sub_u32 s{sWoff}, s{sWoff}, s{sT1}")],
           [salu(f"s_cmp_lt_u32 s{sWdst}, {SLOT}"), salu(f"s_cselect_b32 s{sT1}, {3 * SLOT}, 0")],
           [salu(f"s_add_u32 s{sWdst}, s{sWdst}, s{sT1}")], [salu(f"s_sub_u32 s{sWdst}, s{sWdst}, {SLOT}")]]
    return g, adv


def qx_dma(cidx):
    g = []
    for k in range(5):
        pre = [salu(f"s_add_u32 m0, s{sXdst}, {k * 4096}"), salu(f"s_add_u32 s{sT0}, s{sXoff}, {k * 32 * 896}")]
        g.append((pre, dma(vX, sX, sT0, 0, tag=("QX", cidx))))
    adv = [[salu(f"s_add_u32 s{sXoff}, s{sXoff}, 128")],
           [salu(f"s_cmp_eq_u32 s{sXoff}, s{sXlim}"), salu(f"s_cselect_b32 s{sT1}, 896, 0")],
           [salu(f"s_sub_u32 s{sXoff}, s{sXoff}, s{sT1}")],
           [salu(f"s_cmp_ge_u32 s{sXdst}, {XBASE + 2 * XSL}"), salu(f"s_cselect_b32 s{sT1}, {3 * XSL}, 0")],
           [salu(f"s_sub_u32 s{sXdst}, s{sXdst}, s{sT1}")], [salu(f"s_add_u32 s{sXdst}, s{sXdst}, {XSL}")]]
    return g, adv


def dst_adv():
    return [[salu(f"s_add_u32 s{sDst}, s{sDst}, {SLOT}")],
            [salu(f"s_cmp_eq_u32 s{sDst}, s{sDstLim}"), salu(f"s_cselect_b32 s{sDst}, s{sDst0}, s{sDst}")]]


def kv_dma(kind, tag):
    g = []
    r, off = (sK, sKoff) if kind == "K" else (sV, sVoff)
    for x in range(2):
        for t in range(4):
            pre = []
            if t == 0:
                pre.append(salu(f"s_add_u32 m0, s{sDst}, {x * 16384}") if x else salu(f"s_mov_b32 m0, s{sDst}"))
                if x:
                    pre.append(salu(f"s_add_u32 s{off}, s{off}, 16384"))
            vo = (vK1 if t & 1 else vK0) if kind == "K" else vV
            g.append((pre, dma(vo, r, off, t * 1024, nt=OPT.get("nt", 1), tag=tag)))
    return g, [[salu(f"s_add_u32 s{off}, s{off}, 16384")]] + dst_adv()


def wo_dma(o, slot):
    g = []
    for kk in range(2):
        for t in range(4):
            rows = 32 * kk + 16 * (t >> 1) + 8 * (t & 1)
            pre = [salu(f"s_add_u32 m0, s{sE6}, {slot * SLOT + kk * 4096}")] if t == 0 else []
            if kk == 0 and t == 0 and o > 0:
                pre = [salu(f"s_add_u32 s{sK2}, s{sK2}, 128"),
                       I(f"s_cmp_eq_u32 s{sK2}, s{sK3}\ns_cselect_b32 s{sT0}, 896, 0", "S", [], [("scc", 0), ("s", sT0)]),
                       salu(f"s_sub_u32 s{sK2}, s{sK2}, s{sT0}")] + pre
            pre.append(salu(f"s_add_u32 s{sT0}, s{sK2}, {rows * 896 - t * 1024}"))
            g.append((pre, dma(vWt, sWO, sT0, t * 1024, tag=("WO", o))))
    return g, []


def add_dma(tasks, g, adv, first, rel, dl, spread, gapmin=0):
    prev = first
    pd = None
    n = len(g)
    for k, (pre, d) in enumerate(g):
        ddl = dl - (n - 1 - k) * max(3, gapmin)
        for p in pre:
            t = Task(p, "S", rel=rel, dl=ddl, deps=[(prev, 0)], name="dmapre")
            tasks.append(t)
            prev = t
        t = Task(d, "D", rel=rel + k * spread, dl=ddl, deps=[(prev, 1 if (prev.cls == "S" and prev.ins) else 0)] + ([(pd, gapmin)] if pd and gapmin else []), name="dma")
        tasks.append(t)
        prev = pd = t
    for a in adv:
        t = Task(a, "S", rel=rel, dl=dl + 8, deps=[(prev, 0)], name="dmaadv")
        tasks.append(t)
        prev = t
    return prev


def emit_serial(c, g, adv, fill=None):
    for pre, d in g:
        c += pre
        c.append(d)
        if fill:
            for _ in range(6):
                if fill:
                    c.append(fill.pop(0))
    for a in adv:
        c += a


def prologue():
    c = []
    S = lambda t: c.append(salu(t))
    V = lambda t: c.append(valu(t))
    c.append(raw(f"s_load_dwordx16 s[{sArg}:{sArg + 15}], s[0:1], 0"))
    c += stamp(0)
    if STAMP or OPT.get("diag") or OPT.get("padto"):
        c.append(raw("s_memrealtime s[98:99]"))
    V(f"v_lshrrev_b32 v{vT0}, 6, v0")
    V(f"v_and_b32 v{vLANE}, 63, v0")
    V(f"v_readfirstlane_b32 s{sW}, v{vT0}")
    def code_prefetch(c):
        c.append(raw(f"s_getpc_b64 s[{sPat}:{sPat + 1}]"))
        c.append(salu(f"s_lshr_b32 s{sD}, s2, 3"))
        c.append(salu(f"s_and_b32 s{sD}, s{sD}, 1"))
        c.append(salu(f"s_lshl_b32 s{sD}, s{sD}, 15"))
        c.append(valu(f"v_lshlrev_b32 v{vU[4]}, 7, v0"))
        c.append(valu(f"v_add_u32 v{vU[4]}, s{sD}, v{vU[4]}"))
        c.append(valu(f"v_min_u32 v{vU[4]}, @CODEMAX, v{vU[4]}"))
        c.append(I(f"global_load_dword v{vU[4]}, v{vU[4]}, s[{sPat}:{sPat + 1}]", "D", [("v", vU[4])], [("v", vU[4])]))

    if OPT.get("cpf") == 1:
        code_prefetch(c)
    S(f"s_lshr_b32 s{sT1}, s2, 3")
    S(f"s_and_b32 s{sT3}, s2, 1")
    S(f"s_lshl_b32 s{sT3}, s{sT3}, 2")
    S(f"s_and_b32 s{sT2}, s{sT1}, 3")
    S(f"s_add_u32 s{sT3}, s{sT3}, s{sT2}")
    S(f"s_and_b32 s{sB}, s2, 6")
    S(f"s_bfe_u32 s{sT2}, s{sT1}, 0x10002")
    S(f"s_add_u32 s{sB}, s{sB}, s{sT2}")
    S(f"s_bfe_u32 s{sH}, s{sT1}, 0x10003")
    S(f"s_lshl_b32 s{sT2}, s{sT3}, 1")
    S(f"s_add_u32 s{sH}, s{sH}, s{sT2}")
    S(f"s_lshr_b32 s{sSP}, s{sT1}, 4")
    S(f"s_lshr_b32 s{sXW}, s{sW}, 1")
    S(f"s_and_b32 s{sHW}, s{sW}, 1")
    S(f"s_lshl_b32 s{sKoff}, s{sB}, 3")
    S(f"s_add_u32 s{sKoff}, s{sKoff}, s{sT3}")
    V(f"v_lshrrev_b32 v{vT0}, 3, v{vLANE}")
    V(f"v_and_b32 v{vT1}, 7, v{vLANE}")
    V(f"v_lshrrev_b32 v{vT2}, 1, v{vT0}")
    V(f"v_xor_b32 v{vK0}, v{vT1}, v{vT2}")
    V(f"v_lshlrev_b32 v{vK0}, 4, v{vK0}")
    V(f"v_lshlrev_b32 v{vV}, 1, v{vT2}")
    V(f"v_xor_b32 v{vV}, v{vT1}, v{vV}")
    V(f"v_lshlrev_b32 v{vV}, 4, v{vV}")
    S(f"s_lshl_b32 s{sT2}, s{sHW}, 6")
    V(f"v_xor_b32 v{vX}, s{sT2}, v{vK0}")
    V(f"v_mul_u32_u24 v{vST}, 896, v{vT0}")
    V(f"v_add_u32 v{vX}, v{vX}, v{vST}")
    V(f"v_and_b32 v{vWt}, 3, v{vT0}")
    V(f"v_lshrrev_b32 v{vST}, 2, v{vT0}")
    V(f"v_lshl_add_u32 v{vWt}, v{vST}, 3, v{vWt}")
    V(f"v_lshlrev_b32 v{vWt}, 13, v{vWt}")
    V(f"v_add_u32 v{vWt}, v{vWt}, v{vV}")
    S(f"s_lshl_b32 s{sT3}, s{sW}, 7")
    V(f"v_add_u32 v{vWt}, s{sT3}, v{vWt}")
    S(f"s_lshl_b32 s{sWoff}, s{sH}, 9")
    S(f"s_mul_i32 s{sXoff}, s{sB}, {160 * 896}")
    S(f"s_mul_i32 s{sT2}, s{sW}, {8 * 896}")
    S(f"s_add_u32 s{sXoff}, s{sXoff}, s{sT2}")
    S(f"s_add_u32 s{sXlim}, s{sXoff}, 896")
    if OPT["rot"]:
        S(f"s_and_b32 s{sT2}, s{sB}, 1")
        S(f"s_lshl_b32 s{sT1}, s{sSP}, 1")
        S(f"s_add_u32 s{sT2}, s{sT2}, s{sT1}")
        S(f"s_lshl_b32 s{sT2}, s{sT2}, 1")
        S(f"s_and_b32 s{sT1}, s{sH}, 3")
        S(f"s_add_u32 s{sT2}, s{sT2}, s{sT1}")
        S(f"s_cmp_ge_u32 s{sT2}, 7")
        S(f"s_cselect_b32 s{sT1}, 7, 0")
        S(f"s_sub_u32 s{sT2}, s{sT2}, s{sT1}")
        S(f"s_lshl_b32 s{sT1}, s{sT2}, 19")
        S(f"s_add_u32 s{sWoff}, s{sWoff}, s{sT1}")
        S(f"s_lshl_b32 s{sT1}, s{sT2}, 7")
        S(f"s_add_u32 s{sXoff}, s{sXoff}, s{sT1}")
    S(f"s_lshl_b32 s{sDst0}, s{sW}, 12")
    S(f"s_add_u32 s{sWdst}, s{sDst0}, {SLOT}")
    S(f"s_lshl_b32 s{sXdst}, s{sW}, 10")
    S(f"s_add_u32 s{sXdst}, s{sXdst}, {XBASE}")
    c.append(I("s_waitcnt lgkmcnt(0)", "W"))
    if STAMP:
        c.append(raw("s_memrealtime s[92:93]"))
    if OPT.get("swarm", 1):
        S(f"s_lshl_b32 s{sT1}, s{sKoff}, 20")
        c.append(raw(f"s_load_dword s91, s[{sArg}:{sArg + 1}], s{sXoff}"))
        c.append(raw(f"s_load_dword s91, s[{sArg + 2}:{sArg + 3}], s{sT1}"))
        c.append(raw(f"s_load_dword s91, s[{sArg + 4}:{sArg + 5}], s{sT1}"))
        c.append(raw(f"s_load_dword s91, s[{sArg + 6}:{sArg + 7}], 0"))
        c.append(raw(f"s_load_dword s91, s[{sArg + 6}:{sArg + 7}], 0xffffc"))
        S(f"s_mov_b32 s{sT1}, {448 * 4096 * 2 - 4}")
        c.append(raw(f"s_load_dword s91, s[{sArg + 6}:{sArg + 7}], s{sT1}"))
    srd(c, sWQ, 6, 448 * 4096 * 2)
    srd(c, sX, 0, 8 * 160 * 448 * 2)
    f = []
    c2, c = c, f
    S = lambda t: f.append(salu(t))
    V = lambda t: f.append(valu(t))
    V(f"v_and_b32 v{vST}, 1, v{vT0}")
    V(f"v_lshl_add_u32 v{vST}, v{vT2}, 3, v{vST}")
    V(f"v_lshlrev_b32 v{vST}, 9, v{vST}")
    V(f"v_add_u32 v{vST}, s{sT3}, v{vST}")
    V(f"v_add_u32 v{vK0}, v{vK0}, v{vST}")
    V(f"v_add_u32 v{vV}, v{vV}, v{vST}")
    V(f"v_xor_b32 v{vK1}, 64, v{vK0}")
    srd(f, sK, 2, 0x4000000)
    srd(f, sV, 4, 0x4000000)
    srd(f, sWO, 8, 448 * 4096 * 2)
    srd(f, sWS, 14, 0x10000000)
    S(f"s_lshl_b32 s{sKoff}, s{sKoff}, 20")
    S(f"s_lshl_b32 s{sVoff}, s{sSP}, 19")
    S(f"s_add_u32 s{sKoff}, s{sKoff}, s{sVoff}")
    S(f"s_mov_b32 s{sVoff}, s{sKoff}")
    S(f"s_lshl_b32 s{sID}, s{sB}, 1")
    S(f"s_add_u32 s{sID}, s{sID}, s{sSP}")
    S(f"s_lshl_b32 s{sID}, s{sID}, 4")
    S(f"s_add_u32 s{sID}, s{sID}, s{sH}")
    srd(f, sDBG, 12, 256)
    S(f"s_lshl_b32 s{sIN}, s{sID}, {ISH}")
    S(f"s_add_u32 s{sIN}, s{sIN}, {INBOX}")
    f.append(I(f"s_cmp_eq_u32 s{sW}, 0\ns_cselect_b32 s{sT2}, s{sIN}, {OOB:#x}\ns_cselect_b32 s{sIN + 1}, s{sID}, {OOB:#x}", "S"))
    V(f"v_and_b32 v{vT0}, 31, v{vLANE}")
    V(f"v_lshlrev_b32 v{vT0}, 2, v{vT0}")
    V(f"v_mov_b32 v{vU[2]}, 0")
    V(f"v_mov_b32 v{vU[3]}, 1")
    f.append(bstore(1, ("v", vU[2]), vT0, sWS, sT2, 0, " sc0 sc1"))
    f.append(nop(1))
    V(f"v_and_b32 v{vT0}, 15, v{vLANE}")
    V(f"v_lshrrev_b32 v{vT1}, 4, v{vLANE}")
    V(f"v_lshrrev_b32 v{vT2}, 1, v{vT0}")
    V(f"v_xor_b32 v{LK0}, v{vT1}, v{vT2}")
    V(f"v_lshlrev_b32 v{LK0}, 4, v{LK0}")
    V(f"v_lshl_add_u32 v{LK0}, v{vT0}, 7, v{LK0}")
    V(f"v_lshrrev_b32 v{vT0}, 2, v{vLANE}")
    V(f"v_and_b32 v{vT1}, 6, v{vT0}")
    V(f"v_bfe_u32 v{vT2}, v{vLANE}, 1, 1")
    V(f"v_xor_b32 v{vT1}, v{vT1}, v{vT2}")
    V(f"v_lshlrev_b32 v{vT1}, 4, v{vT1}")
    V(f"v_lshl_add_u32 v{vT1}, v{vT0}, 7, v{vT1}")
    V(f"v_and_b32 v{vT2}, 1, v{vLANE}")
    V(f"v_lshl_add_u32 v{LV[0]}, v{vT2}, 3, v{vT1}")
    for k in range(1, 4):
        V(f"v_xor_b32 v{LV[k]}, {32 * k}, v{LV[0]}")
    S(f"s_add_u32 s{sT2}, s{sDst0}, {SLOT}")
    for k in range(4):
        V(f"v_add_u32 v{VA[k]}, s{sT2}, v{LV[k]}")
    V(f"v_add_u32 v{XA[0]}, {XBASE}, v{LK0}")
    V(f"v_xor_b32 v{XA[1]}, 64, v{XA[0]}")
    S(f"s_mov_b32 s{sWrd}, {SLOT}")
    S(f"s_mov_b32 s{sXrd}, 0")
    S(f"s_add_u32 s{sDstLim}, s{sDst0}, {5 * SLOT}")
    S(f"s_mov_b32 s{sDst}, s{sDst0}")
    S(f"s_lshl_b32 s{sHalf}, s{sXW}, 15")
    S(f"s_sub_u32 s{sHalf}, s{sHalf}, 16384")
    S(f"s_sub_u32 s{sC1}, {2 * SLOT}, s{sHalf}")
    S(f"s_sub_u32 s{sC2}, {(-3 * SLOT) & 0xffffffff}, s{sHalf}")
    S(f"s_mov_b32 s{sThr}, 0x53800000")
    pat = 0
    for j in range(40):
        if (j + 1) % 5 < (j - 1) % 5:
            pat |= 1 << j
    S(f"s_mov_b32 s{sPat}, {pat & 0xffffffff:#x}")
    S(f"s_mov_b32 s{sPat + 1}, {pat >> 32:#x}")
    S(f"s_lshl_b32 s{sT2}, s{sXW}, 14")
    S(f"s_sub_u32 s{sT2}, 16384, s{sT2}")
    V(f"v_add_u32 v{KA[0]}, s{sT2}, v{LK0}")
    V(f"v_xor_b32 v{KA[1]}, 64, v{KA[0]}")
    V(f"v_and_b32 v{vT0}, 15, v{vLANE}")
    V(f"v_lshlrev_b32 v{vT0}, 4, v{vT0}")
    V(f"v_lshrrev_b32 v{vT1}, 5, v{vLANE}")
    V(f"v_lshl_add_u32 v{vT0}, v{vT1}, 8, v{vT0}")
    V(f"v_bfe_u32 v{vT1}, v{vLANE}, 4, 1")
    V(f"v_lshl_add_u32 v{vT0}, v{vT1}, 3, v{vT0}")
    S(f"s_lshl_b32 s{sT2}, s{sW}, 11")
    S(f"s_add_u32 s{sT3}, s{sT2}, {XBASE}")
    V(f"v_add_u32 v{vU[0]}, s{sT3}, v{vT0}")
    S(f"s_add_u32 s{sT3}, s{sT2}, {SLOT}")
    V(f"v_add_u32 v{vU[1]}, s{sT3}, v{vT0}")
    V(f"v_lshlrev_b32 v{vST}, 4, v{vLANE}")
    S(f"s_lshl_b32 s{sT2}, s{sW}, 1")
    S(f"s_add_u32 s{sT2}, s{sT2}, s{sSP}")
    S(f"s_lshl_b32 s{sT2}, s{sT2}, 13")
    S(f"s_add_u32 s{sT2}, s{sT2}, {XBASE}")
    V(f"v_add_u32 v{QA[0]}, s{sT2}, v{vST}")
    V(f"v_xor_b32 v{QA[1]}, 8192, v{QA[0]}")
    S(f"s_xor_b32 s{sT2}, s{sHW}, s{sSP}")
    S(f"s_lshl_b32 s{sT2}, s{sT2}, 13")
    S(f"s_add_u32 s{sT2}, s{sT2}, {SLOT}")
    V(f"v_add_u32 v{QA[2]}, s{sT2}, v{vST}")
    S(f"s_lshl_b32 s{sK2}, s{sH}, 2")
    S(f"s_add_u32 s{sK2}, s{sK2}, s{sW}")
    S(f"s_mul_i32 s{sK2}, s{sK2}, {64 * 896}")
    S(f"s_add_u32 s{sK3}, s{sK2}, 896")
    S(f"s_and_b32 s{sRot}, s{sB}, 1")
    S(f"s_lshl_b32 s{sT2}, s{sSP}, 1")
    S(f"s_add_u32 s{sRot}, s{sRot}, s{sT2}")
    S(f"s_mul_i32 s{sRot}, s{sRot}, {2 * OPT['rot']}")
    S(f"s_lshl_b32 s{sT2}, s{sRot}, 7")
    S(f"s_add_u32 s{sK2}, s{sK2}, s{sT2}")
    c = c2
    for fn, cidx in ((qw_dma, 0), (qx_dma, 0), (qw_dma, 1)):
        g, adv = fn(cidx)
        emit_serial(c, g, adv, f if (OPT.get("ilv", 1) or cidx == 1) else None)
        if STAMP and fn is qx_dma:
            c.append(raw("s_memrealtime s[94:95]"))
        if fn is qx_dma and OPT.get("cpf") == 2:
            code_prefetch(c)
    c += f
    if STAMP:
        c.append(raw("s_memrealtime s[86:87]"))
    c.append(I("s_waitcnt lgkmcnt(0)", "W"))
    if OPT["pref"]:
        S = lambda t: c.append(salu(t))
        V = lambda t: c.append(valu(t))
        S(f"s_and_b32 s{sT0}, s{sB}, 1")
        S(f"s_lshl_b32 s{sT0}, s{sT0}, 1")
        S(f"s_add_u32 s{sT0}, s{sT0}, s{sSP}")
        S(f"s_lshl_b32 s{sT0}, s{sT0}, 2")
        S(f"s_add_u32 s{sT0}, s{sT0}, s{sW}")
        V(f"v_lshrrev_b32 v{vT0}, 2, v{vLANE}")
        V(f"v_lshlrev_b32 v{vT0}, 13, v{vT0}")
        V(f"v_and_b32 v{vT1}, 3, v{vLANE}")
        V(f"v_lshl_add_u32 v{vT0}, v{vT1}, 7, v{vT0}")
        S(f"s_lshl_b32 s{sT1}, s{sT0}, 17")
        S(f"s_add_u32 s{sT1}, s{sT1}, s{sWoff}")
        c.append(bload(1, ("v", 32), vT0, sWQ, sT1, 0))
        S(f"s_lshr_b32 s{sT1}, s2, 3")
        S(f"s_and_b32 s{sT2}, s{sT1}, 3")
        S(f"s_lshr_b32 s{sT1}, s{sT1}, 3")
        S(f"s_lshl_b32 s{sT1}, s{sT1}, 2")
        S(f"s_add_u32 s{sT1}, s{sT1}, s{sT2}")
        S(f"s_lshl_b32 s{sT1}, s{sT1}, 2")
        S(f"s_add_u32 s{sT1}, s{sT1}, s{sW}")
        S(f"s_mul_i32 s{sT1}, s{sT1}, {18 * 128}")
        S(f"s_mul_i32 s{sT2}, s{sB}, {160 * 896}")
        S(f"s_add_u32 s{sT1}, s{sT1}, s{sT2}")
        V(f"v_min_u32 v{vT1}, 17, v{vLANE}")
        V(f"v_lshlrev_b32 v{vT1}, 7, v{vT1}")
        c.append(bload(1, ("v", 33), vT1, sX, sT1, 0))
        c.append(raw(f"s_getpc_b64 s[{sT2}:{sT3}]"))
        S(f"s_and_b32 s{sT1}, s{sT0}, 7")
        S(f"s_lshl_b32 s{sT1}, s{sT1}, 13")
        V(f"v_lshlrev_b32 v{vT1}, 7, v{vLANE}")
        V(f"v_add_u32 v{vT1}, s{sT1}, v{vT1}")
        V(f"v_min_u32 v{vT1}, @CODEMAX, v{vT1}")
        c.append(I(f"global_load_dword v34, v{vT1}, s[{sT2}:{sT3}]", "D", [("v", vT1)], [("v", 34)]))
        S(f"s_mul_i32 s{sT1}, s{sH}, {256 * 896}")
        S(f"s_mul_i32 s{sT0}, s{sT0}, {112 * 128}")
        S(f"s_add_u32 s{sT1}, s{sT1}, s{sT0}")
        V(f"v_lshlrev_b32 v{vT1}, 7, v{vLANE}")
        if OPT["pref"] > 1:
            c.append(bload(1, ("v", 35), vT1, sWO, sT1, 0))
            S(f"s_add_u32 s{sT1}, s{sT1}, {48 * 128}")
            c.append(bload(1, ("v", 36), vT1, sWO, sT1, 0))
    return c


def qacc(blk, t):
    return 96 + (blk * 4 + t) * 4


def q_phase():
    mf, tasks, marks = [], [], []
    WF = lambda c, ks, t: (c & 1) * 32 + (ks * 4 + t) * 4
    XF = lambda blk, ks: 64 + (blk * 2 + ks) * 4
    bar, lastx, lastaddr, xuse, wuse = {}, {}, {}, {}, {}
    prev_dma, prev_aups = None, []
    allreads = []
    for cidx in range(7):
        start = 80 * cidx
        marks.append(start)
        if cidx == 0:
            bar[0] = Task(wait_bar([("QX", 0)], None), "BAR", rel=-1, dl=-1, name="bar0")
            wready = bar[0]
        else:
            bar[cidx] = Task(wait_bar([("QX", cidx)], ("XR", cidx - 1)), "BAR", rel=start - 20, dl=start - 10, deps=[(lastx[cidx - 1], 4)], name=f"bar{cidx}")
            wready = Task(waitr([("QW", cidx)], None), "S", rel=start - 44, name="wready")
            tasks.append(wready)
        tasks.append(bar[cidx])
        aup = {}
        if cidx > 0:
            sd = [Task([salu(f"s_cmp_eq_u32 s{sWrd}, 0"), salu(f"s_cselect_b32 s{sD}, {3 * SLOT}, 0")], "S", rel=start - 76, deps=[(t, 0) for t in prev_aups], name="sd")]
            for t in (f"s_sub_u32 s{sD}, s{sD}, {SLOT}", f"s_add_u32 s{sWrd}, s{sWrd}, s{sD}"):
                sd.append(Task(salu(t), "S", deps=[(sd[-1], 0)], name="sd"))
            sd.append(Task([salu(f"s_cmp_eq_u32 s{sXrd}, {2 * XSL}"), salu(f"s_cselect_b32 s{sDX}, {3 * XSL}, 0")], "S", deps=[(sd[-1], 0)], name="sd"))
            for t in (f"s_sub_u32 s{sDX}, {XSL}, s{sDX}", f"s_add_u32 s{sXrd}, s{sXrd}, s{sDX}"):
                sd.append(Task(salu(t), "S", deps=[(sd[-1], 0)], name="sd"))
            tasks += sd
            for r in VA:
                aup[r] = Task(valu(f"v_add_u32 v{r}, s{sD}, v{r}"), "V", deps=[(sd[-1], 1), (lastaddr[r], 0)], name="aup")
            for r in XA:
                aup[r] = Task(valu(f"v_add_u32 v{r}, s{sDX}, v{r}"), "V", deps=[(sd[-1], 1), (lastaddr[r], 0)], name="aup")
            tasks += list(aup.values())
            prev_aups = list(aup.values())

        def rd(ins, consumer, gate, tag, rel, war):
            ins.tag = tag
            a = ins.rd[0][1]
            deps = [(gate, 0)] + ([(aup[a], 1)] if a in aup else []) + ([(lastaddr[a], 0)] if a in lastaddr else [])
            first = cidx == 0 and consumer < 12
            t = Task(ins, "L", rel=-1 if first else max(rel, war), dl=-1 if first else consumer - 6, deps=deps, name="rd")
            tasks.append(t)
            lastaddr[a] = t
            allreads.append(t)
            return t

        for ks in range(2):
            for t in range(4):
                for e in range(2):
                    rd(ds_rtr(("a", WF(cidx, ks, t) + 2 * e), VA[t], ks * 16384 + e * 2048), start + ks * 4 + t, wready, ("WR", cidx),
                       start - 42, wuse.get(cidx & 1, -1))
        early = 60 if cidx == 6 else 22
        for blk in range(10):
            for ks in range(2):
                c0 = len(mf)
                lastx[cidx] = rd(ds_r128(("a", XF(blk, ks)), XA[ks], blk * 2048), c0, bar[cidx], ("XR", cidx), c0 - early, xuse.get((blk, ks), -1))
                for t in range(4):
                    d = ("v", qacc(blk, t))
                    mf.append(mfma(d, ("a", WF(cidx, ks, t)), ("a", XF(blk, ks)), 0 if (cidx == 0 and ks == 0) else d))
                xuse[(blk, ks)] = len(mf) - 1
        wuse[cidx & 1] = len(mf) - 1
    q = []
    for cidx in range(1, 7):
        q.append((qx_dma(cidx), bar[max(cidx - 2, 0)], max(0, 80 * (cidx - 2) - 10), 80 * (cidx - 1) + (30 if cidx > 1 else 16)))
        if cidx + 1 <= 6:
            q.append((qw_dma(cidx + 1), bar[0], max(0, 80 * (cidx - 2) + 10), 80 * (cidx - 1) + 62))
    g, adv = kv_dma("K", ("T", -1))
    q.append(((g, adv + dst_adv()), bar[0], 80 * 4 + 10, 80 * 5 + 40))
    q.append((kv_dma("K", ("T", 1)), bar[0], 80 * 5 + 10, 80 * 6 + 20))
    for (g, adv), gate, r0, d0 in q:
        first = Task([], "S", rel=r0, deps=[(gate, 0)] + ([(prev_dma, 0)] if prev_dma else []), name="dmastart")
        tasks.append(first)
        prev_dma = add_dma(tasks, g, adv, first, r0, d0, spread=0, gapmin=OPT.get("qgap", 3))
    an = I(f"buffer_store_byte v{vU[3]}, v{vU[2]}, s[{sDBG}:{sDBG + 3}], s{sIN + 1} offen sc0 sc1", "D", [("v", vU[3]), ("v", vU[2])], [], tag="store")
    seq = [an]
    if OPT.get("tlb", 1):
        seq += [bload(1, ("v", vX), vU[2], sV, sVoff, 0), bload(1, ("v", vX), vU[2], sWO, sK2, 0)]
    for i in seq:
        prev_dma = Task(i, i.kind, deps=[(prev_dma, 1)], dl=80 * 6 + 60, name="warm")
        tasks.append(prev_dma)
    start = 480
    dead = Task(wait_bar([], ("XR", 6)), "BAR", deps=[(lastx[6], 4)], name="dead")
    tasks.append(dead)
    sc = Task([salu(f"s_mov_b32 s{sT2}, {QSCALE:#x}"), salu(f"s_mov_b32 s{sT3}, {QSCALE:#x}")], "S", rel=start, name="sc")
    tasks.append(sc)
    for blk in range(10):
        for t in range(4):
            s = qacc(blk, t)
            done = start + blk * 8 + 4 + t
            if blk < OPT.get("pkfrom", 4):
                ms = [Task(valu(f"v_mul_f32 v{s + r}, s{sT3}, v{s + r}"), "V", rel=done + MLAT, deps=[(sc, 1)], name="qmul") for r in range(4)]
            else:
                m2 = [Task(valu(f"v_pk_mul_f32 v[{s + r}:{s + r + 1}], v[{s + r}:{s + r + 1}], s[{sT2}:{sT3}]"), "V", rel=done + MLAT, deps=[(sc, 1)], name="qmul") for r in (0, 2)]
                ms = [m2[0], m2[0], m2[1], m2[1]]
            c0 = Task(valu(f"v_cvt_pk_bf16_f32 v{s}, v{s}, v{s + 1}"), "V", deps=[(ms[0], 0), (ms[1], 0)], name="qcv")
            c1 = Task(valu(f"v_cvt_pk_bf16_f32 v{s + 1}, v{s + 2}, v{s + 3}"), "V", deps=[(ms[2], 0), (ms[3], 0), (c0, 0)], name="qcv")
            w = ds_w64(vU[0] if blk < 8 else vU[1], ("v", s), (blk & 7) * 8192 + (t >> 1) * 1024 + (t & 1) * 512)
            wt = Task(w, "L", deps=[(c1, 0), (dead, 0)], name="qwr")
            tasks += list(dict.fromkeys(ms)) + [c0, c1, wt]
    gaps = schedule(mf, tasks, verbose=True)
    for k, m in enumerate(marks):
        mf[m].mark = ("Q", k)
    return linearize(mf, gaps)


def q_finish():
    c = []
    S = lambda t: c.append(salu(t))
    V = lambda t: c.append(valu(t))
    S(f"s_lshl_b32 s{sT0}, s{sXW}, 14")
    S(f"s_sub_u32 s{sT0}, {3 * SLOT + 16384}, s{sT0}")
    for k in range(4):
        V(f"v_add_u32 v{VA[k]}, s{sT0}, v{LV[k]}")
    V(f"v_lshrrev_b32 v{vT0}, 3, v{vLANE}")
    V(f"v_mul_u32_u24 v{vT0}, 896, v{vT0}")
    V(f"v_and_b32 v{vWt}, 0x70, v{vV}")
    V(f"v_add_u32 v{vWt}, v{vWt}, v{vT0}")
    S(f"s_lshl_b32 s{sE6}, s{sW}, 13")
    c.append(I("s_waitcnt lgkmcnt(0)", "W"))
    for r in list(range(NEGM[0], NEGM[0] + 12)) + LS:
        V(f"v_mov_b32 v{r}, 0")
    c += wait_bar([("T", -1)], None)
    return c


sites = []


def rowmax_tasks(tasks, src, t, u, dep, name):
    seq = [f"v_max3_f32 v{t}, v{src}, v{src + 1}, v{src + 2}", f"v_max_f32 v{t}, v{t}, v{src + 3}", f"v_mov_b32 v{u}, v{t}",
           f"v_permlane32_swap_b32 v{t}, v{u}", f"v_max_f32 v{t}, v{t}, v{u}", f"v_mov_b32 v{u}, v{t}",
           f"v_permlane16_swap_b32 v{t}, v{u}", f"v_max_f32 v{t}, v{t}, v{u}", f"v_ceil_f32 v{t}, v{t}"]
    prev = dep
    for x in seq:
        i = valu(x)
        tk = Task(i, "V", deps=[(prev, 1 if i.kind == "P" else 0)], name=name)
        tasks.append(tk)
        prev = tk
    return prev


def main_phase():
    NS = 35
    mf, tasks = [], []
    nfrag = 0
    start, chain_first, chain_last, plan, qfirst = {}, {}, {}, [], {}
    for j in range(NS):
        start[j] = len(mf)
        for gam in range(16):
            kt, ks = gam >> 3, gam & 7
            if j <= 31:
                f = FB + (nfrag % 16) * 4
                nfrag += 1
                plan.append(("K", j, gam, f, len(mf)))
                for blk in ((0, 1, 2) if j & 1 else (0, 1)):
                    d = ("v", Sreg(j, kt, blk))
                    qfirst.setdefault((blk, ks), len(mf))
                    mf.append(mfma(d, ("a", f), ("v", QB[blk] + 4 * ks), ("v", NEGM[blk]) if ks == 0 else d))
                    chain_first.setdefault((j, kt), len(mf) - 1)
                    chain_last[(j, kt, blk)] = len(mf) - 1
            if j >= 3:
                f = FB + (nfrag % 16) * 4
                nfrag += 1
                plan.append(("V", j, gam, f, len(mf)))
                for blk in ((0, 1, 2) if (j & 1) == 0 else (0, 1)):
                    d = ("a", OB[blk] + 4 * gam)
                    mf.append(mfma(d, ("a", f), ("v", Preg(j - 3, blk)), 0 if j == (3 if blk < 2 else 4) else d))
    start[NS] = start[NS + 1] = len(mf)
    bar, aup, lastread, lastaddr = {}, {}, {}, {}
    qlast = None
    for (blk, ks), c0 in sorted(qfirst.items(), key=lambda x: x[1]):
        i = ds_r128(("v", QB[blk] + 4 * ks), QA[blk], ks * 1024)
        i.tag = ("QS", 0)
        first = c0 < 8
        qlast = Task(i, "L", rel=-1, dl=-1 if first else min(c0 - 6, 22), deps=[(qlast, 0)] if qlast else [], name="qrd")
        tasks.append(qlast)
    bar[0] = Task(wait_bar([], ("QS", 0)), "BAR", deps=[(qlast, 4)], name="barq")
    tasks.append(bar[0])
    st = dict(sd=None, aups=[])
    done_steps = set()

    def tile_of(kind, j):
        return ("K", j >> 1) if kind == "K" else ("V", (j - 3) >> 1)

    def add_wreads(o, gate, rel, dl):
        c = []
        wfrag_reads(c, o)
        prev = gate
        for i in c:
            prev = Task(i, "L", rel=rel, dl=dl, deps=[(prev, 0), (setup_done, 1)], prio=-40, name="wrd")
            tasks.append(prev)
        return prev

    su = []
    tail_setup(su)
    setup_done = None
    for i in su:
        setup_done = Task(i, i.kind if i.kind in ("S", "D") else "V", rel=start[29], dl=start[32] - 30, deps=[(setup_done, 0)] if setup_done else [], name="su")
        tasks.append(setup_done)

    def enter(j):
        done_steps.add(j)
        sw = "K" if j % 2 == 0 else "V"
        old = tile_of(sw, j - 1)
        newvalid = (sw == "K" and j <= 30) or (sw == "V" and 3 <= j <= 33)
        vm = [("T", j - 1)] if newvalid else []
        deps, lg = [], None
        if old in lastread:
            deps.append((lastread[old], OPT["barlag"]))
            lg = old
        if j == 32:
            vm = [("WO", 0)]
        if j == 33:
            vm = vm + [("WO", 1)]
        if j in (33, 34):
            wl = add_wreads(j - 33, bar[j - 1], start[j - 1], start[j] - DIST)
            deps = [(wl, 3)] + deps
            lg = ("ANY", j)
            for t in [wl] + ([lastread[old]] if old in lastread else []):
                t.ins[0].tag = ("ANY", j)
        if vm or lg:
            pb = max(k for k in bar)
            bar[j] = Task(wait_bar(vm, lg), "BAR", rel=start[j] - DIST + 1 + OPT["barlag"], dl=start[j] - 8, deps=deps + [(bar[pb], 1)], name=f"bar{j}")
            tasks.append(bar[j])
        sd0 = Task([salu(f"s_bitcmp1_b64 s[{sPat}:{sPat + 1}], 0"), salu(f"s_cselect_b32 s{sD}, s{sC2}, s{sC1}")], "S", rel=start[j - 1] + 8,
                   deps=[(t, 0) for t in st["aups"]] + ([(st["sd"], 0)] if st["sd"] else []), name="sd")
        sd0.ins[0].wr = [("scc", 0)]
        sd = Task(salu(f"s_lshr_b64 s[{sPat}:{sPat + 1}], s[{sPat}:{sPat + 1}], 1"), "S", deps=[(sd0, 0)], name="sd")
        tasks.extend([sd0, sd])
        st["sd"], st["aups"] = sd, []
        for kind, regs in (("K", KA), ("V", VA)):
            if not ((kind == "K" and 1 <= j <= 31) or (kind == "V" and 4 <= j <= 34)):
                continue
            for r in regs:
                t = Task(valu(f"v_add_u32 v{r}, s{sD if kind == sw else sHalf}, v{r}"), "V", deps=[(sd0, 1), (lastaddr[r], 0)], name="aup")
                aup[(j, r)] = t
                tasks.append(t)
                st["aups"].append(t)

    for kind, j, gam, f, c0 in plan:
        if j >= 1 and j not in done_steps:
            enter(j)
        kt, ks = gam >> 3, gam & 7
        if kind == "K":
            a = KA[ks & 1]
            ins = [ds_r128(("a", f), a, (ks >> 1) * 4096 + kt * 2048)]
        else:
            a = VA[gam & 3]
            ins = [ds_rtr(("a", f), a, (gam >> 2) * 4096), ds_rtr(("a", f + 2), a, (gam >> 2) * 4096 + 2048)]
        tl = tile_of(kind, j)
        for i in ins:
            i.tag = tl
            deps = []
            swj = j if (kind == "K") == (j % 2 == 0) else j - 1
            if swj in bar and swj > 0:
                deps.append((bar[swj], 0))
            if (j, a) in aup:
                deps.append((aup[(j, a)], 1))
            if a in lastaddr:
                deps.append((lastaddr[a], 0))
            first = c0 < 8
            t = Task(i, "L", rel=-1 if first else c0 - DIST, dl=-1 if first else c0 - 5, deps=deps, name=f"rd{kind}{j}.{gam}")
            tasks.append(t)
            lastread[tl] = t
            lastaddr[a] = t
    prev = None
    for j in range(NS):
        n = j + 2
        if n <= 32 and n != 31:
            g, adv = kv_dma("K" if n & 1 else "V", ("T", n))
        elif n in (31, 33):
            g, adv = wo_dma((n - 31) // 2, (n + 1) % 5)
            adv = dst_adv()
        elif n in (34, 35):
            g, adv = wo_dma(n - 32, WSL[n - 32])
        else:
            continue
        pb = max(k for k in bar if k <= j)
        first = Task([], "S", rel=start[j] - LEAD, deps=[(bar[pb], 0)] + ([(prev, 0)] if prev else []), name="dmastart")
        tasks.append(first)
        L = start[j + 1] - start[j]
        dl = start[j + 1] - OPT.get("dmadl", DIST) if OPT.get("fill", 6) <= j < 32 else start[j + 2] - DIST
        if j == 0:
            dl = start[1] + 34
        prev = add_dma(tasks, g, adv, first, start[j] - LEAD, dl, spread=max(3, (L - DIST) // 9), gapmin=OPT.get("mgap", 4) if j < 32 else 0)
    ecount, econs, prev_branch, prev_ladd = 0, {}, None, {}
    for j in range(32):
        blks = (0, 1, 2) if j & 1 else (0, 1)
        dl_chk = chain_first[(j + 2, 0)] - 1 if j + 2 <= 31 else start[j + 3] - 4
        allcv, tsdep, fix = [], {}, {}
        for blk in blks:
            if (j == 0 and blk < 2) or (j == 1 and blk == 2):
                t, u = ET + 2 * (blk & 1), ET + 2 * (blk & 1) + 1
                base = Task([], "V", rel=chain_last[(j, 0, blk)] + MLAT, deps=[(prev_branch, 0)] if prev_branch else [], name="mx0")
                tasks.append(base)
                last = rowmax_tasks(tasks, Sreg(j, 0, blk), t, u, base, "mx")
                nm = [Task(valu(f"v_sub_f32 v{NEGM[blk] + r}, 0, v{t}"), "V", rel=chain_first[(j, 1)] + 6,
                           dl=chain_first[(j + (1 if blk < 2 else 2), 0)] - 3, deps=[(last, 0)], name="negm") for r in range(4)]
                tasks += nm
                for kt in range(2):
                    for r in range(4):
                        s = Sreg(j, kt, blk) + r
                        x = Task(valu(f"v_sub_f32 v{s}, v{s}, v{t}"), "V", rel=chain_last[(j, kt, blk)] + MLAT, deps=[(last, 0)], name="sfix")
                        tasks.append(x)
                        fix[(kt, blk, r)] = x
                        econs.setdefault(t - ET, []).append(x)
                econs.setdefault(t - ET, []).extend(nm)
                econs.setdefault(u - ET, []).append(last)
        for kt in range(2):
            for blk in blks:
                ts = TS[j & 1][blk]
                for pr in range(2):
                    es = []
                    for r in (2 * pr, 2 * pr + 1):
                        e = ecount % 8
                        ecount += 1
                        deps = [(x, 0) for x in econs.get(e, [])] + ([(prev_branch, 0)] if prev_branch else [])
                        if (kt, blk, r) in fix:
                            deps.append((fix[(kt, blk, r)], 1))
                        t = Task(valu(f"v_exp_f32 v{ET + e}, v{Sreg(j, kt, blk) + r}"), "E", rel=chain_last[(j, kt, blk)] + MLAT, deps=deps, name=f"exp{j}.{kt}")
                        tasks.append(t)
                        econs[e] = []
                        es.append((e, t))
                    (e0, t0), (e1, t1) = es
                    cv = Task(valu(f"v_cvt_pk_bf16_f32 v{Preg(j, blk) + 2 * kt + pr}, v{ET + e0}, v{ET + e1}"), "V", deps=[(t0, 1), (t1, 1)], name="cvt")
                    tasks.append(cv)
                    allcv.append(cv)
                    if blk not in tsdep:
                        ad = Task(valu(f"v_add_f32 v{ts}, v{ET + e0}, v{ET + e1}"), "V",
                                  deps=[(t0, 1), (t1, 1)] + ([(prev_ladd[(j & 1, blk)], 0)] if (j & 1, blk) in prev_ladd else []), name="add")
                        tasks.append(ad)
                        econs[e0] += [cv, ad]
                        econs[e1] += [cv, ad]
                        tsdep[blk] = ad
                    else:
                        a0 = Task(valu(f"v_add_f32 v{ts}, v{ET + e0}, v{ts}"), "V", deps=[(t0, 1), (tsdep[blk], 1)], name="add")
                        a1 = Task(valu(f"v_add_f32 v{ts}, v{ET + e1}, v{ts}"), "V", deps=[(t1, 1), (a0, 1)], name="add")
                        tasks += [a0, a1]
                        econs[e0] += [cv, a0]
                        econs[e1] += [cv, a1]
                        tsdep[blk] = a1
        tsr = [TS[j & 1][b] for b in blks]
        mx = Task(valu(f"v_max3_f32 v{vC}, v{tsr[0]}, v{tsr[1]}, v{tsr[2]}") if len(tsr) == 3 else valu(f"v_max_f32 v{vC}, v{tsr[0]}, v{tsr[1]}"),
                  "V", deps=[(t, 1) for t in tsdep.values()], name="mx")
        cmp_ = Task(valu(f"v_cmp_lt_f32 vcc, s{sThr}, v{vC}"), "V", deps=[(mx, 1)], name="cmp")
        br = Task([I(f"s_cbranch_vccnz L_slow_@{j}", "BR", [("vcc", 0)], [], tag=("site", j)), I(f"L_ret_@{j}:", "LAB", tag=("ret", j))],
                  "S", dl=dl_chk, deps=[(cmp_, 1)] + [(t, 0) for t in allcv] + [(t, 0) for t in prev_ladd.values()], name=f"br{j}")
        tasks += [mx, cmp_, br]
        for blk in blks:
            la = Task(valu(f"v_add_f32 v{LS[blk]}, v{TS[j & 1][blk]}, v{LS[blk]}"), "V", deps=[(br, 0)], dl=dl_chk + 12, name="ladd")
            tasks.append(la)
            prev_ladd[(j & 1, blk)] = la
        prev_branch = br
        sites.append(dict(j=j, task=br, blks=blks))
    last = None
    for blk in (1, 2, 0):
        xs = []
        xsum(xs, LS[blk], vT1)
        for i in xs:
            last = Task(i, "V", deps=[(t, 0) for t in prev_ladd.values()] + ([(last, 1 if i.kind == "P" else 0)] if last else []), name="xsum")
            tasks.append(last)
        if blk == 1:
            m0_ = Task(valu(f"v_mov_b32 v{ET}, v{NEGM[1]}"), "V", deps=[(last, 0)], name="st")
            m1_ = Task(valu(f"v_mov_b32 v{ET + 1}, v{LS[1]}"), "V", deps=[(last, 0)], name="st")
            stt = Task(bstore(2, ("v", ET), vT2, sWS, sT3, 0, STF), "D", deps=[(m0_, 1), (m1_, 1), (prev, 0)], name="st")
            tasks += [m0_, m1_, stt]
    pcv = {}
    for T in range(16):
        done = start[34] + 3 * T + 1
        tmp = SB + 4 * (T & 3)
        ars = [Task(AR(tmp + r, OB[1] + 4 * T + r), "V", rel=done + MLAT, deps=[(prev_branch, 0)] + [(x, 0) for x in pcv.get(T & 3, [])], name="ar") for r in range(4)]
        cv = [Task(valu(f"v_cvt_pk_bf16_f32 v{FSB + 2 * T + h}, v{tmp + 2 * h}, v{tmp + 2 * h + 1}"), "V", deps=[(ars[2 * h], 0), (ars[2 * h + 1], 0)], name="cv") for h in range(2)]
        tasks += ars + cv
        if T & 1:
            kb = T >> 1
            tasks.append(Task(bstore(4, ("v", FSB + 4 * kb), vST, sWS, sE4 if kb < 4 else sE5, (kb & 3) * 1024, STF), "D",
                              deps=[(x, 1) for x in cv + pcv[(T - 1) & 3]] + [(prev, 0)], name="fst"))
        pcv[T & 3] = cv
    gaps = schedule(mf, tasks, verbose=True)
    for s in sites:
        j, g = s["j"], s["task"].gap
        s["later_blk"] = {}
        for (jj, kt), idx in chain_first.items():
            if jj > j:
                for blk in ((0, 1, 2) if jj & 1 else (0, 1)):
                    if idx + blk <= g:
                        s["later_blk"].setdefault(blk, []).append(Sreg(jj, kt, blk))
        s["pend"] = [jj for jj in range(max(0, j - 3), j) if start[jj + 4] - 1 > g]
    for j in range(NS):
        mf[start[j]].mark = ("M", j)
    return linearize(mf, gaps)


def slow_path(s, name):
    c = []
    V = lambda t: c.append(valu(t))
    j = s["j"]
    c.append(I(f"L_slow_{name}:", "LAB"))
    c.append(nop(15))
    t, u, x, y = ET, ET + 1, ET + 2, ET + 3
    for blk in range(3):
        if blk not in s["blks"]:
            V(f"v_mov_b32 v{vF[blk]}, 1.0")
            continue
        s0, s1 = Sreg(j, 0, blk), Sreg(j, 1, blk)
        V(f"v_max3_f32 v{t}, v{s0}, v{s0 + 1}, v{s0 + 2}")
        V(f"v_max3_f32 v{t}, v{t}, v{s0 + 3}, v{s1}")
        V(f"v_max3_f32 v{t}, v{t}, v{s1 + 1}, v{s1 + 2}")
        V(f"v_max_f32 v{t}, v{t}, v{s1 + 3}")
        for sw in ("v_permlane32_swap_b32", "v_permlane16_swap_b32"):
            V(f"v_mov_b32 v{u}, v{t}")
            V(f"{sw} v{t}, v{u}")
            V(f"v_max_f32 v{t}, v{t}, v{u}")
        V(f"v_ceil_f32 v{t}, v{t}")
        V(f"v_max_f32 v{t}, 0, v{t}")
        V(f"v_exp_f32 v{vF[blk]}, -v{t}")
        for base in [NEGM[blk], s0, s1] + s["later_blk"].get(blk, []):
            for r in range(4):
                V(f"v_sub_f32 v{base + r}, v{base + r}, v{t}")
        for jj in s["pend"]:
            if blk == 2 and not (jj & 1):
                continue
            for r in range(4):
                p = Preg(jj, blk) + r
                V(f"v_lshlrev_b32 v{x}, 16, v{p}")
                V(f"v_and_b32 v{y}, 0xffff0000, v{p}")
                V(f"v_mul_f32 v{x}, v{x}, v{vF[blk]}")
                V(f"v_mul_f32 v{y}, v{y}, v{vF[blk]}")
                V(f"v_cvt_pk_bf16_f32 v{p}, v{x}, v{y}")
        ts = TS[j & 1][blk]
        V(f"v_mov_b32 v{ts}, 0")
        for kt in range(2):
            for pr in range(2):
                sr = Sreg(j, kt, blk) + 2 * pr
                V(f"v_exp_f32 v{x}, v{sr}")
                V(f"v_exp_f32 v{y}, v{sr + 1}")
                V(f"v_cvt_pk_bf16_f32 v{Preg(j, blk) + 2 * kt + pr}, v{x}, v{y}")
                V(f"v_add_f32 v{ts}, v{x}, v{ts}")
                V(f"v_add_f32 v{ts}, v{y}, v{ts}")
    return c


def slow_tail(names):
    c = []
    V = lambda t: c.append(valu(t))
    c.append(I("L_slow_tail:", "LAB"))
    for blk in range(3):
        V(f"v_mul_f32 v{LS[blk]}, v{LS[blk]}, v{vF[blk]}")
        for r in range(0, 64, 4):
            for k in range(4):
                c.append(AR(ET + k, OB[blk] + r + k))
            for k in range(4):
                V(f"v_mul_f32 v{ET + k}, v{ET + k}, v{vF[blk]}")
            for k in range(4):
                c.append(I(f"v_accvgpr_write_b32 a{OB[blk] + r + k}, v{ET + k}", "V", [("v", ET + k)], [("a", OB[blk] + r + k)]))
    c.append(nop(3))
    for k, nm in enumerate(names):
        c.append(salu(f"s_cmp_eq_u32 s{sSite}, {k}"))
        c.append(I(f"s_cbranch_scc1 L_ret_{nm}", "BR"))
    c.append(I(f"s_branch L_ret_{names[-1]}", "BR"))
    return c


def xsum(c, r, u):
    for sw in ("v_permlane32_swap_b32", "v_permlane16_swap_b32"):
        c += [valu(f"v_mov_b32 v{u}, v{r}"), valu(f"{sw} v{r}, v{u}"), valu(f"v_add_f32 v{r}, v{r}, v{u}")]


WFR = [("v", 32), ("v", 64), ("a", 96), ("a", 128), ("a", 160), ("a", 192), ("a", 224)]
WSL = [2, 4, 0, 2, 3, 1, 4]
FSB = 96
RI, RA, RB = [QA[0], QA[1]], [QA[2], vU[0]], [vU[1], vX]


def OFR(blk, kb):
    n = blk * 8 + kb
    return ("a", 4 * n) if n < 24 else ("v", 128 + 4 * (n - 24))


def wfrag_reads(c, o):
    off = WSL[o] * SLOT
    a = vU[2] if off < 65536 else (vU[3] if off < 131072 else vU[4])
    off &= 65535
    k, b = WFR[o]
    for kb in range(8):
        for e in range(2):
            c.append(ds_rtr((k, b + 4 * kb + 2 * e), a, off + kb * 4096 + e * 2048))


def tail_setup(c):
    S = lambda t: c.append(salu(t))
    V = lambda t: c.append(valu(t))
    if OPT.get("cpf2", 1):
        c.append(raw(f"s_getpc_b64 s[{sT2}:{sT3}]"))
        S(f"s_lshl_b32 s{sT1}, s{sW}, 13")
        V(f"v_lshlrev_b32 v{vT2}, 7, v{vLANE}")
        V(f"v_add_u32 v{vT2}, s{sT1}, v{vT2}")
        V(f"v_min_u32 v{vT2}, {OPT.get('cpf2max', 20000)}, v{vT2}")
        c.append(I(f"global_load_dword v{vX}, v{vT2}, s[{sT2}:{sT3}]", "D", [("v", vT2)], [("v", vX)]))
    V(f"v_and_b32 v{vU[1]}, 7, v{vLANE}")
    V(f"v_lshlrev_b32 v{vU[1]}, 2, v{vU[1]}")
    S(f"s_lshl_b32 s91, s{sB}, 5")
    S(f"s_mov_b32 s{sIN + 1}, 0x01010101")
    c.append(bload(1, ("v", vU[0]), vU[1], sDBG, 91, 0, " sc0 sc1"))
    srd(c, sOUT, 10, 8 * 160 * 448 * 2)
    S(f"s_mul_i32 s{sE0}, s{sID}, {EX_WG}")
    S(f"s_xor_b32 s{sT1}, s{sID}, 16")
    S(f"s_mul_i32 s{sE1}, s{sT1}, {EX_WG}")
    S(f"s_add_u32 s{sE4}, s{sE0}, s{sE6}")
    S(f"s_add_u32 s{sE5}, s{sE4}, 4096")
    S(f"s_lshl_b32 s{sT3}, s{sW}, 9")
    S(f"s_add_u32 s{sT2}, s{sT3}, {4 * SLOT}")
    S(f"s_add_u32 s{sT3}, s{sT3}, s{sE0}")
    S(f"s_add_u32 s{sT3}, s{sT3}, 40960")
    V(f"v_lshlrev_b32 v{vT2}, 3, v{vLANE}")
    V(f"v_add_u32 v{XA[0]}, s{sT2}, v{vT2}")
    V(f"v_xor_b32 v{XA[1]}, 1024, v{XA[0]}")
    S(f"s_lshl_b32 s{sT1}, s{sW}, 5")
    V(f"v_xor_b32 v{vU[2]}, s{sT1}, v{LV[0]}")
    V(f"v_add_u32 v{vU[3]}, 0x10000, v{vU[2]}")
    V(f"v_add_u32 v{vU[4]}, 0x20000, v{vU[2]}")


def merge_coef(c, nm_o, l_o, pst_, co, cp, t):
    V = lambda x: c.append(valu(x))
    V(f"v_min_f32 v{t}, v{nm_o}, v{pst_}")
    V(f"v_sub_f32 v{co}, v{t}, v{nm_o}")
    V(f"v_sub_f32 v{cp}, v{t}, v{pst_}")
    V(f"v_exp_f32 v{co}, v{co}")
    V(f"v_exp_f32 v{cp}, v{cp}")
    V(f"v_mul_f32 v{t}, v{co}, v{l_o}")
    V(f"v_fmac_f32 v{t}, v{cp}, v{pst_ + 1}")
    V(f"v_rcp_f32 v{t}, v{t}")
    V(f"v_mul_f32 v{co}, v{co}, v{t}")
    V(f"v_mul_f32 v{cp}, v{cp}, v{t}")
    V(f"v_mov_b32 v{co + 1}, v{co}")
    V(f"v_mov_b32 v{cp + 1}, v{cp}")


def pk(op, d, *src):
    return valu(f"{op} v[{d}:{d + 1}], " + ", ".join(f"v[{x}:{x + 1}]" for x in src))


def decode(c):
    S = lambda t: c.append(salu(t))
    V = lambda t: c.append(valu(t))
    S(f"s_mul_i32 s{sC1}, s{sH}, 288")
    S(f"s_mul_i32 s{sT1}, s{sW}, 72")
    S(f"s_add_u32 s{sC1}, s{sC1}, s{sT1}")
    S(f"s_lshr_b32 s{sT1}, s{sH}, 2")
    S(f"s_mul_i32 s{sT2}, s{sT1}, 18")
    S(f"s_lshl_b32 s{sT1}, s{sT1}, 5")
    S(f"s_mul_i32 s{sT3}, s{sB}, 160")
    S(f"s_lshl_b32 s{sD}, s{sSP}, 4")
    S(f"s_add_u32 s{sT3}, s{sT3}, s{sD}")
    S(f"s_mul_i32 s{sT3}, s{sT3}, 896")
    S(f"s_add_u32 s{sT3}, s{sT3}, s{sT1}")
    S(f"s_mov_b32 s{sD}, {PART_WG}")
    for n in range(2):
        g, k, x, y = vK0, vK1, vV, vT0
        if n == 0:
            V(f"v_add_u32 v{g}, s{sC1}, v{vLANE}")
            V(f"v_lshlrev_b32 v{RI[n]}, 4, v{g}")
        else:
            V(f"v_and_b32 v{g}, 7, v{vLANE}")
            V(f"v_add_u32 v{g}, s{sC1}, v{g}")
            V(f"v_add_u32 v{g}, 64, v{g}")
            V(f"v_lshrrev_b32 v{k}, 3, v{vLANE}")
            V(f"v_mul_lo_u32 v{k}, v{k}, s{sD}")
            V(f"v_lshl_add_u32 v{RI[n]}, v{g}, 4, v{k}")
        V(f"v_lshrrev_b32 v{k}, 6, v{g}")
        V(f"v_subrev_u32 v{k}, s{sT2}, v{k}")
        V(f"v_and_b32 v{x}, 15, v{g}")
        V(f"v_mul_u32_u24 v{x}, 896, v{x}")
        V(f"v_bfe_u32 v{y}, v{g}, 4, 2")
        V(f"v_lshl_add_u32 v{x}, v{y}, 3, v{x}")
        V(f"v_add_u32 v{x}, s{sT3}, v{x}")
        z = VA[1]
        V(f"v_lshrrev_b32 v{y}, 1, v{k}")
        V(f"v_lshlrev_b32 v{g}, 1, v{k}")
        V(f"v_subrev_u32 v{g}, 28, v{g}")
        V(f"v_cmp_gt_u32 vcc, 14, v{k}")
        V(f"v_cndmask_b32 v{y}, v{g}, v{y}, vcc")
        V(f"v_add_u32 v{g}, 1, v{y}")
        V(f"v_cndmask_b32 v{z}, v{g}, v{y}, vcc")
        V(f"v_and_b32 v{g}, 1, v{k}")
        V(f"v_mul_u32_u24 v{g}, {64 * 896}, v{g}")
        V(f"v_mov_b32 v{RB[n]}, {128 * 896}")
        V(f"v_cndmask_b32 v{g}, v{RB[n]}, v{g}, vcc")
        V(f"v_add_u32 v{RA[n]}, v{x}, v{g}")
        V(f"v_mov_b32 v{g}, {32 * 896}")
        V(f"v_cndmask_b32 v{g}, 0, v{g}, vcc")
        V(f"v_add_u32 v{RB[n]}, v{RA[n]}, v{g}")
        for pz, dst in ((y, RA[n]), (z, RB[n])):
            V(f"v_add_u32 v{pz}, s{sRot}, v{pz}")
            V(f"v_subrev_u32 v{g}, 7, v{pz}")
            V(f"v_min_u32 v{pz}, v{pz}, v{g}")
            V(f"v_lshl_add_u32 v{dst}, v{pz}, 7, v{dst}")
        V(f"v_mov_b32 v{g}, {OOB:#x}")
        V(f"v_cmp_eq_u32 vcc, 17, v{k}")
        V(f"v_cndmask_b32 v{RB[n]}, v{RB[n]}, v{g}, vcc")
        if n:
            V(f"v_cmp_gt_u32 vcc, 8, v{vLANE}")
            for r in (RA[1], RB[1]):
                V(f"v_cndmask_b32 v{r}, v{g}, v{r}, vcc")


def tail():
    c = []
    S = lambda t: c.append(salu(t))
    V = lambda t: c.append(valu(t))
    W = lambda t: c.append(I(f"s_waitcnt {t}", "W"))
    BAR = lambda: c.append(I("s_barrier", "B"))
    HK, OWN, HSB, PH = 192, 128, 160, 224
    hs, fs_p, hs_p, own_nm = 246, 240, 242, 244
    c += pst()
    V(f"v_add_u32 v{KA[0]}, s{sE6}, v{vST}")
    V(f"v_xor_b32 v{KA[1]}, 16384, v{KA[0]}")
    V(f"v_mov_b32 v{hs}, v{NEGM[2]}")
    V(f"v_mov_b32 v{hs + 1}, v{LS[2]}")
    V(f"v_mov_b32 v{own_nm}, v{NEGM[0]}")
    c.append(ds_w64(XA[0], ("v", hs), 0))
    S(f"s_cmp_eq_u32 s{sXW}, 0")
    c.append(I("s_cbranch_scc1 L_h0", "BR"))
    for half, lab, nxt in ((1, None, "L_h1"), (0, "L_h0", None)):
        if lab:
            c.append(I(f"{lab}:", "LAB"))
        for T in range(8):
            i = ds_w128(KA[0], ("a", OB[2] + 32 * (1 - half) + 4 * T), SLOT + T * 1024)
            if half == 1:
                i.kind = "X"
            c.append(i)
        for r in range(32):
            c.append(AR(HK + r, OB[2] + 32 * half + r))
        if nxt:
            c.append(I(f"s_branch {nxt}", "BR"))
    c.append(I("L_h1:", "LAB"))
    S(f"s_lshl_b32 s{sT0}, s{sXW}, 12")
    S(f"s_add_u32 s{sT0}, s{sT0}, 32768")
    S(f"s_lshl_b32 s{sT1}, s{sXW}, 9")
    S(f"s_add_u32 s{sT1}, s{sT1}, 43008")
    S(f"s_cmp_eq_u32 s{sHW}, 1")
    S(f"s_cselect_b32 s{sT2}, s{sE0}, {OOB:#x}")
    S(f"s_cselect_b32 s{sT3}, {OOB:#x}, s{sE1}")
    S(f"s_add_u32 s{sE2}, s{sT3}, s{sT0}")
    S(f"s_add_u32 s{sE3}, s{sT3}, s{sT1}")
    S(f"s_add_u32 s{sE4}, s{sT2}, s{sT0}")
    S(f"s_add_u32 s{sE5}, s{sT2}, s{sT1}")
    W("lgkmcnt(0)")
    BAR()
    c += pst()
    c.append(ds_r64(("v", hs_p), XA[1], 0))
    for T in range(8):
        c.append(ds_r128(("v", OWN + 4 * T), KA[1], SLOT + T * 1024))
    W("vmcnt(0)")
    S(f"s_mov_b32 s{sCnt}, 0")
    c.append(I("L_an:", "LAB"))
    V(f"v_cmp_ne_u32 vcc, s{sIN + 1}, v{vU[0]}")
    S(f"s_add_u32 s{sCnt}, s{sCnt}, 1")
    c.append(I("s_cbranch_vccz L_and", "BR", [("vcc", 0)]))
    c.append(raw(f"buffer_load_dword v{vU[0]}, v{vU[1]}, s[{sDBG}:{sDBG + 3}], s91 offen sc0 sc1", "X"))
    c.append(raw("s_waitcnt vmcnt(0)", "X"))
    S(f"s_cmp_lt_u32 s{sCnt}, 300000")
    c.append(I("s_cbranch_scc1 L_an", "BR"))
    c.append(I("L_and:", "LAB"))
    S(f"s_xor_b32 s{sC1}, s{sIN}, {16 << ISH}")
    S(f"s_lshl_b32 s{sT1}, s{sW}, 2")
    S(f"s_add_u32 s{sC1}, s{sC1}, s{sT1}")
    V(f"v_mov_b32 v{vT0}, 1")
    V(f"v_mov_b32 v{vT1}, 0")
    c.append(bstore(1, ("v", vT0), vT1, sWS, sC1, 64, FLF))
    nm, a_o, a_p = 253, 248, 236
    V(f"v_min_f32 v{nm}, v{hs}, v{hs_p}")
    V(f"v_sub_f32 v{a_o}, v{nm}, v{hs}")
    V(f"v_sub_f32 v{a_p}, v{nm}, v{hs_p}")
    V(f"v_exp_f32 v{a_o}, v{a_o}")
    V(f"v_exp_f32 v{a_p}, v{a_p}")
    V(f"v_mov_b32 v{hs}, v{nm}")
    V(f"v_mul_f32 v{hs + 1}, v{a_o}, v{hs + 1}")
    V(f"v_fmac_f32 v{hs + 1}, v{a_p}, v{hs_p + 1}")
    V(f"v_mov_b32 v{a_o + 1}, v{a_o}")
    V(f"v_mov_b32 v{a_p + 1}, v{a_p}")
    c.append(bstore(2, ("v", hs), vT2, sWS, sE5, 0, STF))
    for r in range(0, 32, 2):
        c.append(pk("v_pk_mul_f32", HK + r, HK + r, a_o))
    for T in range(8):
        for r in (0, 2):
            c.append(pk("v_pk_fma_f32", HK + 4 * T + r, OWN + 4 * T + r, a_p, HK + 4 * T + r))
        V(f"v_cvt_pk_bf16_f32 v{HSB + 2 * T}, v{HK + 4 * T}, v{HK + 4 * T + 1}")
        V(f"v_cvt_pk_bf16_f32 v{HSB + 2 * T + 1}, v{HK + 4 * T + 2}, v{HK + 4 * T + 3}")
        if T & 1:
            c.append(bstore(4, ("v", HSB + 2 * (T - 1)), vST, sWS, sE4, (T >> 1) * 1024, STF))
    c += pst()
    f = [AR(OWN + r, OB[0] + r) for r in range(64)]
    for pre, d in wo_dma(4, WSL[4])[0]:
        c += [f.pop(0) for _ in range(8)] + pre + [d]
    c += pst()
    W("vmcnt(8)")
    c.append(bstore(1, ("v", vT0), vT1, sWS, sC1, 80, FLF))
    BAR()
    c += pst()
    f = []
    wfrag_reads(f, 2)
    wfrag_reads(f, 3)
    decode(f)
    for o in (5, 6):
        for pre, d in wo_dma(o, WSL[o])[0]:
            c += pre + [d] + [f.pop(0) for _ in range(min(8, len(f)))]
    c += f
    S(f"s_add_u32 s{sT1}, s{sE1}, s{sE6}")
    S(f"s_add_u32 s{sT2}, s{sT1}, 4096")
    S(f"s_lshl_b32 s{sT3}, s{sW}, 9")
    S(f"s_add_u32 s{sT3}, s{sT3}, s{sE1}")
    S(f"s_add_u32 s{sT3}, s{sT3}, 40960")
    S(f"s_lshl_b32 s{sT0}, s{sW}, 2")
    S(f"s_add_u32 s{sT0}, s{sT0}, s{sIN}")
    S(f"s_or_b32 s{sC1}, s{sT0}, 4")
    c += pst()

    def poll(lab, sreg, off):
        S(f"s_mov_b32 s{sCnt}, 0")
        c.append(I(f"{lab}:", "LAB"))
        c.append(raw(f"buffer_load_dword v{vT0}, v{vT1}, s[{sWS}:{sWS + 3}], s{sreg} offen offset:{off}{FLF}", "X"))
        S(f"s_add_u32 s{sCnt}, s{sCnt}, 1")
        c.append(raw("s_waitcnt vmcnt(0)", "X"))
        V(f"v_readfirstlane_b32 s{sD}, v{vT0}")
        S(f"s_cmp_gt_u32 s{sCnt}, 300000")
        c.append(I(f"s_cbranch_scc1 {lab}d", "BR"))
        S(f"s_cmp_eq_u32 s{sD}, 0")
        c.append(I(f"s_cbranch_scc1 {lab}", "BR"))
        c.append(I(f"{lab}d:", "LAB"))

    poll("L_p1", sT0, 64)
    c += pst()
    c.append(bload(2, ("v", fs_p), vT2, sWS, sT3, 0, LDF))
    for kb in range(8):
        c.append(bload(4, ("v", FSB + 4 * kb), vST, sWS, sT1 if kb < 4 else sT2, (kb & 3) * 1024, LDF))
    poll("L_p1h", sC1, 80)
    c.append(bload(2, ("v", hs_p), vT2, sWS, sE3, 0, LDF))
    for kb in range(4):
        c.append(bload(4, ("v", PH + 4 * kb), vST, sWS, sE2, kb * 1024, LDF))
    W("lgkmcnt(0)")
    BAR()
    S(f"s_lshl_b32 s{sT0}, s{sXW}, 12")
    S(f"s_lshl_b32 s{sT1}, s{sHW}, 13")
    S(f"s_add_u32 s{sT0}, s{sT0}, s{sT1}")
    S(f"s_add_u32 s{sT0}, s{sT0}, {2 * SLOT}")
    V(f"v_add_u32 v{KA[1]}, s{sT0}, v{vST}")
    S(f"s_mul_i32 s{sE0}, s{sID}, {PART_WG}")
    S(f"s_mul_i32 s{sT0}, s{sW}, {18 * 1024}")
    S(f"s_add_u32 s{sE0}, s{sE0}, s{sT0}")
    S(f"s_add_u32 s{sE0}, s{sE0}, {PART0}")
    S(f"s_add_u32 s{sE1}, s{sE0}, {14 * 1024}")
    V(f"v_add_u32 v{XA[0]}, {2 * SLOT}, v{vST}")
    c += pst()
    co, cp, ch, cq = 248, 254, vK0, VA[0]
    u = [vU[2] + 1, 252]
    u = [240, 244]
    for own_, pay, n, cc, cs, addr in ((OWN, FSB, 8, cp, co, KA[0]), (HK, PH, 4, cq, ch, KA[1])):
        if own_ == OWN:
            merge_coef(c, own_nm, LS[0], fs_p, co, cp, 253)
        else:
            W("vmcnt(0)")
            merge_coef(c, hs, hs + 1, hs_p, ch, cq, 253)
        for kb in range(n):
            for r in range(4):
                p, o, t = pay + 4 * kb + r, own_ + 8 * kb + 2 * r, u[r & 1]
                c.append(pk("v_pk_mul_f32", o, o, cs))
                V(f"v_lshlrev_b32 v{t}, 16, v{p}")
                V(f"v_and_b32 v{t + 1}, 0xffff0000, v{p}")
                c.append(pk("v_pk_fma_f32", o, t, cc, o))
                V(f"v_cvt_pk_bf16_f32 v{p}, v{o}, v{o + 1}")
            c.append(ds_w128(addr, ("v", pay + 4 * kb), kb * 1024))
    W("lgkmcnt(0)")
    BAR()
    return c


def o_phase():
    mf, tasks = [], []
    ACC = [192, 212]
    PK = [[232, 236], [240, 244]]
    HST = 248
    prev = None
    for kb in range(8):
        for blk in range(5):
            c0 = kb * 5 + blk
            i = ds_r128(OFR(blk, kb), vST, blk * 8192 + kb * 1024) if blk < 4 else ds_r128(OFR(blk, kb), XA[0], kb * 1024)
            prev = Task(i, "L", rel=-1, dl=-1 if c0 < 10 else c0 - 8, deps=[(prev, 0)] if prev else [], name="ord")
            tasks.append(prev)
    for o in (4, 5, 6):
        cc = []
        wfrag_reads(cc, o)
        for k, i in enumerate(cc):
            prev = Task(i, "L", dl=40 * o + (k >> 1) * 5 - 8, deps=[(prev, 0)], name="wrd")
            tasks.append(prev)
    prev_st, prev_inc = {}, None
    for o in range(7):
        p = o & 1
        firstm = len(mf)
        for kb in range(8):
            for blk in range(5):
                d = ("v", ACC[p] + 4 * blk)
                mf.append(mfma(d, (WFR[o][0], WFR[o][1] + 4 * kb), OFR(blk, kb), 0 if kb == 0 else d))
        dl = firstm + 80 - 3
        cvs = {}
        for blk in range(5):
            for h in range(2):
                dst, key = (HST + 2 * p + h, "H") if blk == 4 else (PK[p][blk >> 1] + 2 * (blk & 1) + h, (p, blk >> 1))
                s = ACC[p] + 4 * blk + 2 * h
                t = Task(valu(f"v_cvt_pk_bf16_f32 v{dst}, v{s}, v{s + 1}"), "V", rel=firstm + 35 + blk + MLAT, dl=dl,
                         deps=[(prev_st[key], 2)] if key in prev_st else [], name="cvt")
                tasks.append(t)
                cvs.setdefault(key, []).append(t)
        sts = []
        for pr in range(2):
            st = Task(bstore(4, ("v", PK[p][pr]), vST, sWS, sE0, p * 2048 + pr * 1024, STF), "D",
                      deps=[(t, 1) for t in cvs[(p, pr)]] + ([(prev_inc, 0)] if prev_inc else []), name="st")
            tasks.append(st)
            prev_st[(p, pr)] = st
            sts.append(st)
        if p == 0:
            hcv, sts0 = cvs["H"], sts
        if p == 1 or o == 6:
            st = Task(bstore(4, ("v", HST), vST, sWS, sE1, (o >> 1) * 1024, STF), "D", deps=[(t, 1) for t in hcv + cvs["H"]], name="stH")
            tasks.append(st)
            prev_st["H"] = st
            prev_inc = Task(salu(f"s_add_u32 s{sE0}, s{sE0}, 4096"), "S", deps=[(t, 0) for t in sts + sts0], name="inc")
            tasks.append(prev_inc)
    gaps = schedule(mf, tasks, verbose=True)
    for o in range(7):
        mf[40 * o].mark = ("N", o)
    return linearize(mf, gaps)


def final():
    c = []
    S = lambda t: c.append(salu(t))
    V = lambda t: c.append(valu(t))
    W = lambda t: c.append(I(f"s_waitcnt {t}", "W"))
    S(f"s_and_b32 s{sT0}, s{sID}, 0xf0")
    S(f"s_mul_i32 s{sE2}, s{sT0}, {PART_WG}")
    S(f"s_add_u32 s{sE2}, s{sE2}, {PART0}")
    S(f"s_add_u32 s{sE3}, s{sE2}, {8 * PART_WG}")
    S(f"s_lshl_b32 s{sT1}, s{sW}, 2")
    S(f"s_add_u32 s{sT1}, s{sT1}, s{sT0}")
    S(f"s_lshl_b32 s{sT1}, s{sT1}, {ISH}")
    S(f"s_lshl_b32 s{sT2}, s{sH}, 2")
    S(f"s_add_u32 s{sT1}, s{sT1}, s{sT2}")
    S(f"s_add_u32 s{sT1}, s{sT1}, {INBOX}")
    V(f"v_and_b32 v{vK0}, 3, v{vLANE}")
    V(f"v_lshlrev_b32 v{vK0}, {ISH}, v{vK0}")
    V(f"v_and_b32 v{vK1}, 15, v{vLANE}")
    V(f"v_lshlrev_b32 v{vK1}, 2, v{vK1}")
    V(f"v_mov_b32 v{vT0}, 1")
    c += pst()
    c.append(raw(f"buffer_load_dword v{vV}, v{vK1}, s[{sWS}:{sWS + 3}], s{sIN} offen{FLF}", "X"))
    W("vmcnt(0)")
    c += pst()
    c.append(bstore(1, ("v", vT0), vK0, sWS, sT1, 0, FLF))
    S(f"s_mov_b32 s{sCnt}, 0")
    S(f"s_mov_b32 s{sT2}, 0")
    c.append(I("L_p2:", "LAB"))
    V(f"v_cmp_ne_u32 vcc, 0, v{vV}")
    S(f"s_add_u32 s{sCnt}, s{sCnt}, 1")
    c.append(I(f"s_and_b32 s{sT3}, vcc_lo, 0xffff", "S", [("vcc", 0)], [("s", sT3)]))
    S(f"s_cmp_gt_u32 s{sCnt}, 300000")
    S(f"s_cselect_b32 s{sT3}, 0xffff, s{sT3}")
    S(f"s_andn2_b32 s{sT1}, s{sT3}, s{sT2}")
    S(f"s_mov_b32 s{sT2}, s{sT3}")
    for p in range(16):
        c.append(raw(f"s_bitcmp1_b32 s{sT1}, {p}"))
        c.append(I(f"s_cbranch_scc0 L_g{p}", "BR"))
        S(f"s_add_u32 s{sD}, s{sE2}, {p * PART_WG}")
        i = bload(4, ("v", 32 + p * 4), RI[0], sWS, sD, 0, LDF)
        i.kind = "X"
        c.append(i)
        c.append(I(f"L_g{p}:", "LAB"))
    S(f"s_cmp_eq_u32 s{sT2}, 0xffff")
    c.append(I("s_cbranch_scc1 L_p2d", "BR"))
    c.append(raw(f"buffer_load_dword v{vV}, v{vK1}, s[{sWS}:{sWS + 3}], s{sIN} offen{FLF}", "X"))
    c.append(raw("s_waitcnt vmcnt(0)", "X"))
    c.append(I("s_branch L_p2", "BR"))
    c.append(I("L_p2d:", "LAB"))
    c += pst()
    c.append(bload(4, ("v", 96), RI[1], sWS, sE2, 0, LDF))
    c.append(bload(4, ("v", 100), RI[1], sWS, sE3, 0, LDF))
    A0, A1, U = 192, 200, [208, 210]
    c += pst()

    def acc(a, x, first):
        for r in range(4):
            t = a + 2 * r if first else U[r & 1]
            V(f"v_lshlrev_b32 v{t}, 16, v{x + r}")
            V(f"v_and_b32 v{t + 1}, 0xffff0000, v{x + r}")
            if not first:
                c.append(pk("v_pk_add_f32", a + 2 * r, a + 2 * r, t))

    W("vmcnt(2)")
    c += pst()
    for p in range(16):
        acc(A0, 32 + 4 * p, p == 0)
    W("vmcnt(0)")
    acc(A1, 96, True)
    acc(A1, 100, False)
    for sw in ("v_permlane32_swap_b32", "v_permlane16_swap_b32"):
        for r in range(8):
            V(f"v_mov_b32 v{212 + r}, v{A1 + r}")
        for r in range(8):
            V(f"{sw} v{A1 + r}, v{212 + r}")
        for r in range(0, 8, 2):
            c.append(pk("v_pk_add_f32", A1 + r, A1 + r, 212 + r))
    c.append(nop(1))
    for r in range(8):
        c.append(I(f"v_add_f32_dpp v{A1 + r}, v{A1 + r}, v{A1 + r} row_ror:8 row_mask:0xf bank_mask:0xf", "V", [("v", A1 + r)], [("v", A1 + r)]))
    for n, a in enumerate((A0, A1)):
        for r in range(4):
            V(f"v_cvt_pk_bf16_f32 v{220 + n * 4 + r}, v{a + 2 * r}, v{a + 2 * r + 1}")
        c.append(bstore(2, ("v", 220 + n * 4), RA[n], sOUT, "0", 0))
        c.append(bstore(2, ("v", 220 + n * 4 + 2), RB[n], sOUT, "0", 0))
    c += pst() + pst()
    return c


def norm(ins):
    t = ins.text
    if "@" in t:
        a, b = t.split("@")
        if b.startswith("CODE"):
            return t
        return f"{a}@{int(b.rstrip(':')) % 4}"
    return t


def fold(code):
    segs, cur, keys, key = [], [], [], None
    for ins in code:
        if ins.kind == "M" and ins.mark is not None:
            segs.append(cur)
            keys.append(key)
            cur, key = [], ins.mark
        if ins.kind == "LAB" and ins.tag and ins.tag[0] == "cut":
            segs.append(cur)
            keys.append(key)
            cur, key = [], None
            continue
        cur.append(ins)
    segs.append(cur)
    keys.append(key)
    print("; est cycles/seg:", [gap_cost(s) for s in segs])
    txt = [tuple(norm(i) for i in s) for s in segs]
    out, i, nloop, n = [], 0, 0, len(segs)
    sitekey = lambda s: (s["j"] % 4, tuple(sorted((b, tuple(v)) for b, v in s["later_blk"].items())), tuple(x % 4 for x in s["pend"]), s["blks"])
    sinfo = {s["j"]: s for s in sites}
    sites_in = lambda seg: [sitekey(sinfo[x.tag[1]]) for x in seg if x.kind == "BR" and x.tag and x.tag[0] == "site"]
    while i < n:
        k = 1
        if keys[i] is not None:
            p = {"M": 4, "Q": 2}.get(keys[i][0], 1)
            while i + (k + 1) * p <= n and all(keys[i + k * p + r] is not None and txt[i + k * p + r] == txt[i + r] and
                                               sites_in(segs[i + k * p + r]) == sites_in(segs[i + r]) for r in range(p)):
                k += 1
        if k >= 2:
            x = 0
            while x < p - 1 and i + k * p + x < n and keys[i + k * p + x] is not None and txt[i + k * p + x] == txt[i + x] and \
                    sites_in(segs[i + k * p + x]) == sites_in(segs[i + x]):
                x += 1
            out.append(salu(f"s_mov_b32 s{sCnt}, {k + (1 if x else 0)}"))
            out.append(I(f"L_loop{nloop}:", "LAB"))
            for r in range(p):
                out += segs[i + r]
                if x and r == x - 1:
                    out += [salu(f"s_sub_u32 s{sCnt}, s{sCnt}, 1"), salu(f"s_cmp_eq_u32 s{sCnt}, 0"), I(f"s_cbranch_scc1 L_exit{nloop}", "BR")]
            if x:
                out += [I(f"s_branch L_loop{nloop}", "BR"), I(f"L_exit{nloop}:", "LAB")]
            else:
                out += [salu(f"s_sub_u32 s{sCnt}, s{sCnt}, 1"), salu(f"s_cmp_lg_u32 s{sCnt}, 0"), I(f"s_cbranch_scc1 L_loop{nloop}", "BR")]
            nloop += 1
            i += p * k + x
        else:
            out += segs[i]
            i += 1
    return out


def cut():
    return I("", "LAB", tag=("cut",))


def build():
    code = prologue() + stamp(1) + q_phase() + [cut()] + stamp(2) + q_finish() + stamp(3) + main_phase() + [cut()] + stamp(4)
    code += tail() + stamp(6) + o_phase() + [cut()] + final()
    if STAMP:
        nc = []
        for ins in code:
            nc.append(ins)
            if ins.kind == "M" and ins.mark is not None:
                if ins.mark[0] == "N" and ins.mark[1] not in (0,):
                    continue
                if OPT.get("light") and ins.mark[0] == "M" and 4 <= ins.mark[1] <= 27:
                    continue
                nc += pst()[1:]
        code = [raw("s_mov_b64 s[80:81], 1"), raw("s_mov_b32 s96, 0")] + nc
    if OPT.get("padstep"):
        nc = []
        for ins in code:
            nc.append(ins)
            if ins.kind == "M" and ins.mark is not None and ins.mark[0] == OPT.get("padph", "M"):
                nc += [nop(15) for _ in range(OPT["padstep"])]
        code = nc
    code = insert_lgkm_waits(code, age=OPT["age"])
    code = resolve_vm_waits(code)
    code, nf = check_hazards(code)
    code = fold(code)
    names, slow = [], []
    sinfo = {s["j"]: s for s in sites}
    for ins in code:
        ins.text = ins.text.replace("@CODEMAX", str(OPT.get("codemax", 45056))).replace("@", "")
        if ins.kind == "BR" and ins.tag and ins.tag[0] == "site":
            j = ins.tag[1]
            sp = slow_path(sinfo[j], str(j)) + [salu(f"s_mov_b32 s{sSite}, {len(names)}"), I("s_branch L_slow_tail", "BR")]
            names.append(str(j))
            slow += check_hazards(sp)[0]
    slow += check_hazards(slow_tail(names))[0]
    fin = []
    if STAMP:
        fin.append(I("s_waitcnt vmcnt(0) lgkmcnt(0)", "W"))
        fin += [raw(f"s_memtime s[100:101]"), raw(f"s_memrealtime s[96:97]"), I("s_waitcnt lgkmcnt(0)", "W")]
        for t in (f"s_lshl_b32 s{sT0}, s2, 2", f"s_add_u32 s{sT0}, s{sT0}, s{sW}", f"s_lshl_b32 s{sT0}, s{sT0}, 6",
                  f"s_lshl_b32 s{sT1}, s{sT0}, 2", f"s_add_u32 s{sT0}, s{sT0}, {128 << 20}", f"s_add_u32 s{sT1}, s{sT1}, {132 << 20}"):
            fin.append(salu(t))
        fin.append(valu(f"v_mov_b32 v{vT0}, 0"))
        for k in range(8):
            fin.append(valu(f"v_mov_b32 v{128 + k}, s{[84, 84, 92, 94, 86, 84, 84, 84][k]}"))
        fin += [valu("v_mov_b32 v136, s100"), valu("v_mov_b32 v137, s96"), valu("v_mov_b32 v138, s98")]
        for k in range(0, 12, 4):
            fin.append(bstore(4, ("v", 128 + k), vT0, sWS, sT0, k * 4))
        fin.append(valu(f"v_lshlrev_b32 v{vT1}, 2, v{vLANE}"))
        fin.append(bstore(1, ("v", 0), vT1, sWS, sT1, 0))
    NAME = "standalone__gqa_block_cached__near_ridge_kernel"
    hdr = open("standalone__gqa_block_cached__near_ridge.s.ref").read().split("; Override launch")[0]
    L = [hdr.rstrip()]
    A = L.append
    A("; @launch grid=(256,1,1) block=(256,1,1) lds=163840")
    A('.amdgcn_target "amdgcn-amd-amdhsa--gfx950"')
    A(".text")
    A(f".globl {NAME}")
    A(".p2align 8")
    A(f".type {NAME},@function")
    A(f"{NAME}:")
    A("s_cmp_ge_u32 s2, 256")
    A("s_cbranch_scc1 L_end")
    if OPT.get("delay"):
        L += ["s_memrealtime s[8:9]", "s_waitcnt lgkmcnt(0)", f"s_add_u32 s10, s8, {OPT['delay'] * 100}", "L_dly:", "s_memrealtime s[8:9]", "s_waitcnt lgkmcnt(0)",
              "s_sub_u32 s11, s10, s8", "s_cmp_gt_i32 s11, 0", "s_cbranch_scc1 L_dly"]
    L += [i.text for i in code if i.text]
    L += [i.text for i in fin]
    if OPT.get("padto"):
        L += [f"s_add_u32 s10, s98, {OPT['padto'] * 100}", "L_pad:", "s_memrealtime s[8:9]", "s_waitcnt lgkmcnt(0)",
              "s_sub_u32 s11, s10, s8", "s_cmp_gt_i32 s11, 0", "s_cbranch_scc1 L_pad"]
    A("L_end:")
    A("s_endpgm")
    L += [i.text for i in slow]
    A('.section .rodata,"a"')
    A(".p2align 6")
    A(f".amdhsa_kernel {NAME}")
    for t in ("next_free_vgpr 512", "next_free_sgpr 102", "accum_offset 256", "group_segment_fixed_size 0", "kernarg_size 64",
              "user_sgpr_count 2", "user_sgpr_kernarg_segment_ptr 1", "system_sgpr_workgroup_id_x 1"):
        A(f"  .amdhsa_{t}")
    A(".end_amdhsa_kernel")
    return "\n".join(L) + "\n"


if __name__ == "__main__":
    out = [a for a in sys.argv[1:] if a.endswith(".s")]
    open(out[0] if out else "k2.s", "w").write(build())
```

```python
import sys
from sched import *

OPT = dict(debug=None, stamp=0, dist=15, age=7, stf="sc1", ldf="sc1", pref=0, rot=1, cpf=1, fill=3, dmadl=10, barlag=3, ish=8, flf="sc1", codemax=45500)
for a in sys.argv[1:]:
    if "=" in a:
        k, v = a.split("=")
        OPT[k] = int(v) if v.lstrip("-").isdigit() else v
    elif a == "stamp":
        OPT["stamp"] = 1
import sched as _sc
for _k in _sc.SOPT:
    if _k in OPT:
        _sc.SOPT[_k] = OPT[_k]
STAMP, DEBUG = OPT["stamp"], OPT["debug"]
STF = " " + OPT["stf"].replace("+", " ") if OPT["stf"] else ""
LDF = " " + OPT["ldf"].replace("+", " ") if OPT["ldf"] else ""

sID = 3
sX, sK, sV, sWQ, sWO, sWS = 8, 12, 16, 20, 24, 28
sDBG, sOUT = 4, 20
INBOX = 48 << 20
sIN = 82
sRot, sXlim, sK3 = 88, 89, 90
sW, sXW, sHW, sB, sH, sSP = 32, 33, 34, 35, 36, 37
sKoff, sVoff, sDst, sDstLim, sDst0 = 38, 39, 40, 41, 42
sHalf, sC1, sC2, sD, sK2 = 43, 44, 45, 46, 47
sPat = 48
sT0, sT1, sT2, sT3 = 50, 51, 52, 53
sThr, sCnt, sSite = 54, 55, 56
sWoff, sXoff, sWdst, sXdst, sWrd, sXrd, sDX = 57, 58, 59, 60, 61, 62, 63
sE0, sE1, sE2, sE3, sE4, sE5, sE6 = 57, 58, 59, 60, 61, 62, 63
sArg = 64
sSt = 80

vLANE, vK0, vK1, vV, vWt, vX, vST = 1, 2, 3, 4, 5, 6, 7
KA = [8, 9]
XA = [10, 11]
VA = [12, 13, 14, 15]
QA = [16, 17, 18]
vU = [19, 20, 21, 22, 23]
LV = [24, 25, 26, 27]
LK0 = 28
vT0, vT1, vT2 = 29, 30, 31
QB = [32, 64, 96]
SB, PB = 128, 176
NEGM = [224, 228, 232]
ET = 236
TS = [[244, 245, 246], [247, 248, 249]]
LS = [250, 251, 252]
vC = 253
vF = [253, 254, 255]
OB = [0, 64, 128]
FB = 192
SLOT = 32768
XBASE, XSL = 3 * SLOT, 20480
EX_WG = 49152
PART0, PART_WG = 16 << 20, 73728
OOB = 0x7ff00000
QSCALE = 0x3DB8AA3B
ISH = OPT.get("ish", 7)
FLF = " " + OPT.get("flf", "sc0+sc1").replace("+", " ")
LEAD = OPT.get("lead", 0)
DIST, MLAT = OPT["dist"], 5


def Sreg(j, kt, blk):
    return SB + ((2 * j + kt) % 4) * 12 + blk * 4


def Preg(j, blk):
    return PB + (j % 4) * 12 + blk * 4


def waitr(vm_keys, lg_key):
    return I("s_waitcnt <resolve>", "W", tag=("resolve", vm_keys, lg_key))


def wait_bar(vm_keys, lg_key):
    return [waitr(vm_keys, lg_key), I("s_barrier", "B")]


def stamp(k):
    return [raw(f"s_memtime s[{84 + 2 * k}:{85 + 2 * k}]")] if STAMP and k < 1 else []


def pst():
    if not STAMP:
        return []
    return [raw("s_waitcnt lgkmcnt(0)", "W"), raw("s_mov_b32 s100, s96"), I("v_mov_b32 v28, s100", "V"), I("v_cndmask_b32 v0, v0, v28, s[80:81]", "V"),
            raw("s_memrealtime s[96:97]" if OPT.get("rt") else "s_memtime s[96:97]"), raw("s_lshl_b64 s[80:81], s[80:81], 1")]


def AR(v, a):
    return I(f"v_accvgpr_read_b32 v{v}, a{a}", "V", [("a", a)], [("v", v)])


def bload(n, dst, voff, srd, soff, imm, flags="", tag=None):
    suf = {1: "dword", 2: "dwordx2", 4: "dwordx4"}[n]
    t = f"buffer_load_{suf} {rtxt(dst[0], dst[1], n)}, v{voff}, s[{srd}:{srd + 3}], s{soff} offen offset:{imm}{flags}"
    return I(t, "D", [("v", voff), ("s", soff)] + R("s", srd, 4), R(dst[0], dst[1], n), tag=tag)


def srd(c, d, arg, size):
    for t in (f"s_mov_b32 s{d}, s{sArg + arg}", f"s_mov_b32 s{d + 1}, s{sArg + arg + 1}", f"s_mov_b32 s{d + 2}, {size}",
              f"s_mov_b32 s{d + 3}, 0x20000"):
        c.append(salu(t))


def qw_dma(cidx):
    g = []
    for x in range(2):
        for t in range(4):
            rows = 32 * x + 16 * (t & 1) + 4 * (t >> 1)
            pre = [salu(f"s_add_u32 m0, s{sWdst}, {x * 16384}")] if t == 0 else []
            pre.append(salu(f"s_add_u32 s{sT0}, s{sWoff}, {rows * 8192 - t * 1024}"))
            g.append((pre, dma(vWt, sWQ, sT0, t * 1024, tag=("QW", cidx))))
    adv = [[salu(f"s_add_u32 s{sWoff}, s{sWoff}, {64 * 8192}")],
           [salu(f"s_cmp_ge_u32 s{sWoff}, {448 * 8192}"), salu(f"s_cselect_b32 s{sT1}, {448 * 8192}, 0")],
           [salu(f"s_sub_u32 s{sWoff}, s{sWoff}, s{sT1}")],
           [salu(f"s_cmp_lt_u32 s{sWdst}, {SLOT}"), salu(f"s_cselect_b32 s{sT1}, {3 * SLOT}, 0")],
           [salu(f"s_add_u32 s{sWdst}, s{sWdst}, s{sT1}")], [salu(f"s_sub_u32 s{sWdst}, s{sWdst}, {SLOT}")]]
    return g, adv


def qx_dma(cidx):
    g = []
    for k in range(5):
        pre = [salu(f"s_add_u32 m0, s{sXdst}, {k * 4096}"), salu(f"s_add_u32 s{sT0}, s{sXoff}, {k * 32 * 896}")]
        g.append((pre, dma(vX, sX, sT0, 0, tag=("QX", cidx))))
    adv = [[salu(f"s_add_u32 s{sXoff}, s{sXoff}, 128")],
           [salu(f"s_cmp_eq_u32 s{sXoff}, s{sXlim}"), salu(f"s_cselect_b32 s{sT1}, 896, 0")],
           [salu(f"s_sub_u32 s{sXoff}, s{sXoff}, s{sT1}")],
           [salu(f"s_cmp_ge_u32 s{sXdst}, {XBASE + 2 * XSL}"), salu(f"s_cselect_b32 s{sT1}, {3 * XSL}, 0")],
           [salu(f"s_sub_u32 s{sXdst}, s{sXdst}, s{sT1}")], [salu(f"s_add_u32 s{sXdst}, s{sXdst}, {XSL}")]]
    return g, adv


def dst_adv():
    return [[salu(f"s_add_u32 s{sDst}, s{sDst}, {SLOT}")],
            [salu(f"s_cmp_eq_u32 s{sDst}, s{sDstLim}"), salu(f"s_cselect_b32 s{sDst}, s{sDst0}, s{sDst}")]]


def kv_dma(kind, tag):
    g = []
    r, off = (sK, sKoff) if kind == "K" else (sV, sVoff)
    for x in range(2):
        for t in range(4):
            pre = []
            if t == 0:
                pre.append(salu(f"s_add_u32 m0, s{sDst}, {x * 16384}") if x else salu(f"s_mov_b32 m0, s{sDst}"))
                if x:
                    pre.append(salu(f"s_add_u32 s{off}, s{off}, 16384"))
            vo = (vK1 if t & 1 else vK0) if kind == "K" else vV
            g.append((pre, dma(vo, r, off, t * 1024, nt=OPT.get("nt", 1), tag=tag)))
    return g, [[salu(f"s_add_u32 s{off}, s{off}, 16384")]] + dst_adv()


def wo_dma(o, slot):
    g = []
    for kk in range(2):
        for t in range(4):
            rows = 32 * kk + 16 * (t >> 1) + 8 * (t & 1)
            pre = [salu(f"s_add_u32 m0, s{sE6}, {slot * SLOT + kk * 4096}")] if t == 0 else []
            if kk == 0 and t == 0 and o > 0:
                pre = [salu(f"s_add_u32 s{sK2}, s{sK2}, 128"),
                       I(f"s_cmp_eq_u32 s{sK2}, s{sK3}\ns_cselect_b32 s{sT0}, 896, 0", "S", [], [("scc", 0), ("s", sT0)]),
                       salu(f"s_sub_u32 s{sK2}, s{sK2}, s{sT0}")] + pre
            pre.append(salu(f"s_add_u32 s{sT0}, s{sK2}, {rows * 896 - t * 1024}"))
            g.append((pre, dma(vWt, sWO, sT0, t * 1024, tag=("WO", o))))
    return g, []


def add_dma(tasks, g, adv, first, rel, dl, spread, gapmin=0):
    prev = first
    pd = None
    n = len(g)
    for k, (pre, d) in enumerate(g):
        ddl = dl - (n - 1 - k) * max(3, gapmin)
        for p in pre:
            t = Task(p, "S", rel=rel, dl=ddl, deps=[(prev, 0)], name="dmapre")
            tasks.append(t)
            prev = t
        t = Task(d, "D", rel=rel + k * spread, dl=ddl, deps=[(prev, 1 if (prev.cls == "S" and prev.ins) else 0)] + ([(pd, gapmin)] if pd and gapmin else []), name="dma")
        tasks.append(t)
        prev = pd = t
    for a in adv:
        t = Task(a, "S", rel=rel, dl=dl + 8, deps=[(prev, 0)], name="dmaadv")
        tasks.append(t)
        prev = t
    return prev


def emit_serial(c, g, adv, fill=None):
    for pre, d in g:
        c += pre
        c.append(d)
        if fill:
            for _ in range(6):
                if fill:
                    c.append(fill.pop(0))
    for a in adv:
        c += a


def prologue():
    c = []
    S = lambda t: c.append(salu(t))
    V = lambda t: c.append(valu(t))
    c.append(raw(f"s_load_dwordx16 s[{sArg}:{sArg + 15}], s[0:1], 0"))
    c += stamp(0)
    if STAMP or OPT.get("diag") or OPT.get("padto"):
        c.append(raw("s_memrealtime s[98:99]"))
    V(f"v_lshrrev_b32 v{vT0}, 6, v0")
    V(f"v_and_b32 v{vLANE}, 63, v0")
    V(f"v_readfirstlane_b32 s{sW}, v{vT0}")
    def code_prefetch(c):
        c.append(raw(f"s_getpc_b64 s[{sPat}:{sPat + 1}]"))
        c.append(salu(f"s_lshr_b32 s{sD}, s2, 3"))
        c.append(salu(f"s_and_b32 s{sD}, s{sD}, 1"))
        c.append(salu(f"s_lshl_b32 s{sD}, s{sD}, 15"))
        c.append(valu(f"v_lshlrev_b32 v{vU[4]}, 7, v0"))
        c.append(valu(f"v_add_u32 v{vU[4]}, s{sD}, v{vU[4]}"))
        c.append(valu(f"v_min_u32 v{vU[4]}, @CODEMAX, v{vU[4]}"))
        c.append(I(f"global_load_dword v{vU[4]}, v{vU[4]}, s[{sPat}:{sPat + 1}]", "D", [("v", vU[4])], [("v", vU[4])]))

    if OPT.get("cpf") == 1:
        code_prefetch(c)
    S(f"s_lshr_b32 s{sT1}, s2, 3")
    S(f"s_and_b32 s{sT3}, s2, 1")
    S(f"s_lshl_b32 s{sT3}, s{sT3}, 2")
    S(f"s_and_b32 s{sT2}, s{sT1}, 3")
    S(f"s_add_u32 s{sT3}, s{sT3}, s{sT2}")
    S(f"s_and_b32 s{sB}, s2, 6")
    S(f"s_bfe_u32 s{sT2}, s{sT1}, 0x10002")
    S(f"s_add_u32 s{sB}, s{sB}, s{sT2}")
    S(f"s_bfe_u32 s{sH}, s{sT1}, 0x10003")
    S(f"s_lshl_b32 s{sT2}, s{sT3}, 1")
    S(f"s_add_u32 s{sH}, s{sH}, s{sT2}")
    S(f"s_lshr_b32 s{sSP}, s{sT1}, 4")
    S(f"s_lshr_b32 s{sXW}, s{sW}, 1")
    S(f"s_and_b32 s{sHW}, s{sW}, 1")
    S(f"s_lshl_b32 s{sKoff}, s{sB}, 3")
    S(f"s_add_u32 s{sKoff}, s{sKoff}, s{sT3}")
    V(f"v_lshrrev_b32 v{vT0}, 3, v{vLANE}")
    V(f"v_and_b32 v{vT1}, 7, v{vLANE}")
    V(f"v_lshrrev_b32 v{vT2}, 1, v{vT0}")
    V(f"v_xor_b32 v{vK0}, v{vT1}, v{vT2}")
    V(f"v_lshlrev_b32 v{vK0}, 4, v{vK0}")
    V(f"v_lshlrev_b32 v{vV}, 1, v{vT2}")
    V(f"v_xor_b32 v{vV}, v{vT1}, v{vV}")
    V(f"v_lshlrev_b32 v{vV}, 4, v{vV}")
    S(f"s_lshl_b32 s{sT2}, s{sHW}, 6")
    V(f"v_xor_b32 v{vX}, s{sT2}, v{vK0}")
    V(f"v_mul_u32_u24 v{vST}, 896, v{vT0}")
    V(f"v_add_u32 v{vX}, v{vX}, v{vST}")
    V(f"v_and_b32 v{vWt}, 3, v{vT0}")
    V(f"v_lshrrev_b32 v{vST}, 2, v{vT0}")
    V(f"v_lshl_add_u32 v{vWt}, v{vST}, 3, v{vWt}")
    V(f"v_lshlrev_b32 v{vWt}, 13, v{vWt}")
    V(f"v_add_u32 v{vWt}, v{vWt}, v{vV}")
    S(f"s_lshl_b32 s{sT3}, s{sW}, 7")
    V(f"v_add_u32 v{vWt}, s{sT3}, v{vWt}")
    S(f"s_lshl_b32 s{sWoff}, s{sH}, 9")
    S(f"s_mul_i32 s{sXoff}, s{sB}, {160 * 896}")
    S(f"s_mul_i32 s{sT2}, s{sW}, {8 * 896}")
    S(f"s_add_u32 s{sXoff}, s{sXoff}, s{sT2}")
    S(f"s_add_u32 s{sXlim}, s{sXoff}, 896")
    if OPT["rot"]:
        S(f"s_and_b32 s{sT2}, s{sB}, 1")
        S(f"s_lshl_b32 s{sT1}, s{sSP}, 1")
        S(f"s_add_u32 s{sT2}, s{sT2}, s{sT1}")
        S(f"s_lshl_b32 s{sT2}, s{sT2}, 1")
        S(f"s_and_b32 s{sT1}, s{sH}, 3")
        S(f"s_add_u32 s{sT2}, s{sT2}, s{sT1}")
        S(f"s_cmp_ge_u32 s{sT2}, 7")
        S(f"s_cselect_b32 s{sT1}, 7, 0")
        S(f"s_sub_u32 s{sT2}, s{sT2}, s{sT1}")
        S(f"s_lshl_b32 s{sT1}, s{sT2}, 19")
        S(f"s_add_u32 s{sWoff}, s{sWoff}, s{sT1}")
        S(f"s_lshl_b32 s{sT1}, s{sT2}, 7")
        S(f"s_add_u32 s{sXoff}, s{sXoff}, s{sT1}")
    S(f"s_lshl_b32 s{sDst0}, s{sW}, 12")
    S(f"s_add_u32 s{sWdst}, s{sDst0}, {SLOT}")
    S(f"s_lshl_b32 s{sXdst}, s{sW}, 10")
    S(f"s_add_u32 s{sXdst}, s{sXdst}, {XBASE}")
    c.append(I("s_waitcnt lgkmcnt(0)", "W"))
    if STAMP:
        c.append(raw("s_memrealtime s[92:93]"))
    if OPT.get("swarm", 1):
        S(f"s_lshl_b32 s{sT1}, s{sKoff}, 20")
        c.append(raw(f"s_load_dword s91, s[{sArg}:{sArg + 1}], s{sXoff}"))
        c.append(raw(f"s_load_dword s91, s[{sArg + 2}:{sArg + 3}], s{sT1}"))
        c.append(raw(f"s_load_dword s91, s[{sArg + 4}:{sArg + 5}], s{sT1}"))
        c.append(raw(f"s_load_dword s91, s[{sArg + 6}:{sArg + 7}], 0"))
        c.append(raw(f"s_load_dword s91, s[{sArg + 6}:{sArg + 7}], 0xffffc"))
        S(f"s_mov_b32 s{sT1}, {448 * 4096 * 2 - 4}")
        c.append(raw(f"s_load_dword s91, s[{sArg + 6}:{sArg + 7}], s{sT1}"))
    srd(c, sWQ, 6, 448 * 4096 * 2)
    srd(c, sX, 0, 8 * 160 * 448 * 2)
    f = []
    c2, c = c, f
    S = lambda t: f.append(salu(t))
    V = lambda t: f.append(valu(t))
    V(f"v_and_b32 v{vST}, 1, v{vT0}")
    V(f"v_lshl_add_u32 v{vST}, v{vT2}, 3, v{vST}")
    V(f"v_lshlrev_b32 v{vST}, 9, v{vST}")
    V(f"v_add_u32 v{vST}, s{sT3}, v{vST}")
    V(f"v_add_u32 v{vK0}, v{vK0}, v{vST}")
    V(f"v_add_u32 v{vV}, v{vV}, v{vST}")
    V(f"v_xor_b32 v{vK1}, 64, v{vK0}")
    srd(f, sK, 2, 0x4000000)
    srd(f, sV, 4, 0x4000000)
    srd(f, sWO, 8, 448 * 4096 * 2)
    srd(f, sWS, 14, 0x10000000)
    S(f"s_lshl_b32 s{sKoff}, s{sKoff}, 20")
    S(f"s_lshl_b32 s{sVoff}, s{sSP}, 19")
    S(f"s_add_u32 s{sKoff}, s{sKoff}, s{sVoff}")
    S(f"s_mov_b32 s{sVoff}, s{sKoff}")
    S(f"s_lshl_b32 s{sID}, s{sB}, 1")
    S(f"s_add_u32 s{sID}, s{sID}, s{sSP}")
    S(f"s_lshl_b32 s{sID}, s{sID}, 4")
    S(f"s_add_u32 s{sID}, s{sID}, s{sH}")
    srd(f, sDBG, 12, 256)
    S(f"s_lshl_b32 s{sIN}, s{sID}, {ISH}")
    S(f"s_add_u32 s{sIN}, s{sIN}, {INBOX}")
    f.append(I(f"s_cmp_eq_u32 s{sW}, 0\ns_cselect_b32 s{sT2}, s{sIN}, {OOB:#x}\ns_cselect_b32 s{sIN + 1}, s{sID}, {OOB:#x}", "S"))
    V(f"v_and_b32 v{vT0}, 31, v{vLANE}")
    V(f"v_lshlrev_b32 v{vT0}, 2, v{vT0}")
    V(f"v_mov_b32 v{vU[2]}, 0")
    V(f"v_mov_b32 v{vU[3]}, 1")
    f.append(bstore(1, ("v", vU[2]), vT0, sWS, sT2, 0, " sc0 sc1"))
    f.append(nop(1))
    V(f"v_and_b32 v{vT0}, 15, v{vLANE}")
    V(f"v_lshrrev_b32 v{vT1}, 4, v{vLANE}")
    V(f"v_lshrrev_b32 v{vT2}, 1, v{vT0}")
    V(f"v_xor_b32 v{LK0}, v{vT1}, v{vT2}")
    V(f"v_lshlrev_b32 v{LK0}, 4, v{LK0}")
    V(f"v_lshl_add_u32 v{LK0}, v{vT0}, 7, v{LK0}")
    V(f"v_lshrrev_b32 v{vT0}, 2, v{vLANE}")
    V(f"v_and_b32 v{vT1}, 6, v{vT0}")
    V(f"v_bfe_u32 v{vT2}, v{vLANE}, 1, 1")
    V(f"v_xor_b32 v{vT1}, v{vT1}, v{vT2}")
    V(f"v_lshlrev_b32 v{vT1}, 4, v{vT1}")
    V(f"v_lshl_add_u32 v{vT1}, v{vT0}, 7, v{vT1}")
    V(f"v_and_b32 v{vT2}, 1, v{vLANE}")
    V(f"v_lshl_add_u32 v{LV[0]}, v{vT2}, 3, v{vT1}")
    for k in range(1, 4):
        V(f"v_xor_b32 v{LV[k]}, {32 * k}, v{LV[0]}")
    S(f"s_add_u32 s{sT2}, s{sDst0}, {SLOT}")
    for k in range(4):
        V(f"v_add_u32 v{VA[k]}, s{sT2}, v{LV[k]}")
    V(f"v_add_u32 v{XA[0]}, {XBASE}, v{LK0}")
    V(f"v_xor_b32 v{XA[1]}, 64, v{XA[0]}")
    S(f"s_mov_b32 s{sWrd}, {SLOT}")
    S(f"s_mov_b32 s{sXrd}, 0")
    S(f"s_add_u32 s{sDstLim}, s{sDst0}, {5 * SLOT}")
    S(f"s_mov_b32 s{sDst}, s{sDst0}")
    S(f"s_lshl_b32 s{sHalf}, s{sXW}, 15")
    S(f"s_sub_u32 s{sHalf}, s{sHalf}, 16384")
    S(f"s_sub_u32 s{sC1}, {2 * SLOT}, s{sHalf}")
    S(f"s_sub_u32 s{sC2}, {(-3 * SLOT) & 0xffffffff}, s{sHalf}")
    S(f"s_mov_b32 s{sThr}, 0x53800000")
    pat = 0
    for j in range(40):
        if (j + 1) % 5 < (j - 1) % 5:
            pat |= 1 << j
    S(f"s_mov_b32 s{sPat}, {pat & 0xffffffff:#x}")
    S(f"s_mov_b32 s{sPat + 1}, {pat >> 32:#x}")
    S(f"s_lshl_b32 s{sT2}, s{sXW}, 14")
    S(f"s_sub_u32 s{sT2}, 16384, s{sT2}")
    V(f"v_add_u32 v{KA[0]}, s{sT2}, v{LK0}")
    V(f"v_xor_b32 v{KA[1]}, 64, v{KA[0]}")
    V(f"v_and_b32 v{vT0}, 15, v{vLANE}")
    V(f"v_lshlrev_b32 v{vT0}, 4, v{vT0}")
    V(f"v_lshrrev_b32 v{vT1}, 5, v{vLANE}")
    V(f"v_lshl_add_u32 v{vT0}, v{vT1}, 8, v{vT0}")
    V(f"v_bfe_u32 v{vT1}, v{vLANE}, 4, 1")
    V(f"v_lshl_add_u32 v{vT0}, v{vT1}, 3, v{vT0}")
    S(f"s_lshl_b32 s{sT2}, s{sW}, 11")
    S(f"s_add_u32 s{sT3}, s{sT2}, {XBASE}")
    V(f"v_add_u32 v{vU[0]}, s{sT3}, v{vT0}")
    S(f"s_add_u32 s{sT3}, s{sT2}, {SLOT}")
    V(f"v_add_u32 v{vU[1]}, s{sT3}, v{vT0}")
    V(f"v_lshlrev_b32 v{vST}, 4, v{vLANE}")
    S(f"s_lshl_b32 s{sT2}, s{sW}, 1")
    S(f"s_add_u32 s{sT2}, s{sT2}, s{sSP}")
    S(f"s_lshl_b32 s{sT2}, s{sT2}, 13")
    S(f"s_add_u32 s{sT2}, s{sT2}, {XBASE}")
    V(f"v_add_u32 v{QA[0]}, s{sT2}, v{vST}")
    V(f"v_xor_b32 v{QA[1]}, 8192, v{QA[0]}")
    S(f"s_xor_b32 s{sT2}, s{sHW}, s{sSP}")
    S(f"s_lshl_b32 s{sT2}, s{sT2}, 13")
    S(f"s_add_u32 s{sT2}, s{sT2}, {SLOT}")
    V(f"v_add_u32 v{QA[2]}, s{sT2}, v{vST}")
    S(f"s_lshl_b32 s{sK2}, s{sH}, 2")
    S(f"s_add_u32 s{sK2}, s{sK2}, s{sW}")
    S(f"s_mul_i32 s{sK2}, s{sK2}, {64 * 896}")
    S(f"s_add_u32 s{sK3}, s{sK2}, 896")
    S(f"s_and_b32 s{sRot}, s{sB}, 1")
    S(f"s_lshl_b32 s{sT2}, s{sSP}, 1")
    S(f"s_add_u32 s{sRot}, s{sRot}, s{sT2}")
    S(f"s_mul_i32 s{sRot}, s{sRot}, {2 * OPT['rot']}")
    S(f"s_lshl_b32 s{sT2}, s{sRot}, 7")
    S(f"s_add_u32 s{sK2}, s{sK2}, s{sT2}")
    c = c2
    for fn, cidx in ((qw_dma, 0), (qx_dma, 0), (qw_dma, 1)):
        g, adv = fn(cidx)
        emit_serial(c, g, adv, f if (OPT.get("ilv", 1) or cidx == 1) else None)
        if STAMP and fn is qx_dma:
            c.append(raw("s_memrealtime s[94:95]"))
        if fn is qx_dma and OPT.get("cpf") == 2:
            code_prefetch(c)
    c += f
    if STAMP:
        c.append(raw("s_memrealtime s[86:87]"))
    c.append(I("s_waitcnt lgkmcnt(0)", "W"))
    if OPT["pref"]:
        S = lambda t: c.append(salu(t))
        V = lambda t: c.append(valu(t))
        S(f"s_and_b32 s{sT0}, s{sB}, 1")
        S(f"s_lshl_b32 s{sT0}, s{sT0}, 1")
        S(f"s_add_u32 s{sT0}, s{sT0}, s{sSP}")
        S(f"s_lshl_b32 s{sT0}, s{sT0}, 2")
        S(f"s_add_u32 s{sT0}, s{sT0}, s{sW}")
        V(f"v_lshrrev_b32 v{vT0}, 2, v{vLANE}")
        V(f"v_lshlrev_b32 v{vT0}, 13, v{vT0}")
        V(f"v_and_b32 v{vT1}, 3, v{vLANE}")
        V(f"v_lshl_add_u32 v{vT0}, v{vT1}, 7, v{vT0}")
        S(f"s_lshl_b32 s{sT1}, s{sT0}, 17")
        S(f"s_add_u32 s{sT1}, s{sT1}, s{sWoff}")
        c.append(bload(1, ("v", 32), vT0, sWQ, sT1, 0))
        S(f"s_lshr_b32 s{sT1}, s2, 3")
        S(f"s_and_b32 s{sT2}, s{sT1}, 3")
        S(f"s_lshr_b32 s{sT1}, s{sT1}, 3")
        S(f"s_lshl_b32 s{sT1}, s{sT1}, 2")
        S(f"s_add_u32 s{sT1}, s{sT1}, s{sT2}")
        S(f"s_lshl_b32 s{sT1}, s{sT1}, 2")
        S(f"s_add_u32 s{sT1}, s{sT1}, s{sW}")
        S(f"s_mul_i32 s{sT1}, s{sT1}, {18 * 128}")
        S(f"s_mul_i32 s{sT2}, s{sB}, {160 * 896}")
        S(f"s_add_u32 s{sT1}, s{sT1}, s{sT2}")
        V(f"v_min_u32 v{vT1}, 17, v{vLANE}")
        V(f"v_lshlrev_b32 v{vT1}, 7, v{vT1}")
        c.append(bload(1, ("v", 33), vT1, sX, sT1, 0))
        c.append(raw(f"s_getpc_b64 s[{sT2}:{sT3}]"))
        S(f"s_and_b32 s{sT1}, s{sT0}, 7")
        S(f"s_lshl_b32 s{sT1}, s{sT1}, 13")
        V(f"v_lshlrev_b32 v{vT1}, 7, v{vLANE}")
        V(f"v_add_u32 v{vT1}, s{sT1}, v{vT1}")
        V(f"v_min_u32 v{vT1}, @CODEMAX, v{vT1}")
        c.append(I(f"global_load_dword v34, v{vT1}, s[{sT2}:{sT3}]", "D", [("v", vT1)], [("v", 34)]))
        S(f"s_mul_i32 s{sT1}, s{sH}, {256 * 896}")
        S(f"s_mul_i32 s{sT0}, s{sT0}, {112 * 128}")
        S(f"s_add_u32 s{sT1}, s{sT1}, s{sT0}")
        V(f"v_lshlrev_b32 v{vT1}, 7, v{vLANE}")
        if OPT["pref"] > 1:
            c.append(bload(1, ("v", 35), vT1, sWO, sT1, 0))
            S(f"s_add_u32 s{sT1}, s{sT1}, {48 * 128}")
            c.append(bload(1, ("v", 36), vT1, sWO, sT1, 0))
    return c


def qacc(blk, t):
    return 96 + (blk * 4 + t) * 4


def q_phase():
    mf, tasks, marks = [], [], []
    WF = lambda c, ks, t: (c & 1) * 32 + (ks * 4 + t) * 4
    XF = lambda blk, ks: 64 + (blk * 2 + ks) * 4
    bar, lastx, lastaddr, xuse, wuse = {}, {}, {}, {}, {}
    prev_dma, prev_aups = None, []
    allreads = []
    for cidx in range(7):
        start = 80 * cidx
        marks.append(start)
        if cidx == 0:
            bar[0] = Task(wait_bar([("QX", 0)], None), "BAR", rel=-1, dl=-1, name="bar0")
            wready = bar[0]
        else:
            bar[cidx] = Task(wait_bar([("QX", cidx)], ("XR", cidx - 1)), "BAR", rel=start - 20, dl=start - 10, deps=[(lastx[cidx - 1], 4)], name=f"bar{cidx}")
            wready = Task(waitr([("QW", cidx)], None), "S", rel=start - 44, name="wready")
            tasks.append(wready)
        tasks.append(bar[cidx])
        aup = {}
        if cidx > 0:
            sd = [Task([salu(f"s_cmp_eq_u32 s{sWrd}, 0"), salu(f"s_cselect_b32 s{sD}, {3 * SLOT}, 0")], "S", rel=start - 76, deps=[(t, 0) for t in prev_aups], name="sd")]
            for t in (f"s_sub_u32 s{sD}, s{sD}, {SLOT}", f"s_add_u32 s{sWrd}, s{sWrd}, s{sD}"):
                sd.append(Task(salu(t), "S", deps=[(sd[-1], 0)], name="sd"))
            sd.append(Task([salu(f"s_cmp_eq_u32 s{sXrd}, {2 * XSL}"), salu(f"s_cselect_b32 s{sDX}, {3 * XSL}, 0")], "S", deps=[(sd[-1], 0)], name="sd"))
            for t in (f"s_sub_u32 s{sDX}, {XSL}, s{sDX}", f"s_add_u32 s{sXrd}, s{sXrd}, s{sDX}"):
                sd.append(Task(salu(t), "S", deps=[(sd[-1], 0)], name="sd"))
            tasks += sd
            for r in VA:
                aup[r] = Task(valu(f"v_add_u32 v{r}, s{sD}, v{r}"), "V", deps=[(sd[-1], 1), (lastaddr[r], 0)], name="aup")
            for r in XA:
                aup[r] = Task(valu(f"v_add_u32 v{r}, s{sDX}, v{r}"), "V", deps=[(sd[-1], 1), (lastaddr[r], 0)], name="aup")
            tasks += list(aup.values())
            prev_aups = list(aup.values())

        def rd(ins, consumer, gate, tag, rel, war):
            ins.tag = tag
            a = ins.rd[0][1]
            deps = [(gate, 0)] + ([(aup[a], 1)] if a in aup else []) + ([(lastaddr[a], 0)] if a in lastaddr else [])
            first = cidx == 0 and consumer < 12
            t = Task(ins, "L", rel=-1 if first else max(rel, war), dl=-1 if first else consumer - 6, deps=deps, name="rd")
            tasks.append(t)
            lastaddr[a] = t
            allreads.append(t)
            return t

        for ks in range(2):
            for t in range(4):
                for e in range(2):
                    rd(ds_rtr(("a", WF(cidx, ks, t) + 2 * e), VA[t], ks * 16384 + e * 2048), start + 2 * t, wready, ("WR", cidx),
                       start - 42, wuse.get(cidx & 1, -1))
        early = 60 if cidx == 6 else 22
        for blk in range(10):
            c0 = len(mf)
            for ks in range(2):
                lastx[cidx] = rd(ds_r128(("a", XF(blk, ks)), XA[ks], blk * 2048), c0 + ks, bar[cidx], ("XR", cidx), c0 - early, xuse.get((blk, ks), -1))
            for t in range(4):
                for ks in ((0, 1) if (t % 2 == 0 or cidx == 0) else (1, 0)):
                    d = ("v", qacc(blk, t))
                    mf.append(mfma(d, ("a", WF(cidx, ks, t)), ("a", XF(blk, ks)), 0 if (cidx == 0 and ks == 0) else d))
            xuse[(blk, 0)] = xuse[(blk, 1)] = len(mf) - 1
        wuse[cidx & 1] = len(mf) - 1
    q = []
    for cidx in range(1, 7):
        q.append((qx_dma(cidx), bar[max(cidx - 2, 0)], max(0, 80 * (cidx - 2) - 10), 80 * (cidx - 1) + (30 if cidx > 1 else 16)))
        if cidx + 1 <= 6:
            q.append((qw_dma(cidx + 1), bar[0], max(0, 80 * (cidx - 2) + 10), 80 * (cidx - 1) + 62))
    g, adv = kv_dma("K", ("T", -1))
    q.append(((g, adv + dst_adv()), bar[0], 80 * 4 + 10, 80 * 5 + 40))
    q.append((kv_dma("K", ("T", 1)), bar[0], 80 * 5 + 10, 80 * 6 + 20))
    for (g, adv), gate, r0, d0 in q:
        first = Task([], "S", rel=r0, deps=[(gate, 0)] + ([(prev_dma, 0)] if prev_dma else []), name="dmastart")
        tasks.append(first)
        prev_dma = add_dma(tasks, g, adv, first, r0, d0, spread=0, gapmin=OPT.get("qgap", 3))
    an = I(f"buffer_store_byte v{vU[3]}, v{vU[2]}, s[{sDBG}:{sDBG + 3}], s{sIN + 1} offen sc0 sc1", "D", [("v", vU[3]), ("v", vU[2])], [], tag="store")
    seq = [an]
    if OPT.get("tlb", 1):
        seq += [bload(1, ("v", vX), vU[2], sV, sVoff, 0), bload(1, ("v", vX), vU[2], sWO, sK2, 0)]
    for i in seq:
        prev_dma = Task(i, i.kind, deps=[(prev_dma, 1)], dl=80 * 6 + 60, name="warm")
        tasks.append(prev_dma)
    start = 480
    dead = Task(wait_bar([], ("XR", 6)), "BAR", deps=[(lastx[6], 4)], name="dead")
    tasks.append(dead)
    sc = Task([salu(f"s_mov_b32 s{sT2}, {QSCALE:#x}"), salu(f"s_mov_b32 s{sT3}, {QSCALE:#x}")], "S", rel=start, name="sc")
    tasks.append(sc)
    for blk in range(10):
        for t in range(4):
            s = qacc(blk, t)
            done = start + blk * 8 + 2 * t + 1
            if blk < OPT.get("pkfrom", 4):
                ms = [Task(valu(f"v_mul_f32 v{s + r}, s{sT3}, v{s + r}"), "V", rel=done + MLAT, deps=[(sc, 1)], name="qmul") for r in range(4)]
            else:
                m2 = [Task(valu(f"v_pk_mul_f32 v[{s + r}:{s + r + 1}], v[{s + r}:{s + r + 1}], s[{sT2}:{sT3}]"), "V", rel=done + MLAT, deps=[(sc, 1)], name="qmul") for r in (0, 2)]
                ms = [m2[0], m2[0], m2[1], m2[1]]
            c0 = Task(valu(f"v_cvt_pk_bf16_f32 v{s}, v{s}, v{s + 1}"), "V", deps=[(ms[0], 0), (ms[1], 0)], name="qcv")
            c1 = Task(valu(f"v_cvt_pk_bf16_f32 v{s + 1}, v{s + 2}, v{s + 3}"), "V", deps=[(ms[2], 0), (ms[3], 0), (c0, 0)], name="qcv")
            w = ds_w64(vU[0] if blk < 8 else vU[1], ("v", s), (blk & 7) * 8192 + (t >> 1) * 1024 + (t & 1) * 512)
            wt = Task(w, "L", deps=[(c1, 0), (dead, 0)], name="qwr")
            tasks += list(dict.fromkeys(ms)) + [c0, c1, wt]
    gaps = schedule(mf, tasks, verbose=True)
    for k, m in enumerate(marks):
        mf[m].mark = ("Q", k)
    return linearize(mf, gaps)


def q_finish():
    c = []
    S = lambda t: c.append(salu(t))
    V = lambda t: c.append(valu(t))
    S(f"s_lshl_b32 s{sT0}, s{sXW}, 14")
    S(f"s_sub_u32 s{sT0}, {3 * SLOT + 16384}, s{sT0}")
    for k in range(4):
        V(f"v_add_u32 v{VA[k]}, s{sT0}, v{LV[k]}")
    V(f"v_lshrrev_b32 v{vT0}, 3, v{vLANE}")
    V(f"v_mul_u32_u24 v{vT0}, 896, v{vT0}")
    V(f"v_and_b32 v{vWt}, 0x70, v{vV}")
    V(f"v_add_u32 v{vWt}, v{vWt}, v{vT0}")
    S(f"s_lshl_b32 s{sE6}, s{sW}, 13")
    c.append(I("s_waitcnt lgkmcnt(0)", "W"))
    for r in list(range(NEGM[0], NEGM[0] + 12)) + LS:
        V(f"v_mov_b32 v{r}, 0")
    c += wait_bar([("T", -1)], None)
    return c


sites = []


def rowmax_tasks(tasks, src, t, u, dep, name):
    seq = [f"v_max3_f32 v{t}, v{src}, v{src + 1}, v{src + 2}", f"v_max_f32 v{t}, v{t}, v{src + 3}", f"v_mov_b32 v{u}, v{t}",
           f"v_permlane32_swap_b32 v{t}, v{u}", f"v_max_f32 v{t}, v{t}, v{u}", f"v_mov_b32 v{u}, v{t}",
           f"v_permlane16_swap_b32 v{t}, v{u}", f"v_max_f32 v{t}, v{t}, v{u}", f"v_ceil_f32 v{t}, v{t}"]
    prev = dep
    for x in seq:
        i = valu(x)
        tk = Task(i, "V", deps=[(prev, 1 if i.kind == "P" else 0)], name=name)
        tasks.append(tk)
        prev = tk
    return prev


def main_phase():
    NS = 35
    mf, tasks = [], []
    nfrag = 0
    start, chain_first, chain_last, plan, qfirst = {}, {}, {}, [], {}
    CH = OPT.get("chain", 4)
    fraguse = {}
    cfirst_blk = {}
    pvdone = {}
    for j in range(NS):
        start[j] = len(mf)
        qb = ((0, 1, 2) if j & 1 else (0, 1)) if j <= 31 else ()
        pbk = ((0, 1, 2) if (j & 1) == 0 else (0, 1)) if j >= 3 else ()
        for sg in range(16 // CH):
            gams = list(range(sg * CH, sg * CH + CH))
            qitems = [("Q", b) for b in (qb if sg % 2 == 0 else qb[::-1])]
            pitems = [("P", g_) for g_ in gams] if pbk else []
            order = []
            nq = len(qitems)
            if nq == 0:
                order = pitems
            else:
                per = [len(pitems) // nq + (1 if k < len(pitems) % nq else 0) for k in range(nq)]
                pi = 0
                for k, q in enumerate(qitems):
                    ps_ = pitems[pi:pi + per[k]]
                    pi += per[k]
                    order += (ps_ + [q]) if sg % 2 == 0 else ([q] + ps_)
            kf = {}
            for kind, x in order:
                if kind == "Q":
                    for gam in gams:
                        kt, ks = gam >> 3, gam & 7
                        if gam not in kf:
                            kf[gam] = nfrag % 16
                            nfrag += 1
                            plan.append(("K", j, gam, FB + kf[gam] * 4, len(mf), fraguse.get(kf[gam], -1)))
                        d = ("v", Sreg(j, kt, x))
                        qfirst.setdefault((x, ks), len(mf))
                        mf.append(mfma(d, ("a", FB + kf[gam] * 4), ("v", QB[x] + 4 * ks), ("v", NEGM[x]) if ks == 0 else d))
                        chain_first.setdefault((j, kt), len(mf) - 1)
                        cfirst_blk.setdefault((j, kt, x), len(mf) - 1)
                        chain_last[(j, kt, x)] = len(mf) - 1
                        lastk = kf[gam]
                        kf_use = fraguse
                        pend_use = (kf[gam], len(mf) - 1)
                        kf.setdefault("u", {})[kf[gam]] = len(mf) - 1
                else:
                    fr = nfrag % 16
                    nfrag += 1
                    plan.append(("V", j, x, FB + fr * 4, len(mf), fraguse.get(fr, -1)))
                    for blk in pbk:
                        d = ("a", OB[blk] + 4 * x)
                        mf.append(mfma(d, ("a", FB + fr * 4), ("v", Preg(j - 3, blk)), 0 if j == (3 if blk < 2 else 4) else d))
                        pvdone[(j, x, blk)] = len(mf) - 1
                    fraguse[fr] = len(mf) - 1
            fraguse.update(kf.get("u", {}))
    start[NS] = start[NS + 1] = len(mf)
    bar, aup, lastread, lastaddr = {}, {}, {}, {}
    qlast = None
    for (blk, ks), c0 in sorted(qfirst.items(), key=lambda x: x[1]):
        i = ds_r128(("v", QB[blk] + 4 * ks), QA[blk], ks * 1024)
        i.tag = ("QS", 0)
        first = c0 < 8
        qlast = Task(i, "L", rel=-1, dl=-1 if first else min(c0 - 6, 22), deps=[(qlast, 0)] if qlast else [], name="qrd")
        tasks.append(qlast)
    bar[0] = Task(wait_bar([], ("QS", 0)), "BAR", deps=[(qlast, 4)], name="barq")
    tasks.append(bar[0])
    st = dict(sd=None, aups=[])
    done_steps = set()

    def tile_of(kind, j):
        return ("K", j >> 1) if kind == "K" else ("V", (j - 3) >> 1)

    def add_wreads(o, gate, rel, dl):
        c = []
        wfrag_reads(c, o)
        prev = gate
        for i in c:
            prev = Task(i, "L", rel=rel, dl=dl, deps=[(prev, 0), (setup_done, 1)], prio=-40, name="wrd")
            tasks.append(prev)
        return prev

    su = []
    tail_setup(su)
    setup_done = None
    for i in su:
        setup_done = Task(i, i.kind if i.kind in ("S", "D") else "V", rel=start[29], dl=start[32] - 30, deps=[(setup_done, 0)] if setup_done else [], name="su")
        tasks.append(setup_done)

    def enter(j):
        done_steps.add(j)
        sw = "K" if j % 2 == 0 else "V"
        old = tile_of(sw, j - 1)
        newvalid = (sw == "K" and j <= 30) or (sw == "V" and 3 <= j <= 33)
        vm = [("T", j - 1)] if newvalid else []
        deps, lg = [], None
        if old in lastread:
            deps.append((lastread[old], OPT["barlag"]))
            lg = old
        if j == 32:
            vm = [("WO", 0)]
        if j == 33:
            vm = vm + [("WO", 1)]
        if j in (33, 34):
            wl = add_wreads(j - 33, bar[j - 1], start[j - 1], start[j] - DIST)
            deps = [(wl, 3)] + deps
            lg = ("ANY", j)
            for t in [wl] + ([lastread[old]] if old in lastread else []):
                t.ins[0].tag = ("ANY", j)
        if vm or lg:
            pb = max(k for k in bar)
            bar[j] = Task(wait_bar(vm, lg), "BAR", rel=start[j] - DIST + 1 + OPT["barlag"], dl=start[j] - 8, deps=deps + [(bar[pb], 1)], name=f"bar{j}")
            tasks.append(bar[j])
        sd0 = Task([salu(f"s_bitcmp1_b64 s[{sPat}:{sPat + 1}], 0"), salu(f"s_cselect_b32 s{sD}, s{sC2}, s{sC1}")], "S", rel=start[j - 1] + 8,
                   deps=[(t, 0) for t in st["aups"]] + ([(st["sd"], 0)] if st["sd"] else []), name="sd")
        sd0.ins[0].wr = [("scc", 0)]
        sd = Task(salu(f"s_lshr_b64 s[{sPat}:{sPat + 1}], s[{sPat}:{sPat + 1}], 1"), "S", deps=[(sd0, 0)], name="sd")
        tasks.extend([sd0, sd])
        st["sd"], st["aups"] = sd, []
        for kind, regs in (("K", KA), ("V", VA)):
            if not ((kind == "K" and 1 <= j <= 31) or (kind == "V" and 4 <= j <= 34)):
                continue
            for r in regs:
                t = Task(valu(f"v_add_u32 v{r}, s{sD if kind == sw else sHalf}, v{r}"), "V", deps=[(sd0, 1), (lastaddr[r], 0)], name="aup")
                aup[(j, r)] = t
                tasks.append(t)
                st["aups"].append(t)

    for kind, j, gam, f, c0, war in plan:
        if j >= 1 and j not in done_steps:
            enter(j)
        kt, ks = gam >> 3, gam & 7
        if kind == "K":
            a = KA[ks & 1]
            ins = [ds_r128(("a", f), a, (ks >> 1) * 4096 + kt * 2048)]
        else:
            a = VA[gam & 3]
            ins = [ds_rtr(("a", f), a, (gam >> 2) * 4096), ds_rtr(("a", f + 2), a, (gam >> 2) * 4096 + 2048)]
        tl = tile_of(kind, j)
        for i in ins:
            i.tag = tl
            deps = []
            swj = j if (kind == "K") == (j % 2 == 0) else j - 1
            if swj in bar and swj > 0:
                deps.append((bar[swj], 0))
            if (j, a) in aup:
                deps.append((aup[(j, a)], 1))
            if a in lastaddr:
                deps.append((lastaddr[a], 0))
            first = c0 < 8
            t = Task(i, "L", rel=-1 if first else max(c0 - DIST, war), dl=-1 if first else c0 - 5, deps=deps, name=f"rd{kind}{j}.{gam}")
            tasks.append(t)
            lastread[tl] = t
            lastaddr[a] = t
    prev = None
    for j in range(NS):
        n = j + 2
        if n <= 32 and n != 31:
            g, adv = kv_dma("K" if n & 1 else "V", ("T", n))
        elif n in (31, 33):
            g, adv = wo_dma((n - 31) // 2, (n + 1) % 5)
            adv = dst_adv()
        elif n in (34, 35):
            g, adv = wo_dma(n - 32, WSL[n - 32])
        else:
            continue
        pb = max(k for k in bar if k <= j)
        first = Task([], "S", rel=start[j] - LEAD, deps=[(bar[pb], 0)] + ([(prev, 0)] if prev else []), name="dmastart")
        tasks.append(first)
        L = start[j + 1] - start[j]
        dl = start[j + 1] - OPT.get("dmadl", DIST) if OPT.get("fill", 6) <= j < 32 else start[j + 2] - DIST
        if j == 0:
            dl = start[1] + 34
        prev = add_dma(tasks, g, adv, first, start[j] - LEAD, dl, spread=max(3, (L - DIST) // 9), gapmin=OPT.get("mgap", 4) if j < 32 else 0)
    ecount, econs, prev_branch, prev_ladd = 0, {}, None, {}
    for j in range(32):
        blks = (0, 1, 2) if j & 1 else (0, 1)
        dl_chk = chain_first[(j + 2, 0)] - 1 if j + 2 <= 31 else start[j + 3] - 4
        allcv, tsdep, fix = [], {}, {}
        for blk in blks:
            if (j == 0 and blk < 2) or (j == 1 and blk == 2):
                t, u = ET + 2 * (blk & 1), ET + 2 * (blk & 1) + 1
                base = Task([], "V", rel=chain_last[(j, 0, blk)] + MLAT, deps=[(prev_branch, 0)] if prev_branch else [], name="mx0")
                tasks.append(base)
                last = rowmax_tasks(tasks, Sreg(j, 0, blk), t, u, base, "mx")
                nm = [Task(valu(f"v_sub_f32 v{NEGM[blk] + r}, 0, v{t}"), "V", rel=cfirst_blk[(j, 1, blk)] + 4,
                           dl=cfirst_blk[(j + (1 if blk < 2 else 2), 0, blk)] - 3, deps=[(last, 0)], name="negm") for r in range(4)]
                tasks += nm
                for kt in range(2):
                    for r in range(4):
                        s = Sreg(j, kt, blk) + r
                        x = Task(valu(f"v_sub_f32 v{s}, v{s}, v{t}"), "V", rel=chain_last[(j, kt, blk)] + MLAT, deps=[(last, 0)], name="sfix")
                        tasks.append(x)
                        fix[(kt, blk, r)] = x
                        econs.setdefault(t - ET, []).append(x)
                econs.setdefault(t - ET, []).extend(nm)
                econs.setdefault(u - ET, []).append(last)
        for kt in range(2):
            for blk in blks:
                ts = TS[j & 1][blk]
                for pr in range(2):
                    es = []
                    for r in (2 * pr, 2 * pr + 1):
                        e = ecount % 8
                        ecount += 1
                        deps = [(x, 0) for x in econs.get(e, [])] + ([(prev_branch, 0)] if prev_branch else [])
                        if (kt, blk, r) in fix:
                            deps.append((fix[(kt, blk, r)], 1))
                        t = Task(valu(f"v_exp_f32 v{ET + e}, v{Sreg(j, kt, blk) + r}"), "E", rel=chain_last[(j, kt, blk)] + MLAT, deps=deps, name=f"exp{j}.{kt}")
                        tasks.append(t)
                        econs[e] = []
                        es.append((e, t))
                    (e0, t0), (e1, t1) = es
                    cv = Task(valu(f"v_cvt_pk_bf16_f32 v{Preg(j, blk) + 2 * kt + pr}, v{ET + e0}, v{ET + e1}"), "V", deps=[(t0, 1), (t1, 1)], name="cvt")
                    tasks.append(cv)
                    allcv.append(cv)
                    if blk not in tsdep:
                        ad = Task(valu(f"v_add_f32 v{ts}, v{ET + e0}, v{ET + e1}"), "V",
                                  deps=[(t0, 1), (t1, 1)] + ([(prev_ladd[(j & 1, blk)], 0)] if (j & 1, blk) in prev_ladd else []), name="add")
                        tasks.append(ad)
                        econs[e0] += [cv, ad]
                        econs[e1] += [cv, ad]
                        tsdep[blk] = ad
                    else:
                        a0 = Task(valu(f"v_add_f32 v{ts}, v{ET + e0}, v{ts}"), "V", deps=[(t0, 1), (tsdep[blk], 1)], name="add")
                        a1 = Task(valu(f"v_add_f32 v{ts}, v{ET + e1}, v{ts}"), "V", deps=[(t1, 1), (a0, 1)], name="add")
                        tasks += [a0, a1]
                        econs[e0] += [cv, a0]
                        econs[e1] += [cv, a1]
                        tsdep[blk] = a1
        tsr = [TS[j & 1][b] for b in blks]
        mx = Task(valu(f"v_max3_f32 v{vC}, v{tsr[0]}, v{tsr[1]}, v{tsr[2]}") if len(tsr) == 3 else valu(f"v_max_f32 v{vC}, v{tsr[0]}, v{tsr[1]}"),
                  "V", deps=[(t, 1) for t in tsdep.values()], name="mx")
        cmp_ = Task(valu(f"v_cmp_lt_f32 vcc, s{sThr}, v{vC}"), "V", deps=[(mx, 1)], name="cmp")
        br = Task([I(f"s_cbranch_vccnz L_slow_@{j}", "BR", [("vcc", 0)], [], tag=("site", j)), I(f"L_ret_@{j}:", "LAB", tag=("ret", j))],
                  "S", dl=dl_chk, deps=[(cmp_, 1)] + [(t, 0) for t in allcv] + [(t, 0) for t in prev_ladd.values()], name=f"br{j}")
        tasks += [mx, cmp_, br]
        for blk in blks:
            la = Task(valu(f"v_add_f32 v{LS[blk]}, v{TS[j & 1][blk]}, v{LS[blk]}"), "V", deps=[(br, 0)], dl=dl_chk + 12, name="ladd")
            tasks.append(la)
            prev_ladd[(j & 1, blk)] = la
        prev_branch = br
        sites.append(dict(j=j, task=br, blks=blks))
    last = None
    for blk in (1, 2, 0):
        xs = []
        xsum(xs, LS[blk], vT1)
        for i in xs:
            last = Task(i, "V", deps=[(t, 0) for t in prev_ladd.values()] + ([(last, 1 if i.kind == "P" else 0)] if last else []), name="xsum")
            tasks.append(last)
        if blk == 1:
            m0_ = Task(valu(f"v_mov_b32 v{ET}, v{NEGM[1]}"), "V", deps=[(last, 0)], name="st")
            m1_ = Task(valu(f"v_mov_b32 v{ET + 1}, v{LS[1]}"), "V", deps=[(last, 0)], name="st")
            stt = Task(bstore(2, ("v", ET), vT2, sWS, sT3, 0, STF), "D", deps=[(m0_, 1), (m1_, 1), (prev, 0)], name="st")
            tasks += [m0_, m1_, stt]
    pcv = {}
    for T in range(16):
        done = pvdone[(34, T, 1)]
        tmp = SB + 4 * (T & 3)
        ars = [Task(AR(tmp + r, OB[1] + 4 * T + r), "V", rel=done + MLAT, deps=[(prev_branch, 0)] + [(x, 0) for x in pcv.get(T & 3, [])], name="ar") for r in range(4)]
        cv = [Task(valu(f"v_cvt_pk_bf16_f32 v{FSB + 2 * T + h}, v{tmp + 2 * h}, v{tmp + 2 * h + 1}"), "V", deps=[(ars[2 * h], 0), (ars[2 * h + 1], 0)], name="cv") for h in range(2)]
        tasks += ars + cv
        if T & 1:
            kb = T >> 1
            tasks.append(Task(bstore(4, ("v", FSB + 4 * kb), vST, sWS, sE4 if kb < 4 else sE5, (kb & 3) * 1024, STF), "D",
                              deps=[(x, 1) for x in cv + pcv[(T - 1) & 3]] + [(prev, 0)], name="fst"))
        pcv[T & 3] = cv
    gaps = schedule(mf, tasks, verbose=True)
    for s in sites:
        j, g = s["j"], s["task"].gap
        s["later_blk"] = {}
        for (jj, kt, blk), idx in cfirst_blk.items():
            if jj > j and idx <= g:
                s["later_blk"].setdefault(blk, []).append(Sreg(jj, kt, blk))
        s["pend"] = [jj for jj in range(max(0, j - 3), j) if start[jj + 4] - 1 > g]
    for j in range(NS):
        mf[start[j]].mark = ("M", j)
    return linearize(mf, gaps)


def slow_path(s, name):
    c = []
    V = lambda t: c.append(valu(t))
    j = s["j"]
    c.append(I(f"L_slow_{name}:", "LAB"))
    c.append(nop(15))
    t, u, x, y = ET, ET + 1, ET + 2, ET + 3
    for blk in range(3):
        if blk not in s["blks"]:
            V(f"v_mov_b32 v{vF[blk]}, 1.0")
            continue
        s0, s1 = Sreg(j, 0, blk), Sreg(j, 1, blk)
        V(f"v_max3_f32 v{t}, v{s0}, v{s0 + 1}, v{s0 + 2}")
        V(f"v_max3_f32 v{t}, v{t}, v{s0 + 3}, v{s1}")
        V(f"v_max3_f32 v{t}, v{t}, v{s1 + 1}, v{s1 + 2}")
        V(f"v_max_f32 v{t}, v{t}, v{s1 + 3}")
        for sw in ("v_permlane32_swap_b32", "v_permlane16_swap_b32"):
            V(f"v_mov_b32 v{u}, v{t}")
            V(f"{sw} v{t}, v{u}")
            V(f"v_max_f32 v{t}, v{t}, v{u}")
        V(f"v_ceil_f32 v{t}, v{t}")
        V(f"v_max_f32 v{t}, 0, v{t}")
        V(f"v_exp_f32 v{vF[blk]}, -v{t}")
        for base in [NEGM[blk], s0, s1] + s["later_blk"].get(blk, []):
            for r in range(4):
                V(f"v_sub_f32 v{base + r}, v{base + r}, v{t}")
        for jj in s["pend"]:
            if blk == 2 and not (jj & 1):
                continue
            for r in range(4):
                p = Preg(jj, blk) + r
                V(f"v_lshlrev_b32 v{x}, 16, v{p}")
                V(f"v_and_b32 v{y}, 0xffff0000, v{p}")
                V(f"v_mul_f32 v{x}, v{x}, v{vF[blk]}")
                V(f"v_mul_f32 v{y}, v{y}, v{vF[blk]}")
                V(f"v_cvt_pk_bf16_f32 v{p}, v{x}, v{y}")
        ts = TS[j & 1][blk]
        V(f"v_mov_b32 v{ts}, 0")
        for kt in range(2):
            for pr in range(2):
                sr = Sreg(j, kt, blk) + 2 * pr
                V(f"v_exp_f32 v{x}, v{sr}")
                V(f"v_exp_f32 v{y}, v{sr + 1}")
                V(f"v_cvt_pk_bf16_f32 v{Preg(j, blk) + 2 * kt + pr}, v{x}, v{y}")
                V(f"v_add_f32 v{ts}, v{x}, v{ts}")
                V(f"v_add_f32 v{ts}, v{y}, v{ts}")
    return c


def slow_tail(names):
    c = []
    V = lambda t: c.append(valu(t))
    c.append(I("L_slow_tail:", "LAB"))
    for blk in range(3):
        V(f"v_mul_f32 v{LS[blk]}, v{LS[blk]}, v{vF[blk]}")
        for r in range(0, 64, 4):
            for k in range(4):
                c.append(AR(ET + k, OB[blk] + r + k))
            for k in range(4):
                V(f"v_mul_f32 v{ET + k}, v{ET + k}, v{vF[blk]}")
            for k in range(4):
                c.append(I(f"v_accvgpr_write_b32 a{OB[blk] + r + k}, v{ET + k}", "V", [("v", ET + k)], [("a", OB[blk] + r + k)]))
    c.append(nop(3))
    for k, nm in enumerate(names):
        c.append(salu(f"s_cmp_eq_u32 s{sSite}, {k}"))
        c.append(I(f"s_cbranch_scc1 L_ret_{nm}", "BR"))
    c.append(I(f"s_branch L_ret_{names[-1]}", "BR"))
    return c


def xsum(c, r, u):
    for sw in ("v_permlane32_swap_b32", "v_permlane16_swap_b32"):
        c += [valu(f"v_mov_b32 v{u}, v{r}"), valu(f"{sw} v{r}, v{u}"), valu(f"v_add_f32 v{r}, v{r}, v{u}")]


WFR = [("v", 32), ("v", 64), ("a", 96), ("a", 128), ("a", 160), ("a", 192), ("a", 224)]
WSL = [2, 4, 0, 2, 3, 1, 4]
FSB = 96
RI, RA, RB = [QA[0], QA[1]], [QA[2], vU[0]], [vU[1], vX]


def OFR(blk, kb):
    n = blk * 8 + kb
    return ("a", 4 * n) if n < 24 else ("v", 128 + 4 * (n - 24))


def wfrag_reads(c, o):
    off = WSL[o] * SLOT
    a = vU[2] if off < 65536 else (vU[3] if off < 131072 else vU[4])
    off &= 65535
    k, b = WFR[o]
    for kb in range(8):
        for e in range(2):
            c.append(ds_rtr((k, b + 4 * kb + 2 * e), a, off + kb * 4096 + e * 2048))


def tail_setup(c):
    S = lambda t: c.append(salu(t))
    V = lambda t: c.append(valu(t))
    if OPT.get("cpf2", 1):
        c.append(raw(f"s_getpc_b64 s[{sT2}:{sT3}]"))
        S(f"s_lshl_b32 s{sT1}, s{sW}, 13")
        V(f"v_lshlrev_b32 v{vT2}, 7, v{vLANE}")
        V(f"v_add_u32 v{vT2}, s{sT1}, v{vT2}")
        V(f"v_min_u32 v{vT2}, {OPT.get('cpf2max', 20000)}, v{vT2}")
        c.append(I(f"global_load_dword v{vX}, v{vT2}, s[{sT2}:{sT3}]", "D", [("v", vT2)], [("v", vX)]))
    V(f"v_and_b32 v{vU[1]}, 7, v{vLANE}")
    V(f"v_lshlrev_b32 v{vU[1]}, 2, v{vU[1]}")
    S(f"s_lshl_b32 s91, s{sB}, 5")
    S(f"s_mov_b32 s{sIN + 1}, 0x01010101")
    c.append(bload(1, ("v", vU[0]), vU[1], sDBG, 91, 0, " sc0 sc1"))
    srd(c, sOUT, 10, 8 * 160 * 448 * 2)
    S(f"s_mul_i32 s{sE0}, s{sID}, {EX_WG}")
    S(f"s_xor_b32 s{sT1}, s{sID}, 16")
    S(f"s_mul_i32 s{sE1}, s{sT1}, {EX_WG}")
    S(f"s_add_u32 s{sE4}, s{sE0}, s{sE6}")
    S(f"s_add_u32 s{sE5}, s{sE4}, 4096")
    S(f"s_lshl_b32 s{sT3}, s{sW}, 9")
    S(f"s_add_u32 s{sT2}, s{sT3}, {4 * SLOT}")
    S(f"s_add_u32 s{sT3}, s{sT3}, s{sE0}")
    S(f"s_add_u32 s{sT3}, s{sT3}, 40960")
    V(f"v_lshlrev_b32 v{vT2}, 3, v{vLANE}")
    V(f"v_add_u32 v{XA[0]}, s{sT2}, v{vT2}")
    V(f"v_xor_b32 v{XA[1]}, 1024, v{XA[0]}")
    S(f"s_lshl_b32 s{sT1}, s{sW}, 5")
    V(f"v_xor_b32 v{vU[2]}, s{sT1}, v{LV[0]}")
    V(f"v_add_u32 v{vU[3]}, 0x10000, v{vU[2]}")
    V(f"v_add_u32 v{vU[4]}, 0x20000, v{vU[2]}")


def merge_coef(c, nm_o, l_o, pst_, co, cp, t):
    V = lambda x: c.append(valu(x))
    V(f"v_min_f32 v{t}, v{nm_o}, v{pst_}")
    V(f"v_sub_f32 v{co}, v{t}, v{nm_o}")
    V(f"v_sub_f32 v{cp}, v{t}, v{pst_}")
    V(f"v_exp_f32 v{co}, v{co}")
    V(f"v_exp_f32 v{cp}, v{cp}")
    V(f"v_mul_f32 v{t}, v{co}, v{l_o}")
    V(f"v_fmac_f32 v{t}, v{cp}, v{pst_ + 1}")
    V(f"v_rcp_f32 v{t}, v{t}")
    V(f"v_mul_f32 v{co}, v{co}, v{t}")
    V(f"v_mul_f32 v{cp}, v{cp}, v{t}")
    V(f"v_mov_b32 v{co + 1}, v{co}")
    V(f"v_mov_b32 v{cp + 1}, v{cp}")


def pk(op, d, *src):
    return valu(f"{op} v[{d}:{d + 1}], " + ", ".join(f"v[{x}:{x + 1}]" for x in src))


def decode(c):
    S = lambda t: c.append(salu(t))
    V = lambda t: c.append(valu(t))
    S(f"s_mul_i32 s{sC1}, s{sH}, 288")
    S(f"s_mul_i32 s{sT1}, s{sW}, 72")
    S(f"s_add_u32 s{sC1}, s{sC1}, s{sT1}")
    S(f"s_lshr_b32 s{sT1}, s{sH}, 2")
    S(f"s_mul_i32 s{sT2}, s{sT1}, 18")
    S(f"s_lshl_b32 s{sT1}, s{sT1}, 5")
    S(f"s_mul_i32 s{sT3}, s{sB}, 160")
    S(f"s_lshl_b32 s{sD}, s{sSP}, 4")
    S(f"s_add_u32 s{sT3}, s{sT3}, s{sD}")
    S(f"s_mul_i32 s{sT3}, s{sT3}, 896")
    S(f"s_add_u32 s{sT3}, s{sT3}, s{sT1}")
    S(f"s_mov_b32 s{sD}, {PART_WG}")
    for n in range(2):
        g, k, x, y = vK0, vK1, vV, vT0
        if n == 0:
            V(f"v_add_u32 v{g}, s{sC1}, v{vLANE}")
            V(f"v_lshlrev_b32 v{RI[n]}, 4, v{g}")
        else:
            V(f"v_and_b32 v{g}, 7, v{vLANE}")
            V(f"v_add_u32 v{g}, s{sC1}, v{g}")
            V(f"v_add_u32 v{g}, 64, v{g}")
            V(f"v_lshrrev_b32 v{k}, 3, v{vLANE}")
            V(f"v_mul_lo_u32 v{k}, v{k}, s{sD}")
            V(f"v_lshl_add_u32 v{RI[n]}, v{g}, 4, v{k}")
        V(f"v_lshrrev_b32 v{k}, 6, v{g}")
        V(f"v_subrev_u32 v{k}, s{sT2}, v{k}")
        V(f"v_and_b32 v{x}, 15, v{g}")
        V(f"v_mul_u32_u24 v{x}, 896, v{x}")
        V(f"v_bfe_u32 v{y}, v{g}, 4, 2")
        V(f"v_lshl_add_u32 v{x}, v{y}, 3, v{x}")
        V(f"v_add_u32 v{x}, s{sT3}, v{x}")
        z = VA[1]
        V(f"v_lshrrev_b32 v{y}, 1, v{k}")
        V(f"v_lshlrev_b32 v{g}, 1, v{k}")
        V(f"v_subrev_u32 v{g}, 28, v{g}")
        V(f"v_cmp_gt_u32 vcc, 14, v{k}")
        V(f"v_cndmask_b32 v{y}, v{g}, v{y}, vcc")
        V(f"v_add_u32 v{g}, 1, v{y}")
        V(f"v_cndmask_b32 v{z}, v{g}, v{y}, vcc")
        V(f"v_and_b32 v{g}, 1, v{k}")
        V(f"v_mul_u32_u24 v{g}, {64 * 896}, v{g}")
        V(f"v_mov_b32 v{RB[n]}, {128 * 896}")
        V(f"v_cndmask_b32 v{g}, v{RB[n]}, v{g}, vcc")
        V(f"v_add_u32 v{RA[n]}, v{x}, v{g}")
        V(f"v_mov_b32 v{g}, {32 * 896}")
        V(f"v_cndmask_b32 v{g}, 0, v{g}, vcc")
        V(f"v_add_u32 v{RB[n]}, v{RA[n]}, v{g}")
        for pz, dst in ((y, RA[n]), (z, RB[n])):
            V(f"v_add_u32 v{pz}, s{sRot}, v{pz}")
            V(f"v_subrev_u32 v{g}, 7, v{pz}")
            V(f"v_min_u32 v{pz}, v{pz}, v{g}")
            V(f"v_lshl_add_u32 v{dst}, v{pz}, 7, v{dst}")
        V(f"v_mov_b32 v{g}, {OOB:#x}")
        V(f"v_cmp_eq_u32 vcc, 17, v{k}")
        V(f"v_cndmask_b32 v{RB[n]}, v{RB[n]}, v{g}, vcc")
        if n:
            V(f"v_cmp_gt_u32 vcc, 8, v{vLANE}")
            for r in (RA[1], RB[1]):
                V(f"v_cndmask_b32 v{r}, v{g}, v{r}, vcc")


def tail():
    c = []
    S = lambda t: c.append(salu(t))
    V = lambda t: c.append(valu(t))
    W = lambda t: c.append(I(f"s_waitcnt {t}", "W"))
    BAR = lambda: c.append(I("s_barrier", "B"))
    HK, OWN, HSB, PH = 192, 128, 160, 224
    hs, fs_p, hs_p, own_nm = 246, 240, 242, 244
    c += pst()
    V(f"v_add_u32 v{KA[0]}, s{sE6}, v{vST}")
    V(f"v_xor_b32 v{KA[1]}, 16384, v{KA[0]}")
    V(f"v_mov_b32 v{hs}, v{NEGM[2]}")
    V(f"v_mov_b32 v{hs + 1}, v{LS[2]}")
    V(f"v_mov_b32 v{own_nm}, v{NEGM[0]}")
    c.append(ds_w64(XA[0], ("v", hs), 0))
    S(f"s_cmp_eq_u32 s{sXW}, 0")
    c.append(I("s_cbranch_scc1 L_h0", "BR"))
    for half, lab, nxt in ((1, None, "L_h1"), (0, "L_h0", None)):
        if lab:
            c.append(I(f"{lab}:", "LAB"))
        for T in range(8):
            i = ds_w128(KA[0], ("a", OB[2] + 32 * (1 - half) + 4 * T), SLOT + T * 1024)
            if half == 1:
                i.kind = "X"
            c.append(i)
        for r in range(32):
            c.append(AR(HK + r, OB[2] + 32 * half + r))
        if nxt:
            c.append(I(f"s_branch {nxt}", "BR"))
    c.append(I("L_h1:", "LAB"))
    S(f"s_lshl_b32 s{sT0}, s{sXW}, 12")
    S(f"s_add_u32 s{sT0}, s{sT0}, 32768")
    S(f"s_lshl_b32 s{sT1}, s{sXW}, 9")
    S(f"s_add_u32 s{sT1}, s{sT1}, 43008")
    S(f"s_cmp_eq_u32 s{sHW}, 1")
    S(f"s_cselect_b32 s{sT2}, s{sE0}, {OOB:#x}")
    S(f"s_cselect_b32 s{sT3}, {OOB:#x}, s{sE1}")
    S(f"s_add_u32 s{sE2}, s{sT3}, s{sT0}")
    S(f"s_add_u32 s{sE3}, s{sT3}, s{sT1}")
    S(f"s_add_u32 s{sE4}, s{sT2}, s{sT0}")
    S(f"s_add_u32 s{sE5}, s{sT2}, s{sT1}")
    W("lgkmcnt(0)")
    BAR()
    c += pst()
    c.append(ds_r64(("v", hs_p), XA[1], 0))
    for T in range(8):
        c.append(ds_r128(("v", OWN + 4 * T), KA[1], SLOT + T * 1024))
    W("vmcnt(0)")
    S(f"s_mov_b32 s{sCnt}, 0")
    c.append(I("L_an:", "LAB"))
    V(f"v_cmp_ne_u32 vcc, s{sIN + 1}, v{vU[0]}")
    S(f"s_add_u32 s{sCnt}, s{sCnt}, 1")
    c.append(I("s_cbranch_vccz L_and", "BR", [("vcc", 0)]))
    c.append(raw(f"buffer_load_dword v{vU[0]}, v{vU[1]}, s[{sDBG}:{sDBG + 3}], s91 offen sc0 sc1", "X"))
    c.append(raw("s_waitcnt vmcnt(0)", "X"))
    S(f"s_cmp_lt_u32 s{sCnt}, 300000")
    c.append(I("s_cbranch_scc1 L_an", "BR"))
    c.append(I("L_and:", "LAB"))
    S(f"s_xor_b32 s{sC1}, s{sIN}, {16 << ISH}")
    S(f"s_lshl_b32 s{sT1}, s{sW}, 2")
    S(f"s_add_u32 s{sC1}, s{sC1}, s{sT1}")
    V(f"v_mov_b32 v{vT0}, 1")
    V(f"v_mov_b32 v{vT1}, 0")
    c.append(bstore(1, ("v", vT0), vT1, sWS, sC1, 64, FLF))
    nm, a_o, a_p = 253, 248, 236
    V(f"v_min_f32 v{nm}, v{hs}, v{hs_p}")
    V(f"v_sub_f32 v{a_o}, v{nm}, v{hs}")
    V(f"v_sub_f32 v{a_p}, v{nm}, v{hs_p}")
    V(f"v_exp_f32 v{a_o}, v{a_o}")
    V(f"v_exp_f32 v{a_p}, v{a_p}")
    V(f"v_mov_b32 v{hs}, v{nm}")
    V(f"v_mul_f32 v{hs + 1}, v{a_o}, v{hs + 1}")
    V(f"v_fmac_f32 v{hs + 1}, v{a_p}, v{hs_p + 1}")
    V(f"v_mov_b32 v{a_o + 1}, v{a_o}")
    V(f"v_mov_b32 v{a_p + 1}, v{a_p}")
    c.append(bstore(2, ("v", hs), vT2, sWS, sE5, 0, STF))
    for r in range(0, 32, 2):
        c.append(pk("v_pk_mul_f32", HK + r, HK + r, a_o))
    for T in range(8):
        for r in (0, 2):
            c.append(pk("v_pk_fma_f32", HK + 4 * T + r, OWN + 4 * T + r, a_p, HK + 4 * T + r))
        V(f"v_cvt_pk_bf16_f32 v{HSB + 2 * T}, v{HK + 4 * T}, v{HK + 4 * T + 1}")
        V(f"v_cvt_pk_bf16_f32 v{HSB + 2 * T + 1}, v{HK + 4 * T + 2}, v{HK + 4 * T + 3}")
        if T & 1:
            c.append(bstore(4, ("v", HSB + 2 * (T - 1)), vST, sWS, sE4, (T >> 1) * 1024, STF))
    c += pst()
    f = [AR(OWN + r, OB[0] + r) for r in range(64)]
    for pre, d in wo_dma(4, WSL[4])[0]:
        c += [f.pop(0) for _ in range(8)] + pre + [d]
    c += pst()
    W("vmcnt(8)")
    c.append(bstore(1, ("v", vT0), vT1, sWS, sC1, 80, FLF))
    BAR()
    c += pst()
    f = []
    wfrag_reads(f, 2)
    wfrag_reads(f, 3)
    decode(f)
    for o in (5, 6):
        for pre, d in wo_dma(o, WSL[o])[0]:
            c += pre + [d] + [f.pop(0) for _ in range(min(8, len(f)))]
    c += f
    S(f"s_add_u32 s{sT1}, s{sE1}, s{sE6}")
    S(f"s_add_u32 s{sT2}, s{sT1}, 4096")
    S(f"s_lshl_b32 s{sT3}, s{sW}, 9")
    S(f"s_add_u32 s{sT3}, s{sT3}, s{sE1}")
    S(f"s_add_u32 s{sT3}, s{sT3}, 40960")
    S(f"s_lshl_b32 s{sT0}, s{sW}, 2")
    S(f"s_add_u32 s{sT0}, s{sT0}, s{sIN}")
    S(f"s_or_b32 s{sC1}, s{sT0}, 4")
    c += pst()

    def poll(lab, sreg, off):
        S(f"s_mov_b32 s{sCnt}, 0")
        c.append(I(f"{lab}:", "LAB"))
        c.append(raw(f"buffer_load_dword v{vT0}, v{vT1}, s[{sWS}:{sWS + 3}], s{sreg} offen offset:{off}{FLF}", "X"))
        S(f"s_add_u32 s{sCnt}, s{sCnt}, 1")
        c.append(raw("s_waitcnt vmcnt(0)", "X"))
        V(f"v_readfirstlane_b32 s{sD}, v{vT0}")
        S(f"s_cmp_gt_u32 s{sCnt}, 300000")
        c.append(I(f"s_cbranch_scc1 {lab}d", "BR"))
        S(f"s_cmp_eq_u32 s{sD}, 0")
        c.append(I(f"s_cbranch_scc1 {lab}", "BR"))
        c.append(I(f"{lab}d:", "LAB"))

    poll("L_p1", sT0, 64)
    c += pst()
    c.append(bload(2, ("v", fs_p), vT2, sWS, sT3, 0, LDF))
    for kb in range(8):
        c.append(bload(4, ("v", FSB + 4 * kb), vST, sWS, sT1 if kb < 4 else sT2, (kb & 3) * 1024, LDF))
    poll("L_p1h", sC1, 80)
    c.append(bload(2, ("v", hs_p), vT2, sWS, sE3, 0, LDF))
    for kb in range(4):
        c.append(bload(4, ("v", PH + 4 * kb), vST, sWS, sE2, kb * 1024, LDF))
    W("lgkmcnt(0)")
    BAR()
    S(f"s_lshl_b32 s{sT0}, s{sXW}, 12")
    S(f"s_lshl_b32 s{sT1}, s{sHW}, 13")
    S(f"s_add_u32 s{sT0}, s{sT0}, s{sT1}")
    S(f"s_add_u32 s{sT0}, s{sT0}, {2 * SLOT}")
    V(f"v_add_u32 v{KA[1]}, s{sT0}, v{vST}")
    S(f"s_mul_i32 s{sE0}, s{sID}, {PART_WG}")
    S(f"s_mul_i32 s{sT0}, s{sW}, {18 * 1024}")
    S(f"s_add_u32 s{sE0}, s{sE0}, s{sT0}")
    S(f"s_add_u32 s{sE0}, s{sE0}, {PART0}")
    S(f"s_add_u32 s{sE1}, s{sE0}, {14 * 1024}")
    V(f"v_add_u32 v{XA[0]}, {2 * SLOT}, v{vST}")
    c += pst()
    co, cp, ch, cq = 248, 254, vK0, VA[0]
    u = [vU[2] + 1, 252]
    u = [240, 244]
    for own_, pay, n, cc, cs, addr in ((OWN, FSB, 8, cp, co, KA[0]), (HK, PH, 4, cq, ch, KA[1])):
        if own_ == OWN:
            merge_coef(c, own_nm, LS[0], fs_p, co, cp, 253)
        else:
            W("vmcnt(0)")
            merge_coef(c, hs, hs + 1, hs_p, ch, cq, 253)
        for kb in range(n):
            for r in range(4):
                p, o, t = pay + 4 * kb + r, own_ + 8 * kb + 2 * r, u[r & 1]
                c.append(pk("v_pk_mul_f32", o, o, cs))
                V(f"v_lshlrev_b32 v{t}, 16, v{p}")
                V(f"v_and_b32 v{t + 1}, 0xffff0000, v{p}")
                c.append(pk("v_pk_fma_f32", o, t, cc, o))
                V(f"v_cvt_pk_bf16_f32 v{p}, v{o}, v{o + 1}")
            c.append(ds_w128(addr, ("v", pay + 4 * kb), kb * 1024))
    W("lgkmcnt(0)")
    BAR()
    return c


def o_phase():
    mf, tasks = [], []
    ACC = [192, 212]
    PK = [[232, 236], [240, 244]]
    HST = 248
    prev = None
    for kb in range(8):
        for blk in range(5):
            c0 = kb * 5 + blk
            i = ds_r128(OFR(blk, kb), vST, blk * 8192 + kb * 1024) if blk < 4 else ds_r128(OFR(blk, kb), XA[0], kb * 1024)
            prev = Task(i, "L", rel=-1, dl=-1 if c0 < 10 else c0 - 8, deps=[(prev, 0)] if prev else [], name="ord")
            tasks.append(prev)
    for o in (4, 5, 6):
        cc = []
        wfrag_reads(cc, o)
        for k, i in enumerate(cc):
            prev = Task(i, "L", dl=40 * o + (k >> 1) - 8, deps=[(prev, 0)], name="wrd")
            tasks.append(prev)
    prev_st, prev_inc = {}, None
    for o in range(7):
        p = o & 1
        firstm = len(mf)
        lastm = {}
        for kb, blk in ([(kb, blk) for kb in range(8) for blk in range(5)] if o == 0 else [(kb, blk) for blk in range(5) for kb in range(8)]):
            d = ("v", ACC[p] + 4 * blk)
            mf.append(mfma(d, (WFR[o][0], WFR[o][1] + 4 * kb), OFR(blk, kb), 0 if kb == 0 else d))
            lastm[blk] = len(mf) - 1
        dl = firstm + 80 - 3
        cvs = {}
        for blk in range(5):
            for h in range(2):
                dst, key = (HST + 2 * p + h, "H") if blk == 4 else (PK[p][blk >> 1] + 2 * (blk & 1) + h, (p, blk >> 1))
                s = ACC[p] + 4 * blk + 2 * h
                t = Task(valu(f"v_cvt_pk_bf16_f32 v{dst}, v{s}, v{s + 1}"), "V", rel=lastm[blk] + MLAT, dl=dl,
                         deps=[(prev_st[key], 2)] if key in prev_st else [], name="cvt")
                tasks.append(t)
                cvs.setdefault(key, []).append(t)
        sts = []
        for pr in range(2):
            st = Task(bstore(4, ("v", PK[p][pr]), vST, sWS, sE0, p * 2048 + pr * 1024, STF), "D",
                      deps=[(t, 1) for t in cvs[(p, pr)]] + ([(prev_inc, 0)] if prev_inc else []), name="st")
            tasks.append(st)
            prev_st[(p, pr)] = st
            sts.append(st)
        if p == 0:
            hcv, sts0 = cvs["H"], sts
        if p == 1 or o == 6:
            st = Task(bstore(4, ("v", HST), vST, sWS, sE1, (o >> 1) * 1024, STF), "D", deps=[(t, 1) for t in hcv + cvs["H"]], name="stH")
            tasks.append(st)
            prev_st["H"] = st
            prev_inc = Task(salu(f"s_add_u32 s{sE0}, s{sE0}, 4096"), "S", deps=[(t, 0) for t in sts + sts0], name="inc")
            tasks.append(prev_inc)
    gaps = schedule(mf, tasks, verbose=True)
    for o in range(7):
        mf[40 * o].mark = ("N", o)
    return linearize(mf, gaps)


def final():
    c = []
    S = lambda t: c.append(salu(t))
    V = lambda t: c.append(valu(t))
    W = lambda t: c.append(I(f"s_waitcnt {t}", "W"))
    S(f"s_and_b32 s{sT0}, s{sID}, 0xf0")
    S(f"s_mul_i32 s{sE2}, s{sT0}, {PART_WG}")
    S(f"s_add_u32 s{sE2}, s{sE2}, {PART0}")
    S(f"s_add_u32 s{sE3}, s{sE2}, {8 * PART_WG}")
    S(f"s_lshl_b32 s{sT1}, s{sW}, 2")
    S(f"s_add_u32 s{sT1}, s{sT1}, s{sT0}")
    S(f"s_lshl_b32 s{sT1}, s{sT1}, {ISH}")
    S(f"s_lshl_b32 s{sT2}, s{sH}, 2")
    S(f"s_add_u32 s{sT1}, s{sT1}, s{sT2}")
    S(f"s_add_u32 s{sT1}, s{sT1}, {INBOX}")
    V(f"v_and_b32 v{vK0}, 3, v{vLANE}")
    V(f"v_lshlrev_b32 v{vK0}, {ISH}, v{vK0}")
    V(f"v_and_b32 v{vK1}, 15, v{vLANE}")
    V(f"v_lshlrev_b32 v{vK1}, 2, v{vK1}")
    V(f"v_mov_b32 v{vT0}, 1")
    c += pst()
    c.append(raw(f"buffer_load_dword v{vV}, v{vK1}, s[{sWS}:{sWS + 3}], s{sIN} offen{FLF}", "X"))
    W("vmcnt(0)")
    c += pst()
    c.append(bstore(1, ("v", vT0), vK0, sWS, sT1, 0, FLF))
    S(f"s_mov_b32 s{sCnt}, 0")
    S(f"s_mov_b32 s{sT2}, 0")
    c.append(I("L_p2:", "LAB"))
    V(f"v_cmp_ne_u32 vcc, 0, v{vV}")
    S(f"s_add_u32 s{sCnt}, s{sCnt}, 1")
    c.append(I(f"s_and_b32 s{sT3}, vcc_lo, 0xffff", "S", [("vcc", 0)], [("s", sT3)]))
    S(f"s_cmp_gt_u32 s{sCnt}, 300000")
    S(f"s_cselect_b32 s{sT3}, 0xffff, s{sT3}")
    S(f"s_andn2_b32 s{sT1}, s{sT3}, s{sT2}")
    S(f"s_mov_b32 s{sT2}, s{sT3}")
    for p in range(16):
        c.append(raw(f"s_bitcmp1_b32 s{sT1}, {p}"))
        c.append(I(f"s_cbranch_scc0 L_g{p}", "BR"))
        S(f"s_add_u32 s{sD}, s{sE2}, {p * PART_WG}")
        i = bload(4, ("v", 32 + p * 4), RI[0], sWS, sD, 0, LDF)
        i.kind = "X"
        c.append(i)
        c.append(I(f"L_g{p}:", "LAB"))
    S(f"s_cmp_eq_u32 s{sT2}, 0xffff")
    c.append(I("s_cbranch_scc1 L_p2d", "BR"))
    c.append(raw(f"buffer_load_dword v{vV}, v{vK1}, s[{sWS}:{sWS + 3}], s{sIN} offen{FLF}", "X"))
    c.append(raw("s_waitcnt vmcnt(0)", "X"))
    c.append(I("s_branch L_p2", "BR"))
    c.append(I("L_p2d:", "LAB"))
    c += pst()
    c.append(bload(4, ("v", 96), RI[1], sWS, sE2, 0, LDF))
    c.append(bload(4, ("v", 100), RI[1], sWS, sE3, 0, LDF))
    A0, A1, U = 192, 200, [208, 210]
    c += pst()

    def acc(a, x, first):
        for r in range(4):
            t = a + 2 * r if first else U[r & 1]
            V(f"v_lshlrev_b32 v{t}, 16, v{x + r}")
            V(f"v_and_b32 v{t + 1}, 0xffff0000, v{x + r}")
            if not first:
                c.append(pk("v_pk_add_f32", a + 2 * r, a + 2 * r, t))

    W("vmcnt(2)")
    c += pst()
    for p in range(16):
        acc(A0, 32 + 4 * p, p == 0)
    W("vmcnt(0)")
    acc(A1, 96, True)
    acc(A1, 100, False)
    for sw in ("v_permlane32_swap_b32", "v_permlane16_swap_b32"):
        for r in range(8):
            V(f"v_mov_b32 v{212 + r}, v{A1 + r}")
        for r in range(8):
            V(f"{sw} v{A1 + r}, v{212 + r}")
        for r in range(0, 8, 2):
            c.append(pk("v_pk_add_f32", A1 + r, A1 + r, 212 + r))
    c.append(nop(1))
    for r in range(8):
        c.append(I(f"v_add_f32_dpp v{A1 + r}, v{A1 + r}, v{A1 + r} row_ror:8 row_mask:0xf bank_mask:0xf", "V", [("v", A1 + r)], [("v", A1 + r)]))
    for n, a in enumerate((A0, A1)):
        for r in range(4):
            V(f"v_cvt_pk_bf16_f32 v{220 + n * 4 + r}, v{a + 2 * r}, v{a + 2 * r + 1}")
        c.append(bstore(2, ("v", 220 + n * 4), RA[n], sOUT, "0", 0))
        c.append(bstore(2, ("v", 220 + n * 4 + 2), RB[n], sOUT, "0", 0))
    c += pst() + pst()
    return c


def norm(ins):
    t = ins.text
    if "@" in t:
        a, b = t.split("@")
        if b.startswith("CODE"):
            return t
        return f"{a}@{int(b.rstrip(':')) % 4}"
    return t


def fold(code):
    segs, cur, keys, key = [], [], [], None
    for ins in code:
        if ins.kind == "M" and ins.mark is not None:
            segs.append(cur)
            keys.append(key)
            cur, key = [], ins.mark
        if ins.kind == "LAB" and ins.tag and ins.tag[0] == "cut":
            segs.append(cur)
            keys.append(key)
            cur, key = [], None
            continue
        cur.append(ins)
    segs.append(cur)
    keys.append(key)
    print("; est cycles/seg:", [gap_cost(s) for s in segs])
    txt = [tuple(norm(i) for i in s) for s in segs]
    out, i, nloop, n = [], 0, 0, len(segs)
    sitekey = lambda s: (s["j"] % 4, tuple(sorted((b, tuple(v)) for b, v in s["later_blk"].items())), tuple(x % 4 for x in s["pend"]), s["blks"])
    sinfo = {s["j"]: s for s in sites}
    sites_in = lambda seg: [sitekey(sinfo[x.tag[1]]) for x in seg if x.kind == "BR" and x.tag and x.tag[0] == "site"]
    while i < n:
        k = 1
        if keys[i] is not None:
            p = {"M": 4, "Q": 2}.get(keys[i][0], 1)
            while i + (k + 1) * p <= n and all(keys[i + k * p + r] is not None and txt[i + k * p + r] == txt[i + r] and
                                               sites_in(segs[i + k * p + r]) == sites_in(segs[i + r]) for r in range(p)):
                k += 1
        if k >= 2:
            x = 0
            while x < p - 1 and i + k * p + x < n and keys[i + k * p + x] is not None and txt[i + k * p + x] == txt[i + x] and \
                    sites_in(segs[i + k * p + x]) == sites_in(segs[i + x]):
                x += 1
            out.append(salu(f"s_mov_b32 s{sCnt}, {k + (1 if x else 0)}"))
            out.append(I(f"L_loop{nloop}:", "LAB"))
            for r in range(p):
                out += segs[i + r]
                if x and r == x - 1:
                    out += [salu(f"s_sub_u32 s{sCnt}, s{sCnt}, 1"), salu(f"s_cmp_eq_u32 s{sCnt}, 0"), I(f"s_cbranch_scc1 L_exit{nloop}", "BR")]
            if x:
                out += [I(f"s_branch L_loop{nloop}", "BR"), I(f"L_exit{nloop}:", "LAB")]
            else:
                out += [salu(f"s_sub_u32 s{sCnt}, s{sCnt}, 1"), salu(f"s_cmp_lg_u32 s{sCnt}, 0"), I(f"s_cbranch_scc1 L_loop{nloop}", "BR")]
            nloop += 1
            i += p * k + x
        else:
            out += segs[i]
            i += 1
    return out


def cut():
    return I("", "LAB", tag=("cut",))


def build():
    code = prologue() + stamp(1) + q_phase() + [cut()] + stamp(2) + q_finish() + stamp(3) + main_phase() + [cut()] + stamp(4)
    code += tail() + stamp(6) + o_phase() + [cut()] + final()
    if STAMP:
        nc = []
        for ins in code:
            nc.append(ins)
            if ins.kind == "M" and ins.mark is not None:
                if ins.mark[0] == "N" and ins.mark[1] not in (0,):
                    continue
                if OPT.get("light") and ins.mark[0] == "M" and 4 <= ins.mark[1] <= 27:
                    continue
                nc += pst()[1:]
        code = [raw("s_mov_b64 s[80:81], 1"), raw("s_mov_b32 s96, 0")] + nc
    if OPT.get("padstep"):
        nc = []
        for ins in code:
            nc.append(ins)
            if ins.kind == "M" and ins.mark is not None and ins.mark[0] == OPT.get("padph", "M"):
                nc += [nop(15) for _ in range(OPT["padstep"])]
        code = nc
    code = insert_lgkm_waits(code, age=OPT["age"])
    code = resolve_vm_waits(code)
    code, nf = check_hazards(code)
    code = fold(code)
    names, slow = [], []
    sinfo = {s["j"]: s for s in sites}
    for ins in code:
        ins.text = ins.text.replace("@CODEMAX", str(OPT.get("codemax", 45056))).replace("@", "")
        if ins.kind == "BR" and ins.tag and ins.tag[0] == "site":
            j = ins.tag[1]
            sp = slow_path(sinfo[j], str(j)) + [salu(f"s_mov_b32 s{sSite}, {len(names)}"), I("s_branch L_slow_tail", "BR")]
            names.append(str(j))
            slow += check_hazards(sp)[0]
    slow += check_hazards(slow_tail(names))[0]
    fin = []
    if STAMP:
        fin.append(I("s_waitcnt vmcnt(0) lgkmcnt(0)", "W"))
        fin += [raw(f"s_memtime s[100:101]"), raw(f"s_memrealtime s[96:97]"), I("s_waitcnt lgkmcnt(0)", "W")]
        for t in (f"s_lshl_b32 s{sT0}, s2, 2", f"s_add_u32 s{sT0}, s{sT0}, s{sW}", f"s_lshl_b32 s{sT0}, s{sT0}, 6",
                  f"s_lshl_b32 s{sT1}, s{sT0}, 2", f"s_add_u32 s{sT0}, s{sT0}, {128 << 20}", f"s_add_u32 s{sT1}, s{sT1}, {132 << 20}"):
            fin.append(salu(t))
        fin.append(valu(f"v_mov_b32 v{vT0}, 0"))
        for k in range(8):
            fin.append(valu(f"v_mov_b32 v{128 + k}, s{[84, 84, 92, 94, 86, 84, 84, 84][k]}"))
        fin += [valu("v_mov_b32 v136, s100"), valu("v_mov_b32 v137, s96"), valu("v_mov_b32 v138, s98")]
        for k in range(0, 12, 4):
            fin.append(bstore(4, ("v", 128 + k), vT0, sWS, sT0, k * 4))
        fin.append(valu(f"v_lshlrev_b32 v{vT1}, 2, v{vLANE}"))
        fin.append(bstore(1, ("v", 0), vT1, sWS, sT1, 0))
    NAME = "standalone__gqa_block_cached__near_ridge_kernel"
    hdr = open("standalone__gqa_block_cached__near_ridge.s.ref").read().split("; Override launch")[0]
    L = [hdr.rstrip()]
    A = L.append
    A("; @launch grid=(256,1,1) block=(256,1,1) lds=163840")
    A('.amdgcn_target "amdgcn-amd-amdhsa--gfx950"')
    A(".text")
    A(f".globl {NAME}")
    A(".p2align 8")
    A(f".type {NAME},@function")
    A(f"{NAME}:")
    A("s_cmp_ge_u32 s2, 256")
    A("s_cbranch_scc1 L_end")
    if OPT.get("delay"):
        L += ["s_memrealtime s[8:9]", "s_waitcnt lgkmcnt(0)", f"s_add_u32 s10, s8, {OPT['delay'] * 100}", "L_dly:", "s_memrealtime s[8:9]", "s_waitcnt lgkmcnt(0)",
              "s_sub_u32 s11, s10, s8", "s_cmp_gt_i32 s11, 0", "s_cbranch_scc1 L_dly"]
    L += [i.text for i in code if i.text]
    L += [i.text for i in fin]
    if OPT.get("padto"):
        L += [f"s_add_u32 s10, s98, {OPT['padto'] * 100}", "L_pad:", "s_memrealtime s[8:9]", "s_waitcnt lgkmcnt(0)",
              "s_sub_u32 s11, s10, s8", "s_cmp_gt_i32 s11, 0", "s_cbranch_scc1 L_pad"]
    A("L_end:")
    A("s_endpgm")
    L += [i.text for i in slow]
    A('.section .rodata,"a"')
    A(".p2align 6")
    A(f".amdhsa_kernel {NAME}")
    for t in ("next_free_vgpr 512", "next_free_sgpr 102", "accum_offset 256", "group_segment_fixed_size 0", "kernarg_size 64",
              "user_sgpr_count 2", "user_sgpr_kernarg_segment_ptr 1", "system_sgpr_workgroup_id_x 1"):
        A(f"  .amdhsa_{t}")
    A(".end_amdhsa_kernel")
    return "\n".join(L) + "\n"


if __name__ == "__main__":
    out = [a for a in sys.argv[1:] if a.endswith(".s")]
    open(out[0] if out else "k2.s", "w").write(build())
```

```python
import sys
from sched import *

OPT = dict(debug=None, stamp=0, dist=15, age=7, stf="sc1", ldf="sc1", pref=0, rot=1, cpf=1, fill=3, dmadl=10, barlag=3, ish=8, flf="sc1", codemax=45500)
for a in sys.argv[1:]:
    if "=" in a:
        k, v = a.split("=")
        OPT[k] = int(v) if v.lstrip("-").isdigit() else v
    elif a == "stamp":
        OPT["stamp"] = 1
import sched as _sc
for _k in _sc.SOPT:
    if _k in OPT:
        _sc.SOPT[_k] = OPT[_k]
STAMP, DEBUG = OPT["stamp"], OPT["debug"]
STF = " " + OPT["stf"].replace("+", " ") if OPT["stf"] else ""
LDF = " " + OPT["ldf"].replace("+", " ") if OPT["ldf"] else ""

sID = 3
sX, sK, sV, sWQ, sWO, sWS = 8, 12, 16, 20, 24, 28
sDBG, sOUT = 4, 20
INBOX = 48 << 20
sIN = 82
sRot, sXlim, sK3 = 88, 89, 90
sW, sXW, sHW, sB, sH, sSP = 32, 33, 34, 35, 36, 37
sKoff, sVoff, sDst, sDstLim, sDst0 = 38, 39, 40, 41, 42
sHalf, sC1, sC2, sD, sK2 = 43, 44, 45, 46, 47
sPat = 48
sT0, sT1, sT2, sT3 = 50, 51, 52, 53
sThr, sCnt, sSite = 54, 55, 56
sWoff, sXoff, sWdst, sXdst, sWrd, sXrd, sDX = 57, 58, 59, 60, 61, 62, 63
sE0, sE1, sE2, sE3, sE4, sE5, sE6 = 57, 58, 59, 60, 61, 62, 63
sArg = 64
sSt = 80

vLANE, vK0, vK1, vV, vWt, vX, vST = 1, 2, 3, 4, 5, 6, 7
KA = [8, 9]
XA = [10, 11]
VA = [12, 13, 14, 15]
QA = [16, 17, 18]
vU = [19, 20, 21, 22, 23]
LV = [24, 25, 26, 27]
LK0 = 28
vT0, vT1, vT2 = 29, 30, 31
QB = [32, 64, 96]
SB, PB = 128, 176
NEGM = [224, 228, 232]
ET = 236
TS = [[244, 245, 246], [247, 248, 249]]
LS = [250, 251, 252]
vC = 253
vF = [253, 254, 255]
OB = [0, 64, 128]
FB = 192
SLOT = 32768
XBASE, XSL = 3 * SLOT, 20480
EX_WG = 49152
PART0, PART_WG = 16 << 20, 73728
OOB = 0x7ff00000
QSCALE = 0x3DB8AA3B
ISH = OPT.get("ish", 7)
FLF = " " + OPT.get("flf", "sc0+sc1").replace("+", " ")
LEAD = OPT.get("lead", 0)
DIST, MLAT = OPT["dist"], 5


def Sreg(j, kt, blk):
    return SB + ((2 * j + kt) % 4) * 12 + blk * 4


def Preg(j, blk):
    return PB + (j % 4) * 12 + blk * 4


def waitr(vm_keys, lg_key):
    return I("s_waitcnt <resolve>", "W", tag=("resolve", vm_keys, lg_key))


def wait_bar(vm_keys, lg_key):
    return [waitr(vm_keys, lg_key), I("s_barrier", "B")]


def stamp(k):
    return [raw(f"s_memtime s[{84 + 2 * k}:{85 + 2 * k}]")] if STAMP and k < 1 else []


def pst():
    if not STAMP:
        return []
    return [raw("s_waitcnt lgkmcnt(0)", "W"), raw("s_mov_b32 s100, s96"), I("v_mov_b32 v28, s100", "V"), I("v_cndmask_b32 v0, v0, v28, s[80:81]", "V"),
            raw("s_memrealtime s[96:97]" if OPT.get("rt") else "s_memtime s[96:97]"), raw("s_lshl_b64 s[80:81], s[80:81], 1")]


def AR(v, a):
    return I(f"v_accvgpr_read_b32 v{v}, a{a}", "V", [("a", a)], [("v", v)])


def bload(n, dst, voff, srd, soff, imm, flags="", tag=None):
    suf = {1: "dword", 2: "dwordx2", 4: "dwordx4"}[n]
    t = f"buffer_load_{suf} {rtxt(dst[0], dst[1], n)}, v{voff}, s[{srd}:{srd + 3}], s{soff} offen offset:{imm}{flags}"
    return I(t, "D", [("v", voff), ("s", soff)] + R("s", srd, 4), R(dst[0], dst[1], n), tag=tag)


def srd(c, d, arg, size):
    for t in (f"s_mov_b32 s{d}, s{sArg + arg}", f"s_mov_b32 s{d + 1}, s{sArg + arg + 1}", f"s_mov_b32 s{d + 2}, {size}",
              f"s_mov_b32 s{d + 3}, 0x20000"):
        c.append(salu(t))


def qw_dma(cidx):
    g = []
    for x in range(2):
        for t in range(4):
            rows = 32 * x + 16 * (t & 1) + 4 * (t >> 1)
            pre = [salu(f"s_add_u32 m0, s{sWdst}, {x * 16384}")] if t == 0 else []
            pre.append(salu(f"s_add_u32 s{sT0}, s{sWoff}, {rows * 8192 - t * 1024}"))
            g.append((pre, dma(vWt, sWQ, sT0, t * 1024, tag=("QW", cidx))))
    adv = [[salu(f"s_add_u32 s{sWoff}, s{sWoff}, {64 * 8192}")],
           [salu(f"s_cmp_ge_u32 s{sWoff}, {448 * 8192}"), salu(f"s_cselect_b32 s{sT1}, {448 * 8192}, 0")],
           [salu(f"s_sub_u32 s{sWoff}, s{sWoff}, s{sT1}")],
           [salu(f"s_cmp_lt_u32 s{sWdst}, {SLOT}"), salu(f"s_cselect_b32 s{sT1}, {3 * SLOT}, 0")],
           [salu(f"s_add_u32 s{sWdst}, s{sWdst}, s{sT1}")], [salu(f"s_sub_u32 s{sWdst}, s{sWdst}, {SLOT}")]]
    return g, adv


def qx_dma(cidx):
    g = []
    for k in range(5):
        pre = [salu(f"s_add_u32 m0, s{sXdst}, {k * 4096}"), salu(f"s_add_u32 s{sT0}, s{sXoff}, {k * 32 * 896}")]
        g.append((pre, dma(vX, sX, sT0, 0, tag=("QX", cidx))))
    adv = [[salu(f"s_add_u32 s{sXoff}, s{sXoff}, 128")],
           [salu(f"s_cmp_eq_u32 s{sXoff}, s{sXlim}"), salu(f"s_cselect_b32 s{sT1}, 896, 0")],
           [salu(f"s_sub_u32 s{sXoff}, s{sXoff}, s{sT1}")],
           [salu(f"s_cmp_ge_u32 s{sXdst}, {XBASE + 2 * XSL}"), salu(f"s_cselect_b32 s{sT1}, {3 * XSL}, 0")],
           [salu(f"s_sub_u32 s{sXdst}, s{sXdst}, s{sT1}")], [salu(f"s_add_u32 s{sXdst}, s{sXdst}, {XSL}")]]
    return g, adv


def dst_adv():
    return [[salu(f"s_add_u32 s{sDst}, s{sDst}, {SLOT}")],
            [salu(f"s_cmp_eq_u32 s{sDst}, s{sDstLim}"), salu(f"s_cselect_b32 s{sDst}, s{sDst0}, s{sDst}")]]


def kv_dma(kind, tag):
    g = []
    r, off = (sK, sKoff) if kind == "K" else (sV, sVoff)
    for x in range(2):
        for t in range(4):
            pre = []
            if t == 0:
                pre.append(salu(f"s_add_u32 m0, s{sDst}, {x * 16384}") if x else salu(f"s_mov_b32 m0, s{sDst}"))
                if x:
                    pre.append(salu(f"s_add_u32 s{off}, s{off}, 16384"))
            vo = (vK1 if t & 1 else vK0) if kind == "K" else vV
            g.append((pre, dma(vo, r, off, t * 1024, nt=OPT.get("nt", 1), tag=tag)))
    return g, [[salu(f"s_add_u32 s{off}, s{off}, 16384")]] + dst_adv()


def wo_dma(o, slot):
    g = []
    for kk in range(2):
        for t in range(4):
            rows = 32 * kk + 16 * (t >> 1) + 8 * (t & 1)
            pre = [salu(f"s_add_u32 m0, s{sE6}, {slot * SLOT + kk * 4096}")] if t == 0 else []
            if kk == 0 and t == 0 and o > 0:
                pre = [salu(f"s_add_u32 s{sK2}, s{sK2}, 128"),
                       I(f"s_cmp_eq_u32 s{sK2}, s{sK3}\ns_cselect_b32 s{sT0}, 896, 0", "S", [], [("scc", 0), ("s", sT0)]),
                       salu(f"s_sub_u32 s{sK2}, s{sK2}, s{sT0}")] + pre
            pre.append(salu(f"s_add_u32 s{sT0}, s{sK2}, {rows * 896 - t * 1024}"))
            g.append((pre, dma(vWt, sWO, sT0, t * 1024, tag=("WO", o))))
    return g, []


def add_dma(tasks, g, adv, first, rel, dl, spread, gapmin=0):
    prev = first
    pd = None
    n = len(g)
    for k, (pre, d) in enumerate(g):
        ddl = dl - (n - 1 - k) * max(3, gapmin)
        for p in pre:
            t = Task(p, "S", rel=rel, dl=ddl, deps=[(prev, 0)], name="dmapre")
            tasks.append(t)
            prev = t
        t = Task(d, "D", rel=rel + k * spread, dl=ddl, deps=[(prev, 1 if (prev.cls == "S" and prev.ins) else 0)] + ([(pd, gapmin)] if pd and gapmin else []), name="dma")
        tasks.append(t)
        prev = pd = t
    for a in adv:
        t = Task(a, "S", rel=rel, dl=dl + 8, deps=[(prev, 0)], name="dmaadv")
        tasks.append(t)
        prev = t
    return prev


def emit_serial(c, g, adv, fill=None):
    for pre, d in g:
        c += pre
        c.append(d)
        if fill:
            for _ in range(6):
                if fill:
                    c.append(fill.pop(0))
    for a in adv:
        c += a


def prologue():
    c = []
    S = lambda t: c.append(salu(t))
    V = lambda t: c.append(valu(t))
    c.append(raw(f"s_load_dwordx16 s[{sArg}:{sArg + 15}], s[0:1], 0"))
    c += stamp(0)
    if STAMP or OPT.get("diag") or OPT.get("padto"):
        c.append(raw("s_memrealtime s[98:99]"))
    V(f"v_lshrrev_b32 v{vT0}, 6, v0")
    V(f"v_and_b32 v{vLANE}, 63, v0")
    V(f"v_readfirstlane_b32 s{sW}, v{vT0}")
    def code_prefetch(c):
        c.append(raw(f"s_getpc_b64 s[{sPat}:{sPat + 1}]"))
        c.append(salu(f"s_lshr_b32 s{sD}, s2, 3"))
        c.append(salu(f"s_and_b32 s{sD}, s{sD}, 1"))
        c.append(salu(f"s_lshl_b32 s{sD}, s{sD}, 15"))
        c.append(valu(f"v_lshlrev_b32 v{vU[4]}, 7, v0"))
        c.append(valu(f"v_add_u32 v{vU[4]}, s{sD}, v{vU[4]}"))
        c.append(valu(f"v_min_u32 v{vU[4]}, @CODEMAX, v{vU[4]}"))
        c.append(I(f"global_load_dword v{vU[4]}, v{vU[4]}, s[{sPat}:{sPat + 1}]", "D", [("v", vU[4])], [("v", vU[4])]))

    if OPT.get("cpf") == 1:
        code_prefetch(c)
    S(f"s_lshr_b32 s{sT1}, s2, 3")
    S(f"s_and_b32 s{sT3}, s2, 1")
    S(f"s_lshl_b32 s{sT3}, s{sT3}, 2")
    S(f"s_and_b32 s{sT2}, s{sT1}, 3")
    S(f"s_add_u32 s{sT3}, s{sT3}, s{sT2}")
    S(f"s_and_b32 s{sB}, s2, 6")
    S(f"s_bfe_u32 s{sT2}, s{sT1}, 0x10002")
    S(f"s_add_u32 s{sB}, s{sB}, s{sT2}")
    S(f"s_bfe_u32 s{sH}, s{sT1}, 0x10003")
    S(f"s_lshl_b32 s{sT2}, s{sT3}, 1")
    S(f"s_add_u32 s{sH}, s{sH}, s{sT2}")
    S(f"s_lshr_b32 s{sSP}, s{sT1}, 4")
    S(f"s_lshr_b32 s{sXW}, s{sW}, 1")
    S(f"s_and_b32 s{sHW}, s{sW}, 1")
    S(f"s_lshl_b32 s{sKoff}, s{sB}, 3")
    S(f"s_add_u32 s{sKoff}, s{sKoff}, s{sT3}")
    V(f"v_lshrrev_b32 v{vT0}, 3, v{vLANE}")
    V(f"v_and_b32 v{vT1}, 7, v{vLANE}")
    V(f"v_lshrrev_b32 v{vT2}, 1, v{vT0}")
    V(f"v_xor_b32 v{vK0}, v{vT1}, v{vT2}")
    V(f"v_lshlrev_b32 v{vK0}, 4, v{vK0}")
    V(f"v_lshlrev_b32 v{vV}, 1, v{vT2}")
    V(f"v_xor_b32 v{vV}, v{vT1}, v{vV}")
    V(f"v_lshlrev_b32 v{vV}, 4, v{vV}")
    S(f"s_lshl_b32 s{sT2}, s{sHW}, 6")
    V(f"v_xor_b32 v{vX}, s{sT2}, v{vK0}")
    V(f"v_mul_u32_u24 v{vST}, 896, v{vT0}")
    V(f"v_add_u32 v{vX}, v{vX}, v{vST}")
    V(f"v_and_b32 v{vWt}, 3, v{vT0}")
    V(f"v_lshrrev_b32 v{vST}, 2, v{vT0}")
    V(f"v_lshl_add_u32 v{vWt}, v{vST}, 3, v{vWt}")
    V(f"v_lshlrev_b32 v{vWt}, 13, v{vWt}")
    V(f"v_add_u32 v{vWt}, v{vWt}, v{vV}")
    S(f"s_lshl_b32 s{sT3}, s{sW}, 7")
    V(f"v_add_u32 v{vWt}, s{sT3}, v{vWt}")
    S(f"s_lshl_b32 s{sWoff}, s{sH}, 9")
    S(f"s_mul_i32 s{sXoff}, s{sB}, {160 * 896}")
    S(f"s_mul_i32 s{sT2}, s{sW}, {8 * 896}")
    S(f"s_add_u32 s{sXoff}, s{sXoff}, s{sT2}")
    S(f"s_add_u32 s{sXlim}, s{sXoff}, 896")
    if OPT["rot"]:
        S(f"s_and_b32 s{sT2}, s{sB}, 1")
        S(f"s_lshl_b32 s{sT1}, s{sSP}, 1")
        S(f"s_add_u32 s{sT2}, s{sT2}, s{sT1}")
        S(f"s_lshl_b32 s{sT2}, s{sT2}, 1")
        S(f"s_and_b32 s{sT1}, s{sH}, 3")
        S(f"s_add_u32 s{sT2}, s{sT2}, s{sT1}")
        S(f"s_cmp_ge_u32 s{sT2}, 7")
        S(f"s_cselect_b32 s{sT1}, 7, 0")
        S(f"s_sub_u32 s{sT2}, s{sT2}, s{sT1}")
        S(f"s_lshl_b32 s{sT1}, s{sT2}, 19")
        S(f"s_add_u32 s{sWoff}, s{sWoff}, s{sT1}")
        S(f"s_lshl_b32 s{sT1}, s{sT2}, 7")
        S(f"s_add_u32 s{sXoff}, s{sXoff}, s{sT1}")
    S(f"s_lshl_b32 s{sDst0}, s{sW}, 12")
    S(f"s_add_u32 s{sWdst}, s{sDst0}, {SLOT}")
    S(f"s_lshl_b32 s{sXdst}, s{sW}, 10")
    S(f"s_add_u32 s{sXdst}, s{sXdst}, {XBASE}")
    c.append(I("s_waitcnt lgkmcnt(0)", "W"))
    if STAMP:
        c.append(raw("s_memrealtime s[92:93]"))
    if OPT.get("swarm", 1):
        S(f"s_lshl_b32 s{sT1}, s{sKoff}, 20")
        c.append(raw(f"s_load_dword s91, s[{sArg}:{sArg + 1}], s{sXoff}"))
        c.append(raw(f"s_load_dword s91, s[{sArg + 2}:{sArg + 3}], s{sT1}"))
        c.append(raw(f"s_load_dword s91, s[{sArg + 4}:{sArg + 5}], s{sT1}"))
        c.append(raw(f"s_load_dword s91, s[{sArg + 6}:{sArg + 7}], 0"))
        c.append(raw(f"s_load_dword s91, s[{sArg + 6}:{sArg + 7}], 0xffffc"))
        S(f"s_mov_b32 s{sT1}, {448 * 4096 * 2 - 4}")
        c.append(raw(f"s_load_dword s91, s[{sArg + 6}:{sArg + 7}], s{sT1}"))
    srd(c, sWQ, 6, 448 * 4096 * 2)
    srd(c, sX, 0, 8 * 160 * 448 * 2)
    f = []
    c2, c = c, f
    S = lambda t: f.append(salu(t))
    V = lambda t: f.append(valu(t))
    V(f"v_and_b32 v{vST}, 1, v{vT0}")
    V(f"v_lshl_add_u32 v{vST}, v{vT2}, 3, v{vST}")
    V(f"v_lshlrev_b32 v{vST}, 9, v{vST}")
    V(f"v_add_u32 v{vST}, s{sT3}, v{vST}")
    V(f"v_add_u32 v{vK0}, v{vK0}, v{vST}")
    V(f"v_add_u32 v{vV}, v{vV}, v{vST}")
    V(f"v_xor_b32 v{vK1}, 64, v{vK0}")
    srd(f, sK, 2, 0x4000000)
    srd(f, sV, 4, 0x4000000)
    srd(f, sWO, 8, 448 * 4096 * 2)
    srd(f, sWS, 14, 0x10000000)
    S(f"s_lshl_b32 s{sKoff}, s{sKoff}, 20")
    S(f"s_lshl_b32 s{sVoff}, s{sSP}, 19")
    S(f"s_add_u32 s{sKoff}, s{sKoff}, s{sVoff}")
    S(f"s_mov_b32 s{sVoff}, s{sKoff}")
    S(f"s_lshl_b32 s{sID}, s{sB}, 1")
    S(f"s_add_u32 s{sID}, s{sID}, s{sSP}")
    S(f"s_lshl_b32 s{sID}, s{sID}, 4")
    S(f"s_add_u32 s{sID}, s{sID}, s{sH}")
    srd(f, sDBG, 12, 256)
    S(f"s_lshl_b32 s{sIN}, s{sID}, {ISH}")
    S(f"s_add_u32 s{sIN}, s{sIN}, {INBOX}")
    f.append(I(f"s_cmp_eq_u32 s{sW}, 0\ns_cselect_b32 s{sT2}, s{sIN}, {OOB:#x}\ns_cselect_b32 s{sIN + 1}, s{sID}, {OOB:#x}", "S"))
    V(f"v_and_b32 v{vT0}, 31, v{vLANE}")
    V(f"v_lshlrev_b32 v{vT0}, 2, v{vT0}")
    V(f"v_mov_b32 v{vU[2]}, 0")
    V(f"v_mov_b32 v{vU[3]}, 1")
    f.append(bstore(1, ("v", vU[2]), vT0, sWS, sT2, 0, " sc0 sc1"))
    f.append(nop(1))
    V(f"v_and_b32 v{vT0}, 15, v{vLANE}")
    V(f"v_lshrrev_b32 v{vT1}, 4, v{vLANE}")
    V(f"v_lshrrev_b32 v{vT2}, 1, v{vT0}")
    V(f"v_xor_b32 v{LK0}, v{vT1}, v{vT2}")
    V(f"v_lshlrev_b32 v{LK0}, 4, v{LK0}")
    V(f"v_lshl_add_u32 v{LK0}, v{vT0}, 7, v{LK0}")
    V(f"v_lshrrev_b32 v{vT0}, 2, v{vLANE}")
    V(f"v_and_b32 v{vT1}, 6, v{vT0}")
    V(f"v_bfe_u32 v{vT2}, v{vLANE}, 1, 1")
    V(f"v_xor_b32 v{vT1}, v{vT1}, v{vT2}")
    V(f"v_lshlrev_b32 v{vT1}, 4, v{vT1}")
    V(f"v_lshl_add_u32 v{vT1}, v{vT0}, 7, v{vT1}")
    V(f"v_and_b32 v{vT2}, 1, v{vLANE}")
    V(f"v_lshl_add_u32 v{LV[0]}, v{vT2}, 3, v{vT1}")
    for k in range(1, 4):
        V(f"v_xor_b32 v{LV[k]}, {32 * k}, v{LV[0]}")
    S(f"s_add_u32 s{sT2}, s{sDst0}, {SLOT}")
    for k in range(4):
        V(f"v_add_u32 v{VA[k]}, s{sT2}, v{LV[k]}")
    V(f"v_add_u32 v{XA[0]}, {XBASE}, v{LK0}")
    V(f"v_xor_b32 v{XA[1]}, 64, v{XA[0]}")
    S(f"s_mov_b32 s{sWrd}, {SLOT}")
    S(f"s_mov_b32 s{sXrd}, 0")
    S(f"s_add_u32 s{sDstLim}, s{sDst0}, {5 * SLOT}")
    S(f"s_mov_b32 s{sDst}, s{sDst0}")
    S(f"s_lshl_b32 s{sHalf}, s{sXW}, 15")
    S(f"s_sub_u32 s{sHalf}, s{sHalf}, 16384")
    S(f"s_sub_u32 s{sC1}, {2 * SLOT}, s{sHalf}")
    S(f"s_sub_u32 s{sC2}, {(-3 * SLOT) & 0xffffffff}, s{sHalf}")
    S(f"s_mov_b32 s{sThr}, 0x53800000")
    pat = 0
    for j in range(40):
        if (j + 1) % 5 < (j - 1) % 5:
            pat |= 1 << j
    S(f"s_mov_b32 s{sPat}, {pat & 0xffffffff:#x}")
    S(f"s_mov_b32 s{sPat + 1}, {pat >> 32:#x}")
    S(f"s_lshl_b32 s{sT2}, s{sXW}, 14")
    S(f"s_sub_u32 s{sT2}, 16384, s{sT2}")
    V(f"v_add_u32 v{KA[0]}, s{sT2}, v{LK0}")
    V(f"v_xor_b32 v{KA[1]}, 64, v{KA[0]}")
    V(f"v_and_b32 v{vT0}, 15, v{vLANE}")
    V(f"v_lshlrev_b32 v{vT0}, 4, v{vT0}")
    V(f"v_lshrrev_b32 v{vT1}, 5, v{vLANE}")
    V(f"v_lshl_add_u32 v{vT0}, v{vT1}, 8, v{vT0}")
    V(f"v_bfe_u32 v{vT1}, v{vLANE}, 4, 1")
    V(f"v_lshl_add_u32 v{vT0}, v{vT1}, 3, v{vT0}")
    S(f"s_lshl_b32 s{sT2}, s{sW}, 11")
    S(f"s_add_u32 s{sT3}, s{sT2}, {XBASE}")
    V(f"v_add_u32 v{vU[0]}, s{sT3}, v{vT0}")
    S(f"s_add_u32 s{sT3}, s{sT2}, {SLOT}")
    V(f"v_add_u32 v{vU[1]}, s{sT3}, v{vT0}")
    V(f"v_lshlrev_b32 v{vST}, 4, v{vLANE}")
    S(f"s_lshl_b32 s{sT2}, s{sW}, 1")
    S(f"s_add_u32 s{sT2}, s{sT2}, s{sSP}")
    S(f"s_lshl_b32 s{sT2}, s{sT2}, 13")
    S(f"s_add_u32 s{sT2}, s{sT2}, {XBASE}")
    V(f"v_add_u32 v{QA[0]}, s{sT2}, v{vST}")
    V(f"v_xor_b32 v{QA[1]}, 8192, v{QA[0]}")
    S(f"s_xor_b32 s{sT2}, s{sHW}, s{sSP}")
    S(f"s_lshl_b32 s{sT2}, s{sT2}, 13")
    S(f"s_add_u32 s{sT2}, s{sT2}, {SLOT}")
    V(f"v_add_u32 v{QA[2]}, s{sT2}, v{vST}")
    S(f"s_lshl_b32 s{sK2}, s{sH}, 2")
    S(f"s_add_u32 s{sK2}, s{sK2}, s{sW}")
    S(f"s_mul_i32 s{sK2}, s{sK2}, {64 * 896}")
    S(f"s_add_u32 s{sK3}, s{sK2}, 896")
    S(f"s_and_b32 s{sRot}, s{sB}, 1")
    S(f"s_lshl_b32 s{sT2}, s{sSP}, 1")
    S(f"s_add_u32 s{sRot}, s{sRot}, s{sT2}")
    S(f"s_mul_i32 s{sRot}, s{sRot}, {2 * OPT['rot']}")
    S(f"s_lshl_b32 s{sT2}, s{sRot}, 7")
    S(f"s_add_u32 s{sK2}, s{sK2}, s{sT2}")
    c = c2
    for fn, cidx in ((qw_dma, 0), (qx_dma, 0), (qw_dma, 1)):
        g, adv = fn(cidx)
        emit_serial(c, g, adv, f if (OPT.get("ilv", 1) or cidx == 1) else None)
        if STAMP and fn is qx_dma:
            c.append(raw("s_memrealtime s[94:95]"))
        if fn is qx_dma and OPT.get("cpf") == 2:
            code_prefetch(c)
    c += f
    if STAMP:
        c.append(raw("s_memrealtime s[86:87]"))
    c.append(I("s_waitcnt lgkmcnt(0)", "W"))
    if OPT["pref"]:
        S = lambda t: c.append(salu(t))
        V = lambda t: c.append(valu(t))
        S(f"s_and_b32 s{sT0}, s{sB}, 1")
        S(f"s_lshl_b32 s{sT0}, s{sT0}, 1")
        S(f"s_add_u32 s{sT0}, s{sT0}, s{sSP}")
        S(f"s_lshl_b32 s{sT0}, s{sT0}, 2")
        S(f"s_add_u32 s{sT0}, s{sT0}, s{sW}")
        V(f"v_lshrrev_b32 v{vT0}, 2, v{vLANE}")
        V(f"v_lshlrev_b32 v{vT0}, 13, v{vT0}")
        V(f"v_and_b32 v{vT1}, 3, v{vLANE}")
        V(f"v_lshl_add_u32 v{vT0}, v{vT1}, 7, v{vT0}")
        S(f"s_lshl_b32 s{sT1}, s{sT0}, 17")
        S(f"s_add_u32 s{sT1}, s{sT1}, s{sWoff}")
        c.append(bload(1, ("v", 32), vT0, sWQ, sT1, 0))
        S(f"s_lshr_b32 s{sT1}, s2, 3")
        S(f"s_and_b32 s{sT2}, s{sT1}, 3")
        S(f"s_lshr_b32 s{sT1}, s{sT1}, 3")
        S(f"s_lshl_b32 s{sT1}, s{sT1}, 2")
        S(f"s_add_u32 s{sT1}, s{sT1}, s{sT2}")
        S(f"s_lshl_b32 s{sT1}, s{sT1}, 2")
        S(f"s_add_u32 s{sT1}, s{sT1}, s{sW}")
        S(f"s_mul_i32 s{sT1}, s{sT1}, {18 * 128}")
        S(f"s_mul_i32 s{sT2}, s{sB}, {160 * 896}")
        S(f"s_add_u32 s{sT1}, s{sT1}, s{sT2}")
        V(f"v_min_u32 v{vT1}, 17, v{vLANE}")
        V(f"v_lshlrev_b32 v{vT1}, 7, v{vT1}")
        c.append(bload(1, ("v", 33), vT1, sX, sT1, 0))
        c.append(raw(f"s_getpc_b64 s[{sT2}:{sT3}]"))
        S(f"s_and_b32 s{sT1}, s{sT0}, 7")
        S(f"s_lshl_b32 s{sT1}, s{sT1}, 13")
        V(f"v_lshlrev_b32 v{vT1}, 7, v{vLANE}")
        V(f"v_add_u32 v{vT1}, s{sT1}, v{vT1}")
        V(f"v_min_u32 v{vT1}, @CODEMAX, v{vT1}")
        c.append(I(f"global_load_dword v34, v{vT1}, s[{sT2}:{sT3}]", "D", [("v", vT1)], [("v", 34)]))
        S(f"s_mul_i32 s{sT1}, s{sH}, {256 * 896}")
        S(f"s_mul_i32 s{sT0}, s{sT0}, {112 * 128}")
        S(f"s_add_u32 s{sT1}, s{sT1}, s{sT0}")
        V(f"v_lshlrev_b32 v{vT1}, 7, v{vLANE}")
        if OPT["pref"] > 1:
            c.append(bload(1, ("v", 35), vT1, sWO, sT1, 0))
            S(f"s_add_u32 s{sT1}, s{sT1}, {48 * 128}")
            c.append(bload(1, ("v", 36), vT1, sWO, sT1, 0))
    return c


def qacc(blk, t):
    return 96 + (blk * 4 + t) * 4


def q_phase():
    mf, tasks, marks = [], [], []
    WF = lambda c, ks, t: (c & 1) * 32 + (ks * 4 + t) * 4
    XF = lambda blk, ks: 64 + (blk * 2 + ks) * 4
    bar, lastx, lastaddr, xuse, wuse = {}, {}, {}, {}, {}
    prev_dma, prev_aups = None, []
    allreads = []
    for cidx in range(7):
        start = 80 * cidx
        marks.append(start)
        if cidx == 0:
            bar[0] = Task(wait_bar([("QX", 0)], None), "BAR", rel=-1, dl=-1, name="bar0")
            wready = bar[0]
        else:
            bar[cidx] = Task(wait_bar([("QX", cidx)], ("XR", cidx - 1)), "BAR", rel=start - 20, dl=start - 10, deps=[(lastx[cidx - 1], 4)], name=f"bar{cidx}")
            wready = Task(waitr([("QW", cidx)], None), "S", rel=start - 44, name="wready")
            tasks.append(wready)
        tasks.append(bar[cidx])
        aup = {}
        if cidx > 0:
            sd = [Task([salu(f"s_cmp_eq_u32 s{sWrd}, 0"), salu(f"s_cselect_b32 s{sD}, {3 * SLOT}, 0")], "S", rel=start - 76, deps=[(t, 0) for t in prev_aups], name="sd")]
            for t in (f"s_sub_u32 s{sD}, s{sD}, {SLOT}", f"s_add_u32 s{sWrd}, s{sWrd}, s{sD}"):
                sd.append(Task(salu(t), "S", deps=[(sd[-1], 0)], name="sd"))
            sd.append(Task([salu(f"s_cmp_eq_u32 s{sXrd}, {2 * XSL}"), salu(f"s_cselect_b32 s{sDX}, {3 * XSL}, 0")], "S", deps=[(sd[-1], 0)], name="sd"))
            for t in (f"s_sub_u32 s{sDX}, {XSL}, s{sDX}", f"s_add_u32 s{sXrd}, s{sXrd}, s{sDX}"):
                sd.append(Task(salu(t), "S", deps=[(sd[-1], 0)], name="sd"))
            tasks += sd
            for r in VA:
                aup[r] = Task(valu(f"v_add_u32 v{r}, s{sD}, v{r}"), "V", deps=[(sd[-1], 1), (lastaddr[r], 0)], name="aup")
            for r in XA:
                aup[r] = Task(valu(f"v_add_u32 v{r}, s{sDX}, v{r}"), "V", deps=[(sd[-1], 1), (lastaddr[r], 0)], name="aup")
            tasks += list(aup.values())
            prev_aups = list(aup.values())

        def rd(ins, consumer, gate, tag, rel, war):
            ins.tag = tag
            a = ins.rd[0][1]
            deps = [(gate, 0)] + ([(aup[a], 1)] if a in aup else []) + ([(lastaddr[a], 0)] if a in lastaddr else [])
            first = cidx == 0 and consumer < 12
            t = Task(ins, "L", rel=-1 if first else max(rel, war), dl=-1 if first else consumer - 6, deps=deps, name="rd")
            tasks.append(t)
            lastaddr[a] = t
            allreads.append(t)
            return t

        for ks in range(2):
            for t in range(4):
                for e in range(2):
                    rd(ds_rtr(("a", WF(cidx, ks, t) + 2 * e), VA[t], ks * 16384 + e * 2048), start + 2 * t, wready, ("WR", cidx),
                       start - 42, wuse.get(cidx & 1, -1))
        early = 60 if cidx == 6 else 22
        for blk in range(10):
            c0 = len(mf)
            for ks in range(2):
                lastx[cidx] = rd(ds_r128(("a", XF(blk, ks)), XA[ks], blk * 2048), c0 + ks, bar[cidx], ("XR", cidx), c0 - early, xuse.get((blk, ks), -1))
            for t in range(4):
                for ks in ((0, 1) if (t % 2 == 0 or cidx == 0) else (1, 0)):
                    d = ("v", qacc(blk, t))
                    mf.append(mfma(d, ("a", WF(cidx, ks, t)), ("a", XF(blk, ks)), 0 if (cidx == 0 and ks == 0) else d))
            xuse[(blk, 0)] = xuse[(blk, 1)] = len(mf) - 1
        wuse[cidx & 1] = len(mf) - 1
    q = []
    for cidx in range(1, 7):
        q.append((qx_dma(cidx), bar[max(cidx - 2, 0)], max(0, 80 * (cidx - 2) - 10), 80 * (cidx - 1) + (30 if cidx > 1 else 16)))
        if cidx + 1 <= 6:
            q.append((qw_dma(cidx + 1), bar[0], max(0, 80 * (cidx - 2) + 10), 80 * (cidx - 1) + 62))
    g, adv = kv_dma("K", ("T", -1))
    q.append(((g, adv + dst_adv()), bar[0], 80 * 4 + 10, 80 * 5 + 40))
    q.append((kv_dma("K", ("T", 1)), bar[0], 80 * 5 + 10, 80 * 6 + 20))
    for (g, adv), gate, r0, d0 in q:
        first = Task([], "S", rel=r0, deps=[(gate, 0)] + ([(prev_dma, 0)] if prev_dma else []), name="dmastart")
        tasks.append(first)
        prev_dma = add_dma(tasks, g, adv, first, r0, d0, spread=0, gapmin=OPT.get("qgap", 3))
    an = I(f"buffer_store_byte v{vU[3]}, v{vU[2]}, s[{sDBG}:{sDBG + 3}], s{sIN + 1} offen sc0 sc1", "D", [("v", vU[3]), ("v", vU[2])], [], tag="store")
    seq = [an]
    if OPT.get("tlb", 1):
        seq += [bload(1, ("v", vX), vU[2], sV, sVoff, 0), bload(1, ("v", vX), vU[2], sWO, sK2, 0)]
    for i in seq:
        prev_dma = Task(i, i.kind, deps=[(prev_dma, 1)], dl=80 * 6 + 60, name="warm")
        tasks.append(prev_dma)
    start = 480
    dead = Task(wait_bar([], ("XR", 6)), "BAR", deps=[(lastx[6], 4)], name="dead")
    tasks.append(dead)
    sc = Task([salu(f"s_mov_b32 s{sT2}, {QSCALE:#x}"), salu(f"s_mov_b32 s{sT3}, {QSCALE:#x}")], "S", rel=start, name="sc")
    tasks.append(sc)
    for blk in range(10):
        for t in range(4):
            s = qacc(blk, t)
            done = start + blk * 8 + 2 * t + 1
            if blk < OPT.get("pkfrom", 4):
                ms = [Task(valu(f"v_mul_f32 v{s + r}, s{sT3}, v{s + r}"), "V", rel=done + MLAT, deps=[(sc, 1)], name="qmul") for r in range(4)]
            else:
                m2 = [Task(valu(f"v_pk_mul_f32 v[{s + r}:{s + r + 1}], v[{s + r}:{s + r + 1}], s[{sT2}:{sT3}]"), "V", rel=done + MLAT, deps=[(sc, 1)], name="qmul") for r in (0, 2)]
                ms = [m2[0], m2[0], m2[1], m2[1]]
            c0 = Task(valu(f"v_cvt_pk_bf16_f32 v{s}, v{s}, v{s + 1}"), "V", deps=[(ms[0], 0), (ms[1], 0)], name="qcv")
            c1 = Task(valu(f"v_cvt_pk_bf16_f32 v{s + 1}, v{s + 2}, v{s + 3}"), "V", deps=[(ms[2], 0), (ms[3], 0), (c0, 0)], name="qcv")
            w = ds_w64(vU[0] if blk < 8 else vU[1], ("v", s), (blk & 7) * 8192 + (t >> 1) * 1024 + (t & 1) * 512)
            wt = Task(w, "L", deps=[(c1, 0), (dead, 0)], name="qwr")
            tasks += list(dict.fromkeys(ms)) + [c0, c1, wt]
    gaps = schedule(mf, tasks, verbose=True)
    for k, m in enumerate(marks):
        mf[m].mark = ("Q", k)
    return linearize(mf, gaps)


def q_finish():
    c = []
    S = lambda t: c.append(salu(t))
    V = lambda t: c.append(valu(t))
    S(f"s_lshl_b32 s{sT0}, s{sXW}, 14")
    S(f"s_sub_u32 s{sT0}, {3 * SLOT + 16384}, s{sT0}")
    for k in range(4):
        V(f"v_add_u32 v{VA[k]}, s{sT0}, v{LV[k]}")
    V(f"v_lshrrev_b32 v{vT0}, 3, v{vLANE}")
    V(f"v_mul_u32_u24 v{vT0}, 896, v{vT0}")
    V(f"v_and_b32 v{vWt}, 0x70, v{vV}")
    V(f"v_add_u32 v{vWt}, v{vWt}, v{vT0}")
    S(f"s_lshl_b32 s{sE6}, s{sW}, 13")
    c.append(I("s_waitcnt lgkmcnt(0)", "W"))
    for r in list(range(NEGM[0], NEGM[0] + 12)) + LS:
        V(f"v_mov_b32 v{r}, 0")
    c += wait_bar([("T", -1)], None)
    return c


sites = []


def rowmax_tasks(tasks, src, t, u, dep, name):
    seq = [f"v_max3_f32 v{t}, v{src}, v{src + 1}, v{src + 2}", f"v_max_f32 v{t}, v{t}, v{src + 3}", f"v_mov_b32 v{u}, v{t}",
           f"v_permlane32_swap_b32 v{t}, v{u}", f"v_max_f32 v{t}, v{t}, v{u}", f"v_mov_b32 v{u}, v{t}",
           f"v_permlane16_swap_b32 v{t}, v{u}", f"v_max_f32 v{t}, v{t}, v{u}", f"v_ceil_f32 v{t}, v{t}"]
    prev = dep
    for x in seq:
        i = valu(x)
        tk = Task(i, "V", deps=[(prev, 1 if i.kind == "P" else 0)], name=name)
        tasks.append(tk)
        prev = tk
    return prev


def main_phase():
    NS = 35
    mf, tasks = [], []
    nfrag = 0
    start, chain_first, chain_last, plan, qfirst = {}, {}, {}, [], {}
    CH = OPT.get("chain", 4)
    fraguse = {}
    cfirst_blk = {}
    pvdone = {}
    for j in range(NS):
        start[j] = len(mf)
        qb = ((0, 1, 2) if j & 1 else (0, 1)) if j <= 31 else ()
        pbk = ((0, 1, 2) if (j & 1) == 0 else (0, 1)) if j >= 3 else ()
        for sg in range(16 // CH):
            gams = list(range(sg * CH, sg * CH + CH))
            qitems = [("Q", b) for b in (qb if sg % 2 == 0 else qb[::-1])]
            pitems = [("P", g_) for g_ in gams] if pbk else []
            order = []
            nq = len(qitems)
            if nq == 0:
                order = pitems
            else:
                per = [len(pitems) // nq + (1 if k < len(pitems) % nq else 0) for k in range(nq)]
                pi = 0
                for k, q in enumerate(qitems):
                    ps_ = pitems[pi:pi + per[k]]
                    pi += per[k]
                    order += (ps_ + [q]) if sg % 2 == 0 else ([q] + ps_)
            kf = {}
            for kind, x in order:
                if kind == "Q":
                    for gam in gams:
                        kt, ks = gam >> 3, gam & 7
                        if gam not in kf:
                            kf[gam] = nfrag % 16
                            nfrag += 1
                            plan.append(("K", j, gam, FB + kf[gam] * 4, len(mf), fraguse.get(kf[gam], -1)))
                        d = ("v", Sreg(j, kt, x))
                        qfirst.setdefault((x, ks), len(mf))
                        mf.append(mfma(d, ("a", FB + kf[gam] * 4), ("v", QB[x] + 4 * ks), ("v", NEGM[x]) if ks == 0 else d))
                        chain_first.setdefault((j, kt), len(mf) - 1)
                        cfirst_blk.setdefault((j, kt, x), len(mf) - 1)
                        chain_last[(j, kt, x)] = len(mf) - 1
                        lastk = kf[gam]
                        kf_use = fraguse
                        pend_use = (kf[gam], len(mf) - 1)
                        kf.setdefault("u", {})[kf[gam]] = len(mf) - 1
                else:
                    fr = nfrag % 16
                    nfrag += 1
                    plan.append(("V", j, x, FB + fr * 4, len(mf), fraguse.get(fr, -1)))
                    for blk in pbk:
                        d = ("a", OB[blk] + 4 * x)
                        mf.append(mfma(d, ("a", FB + fr * 4), ("v", Preg(j - 3, blk)), 0 if j == (3 if blk < 2 else 4) else d))
                        pvdone[(j, x, blk)] = len(mf) - 1
                    fraguse[fr] = len(mf) - 1
            fraguse.update(kf.get("u", {}))
    start[NS] = start[NS + 1] = len(mf)
    bar, aup, lastread, lastaddr = {}, {}, {}, {}
    qlast = None
    for (blk, ks), c0 in sorted(qfirst.items(), key=lambda x: x[1]):
        i = ds_r128(("v", QB[blk] + 4 * ks), QA[blk], ks * 1024)
        i.tag = ("QS", 0)
        first = c0 < 8
        qlast = Task(i, "L", rel=-1, dl=-1 if first else min(c0 - 6, 22), deps=[(qlast, 0)] if qlast else [], name="qrd")
        tasks.append(qlast)
    bar[0] = Task(wait_bar([], ("QS", 0)), "BAR", deps=[(qlast, 4)], name="barq")
    tasks.append(bar[0])
    st = dict(sd=None, aups=[])
    done_steps = set()

    def tile_of(kind, j):
        return ("K", j >> 1) if kind == "K" else ("V", (j - 3) >> 1)

    def add_wreads(o, gate, rel, dl):
        c = []
        wfrag_reads(c, o)
        prev = gate
        for i in c:
            prev = Task(i, "L", rel=rel, dl=dl, deps=[(prev, 0), (setup_done, 1)], prio=-40, name="wrd")
            tasks.append(prev)
        return prev

    su = []
    tail_setup(su)
    setup_done = None
    for i in su:
        setup_done = Task(i, i.kind if i.kind in ("S", "D") else "V", rel=start[29], dl=start[32] - 30, deps=[(setup_done, 0)] if setup_done else [], name="su")
        tasks.append(setup_done)

    def enter(j):
        done_steps.add(j)
        sw = "K" if j % 2 == 0 else "V"
        old = tile_of(sw, j - 1)
        newvalid = (sw == "K" and j <= 30) or (sw == "V" and 3 <= j <= 33)
        vm = [("T", j - 1)] if newvalid else []
        deps, lg = [], None
        if old in lastread:
            deps.append((lastread[old], OPT["barlag"]))
            lg = old
        if j == 32:
            vm = [("WO", 0)]
        if j == 33:
            vm = vm + [("WO", 1)]
        if j in (33, 34):
            wl = add_wreads(j - 33, bar[j - 1], start[j - 1], start[j] - DIST)
            deps = [(wl, 3)] + deps
            lg = ("ANY", j)
            for t in [wl] + ([lastread[old]] if old in lastread else []):
                t.ins[0].tag = ("ANY", j)
        if vm or lg:
            pb = max(k for k in bar)
            bar[j] = Task(wait_bar(vm, lg), "BAR", rel=start[j] - DIST + 1 + OPT["barlag"], dl=start[j] - 8, deps=deps + [(bar[pb], 1)], name=f"bar{j}")
            tasks.append(bar[j])
        sd0 = Task([salu(f"s_bitcmp1_b64 s[{sPat}:{sPat + 1}], 0"), salu(f"s_cselect_b32 s{sD}, s{sC2}, s{sC1}")], "S", rel=start[j - 1] + 8,
                   deps=[(t, 0) for t in st["aups"]] + ([(st["sd"], 0)] if st["sd"] else []), name="sd")
        sd0.ins[0].wr = [("scc", 0)]
        sd = Task(salu(f"s_lshr_b64 s[{sPat}:{sPat + 1}], s[{sPat}:{sPat + 1}], 1"), "S", deps=[(sd0, 0)], name="sd")
        tasks.extend([sd0, sd])
        st["sd"], st["aups"] = sd, []
        for kind, regs in (("K", KA), ("V", VA)):
            if not ((kind == "K" and 1 <= j <= 31) or (kind == "V" and 4 <= j <= 34)):
                continue
            for r in regs:
                t = Task(valu(f"v_add_u32 v{r}, s{sD if kind == sw else sHalf}, v{r}"), "V", deps=[(sd0, 1), (lastaddr[r], 0)], name="aup")
                aup[(j, r)] = t
                tasks.append(t)
                st["aups"].append(t)

    for kind, j, gam, f, c0, war in plan:
        if j >= 1 and j not in done_steps:
            enter(j)
        kt, ks = gam >> 3, gam & 7
        if kind == "K":
            a = KA[ks & 1]
            ins = [ds_r128(("a", f), a, (ks >> 1) * 4096 + kt * 2048)]
        else:
            a = VA[gam & 3]
            ins = [ds_rtr(("a", f), a, (gam >> 2) * 4096), ds_rtr(("a", f + 2), a, (gam >> 2) * 4096 + 2048)]
        tl = tile_of(kind, j)
        for i in ins:
            i.tag = tl
            deps = []
            swj = j if (kind == "K") == (j % 2 == 0) else j - 1
            if swj in bar and swj > 0:
                deps.append((bar[swj], 0))
            if (j, a) in aup:
                deps.append((aup[(j, a)], 1))
            if a in lastaddr:
                deps.append((lastaddr[a], 0))
            first = c0 < 8
            t = Task(i, "L", rel=-1 if first else max(c0 - DIST, war), dl=-1 if first else c0 - 5, deps=deps, name=f"rd{kind}{j}.{gam}")
            tasks.append(t)
            lastread[tl] = t
            lastaddr[a] = t
    prev = None
    for j in range(NS):
        n = j + 2
        if n <= 32 and n != 31:
            g, adv = kv_dma("K" if n & 1 else "V", ("T", n))
        elif n in (31, 33):
            g, adv = wo_dma((n - 31) // 2, (n + 1) % 5)
            adv = dst_adv()
        elif n in (34, 35):
            g, adv = wo_dma(n - 32, WSL[n - 32])
        else:
            continue
        pb = max(k for k in bar if k <= j)
        first = Task([], "S", rel=start[j] - LEAD, deps=[(bar[pb], 0)] + ([(prev, 0)] if prev else []), name="dmastart")
        tasks.append(first)
        L = start[j + 1] - start[j]
        dl = start[j + 1] - OPT.get("dmadl", DIST) if OPT.get("fill", 6) <= j < 32 else start[j + 2] - DIST
        if j == 0:
            dl = start[1] + 34
        prev = add_dma(tasks, g, adv, first, start[j] - LEAD, dl, spread=max(3, (L - DIST) // 9), gapmin=OPT.get("mgap", 4) if j < 32 else 0)
    ecount, econs, prev_branch, prev_ladd = 0, {}, None, {}
    for j in range(32):
        blks = (0, 1, 2) if j & 1 else (0, 1)
        dl_chk = chain_first[(j + 2, 0)] - 1 if j + 2 <= 31 else start[j + 3] - 4
        allcv, tsdep, fix = [], {}, {}
        for blk in blks:
            if (j == 0 and blk < 2) or (j == 1 and blk == 2):
                t, u = ET + 2 * (blk & 1), ET + 2 * (blk & 1) + 1
                base = Task([], "V", rel=chain_last[(j, 0, blk)] + MLAT, deps=[(prev_branch, 0)] if prev_branch else [], name="mx0")
                tasks.append(base)
                last = rowmax_tasks(tasks, Sreg(j, 0, blk), t, u, base, "mx")
                nm = [Task(valu(f"v_sub_f32 v{NEGM[blk] + r}, 0, v{t}"), "V", rel=cfirst_blk[(j, 1, blk)] + 4,
                           dl=cfirst_blk[(j + (1 if blk < 2 else 2), 0, blk)] - 3, deps=[(last, 0)], name="negm") for r in range(4)]
                tasks += nm
                for kt in range(2):
                    for r in range(4):
                        s = Sreg(j, kt, blk) + r
                        x = Task(valu(f"v_sub_f32 v{s}, v{s}, v{t}"), "V", rel=chain_last[(j, kt, blk)] + MLAT, deps=[(last, 0)], name="sfix")
                        tasks.append(x)
                        fix[(kt, blk, r)] = x
                        econs.setdefault(t - ET, []).append(x)
                econs.setdefault(t - ET, []).extend(nm)
                econs.setdefault(u - ET, []).append(last)
        for kt in range(2):
            for blk in blks:
                ts = TS[j & 1][blk]
                for pr in range(2):
                    es = []
                    for r in (2 * pr, 2 * pr + 1):
                        e = ecount % 8
                        ecount += 1
                        deps = [(x, 0) for x in econs.get(e, [])] + ([(prev_branch, 0)] if prev_branch else [])
                        if (kt, blk, r) in fix:
                            deps.append((fix[(kt, blk, r)], 1))
                        t = Task(valu(f"v_exp_f32 v{ET + e}, v{Sreg(j, kt, blk) + r}"), "E", rel=chain_last[(j, kt, blk)] + MLAT, deps=deps, name=f"exp{j}.{kt}")
                        tasks.append(t)
                        econs[e] = []
                        es.append((e, t))
                    (e0, t0), (e1, t1) = es
                    cv = Task(valu(f"v_cvt_pk_bf16_f32 v{Preg(j, blk) + 2 * kt + pr}, v{ET + e0}, v{ET + e1}"), "V", deps=[(t0, 1), (t1, 1)], name="cvt")
                    tasks.append(cv)
                    allcv.append(cv)
                    if blk not in tsdep:
                        ad = Task(valu(f"v_add_f32 v{ts}, v{ET + e0}, v{ET + e1}"), "V",
                                  deps=[(t0, 1), (t1, 1)] + ([(prev_ladd[(j & 1, blk)], 0)] if (j & 1, blk) in prev_ladd else []), name="add")
                        tasks.append(ad)
                        econs[e0] += [cv, ad]
                        econs[e1] += [cv, ad]
                        tsdep[blk] = ad
                    else:
                        a0 = Task(valu(f"v_add_f32 v{ts}, v{ET + e0}, v{ts}"), "V", deps=[(t0, 1), (tsdep[blk], 1)], name="add")
                        a1 = Task(valu(f"v_add_f32 v{ts}, v{ET + e1}, v{ts}"), "V", deps=[(t1, 1), (a0, 1)], name="add")
                        tasks += [a0, a1]
                        econs[e0] += [cv, a0]
                        econs[e1] += [cv, a1]
                        tsdep[blk] = a1
        tsr = [TS[j & 1][b] for b in blks]
        mx = Task(valu(f"v_max3_f32 v{vC}, v{tsr[0]}, v{tsr[1]}, v{tsr[2]}") if len(tsr) == 3 else valu(f"v_max_f32 v{vC}, v{tsr[0]}, v{tsr[1]}"),
                  "V", deps=[(t, 1) for t in tsdep.values()], name="mx")
        cmp_ = Task(valu(f"v_cmp_lt_f32 vcc, s{sThr}, v{vC}"), "V", deps=[(mx, 1)], name="cmp")
        br = Task([I(f"s_cbranch_vccnz L_slow_@{j}", "BR", [("vcc", 0)], [], tag=("site", j)), I(f"L_ret_@{j}:", "LAB", tag=("ret", j))],
                  "S", dl=dl_chk, deps=[(cmp_, 1)] + [(t, 0) for t in allcv] + [(t, 0) for t in prev_ladd.values()], name=f"br{j}")
        tasks += [mx, cmp_, br]
        for blk in blks:
            la = Task(valu(f"v_add_f32 v{LS[blk]}, v{TS[j & 1][blk]}, v{LS[blk]}"), "V", deps=[(br, 0)], dl=dl_chk + 12, name="ladd")
            tasks.append(la)
            prev_ladd[(j & 1, blk)] = la
        prev_branch = br
        sites.append(dict(j=j, task=br, blks=blks))
    last = None
    for blk in (1, 2, 0):
        xs = []
        xsum(xs, LS[blk], vT1)
        for i in xs:
            last = Task(i, "V", deps=[(t, 0) for t in prev_ladd.values()] + ([(last, 1 if i.kind == "P" else 0)] if last else []), name="xsum")
            tasks.append(last)
        if blk == 1:
            m0_ = Task(valu(f"v_mov_b32 v{ET}, v{NEGM[1]}"), "V", deps=[(last, 0)], name="st")
            m1_ = Task(valu(f"v_mov_b32 v{ET + 1}, v{LS[1]}"), "V", deps=[(last, 0)], name="st")
            stt = Task(bstore(2, ("v", ET), vT2, sWS, sT3, 0, STF), "D", deps=[(m0_, 1), (m1_, 1), (prev, 0)], name="st")
            tasks += [m0_, m1_, stt]
    pcv = {}
    for T in range(16):
        done = pvdone[(34, T, 1)]
        tmp = SB + 4 * (T & 3)
        ars = [Task(AR(tmp + r, OB[1] + 4 * T + r), "V", rel=done + MLAT, deps=[(prev_branch, 0)] + [(x, 0) for x in pcv.get(T & 3, [])], name="ar") for r in range(4)]
        cv = [Task(valu(f"v_cvt_pk_bf16_f32 v{FSB + 2 * T + h}, v{tmp + 2 * h}, v{tmp + 2 * h + 1}"), "V", deps=[(ars[2 * h], 0), (ars[2 * h + 1], 0)], name="cv") for h in range(2)]
        tasks += ars + cv
        if T & 1:
            kb = T >> 1
            tasks.append(Task(bstore(4, ("v", FSB + 4 * kb), vST, sWS, sE4 if kb < 4 else sE5, (kb & 3) * 1024, STF), "D",
                              deps=[(x, 1) for x in cv + pcv[(T - 1) & 3]] + [(prev, 0)], name="fst"))
        pcv[T & 3] = cv
    gaps = schedule(mf, tasks, verbose=True)
    for s in sites:
        j, g = s["j"], s["task"].gap
        s["later_blk"] = {}
        for (jj, kt, blk), idx in cfirst_blk.items():
            if jj > j and idx <= g:
                s["later_blk"].setdefault(blk, []).append(Sreg(jj, kt, blk))
        s["pend"] = [jj for jj in range(max(0, j - 3), j) if start[jj + 4] - 1 > g]
    for j in range(NS):
        mf[start[j]].mark = ("M", j)
    ab = str(OPT.get("ablate", ""))
    if ab:
        for t in tasks:
            if t.gap is None or not (start[5] <= t.gap < start[29]):
                continue
            if t.name.startswith("br"):
                t.ins = [i for i in t.ins if i.kind != "BR"]
            if "v" in ab and (t.name.startswith("exp") or t.name in ("add", "cvt", "mx", "cmp", "ladd")):
                t.ins = []
            if "a" in ab and t.name in ("add", "mx", "cmp", "ladd"):
                t.ins = []
            if "l" in ab and t.name.startswith("rd") and t.ins[0].tag is not None and t is not lastread.get(t.ins[0].tag):
                t.ins = []
            if "d" in ab and t.name == "dma" and "offset:3072" not in t.ins[0].text:
                t.ins = []
    return linearize(mf, gaps)


def slow_path(s, name):
    c = []
    V = lambda t: c.append(valu(t))
    j = s["j"]
    c.append(I(f"L_slow_{name}:", "LAB"))
    c.append(nop(15))
    t, u, x, y = ET, ET + 1, ET + 2, ET + 3
    for blk in range(3):
        if blk not in s["blks"]:
            V(f"v_mov_b32 v{vF[blk]}, 1.0")
            continue
        s0, s1 = Sreg(j, 0, blk), Sreg(j, 1, blk)
        V(f"v_max3_f32 v{t}, v{s0}, v{s0 + 1}, v{s0 + 2}")
        V(f"v_max3_f32 v{t}, v{t}, v{s0 + 3}, v{s1}")
        V(f"v_max3_f32 v{t}, v{t}, v{s1 + 1}, v{s1 + 2}")
        V(f"v_max_f32 v{t}, v{t}, v{s1 + 3}")
        for sw in ("v_permlane32_swap_b32", "v_permlane16_swap_b32"):
            V(f"v_mov_b32 v{u}, v{t}")
            V(f"{sw} v{t}, v{u}")
            V(f"v_max_f32 v{t}, v{t}, v{u}")
        V(f"v_ceil_f32 v{t}, v{t}")
        V(f"v_max_f32 v{t}, 0, v{t}")
        V(f"v_exp_f32 v{vF[blk]}, -v{t}")
        for base in [NEGM[blk], s0, s1] + s["later_blk"].get(blk, []):
            for r in range(4):
                V(f"v_sub_f32 v{base + r}, v{base + r}, v{t}")
        for jj in s["pend"]:
            if blk == 2 and not (jj & 1):
                continue
            for r in range(4):
                p = Preg(jj, blk) + r
                V(f"v_lshlrev_b32 v{x}, 16, v{p}")
                V(f"v_and_b32 v{y}, 0xffff0000, v{p}")
                V(f"v_mul_f32 v{x}, v{x}, v{vF[blk]}")
                V(f"v_mul_f32 v{y}, v{y}, v{vF[blk]}")
                V(f"v_cvt_pk_bf16_f32 v{p}, v{x}, v{y}")
        ts = TS[j & 1][blk]
        V(f"v_mov_b32 v{ts}, 0")
        for kt in range(2):
            for pr in range(2):
                sr = Sreg(j, kt, blk) + 2 * pr
                V(f"v_exp_f32 v{x}, v{sr}")
                V(f"v_exp_f32 v{y}, v{sr + 1}")
                V(f"v_cvt_pk_bf16_f32 v{Preg(j, blk) + 2 * kt + pr}, v{x}, v{y}")
                V(f"v_add_f32 v{ts}, v{x}, v{ts}")
                V(f"v_add_f32 v{ts}, v{y}, v{ts}")
    return c


def slow_tail(names):
    c = []
    V = lambda t: c.append(valu(t))
    c.append(I("L_slow_tail:", "LAB"))
    for blk in range(3):
        V(f"v_mul_f32 v{LS[blk]}, v{LS[blk]}, v{vF[blk]}")
        for r in range(0, 64, 4):
            for k in range(4):
                c.append(AR(ET + k, OB[blk] + r + k))
            for k in range(4):
                V(f"v_mul_f32 v{ET + k}, v{ET + k}, v{vF[blk]}")
            for k in range(4):
                c.append(I(f"v_accvgpr_write_b32 a{OB[blk] + r + k}, v{ET + k}", "V", [("v", ET + k)], [("a", OB[blk] + r + k)]))
    c.append(nop(3))
    for k, nm in enumerate(names):
        c.append(salu(f"s_cmp_eq_u32 s{sSite}, {k}"))
        c.append(I(f"s_cbranch_scc1 L_ret_{nm}", "BR"))
    c.append(I(f"s_branch L_ret_{names[-1]}", "BR"))
    return c


def xsum(c, r, u):
    for sw in ("v_permlane32_swap_b32", "v_permlane16_swap_b32"):
        c += [valu(f"v_mov_b32 v{u}, v{r}"), valu(f"{sw} v{r}, v{u}"), valu(f"v_add_f32 v{r}, v{r}, v{u}")]


WFR = [("v", 32), ("v", 64), ("a", 96), ("a", 128), ("a", 160), ("a", 192), ("a", 224)]
WSL = [2, 4, 0, 2, 3, 1, 4]
FSB = 96
RI, RA, RB = [QA[0], QA[1]], [QA[2], vU[0]], [vU[1], vX]


def OFR(blk, kb):
    n = blk * 8 + kb
    return ("a", 4 * n) if n < 24 else ("v", 128 + 4 * (n - 24))


def wfrag_reads(c, o):
    off = WSL[o] * SLOT
    a = vU[2] if off < 65536 else (vU[3] if off < 131072 else vU[4])
    off &= 65535
    k, b = WFR[o]
    for kb in range(8):
        for e in range(2):
            c.append(ds_rtr((k, b + 4 * kb + 2 * e), a, off + kb * 4096 + e * 2048))


def tail_setup(c):
    S = lambda t: c.append(salu(t))
    V = lambda t: c.append(valu(t))
    if OPT.get("cpf2", 1):
        c.append(raw(f"s_getpc_b64 s[{sT2}:{sT3}]"))
        S(f"s_lshl_b32 s{sT1}, s{sW}, 13")
        V(f"v_lshlrev_b32 v{vT2}, 7, v{vLANE}")
        V(f"v_add_u32 v{vT2}, s{sT1}, v{vT2}")
        V(f"v_min_u32 v{vT2}, {OPT.get('cpf2max', 20000)}, v{vT2}")
        c.append(I(f"global_load_dword v{vX}, v{vT2}, s[{sT2}:{sT3}]", "D", [("v", vT2)], [("v", vX)]))
    V(f"v_and_b32 v{vU[1]}, 7, v{vLANE}")
    V(f"v_lshlrev_b32 v{vU[1]}, 2, v{vU[1]}")
    S(f"s_lshl_b32 s91, s{sB}, 5")
    S(f"s_mov_b32 s{sIN + 1}, 0x01010101")
    c.append(bload(1, ("v", vU[0]), vU[1], sDBG, 91, 0, " sc0 sc1"))
    srd(c, sOUT, 10, 8 * 160 * 448 * 2)
    S(f"s_mul_i32 s{sE0}, s{sID}, {EX_WG}")
    S(f"s_xor_b32 s{sT1}, s{sID}, 16")
    S(f"s_mul_i32 s{sE1}, s{sT1}, {EX_WG}")
    S(f"s_add_u32 s{sE4}, s{sE0}, s{sE6}")
    S(f"s_add_u32 s{sE5}, s{sE4}, 4096")
    S(f"s_lshl_b32 s{sT3}, s{sW}, 9")
    S(f"s_add_u32 s{sT2}, s{sT3}, {4 * SLOT}")
    S(f"s_add_u32 s{sT3}, s{sT3}, s{sE0}")
    S(f"s_add_u32 s{sT3}, s{sT3}, 40960")
    V(f"v_lshlrev_b32 v{vT2}, 3, v{vLANE}")
    V(f"v_add_u32 v{XA[0]}, s{sT2}, v{vT2}")
    V(f"v_xor_b32 v{XA[1]}, 1024, v{XA[0]}")
    S(f"s_lshl_b32 s{sT1}, s{sW}, 5")
    V(f"v_xor_b32 v{vU[2]}, s{sT1}, v{LV[0]}")
    V(f"v_add_u32 v{vU[3]}, 0x10000, v{vU[2]}")
    V(f"v_add_u32 v{vU[4]}, 0x20000, v{vU[2]}")


def merge_coef(c, nm_o, l_o, pst_, co, cp, t):
    V = lambda x: c.append(valu(x))
    V(f"v_min_f32 v{t}, v{nm_o}, v{pst_}")
    V(f"v_sub_f32 v{co}, v{t}, v{nm_o}")
    V(f"v_sub_f32 v{cp}, v{t}, v{pst_}")
    V(f"v_exp_f32 v{co}, v{co}")
    V(f"v_exp_f32 v{cp}, v{cp}")
    V(f"v_mul_f32 v{t}, v{co}, v{l_o}")
    V(f"v_fmac_f32 v{t}, v{cp}, v{pst_ + 1}")
    V(f"v_rcp_f32 v{t}, v{t}")
    V(f"v_mul_f32 v{co}, v{co}, v{t}")
    V(f"v_mul_f32 v{cp}, v{cp}, v{t}")
    V(f"v_mov_b32 v{co + 1}, v{co}")
    V(f"v_mov_b32 v{cp + 1}, v{cp}")


def pk(op, d, *src):
    return valu(f"{op} v[{d}:{d + 1}], " + ", ".join(f"v[{x}:{x + 1}]" for x in src))


def decode(c):
    S = lambda t: c.append(salu(t))
    V = lambda t: c.append(valu(t))
    S(f"s_mul_i32 s{sC1}, s{sH}, 288")
    S(f"s_mul_i32 s{sT1}, s{sW}, 72")
    S(f"s_add_u32 s{sC1}, s{sC1}, s{sT1}")
    S(f"s_lshr_b32 s{sT1}, s{sH}, 2")
    S(f"s_mul_i32 s{sT2}, s{sT1}, 18")
    S(f"s_lshl_b32 s{sT1}, s{sT1}, 5")
    S(f"s_mul_i32 s{sT3}, s{sB}, 160")
    S(f"s_lshl_b32 s{sD}, s{sSP}, 4")
    S(f"s_add_u32 s{sT3}, s{sT3}, s{sD}")
    S(f"s_mul_i32 s{sT3}, s{sT3}, 896")
    S(f"s_add_u32 s{sT3}, s{sT3}, s{sT1}")
    S(f"s_mov_b32 s{sD}, {PART_WG}")
    for n in range(2):
        g, k, x, y = vK0, vK1, vV, vT0
        if n == 0:
            V(f"v_add_u32 v{g}, s{sC1}, v{vLANE}")
            V(f"v_lshlrev_b32 v{RI[n]}, 4, v{g}")
        else:
            V(f"v_and_b32 v{g}, 7, v{vLANE}")
            V(f"v_add_u32 v{g}, s{sC1}, v{g}")
            V(f"v_add_u32 v{g}, 64, v{g}")
            V(f"v_lshrrev_b32 v{k}, 3, v{vLANE}")
            V(f"v_mul_lo_u32 v{k}, v{k}, s{sD}")
            V(f"v_lshl_add_u32 v{RI[n]}, v{g}, 4, v{k}")
        V(f"v_lshrrev_b32 v{k}, 6, v{g}")
        V(f"v_subrev_u32 v{k}, s{sT2}, v{k}")
        V(f"v_and_b32 v{x}, 15, v{g}")
        V(f"v_mul_u32_u24 v{x}, 896, v{x}")
        V(f"v_bfe_u32 v{y}, v{g}, 4, 2")
        V(f"v_lshl_add_u32 v{x}, v{y}, 3, v{x}")
        V(f"v_add_u32 v{x}, s{sT3}, v{x}")
        z = VA[1]
        V(f"v_lshrrev_b32 v{y}, 1, v{k}")
        V(f"v_lshlrev_b32 v{g}, 1, v{k}")
        V(f"v_subrev_u32 v{g}, 28, v{g}")
        V(f"v_cmp_gt_u32 vcc, 14, v{k}")
        V(f"v_cndmask_b32 v{y}, v{g}, v{y}, vcc")
        V(f"v_add_u32 v{g}, 1, v{y}")
        V(f"v_cndmask_b32 v{z}, v{g}, v{y}, vcc")
        V(f"v_and_b32 v{g}, 1, v{k}")
        V(f"v_mul_u32_u24 v{g}, {64 * 896}, v{g}")
        V(f"v_mov_b32 v{RB[n]}, {128 * 896}")
        V(f"v_cndmask_b32 v{g}, v{RB[n]}, v{g}, vcc")
        V(f"v_add_u32 v{RA[n]}, v{x}, v{g}")
        V(f"v_mov_b32 v{g}, {32 * 896}")
        V(f"v_cndmask_b32 v{g}, 0, v{g}, vcc")
        V(f"v_add_u32 v{RB[n]}, v{RA[n]}, v{g}")
        for pz, dst in ((y, RA[n]), (z, RB[n])):
            V(f"v_add_u32 v{pz}, s{sRot}, v{pz}")
            V(f"v_subrev_u32 v{g}, 7, v{pz}")
            V(f"v_min_u32 v{pz}, v{pz}, v{g}")
            V(f"v_lshl_add_u32 v{dst}, v{pz}, 7, v{dst}")
        V(f"v_mov_b32 v{g}, {OOB:#x}")
        V(f"v_cmp_eq_u32 vcc, 17, v{k}")
        V(f"v_cndmask_b32 v{RB[n]}, v{RB[n]}, v{g}, vcc")
        if n:
            V(f"v_cmp_gt_u32 vcc, 8, v{vLANE}")
            for r in (RA[1], RB[1]):
                V(f"v_cndmask_b32 v{r}, v{g}, v{r}, vcc")


def tail():
    c = []
    S = lambda t: c.append(salu(t))
    V = lambda t: c.append(valu(t))
    W = lambda t: c.append(I(f"s_waitcnt {t}", "W"))
    BAR = lambda: c.append(I("s_barrier", "B"))
    HK, OWN, HSB, PH = 192, 128, 160, 224
    hs, fs_p, hs_p, own_nm = 246, 240, 242, 244
    c += pst()
    V(f"v_add_u32 v{KA[0]}, s{sE6}, v{vST}")
    V(f"v_xor_b32 v{KA[1]}, 16384, v{KA[0]}")
    V(f"v_mov_b32 v{hs}, v{NEGM[2]}")
    V(f"v_mov_b32 v{hs + 1}, v{LS[2]}")
    V(f"v_mov_b32 v{own_nm}, v{NEGM[0]}")
    c.append(ds_w64(XA[0], ("v", hs), 0))
    S(f"s_cmp_eq_u32 s{sXW}, 0")
    c.append(I("s_cbranch_scc1 L_h0", "BR"))
    for half, lab, nxt in ((1, None, "L_h1"), (0, "L_h0", None)):
        if lab:
            c.append(I(f"{lab}:", "LAB"))
        for T in range(8):
            i = ds_w128(KA[0], ("a", OB[2] + 32 * (1 - half) + 4 * T), SLOT + T * 1024)
            if half == 1:
                i.kind = "X"
            c.append(i)
        for r in range(32):
            c.append(AR(HK + r, OB[2] + 32 * half + r))
        if nxt:
            c.append(I(f"s_branch {nxt}", "BR"))
    c.append(I("L_h1:", "LAB"))
    S(f"s_lshl_b32 s{sT0}, s{sXW}, 12")
    S(f"s_add_u32 s{sT0}, s{sT0}, 32768")
    S(f"s_lshl_b32 s{sT1}, s{sXW}, 9")
    S(f"s_add_u32 s{sT1}, s{sT1}, 43008")
    S(f"s_cmp_eq_u32 s{sHW}, 1")
    S(f"s_cselect_b32 s{sT2}, s{sE0}, {OOB:#x}")
    S(f"s_cselect_b32 s{sT3}, {OOB:#x}, s{sE1}")
    S(f"s_add_u32 s{sE2}, s{sT3}, s{sT0}")
    S(f"s_add_u32 s{sE3}, s{sT3}, s{sT1}")
    S(f"s_add_u32 s{sE4}, s{sT2}, s{sT0}")
    S(f"s_add_u32 s{sE5}, s{sT2}, s{sT1}")
    W("lgkmcnt(0)")
    BAR()
    c += pst()
    c.append(ds_r64(("v", hs_p), XA[1], 0))
    for T in range(8):
        c.append(ds_r128(("v", OWN + 4 * T), KA[1], SLOT + T * 1024))
    W("vmcnt(0)")
    S(f"s_mov_b32 s{sCnt}, 0")
    c.append(I("L_an:", "LAB"))
    V(f"v_cmp_ne_u32 vcc, s{sIN + 1}, v{vU[0]}")
    S(f"s_add_u32 s{sCnt}, s{sCnt}, 1")
    c.append(I("s_cbranch_vccz L_and", "BR", [("vcc", 0)]))
    c.append(raw(f"buffer_load_dword v{vU[0]}, v{vU[1]}, s[{sDBG}:{sDBG + 3}], s91 offen sc0 sc1", "X"))
    c.append(raw("s_waitcnt vmcnt(0)", "X"))
    S(f"s_cmp_lt_u32 s{sCnt}, 300000")
    c.append(I("s_cbranch_scc1 L_an", "BR"))
    c.append(I("L_and:", "LAB"))
    S(f"s_xor_b32 s{sC1}, s{sIN}, {16 << ISH}")
    S(f"s_lshl_b32 s{sT1}, s{sW}, 2")
    S(f"s_add_u32 s{sC1}, s{sC1}, s{sT1}")
    V(f"v_mov_b32 v{vT0}, 1")
    V(f"v_mov_b32 v{vT1}, 0")
    c.append(bstore(1, ("v", vT0), vT1, sWS, sC1, 64, FLF))
    nm, a_o, a_p = 253, 248, 236
    V(f"v_min_f32 v{nm}, v{hs}, v{hs_p}")
    V(f"v_sub_f32 v{a_o}, v{nm}, v{hs}")
    V(f"v_sub_f32 v{a_p}, v{nm}, v{hs_p}")
    V(f"v_exp_f32 v{a_o}, v{a_o}")
    V(f"v_exp_f32 v{a_p}, v{a_p}")
    V(f"v_mov_b32 v{hs}, v{nm}")
    V(f"v_mul_f32 v{hs + 1}, v{a_o}, v{hs + 1}")
    V(f"v_fmac_f32 v{hs + 1}, v{a_p}, v{hs_p + 1}")
    V(f"v_mov_b32 v{a_o + 1}, v{a_o}")
    V(f"v_mov_b32 v{a_p + 1}, v{a_p}")
    c.append(bstore(2, ("v", hs), vT2, sWS, sE5, 0, STF))
    for r in range(0, 32, 2):
        c.append(pk("v_pk_mul_f32", HK + r, HK + r, a_o))
    for T in range(8):
        for r in (0, 2):
            c.append(pk("v_pk_fma_f32", HK + 4 * T + r, OWN + 4 * T + r, a_p, HK + 4 * T + r))
        V(f"v_cvt_pk_bf16_f32 v{HSB + 2 * T}, v{HK + 4 * T}, v{HK + 4 * T + 1}")
        V(f"v_cvt_pk_bf16_f32 v{HSB + 2 * T + 1}, v{HK + 4 * T + 2}, v{HK + 4 * T + 3}")
        if T & 1:
            c.append(bstore(4, ("v", HSB + 2 * (T - 1)), vST, sWS, sE4, (T >> 1) * 1024, STF))
    c += pst()
    c += [AR(OWN + r, OB[0] + r) for r in range(64)]
    S(f"s_add_u32 s{sT1}, s{sE1}, s{sE6}")
    S(f"s_add_u32 s{sT2}, s{sT1}, 4096")
    S(f"s_lshl_b32 s{sT3}, s{sW}, 9")
    S(f"s_add_u32 s{sT3}, s{sT3}, s{sE1}")
    S(f"s_add_u32 s{sT3}, s{sT3}, 40960")
    S(f"s_lshl_b32 s{sT0}, s{sW}, 2")
    S(f"s_add_u32 s{sT0}, s{sT0}, s{sIN}")
    S(f"s_or_b32 s{sC2}, s{sT0}, 4")
    c += pst()

    def poll(lab, sreg, off, first=None):
        pv = 253
        S(f"s_mov_b32 s{sCnt}, 0")
        ld = f"buffer_load_dword v{pv}, v{vT1}, s[{sWS}:{sWS + 3}], s{sreg} offen offset:{off}{FLF}"
        if first:
            c.append(raw(ld, "X"))
            c.append(raw("s_waitcnt vmcnt(0)", "X"))
            c.extend(first)
            c.append(I(f"s_branch {lab}c", "BR"))
        c.append(I(f"{lab}:", "LAB"))
        c.append(raw(ld, "X"))
        S(f"s_add_u32 s{sCnt}, s{sCnt}, 1")
        c.append(raw("s_waitcnt vmcnt(0)", "X"))
        c.append(I(f"{lab}c:", "LAB"))
        V(f"v_readfirstlane_b32 s{sD}, v{pv}")
        S(f"s_cmp_gt_u32 s{sCnt}, 300000")
        c.append(I(f"s_cbranch_scc1 {lab}d", "BR"))
        S(f"s_cmp_eq_u32 s{sD}, 0")
        c.append(I(f"s_cbranch_scc1 {lab}", "BR"))
        c.append(I(f"{lab}d:", "LAB"))

    poll("L_p1", sT0, 64, [bstore(1, ("v", vT0), vT1, sWS, sC1, 80, FLF)])
    c += pst()
    c.append(bload(2, ("v", fs_p), vT2, sWS, sT3, 0, LDF))
    for kb in range(8):
        c.append(bload(4, ("v", FSB + 4 * kb), vST, sWS, sT1 if kb < 4 else sT2, (kb & 3) * 1024, LDF))
    BAR()
    c += pst()
    f = []
    wfrag_reads(f, 2)
    wfrag_reads(f, 3)
    decode(f)
    for o in range(4, 4 + OPT.get("wearly", 0)):
        for pre, d in wo_dma(o, WSL[o])[0]:
            c += [f.pop(0) for _ in range(min(12, len(f)))] + pre + [d]
    c += f
    c += pst()
    poll("L_p1h", sC2, 80)
    c.append(bload(2, ("v", hs_p), vT2, sWS, sE3, 0, LDF))
    for kb in range(4):
        c.append(bload(4, ("v", PH + 4 * kb), vST, sWS, sE2, kb * 1024, LDF))
    W("lgkmcnt(0)")
    BAR()
    S(f"s_lshl_b32 s{sT0}, s{sXW}, 12")
    S(f"s_lshl_b32 s{sT1}, s{sHW}, 13")
    S(f"s_add_u32 s{sT0}, s{sT0}, s{sT1}")
    S(f"s_add_u32 s{sT0}, s{sT0}, {2 * SLOT}")
    V(f"v_add_u32 v{KA[1]}, s{sT0}, v{vST}")
    S(f"s_mul_i32 s{sE0}, s{sID}, {PART_WG}")
    S(f"s_mul_i32 s{sT0}, s{sW}, {18 * 1024}")
    S(f"s_add_u32 s{sE0}, s{sE0}, s{sT0}")
    S(f"s_add_u32 s{sE0}, s{sE0}, {PART0}")
    S(f"s_add_u32 s{sE1}, s{sE0}, {14 * 1024}")
    V(f"v_add_u32 v{XA[0]}, {2 * SLOT}, v{vST}")
    c += pst()
    co, cp, ch, cq = 248, 254, vK0, VA[0]
    u = [vU[2] + 1, 252]
    u = [240, 244]
    for own_, pay, n, cc, cs, addr in ((OWN, FSB, 8, cp, co, KA[0]), (HK, PH, 4, cq, ch, KA[1])):
        if own_ == OWN:
            merge_coef(c, own_nm, LS[0], fs_p, co, cp, 253)
        else:
            W("vmcnt(0)")
            merge_coef(c, hs, hs + 1, hs_p, ch, cq, 253)
        for kb in range(n):
            for r in range(4):
                p, o, t = pay + 4 * kb + r, own_ + 8 * kb + 2 * r, u[r & 1]
                c.append(pk("v_pk_mul_f32", o, o, cs))
                V(f"v_lshlrev_b32 v{t}, 16, v{p}")
                V(f"v_and_b32 v{t + 1}, 0xffff0000, v{p}")
                c.append(pk("v_pk_fma_f32", o, t, cc, o))
                V(f"v_cvt_pk_bf16_f32 v{p}, v{o}, v{o + 1}")
            c.append(ds_w128(addr, ("v", pay + 4 * kb), kb * 1024))
    W("lgkmcnt(0)")
    BAR()
    return c


def o_phase():
    mf, tasks = [], []
    ACC = [192, 212]
    PK = [[232, 236], [240, 244]]
    HST = 248
    prev = None
    for kb in range(8):
        for blk in range(5):
            c0 = kb * 5 + blk
            i = ds_r128(OFR(blk, kb), vST, blk * 8192 + kb * 1024) if blk < 4 else ds_r128(OFR(blk, kb), XA[0], kb * 1024)
            prev = Task(i, "L", rel=-1, dl=-1 if c0 < 10 else c0 - 8, deps=[(prev, 0)] if prev else [], name="ord")
            tasks.append(prev)
    pd = Task([], "S", rel=0, name="dmastart")
    tasks.append(pd)
    for o in range(4 + OPT.get("wearly", 0), 7):
        pd = add_dma(tasks, wo_dma(o, WSL[o])[0], [], pd, 0, 40 * o - 60, spread=0, gapmin=OPT.get("ogap", 4))
    for o in (4, 5, 6):
        if o >= 4 + OPT.get("wearly", 0):
            prev = Task(wait_bar([("WO", o)], None), "BAR", rel=40 * o - 34, deps=[(prev, 0)], name="latebar")
            tasks.append(prev)
        cc = []
        wfrag_reads(cc, o)
        for k, i in enumerate(cc):
            prev = Task(i, "L", dl=40 * o + (k >> 1) - 8, deps=[(prev, 0)], name="wrd")
            tasks.append(prev)
    prev_st, prev_inc = {}, None
    for o in range(7):
        p = o & 1
        firstm = len(mf)
        lastm = {}
        for kb, blk in ([(kb, blk) for kb in range(8) for blk in range(5)] if o == 0 else [(kb, blk) for blk in range(5) for kb in range(8)]):
            d = ("v", ACC[p] + 4 * blk)
            mf.append(mfma(d, (WFR[o][0], WFR[o][1] + 4 * kb), OFR(blk, kb), 0 if kb == 0 else d))
            lastm[blk] = len(mf) - 1
        dl = firstm + 80 - 3
        cvs = {}
        for blk in range(5):
            for h in range(2):
                dst, key = (HST + 2 * p + h, "H") if blk == 4 else (PK[p][blk >> 1] + 2 * (blk & 1) + h, (p, blk >> 1))
                s = ACC[p] + 4 * blk + 2 * h
                t = Task(valu(f"v_cvt_pk_bf16_f32 v{dst}, v{s}, v{s + 1}"), "V", rel=lastm[blk] + MLAT, dl=dl,
                         deps=[(prev_st[key], 2)] if key in prev_st else [], name="cvt")
                tasks.append(t)
                cvs.setdefault(key, []).append(t)
        sts = []
        for pr in range(2):
            st = Task(bstore(4, ("v", PK[p][pr]), vST, sWS, sE0, p * 2048 + pr * 1024, STF), "D",
                      deps=[(t, 1) for t in cvs[(p, pr)]] + ([(prev_inc, 0)] if prev_inc else []), name="st")
            tasks.append(st)
            prev_st[(p, pr)] = st
            sts.append(st)
        if p == 0:
            hcv, sts0 = cvs["H"], sts
        if p == 1 or o == 6:
            st = Task(bstore(4, ("v", HST), vST, sWS, sE1, (o >> 1) * 1024, STF), "D", deps=[(t, 1) for t in hcv + cvs["H"]], name="stH")
            tasks.append(st)
            prev_st["H"] = st
            prev_inc = Task(salu(f"s_add_u32 s{sE0}, s{sE0}, 4096"), "S", deps=[(t, 0) for t in sts + sts0], name="inc")
            tasks.append(prev_inc)
    gaps = schedule(mf, tasks, verbose=True)
    for o in range(7):
        mf[40 * o].mark = ("N", o)
    return linearize(mf, gaps)


def final():
    c = []
    S = lambda t: c.append(salu(t))
    V = lambda t: c.append(valu(t))
    W = lambda t: c.append(I(f"s_waitcnt {t}", "W"))
    S(f"s_and_b32 s{sT0}, s{sID}, 0xf0")
    S(f"s_mul_i32 s{sE2}, s{sT0}, {PART_WG}")
    S(f"s_add_u32 s{sE2}, s{sE2}, {PART0}")
    S(f"s_add_u32 s{sE3}, s{sE2}, {8 * PART_WG}")
    S(f"s_lshl_b32 s{sT1}, s{sW}, 2")
    S(f"s_add_u32 s{sT1}, s{sT1}, s{sT0}")
    S(f"s_lshl_b32 s{sT1}, s{sT1}, {ISH}")
    S(f"s_lshl_b32 s{sT2}, s{sH}, 2")
    S(f"s_add_u32 s{sT1}, s{sT1}, s{sT2}")
    S(f"s_add_u32 s{sT1}, s{sT1}, {INBOX}")
    V(f"v_and_b32 v{vK0}, 3, v{vLANE}")
    V(f"v_lshlrev_b32 v{vK0}, {ISH}, v{vK0}")
    V(f"v_and_b32 v{vK1}, 15, v{vLANE}")
    V(f"v_lshlrev_b32 v{vK1}, 2, v{vK1}")
    V(f"v_mov_b32 v{vT0}, 1")
    c += pst()
    c.append(raw(f"buffer_load_dword v{vV}, v{vK1}, s[{sWS}:{sWS + 3}], s{sIN} offen{FLF}", "X"))
    W("vmcnt(0)")
    c += pst()
    c.append(bstore(1, ("v", vT0), vK0, sWS, sT1, 0, FLF))
    S(f"s_mov_b32 s{sCnt}, 0")
    S(f"s_mov_b32 s{sT2}, 0")
    c.append(I("L_p2:", "LAB"))
    V(f"v_cmp_ne_u32 vcc, 0, v{vV}")
    S(f"s_add_u32 s{sCnt}, s{sCnt}, 1")
    c.append(I(f"s_and_b32 s{sT3}, vcc_lo, 0xffff", "S", [("vcc", 0)], [("s", sT3)]))
    S(f"s_cmp_gt_u32 s{sCnt}, 300000")
    S(f"s_cselect_b32 s{sT3}, 0xffff, s{sT3}")
    S(f"s_andn2_b32 s{sT1}, s{sT3}, s{sT2}")
    S(f"s_mov_b32 s{sT2}, s{sT3}")
    for p in range(16):
        c.append(raw(f"s_bitcmp1_b32 s{sT1}, {p}"))
        c.append(I(f"s_cbranch_scc0 L_g{p}", "BR"))
        S(f"s_add_u32 s{sD}, s{sE2}, {p * PART_WG}")
        i = bload(4, ("v", 32 + p * 4), RI[0], sWS, sD, 0, LDF)
        i.kind = "X"
        c.append(i)
        c.append(I(f"L_g{p}:", "LAB"))
    S(f"s_cmp_eq_u32 s{sT2}, 0xffff")
    c.append(I("s_cbranch_scc1 L_p2d", "BR"))
    c.append(raw(f"buffer_load_dword v{vV}, v{vK1}, s[{sWS}:{sWS + 3}], s{sIN} offen{FLF}", "X"))
    c.append(raw("s_waitcnt vmcnt(0)", "X"))
    c.append(I("s_branch L_p2", "BR"))
    c.append(I("L_p2d:", "LAB"))
    c += pst()
    c.append(bload(4, ("v", 96), RI[1], sWS, sE2, 0, LDF))
    c.append(bload(4, ("v", 100), RI[1], sWS, sE3, 0, LDF))
    A0, A1, U = 192, 200, [208, 210]
    c += pst()

    def acc(a, x, first):
        for r in range(4):
            t = a + 2 * r if first else U[r & 1]
            V(f"v_lshlrev_b32 v{t}, 16, v{x + r}")
            V(f"v_and_b32 v{t + 1}, 0xffff0000, v{x + r}")
            if not first:
                c.append(pk("v_pk_add_f32", a + 2 * r, a + 2 * r, t))

    W("vmcnt(2)")
    c += pst()
    for p in range(16):
        acc(A0, 32 + 4 * p, p == 0)
    W("vmcnt(0)")
    acc(A1, 96, True)
    acc(A1, 100, False)
    for sw in ("v_permlane32_swap_b32", "v_permlane16_swap_b32"):
        for r in range(8):
            V(f"v_mov_b32 v{212 + r}, v{A1 + r}")
        for r in range(8):
            V(f"{sw} v{A1 + r}, v{212 + r}")
        for r in range(0, 8, 2):
            c.append(pk("v_pk_add_f32", A1 + r, A1 + r, 212 + r))
    c.append(nop(1))
    for r in range(8):
        c.append(I(f"v_add_f32_dpp v{A1 + r}, v{A1 + r}, v{A1 + r} row_ror:8 row_mask:0xf bank_mask:0xf", "V", [("v", A1 + r)], [("v", A1 + r)]))
    for n, a in enumerate((A0, A1)):
        for r in range(4):
            V(f"v_cvt_pk_bf16_f32 v{220 + n * 4 + r}, v{a + 2 * r}, v{a + 2 * r + 1}")
        c.append(bstore(2, ("v", 220 + n * 4), RA[n], sOUT, "0", 0))
        c.append(bstore(2, ("v", 220 + n * 4 + 2), RB[n], sOUT, "0", 0))
    c += pst() + pst()
    return c


def norm(ins):
    t = ins.text
    if "@" in t:
        a, b = t.split("@")
        if b.startswith("CODE"):
            return t
        return f"{a}@{int(b.rstrip(':')) % 4}"
    return t


def fold(code):
    segs, cur, keys, key = [], [], [], None
    for ins in code:
        if ins.kind == "M" and ins.mark is not None:
            segs.append(cur)
            keys.append(key)
            cur, key = [], ins.mark
        if ins.kind == "LAB" and ins.tag and ins.tag[0] == "cut":
            segs.append(cur)
            keys.append(key)
            cur, key = [], None
            continue
        cur.append(ins)
    segs.append(cur)
    keys.append(key)
    print("; est cycles/seg:", [gap_cost(s) for s in segs])
    txt = [tuple(norm(i) for i in s) for s in segs]
    out, i, nloop, n = [], 0, 0, len(segs)
    sitekey = lambda s: (s["j"] % 4, tuple(sorted((b, tuple(v)) for b, v in s["later_blk"].items())), tuple(x % 4 for x in s["pend"]), s["blks"])
    sinfo = {s["j"]: s for s in sites}
    sites_in = lambda seg: [sitekey(sinfo[x.tag[1]]) for x in seg if x.kind == "BR" and x.tag and x.tag[0] == "site"]
    while i < n:
        k = 1
        if keys[i] is not None:
            p = {"M": 4, "Q": 2}.get(keys[i][0], 1)
            while i + (k + 1) * p <= n and all(keys[i + k * p + r] is not None and txt[i + k * p + r] == txt[i + r] and
                                               sites_in(segs[i + k * p + r]) == sites_in(segs[i + r]) for r in range(p)):
                k += 1
        if k >= 2:
            x = 0
            while x < p - 1 and i + k * p + x < n and keys[i + k * p + x] is not None and txt[i + k * p + x] == txt[i + x] and \
                    sites_in(segs[i + k * p + x]) == sites_in(segs[i + x]):
                x += 1
            out.append(salu(f"s_mov_b32 s{sCnt}, {k + (1 if x else 0)}"))
            out.append(I(f"L_loop{nloop}:", "LAB"))
            for r in range(p):
                out += segs[i + r]
                if x and r == x - 1:
                    out += [salu(f"s_sub_u32 s{sCnt}, s{sCnt}, 1"), salu(f"s_cmp_eq_u32 s{sCnt}, 0"), I(f"s_cbranch_scc1 L_exit{nloop}", "BR")]
            if x:
                out += [I(f"s_branch L_loop{nloop}", "BR"), I(f"L_exit{nloop}:", "LAB")]
            else:
                out += [salu(f"s_sub_u32 s{sCnt}, s{sCnt}, 1"), salu(f"s_cmp_lg_u32 s{sCnt}, 0"), I(f"s_cbranch_scc1 L_loop{nloop}", "BR")]
            nloop += 1
            i += p * k + x
        else:
            out += segs[i]
            i += 1
    return out


def cut():
    return I("", "LAB", tag=("cut",))


def build():
    code = prologue() + stamp(1) + q_phase() + [cut()] + stamp(2) + q_finish() + stamp(3) + main_phase() + [cut()] + stamp(4)
    code += tail() + stamp(6) + o_phase() + [cut()] + final()
    if STAMP:
        nc = []
        for ins in code:
            nc.append(ins)
            if ins.kind == "M" and ins.mark is not None:
                if ins.mark[0] == "N" and ins.mark[1] not in (0,):
                    continue
                if OPT.get("light") and ins.mark[0] == "M" and 4 <= ins.mark[1] <= 27:
                    continue
                nc += pst()[1:]
        code = [raw("s_mov_b64 s[80:81], 1"), raw("s_mov_b32 s96, 0")] + nc
    if OPT.get("padstep"):
        nc = []
        for ins in code:
            nc.append(ins)
            if ins.kind == "M" and ins.mark is not None and ins.mark[0] == OPT.get("padph", "M"):
                nc += [nop(15) for _ in range(OPT["padstep"])]
        code = nc
    code = insert_lgkm_waits(code, age=OPT["age"])
    code = resolve_vm_waits(code)
    code, nf = check_hazards(code)
    print(f"; hazard nops inserted: {nf}; est cycles {gap_cost(code)}")
    code = fold(code)
    names, slow = [], []
    sinfo = {s["j"]: s for s in sites}
    for ins in code:
        ins.text = ins.text.replace("@CODEMAX", str(OPT.get("codemax", 45056))).replace("@", "")
        if ins.kind == "BR" and ins.tag and ins.tag[0] == "site":
            j = ins.tag[1]
            sp = slow_path(sinfo[j], str(j)) + [salu(f"s_mov_b32 s{sSite}, {len(names)}"), I("s_branch L_slow_tail", "BR")]
            names.append(str(j))
            slow += check_hazards(sp)[0]
    slow += check_hazards(slow_tail(names))[0]
    fin = []
    if STAMP:
        fin.append(I("s_waitcnt vmcnt(0) lgkmcnt(0)", "W"))
        fin += [raw(f"s_memtime s[100:101]"), raw(f"s_memrealtime s[96:97]"), I("s_waitcnt lgkmcnt(0)", "W")]
        for t in (f"s_lshl_b32 s{sT0}, s2, 2", f"s_add_u32 s{sT0}, s{sT0}, s{sW}", f"s_lshl_b32 s{sT0}, s{sT0}, 6",
                  f"s_lshl_b32 s{sT1}, s{sT0}, 2", f"s_add_u32 s{sT0}, s{sT0}, {128 << 20}", f"s_add_u32 s{sT1}, s{sT1}, {132 << 20}"):
            fin.append(salu(t))
        fin.append(valu(f"v_mov_b32 v{vT0}, 0"))
        for k in range(8):
            fin.append(valu(f"v_mov_b32 v{128 + k}, s{[84, 84, 92, 94, 86, 84, 84, 84][k]}"))
        fin += [valu("v_mov_b32 v136, s100"), valu("v_mov_b32 v137, s96"), valu("v_mov_b32 v138, s98")]
        for k in range(0, 12, 4):
            fin.append(bstore(4, ("v", 128 + k), vT0, sWS, sT0, k * 4))
        fin.append(valu(f"v_lshlrev_b32 v{vT1}, 2, v{vLANE}"))
        fin.append(bstore(1, ("v", 0), vT1, sWS, sT1, 0))
    NAME = "standalone__gqa_block_cached__near_ridge_kernel"
    hdr = open("standalone__gqa_block_cached__near_ridge.s.ref").read().split("; Override launch")[0]
    L = [hdr.rstrip()]
    A = L.append
    A("; @launch grid=(256,1,1) block=(256,1,1) lds=163840")
    A('.amdgcn_target "amdgcn-amd-amdhsa--gfx950"')
    A(".text")
    A(f".globl {NAME}")
    A(".p2align 8")
    A(f".type {NAME},@function")
    A(f"{NAME}:")
    A("s_cmp_ge_u32 s2, 256")
    A("s_cbranch_scc1 L_end")
    if OPT.get("delay"):
        L += ["s_memrealtime s[8:9]", "s_waitcnt lgkmcnt(0)", f"s_add_u32 s10, s8, {OPT['delay'] * 100}", "L_dly:", "s_memrealtime s[8:9]", "s_waitcnt lgkmcnt(0)",
              "s_sub_u32 s11, s10, s8", "s_cmp_gt_i32 s11, 0", "s_cbranch_scc1 L_dly"]
    L += [i.text for i in code if i.text]
    L += [i.text for i in fin]
    if OPT.get("padto"):
        L += [f"s_add_u32 s10, s98, {OPT['padto'] * 100}", "L_pad:", "s_memrealtime s[8:9]", "s_waitcnt lgkmcnt(0)",
              "s_sub_u32 s11, s10, s8", "s_cmp_gt_i32 s11, 0", "s_cbranch_scc1 L_pad"]
    A("L_end:")
    A("s_endpgm")
    L += [i.text for i in slow]
    A('.section .rodata,"a"')
    A(".p2align 6")
    A(f".amdhsa_kernel {NAME}")
    for t in ("next_free_vgpr 512", "next_free_sgpr 102", "accum_offset 256", "group_segment_fixed_size 0", "kernarg_size 64",
              "user_sgpr_count 2", "user_sgpr_kernarg_segment_ptr 1", "system_sgpr_workgroup_id_x 1"):
        A(f"  .amdhsa_{t}")
    A(".end_amdhsa_kernel")
    return "\n".join(L) + "\n"


if __name__ == "__main__":
    out = [a for a in sys.argv[1:] if a.endswith(".s")]
    open(out[0] if out else "k2.s", "w").write(build())
```

```python
import sys
from sched import *

OPT = dict(debug=None, stamp=0, dist=15, age=7, stf="sc1", ldf="sc1", pref=0, rot=1, cpf=1, wearly=1, qx=0, fill=3, dmadl=10, barlag=3, ish=8, flf="sc1", codemax=48800)
for a in sys.argv[1:]:
    if "=" in a:
        k, v = a.split("=")
        OPT[k] = int(v) if v.lstrip("-").isdigit() else v
    elif a == "stamp":
        OPT["stamp"] = 1
import sched as _sc
for _k in _sc.SOPT:
    if _k in OPT:
        _sc.SOPT[_k] = OPT[_k]
STAMP, DEBUG = OPT["stamp"], OPT["debug"]
STF = " " + OPT["stf"].replace("+", " ") if OPT["stf"] else ""
LDF = " " + OPT["ldf"].replace("+", " ") if OPT["ldf"] else ""

sID = 3
sX, sK, sV, sWQ, sWO, sWS = 8, 12, 16, 20, 24, 28
sDBG, sOUT = 4, 20
INBOX = 48 << 20
sIN = 82
sRot, sXlim, sK3 = 88, 89, 90
sW, sXW, sHW, sB, sH, sSP = 32, 33, 34, 35, 36, 37
sKoff, sVoff, sDst, sDstLim, sDst0 = 38, 39, 40, 41, 42
sHalf, sC1, sC2, sD, sK2 = 43, 44, 45, 46, 47
sPat = 48
sT0, sT1, sT2, sT3 = 50, 51, 52, 53
sThr, sCnt, sSite = 54, 55, 56
sWoff, sXoff, sWdst, sXdst, sWrd, sXrd, sDX = 57, 58, 59, 60, 61, 62, 63
sE0, sE1, sE2, sE3, sE4, sE5, sE6 = 57, 58, 59, 60, 61, 62, 63
sArg = 64
sSt = 80

vLANE, vK0, vK1, vV, vWt, vX, vST = 1, 2, 3, 4, 5, 6, 7
KA = [8, 9]
XA = [10, 11]
VA = [12, 13, 14, 15]
QA = [16, 17, 18]
vU = [19, 20, 21, 22, 23]
LV = [24, 25, 26, 27]
LK0 = 28
vT0, vT1, vT2 = 29, 30, 31
QB = [32, 64, 96]
SB, PB = 128, 176
NEGM = [224, 228, 232]
ET = 236
TS = [[244, 245, 246], [247, 248, 249]]
LS = [250, 251, 252]
vC = 253
vF = [253, 254, 255]
OB = [0, 64, 128]
FB = 192
SLOT = 32768
XBASE, XSL = 3 * SLOT, 20480
EX_WG = 49152
PART0, PART_WG = 16 << 20, 73728
OOB = 0x7ff00000
QSCALE = 0x3DB8AA3B
ISH = OPT.get("ish", 7)
FLF = " " + OPT.get("flf", "sc0+sc1").replace("+", " ")
LEAD = OPT.get("lead", 0)
DIST, MLAT = OPT["dist"], 5


def Sreg(j, kt, blk):
    return SB + ((2 * j + kt) % 4) * 12 + blk * 4


def Preg(j, blk):
    return PB + (j % 4) * 12 + blk * 4


def waitr(vm_keys, lg_key):
    return I("s_waitcnt <resolve>", "W", tag=("resolve", vm_keys, lg_key))


def wait_bar(vm_keys, lg_key):
    return [waitr(vm_keys, lg_key), I("s_barrier", "B")]


def stamp(k):
    return [raw(f"s_memtime s[{84 + 2 * k}:{85 + 2 * k}]")] if STAMP and k < 1 else []


def pst():
    if not STAMP:
        return []
    return [raw("s_waitcnt lgkmcnt(0)", "W"), raw("s_mov_b32 s100, s96"), I("v_mov_b32 v28, s100", "V"), I("v_cndmask_b32 v0, v0, v28, s[80:81]", "V"),
            raw("s_memrealtime s[96:97]" if OPT.get("rt") else "s_memtime s[96:97]"), raw("s_lshl_b64 s[80:81], s[80:81], 1")]


def AR(v, a):
    return I(f"v_accvgpr_read_b32 v{v}, a{a}", "V", [("a", a)], [("v", v)])


def bload(n, dst, voff, srd, soff, imm, flags="", tag=None):
    suf = {1: "dword", 2: "dwordx2", 4: "dwordx4"}[n]
    t = f"buffer_load_{suf} {rtxt(dst[0], dst[1], n)}, v{voff}, s[{srd}:{srd + 3}], s{soff} offen offset:{imm}{flags}"
    return I(t, "D", [("v", voff), ("s", soff)] + R("s", srd, 4), R(dst[0], dst[1], n), tag=tag)


def srd(c, d, arg, size):
    for t in (f"s_mov_b32 s{d}, s{sArg + arg}", f"s_mov_b32 s{d + 1}, s{sArg + arg + 1}", f"s_mov_b32 s{d + 2}, {size}",
              f"s_mov_b32 s{d + 3}, 0x20000"):
        c.append(salu(t))


def qw_dma(cidx):
    g = []
    for x in range(2):
        for t in range(4):
            rows = 32 * x + 16 * (t & 1) + 4 * (t >> 1)
            pre = [salu(f"s_add_u32 m0, s{sWdst}, {x * 16384}")] if t == 0 else []
            pre.append(salu(f"s_add_u32 s{sT0}, s{sWoff}, {rows * 8192 - t * 1024}"))
            g.append((pre, dma(vWt, sWQ, sT0, t * 1024, tag=("QW", cidx))))
    adv = [[salu(f"s_add_u32 s{sWoff}, s{sWoff}, {64 * 8192}")],
           [salu(f"s_cmp_ge_u32 s{sWoff}, {448 * 8192}"), salu(f"s_cselect_b32 s{sT1}, {448 * 8192}, 0")],
           [salu(f"s_sub_u32 s{sWoff}, s{sWoff}, s{sT1}")],
           [salu(f"s_cmp_lt_u32 s{sWdst}, {SLOT}"), salu(f"s_cselect_b32 s{sT1}, {3 * SLOT}, 0")],
           [salu(f"s_add_u32 s{sWdst}, s{sWdst}, s{sT1}")], [salu(f"s_sub_u32 s{sWdst}, s{sWdst}, {SLOT}")]]
    return g, adv


def qx_dma(cidx):
    g = []
    for k in range(5):
        pre = [salu(f"s_add_u32 m0, s{sXdst}, {k * 4096}"), salu(f"s_add_u32 s{sT0}, s{sXoff}, {k * 32 * 896}")]
        g.append((pre, dma(vX, sX, sT0, 0, tag=("QX", cidx))))
    adv = [[salu(f"s_add_u32 s{sXoff}, s{sXoff}, 128")],
           [salu(f"s_cmp_eq_u32 s{sXoff}, s{sXlim}"), salu(f"s_cselect_b32 s{sT1}, 896, 0")],
           [salu(f"s_sub_u32 s{sXoff}, s{sXoff}, s{sT1}")],
           [salu(f"s_cmp_ge_u32 s{sXdst}, {XBASE + 2 * XSL}"), salu(f"s_cselect_b32 s{sT1}, {3 * XSL}, 0")],
           [salu(f"s_sub_u32 s{sXdst}, s{sXdst}, s{sT1}")], [salu(f"s_add_u32 s{sXdst}, s{sXdst}, {XSL}")]]
    return g, adv


def dst_adv():
    return [[salu(f"s_add_u32 s{sDst}, s{sDst}, {SLOT}")],
            [salu(f"s_cmp_eq_u32 s{sDst}, s{sDstLim}"), salu(f"s_cselect_b32 s{sDst}, s{sDst0}, s{sDst}")]]


def kv_dma(kind, tag):
    g = []
    r, off = (sK, sKoff) if kind == "K" else (sV, sVoff)
    for x in range(2):
        for t in range(4):
            pre = []
            if t == 0:
                pre.append(salu(f"s_add_u32 m0, s{sDst}, {x * 16384}") if x else salu(f"s_mov_b32 m0, s{sDst}"))
                if x:
                    pre.append(salu(f"s_add_u32 s{off}, s{off}, 16384"))
            vo = (vK1 if t & 1 else vK0) if kind == "K" else vV
            g.append((pre, dma(vo, r, off, t * 1024, nt=OPT.get("nt", 1), tag=tag)))
    return g, [[salu(f"s_add_u32 s{off}, s{off}, 16384")]] + dst_adv()


def wo_dma(o, slot):
    g = []
    for kk in range(2):
        for t in range(4):
            rows = 32 * kk + 16 * (t >> 1) + 8 * (t & 1)
            pre = [salu(f"s_add_u32 m0, s{sE6}, {slot * SLOT + kk * 4096}")] if t == 0 else []
            if kk == 0 and t == 0 and o > 0:
                pre = [salu(f"s_add_u32 s{sK2}, s{sK2}, 128"),
                       I(f"s_cmp_eq_u32 s{sK2}, s{sK3}\ns_cselect_b32 s{sT0}, 896, 0", "S", [], [("scc", 0), ("s", sT0)]),
                       salu(f"s_sub_u32 s{sK2}, s{sK2}, s{sT0}")] + pre
            pre.append(salu(f"s_add_u32 s{sT0}, s{sK2}, {rows * 896 - t * 1024}"))
            g.append((pre, dma(vWt, sWO, sT0, t * 1024, tag=("WO", o))))
    return g, []


def add_dma(tasks, g, adv, first, rel, dl, spread, gapmin=0):
    prev = first
    pd = None
    n = len(g)
    for k, (pre, d) in enumerate(g):
        ddl = dl - (n - 1 - k) * max(3, gapmin)
        for p in pre:
            t = Task(p, "S", rel=rel, dl=ddl, deps=[(prev, 0)], name="dmapre")
            tasks.append(t)
            prev = t
        t = Task(d, "D", rel=rel + k * spread, dl=ddl, deps=[(prev, 1 if (prev.cls == "S" and prev.ins) else 0)] + ([(pd, gapmin)] if pd and gapmin else []), name="dma")
        tasks.append(t)
        prev = pd = t
    for a in adv:
        t = Task(a, "S", rel=rel, dl=dl + 8, deps=[(prev, 0)], name="dmaadv")
        tasks.append(t)
        prev = t
    return prev


def emit_serial(c, g, adv, fill=None):
    for pre, d in g:
        c += pre
        c.append(d)
        if fill:
            for _ in range(6):
                if fill:
                    c.append(fill.pop(0))
    for a in adv:
        c += a


def prologue():
    c = []
    S = lambda t: c.append(salu(t))
    V = lambda t: c.append(valu(t))
    c.append(raw(f"s_load_dwordx16 s[{sArg}:{sArg + 15}], s[0:1], 0"))
    c += stamp(0)
    if STAMP or OPT.get("diag") or OPT.get("padto"):
        c.append(raw("s_memrealtime s[98:99]"))
    V(f"v_lshrrev_b32 v{vT0}, 6, v0")
    V(f"v_and_b32 v{vLANE}, 63, v0")
    V(f"v_readfirstlane_b32 s{sW}, v{vT0}")
    def code_prefetch(c):
        c.append(raw(f"s_getpc_b64 s[{sPat}:{sPat + 1}]"))
        c.append(salu(f"s_lshr_b32 s{sD}, s2, 3"))
        c.append(salu(f"s_and_b32 s{sD}, s{sD}, 1"))
        c.append(salu(f"s_lshl_b32 s{sD}, s{sD}, 15"))
        c.append(valu(f"v_lshlrev_b32 v{vU[4]}, 7, v0"))
        c.append(valu(f"v_add_u32 v{vU[4]}, s{sD}, v{vU[4]}"))
        c.append(valu(f"v_min_u32 v{vU[4]}, @CODEMAX, v{vU[4]}"))
        c.append(I(f"global_load_dword v{vU[4]}, v{vU[4]}, s[{sPat}:{sPat + 1}]", "D", [("v", vU[4])], [("v", vU[4])]))

    if OPT.get("cpf") == 1:
        code_prefetch(c)
    S(f"s_lshr_b32 s{sT1}, s2, 3")
    S(f"s_and_b32 s{sT3}, s2, 1")
    S(f"s_lshl_b32 s{sT3}, s{sT3}, 2")
    S(f"s_and_b32 s{sT2}, s{sT1}, 3")
    S(f"s_add_u32 s{sT3}, s{sT3}, s{sT2}")
    S(f"s_and_b32 s{sB}, s2, 6")
    S(f"s_bfe_u32 s{sT2}, s{sT1}, 0x10002")
    S(f"s_add_u32 s{sB}, s{sB}, s{sT2}")
    S(f"s_bfe_u32 s{sH}, s{sT1}, 0x10003")
    S(f"s_lshl_b32 s{sT2}, s{sT3}, 1")
    S(f"s_add_u32 s{sH}, s{sH}, s{sT2}")
    S(f"s_lshr_b32 s{sSP}, s{sT1}, 4")
    S(f"s_lshr_b32 s{sXW}, s{sW}, 1")
    S(f"s_and_b32 s{sHW}, s{sW}, 1")
    S(f"s_lshl_b32 s{sKoff}, s{sB}, 3")
    S(f"s_add_u32 s{sKoff}, s{sKoff}, s{sT3}")
    V(f"v_lshrrev_b32 v{vT0}, 3, v{vLANE}")
    V(f"v_and_b32 v{vT1}, 7, v{vLANE}")
    V(f"v_lshrrev_b32 v{vT2}, 1, v{vT0}")
    V(f"v_xor_b32 v{vK0}, v{vT1}, v{vT2}")
    V(f"v_lshlrev_b32 v{vK0}, 4, v{vK0}")
    V(f"v_lshlrev_b32 v{vV}, 1, v{vT2}")
    V(f"v_xor_b32 v{vV}, v{vT1}, v{vV}")
    V(f"v_lshlrev_b32 v{vV}, 4, v{vV}")
    S(f"s_lshl_b32 s{sT2}, s{sHW}, 6")
    V(f"v_xor_b32 v{vX}, s{sT2}, v{vK0}")
    V(f"v_mul_u32_u24 v{vST}, 896, v{vT0}")
    V(f"v_add_u32 v{vX}, v{vX}, v{vST}")
    V(f"v_and_b32 v{vWt}, 3, v{vT0}")
    V(f"v_lshrrev_b32 v{vST}, 2, v{vT0}")
    V(f"v_lshl_add_u32 v{vWt}, v{vST}, 3, v{vWt}")
    V(f"v_lshlrev_b32 v{vWt}, 13, v{vWt}")
    V(f"v_add_u32 v{vWt}, v{vWt}, v{vV}")
    S(f"s_lshl_b32 s{sT3}, s{sW}, 7")
    V(f"v_add_u32 v{vWt}, s{sT3}, v{vWt}")
    S(f"s_lshl_b32 s{sWoff}, s{sH}, 9")
    S(f"s_mul_i32 s{sXoff}, s{sB}, {160 * 896}")
    S(f"s_mul_i32 s{sT2}, s{sW}, {8 * 896}")
    S(f"s_add_u32 s{sXoff}, s{sXoff}, s{sT2}")
    S(f"s_add_u32 s{sXlim}, s{sXoff}, 896")
    if OPT["rot"]:
        S(f"s_and_b32 s{sT2}, s{sB}, 1")
        S(f"s_lshl_b32 s{sT1}, s{sSP}, 1")
        S(f"s_add_u32 s{sT2}, s{sT2}, s{sT1}")
        S(f"s_lshl_b32 s{sT2}, s{sT2}, 1")
        S(f"s_and_b32 s{sT1}, s{sH}, 3")
        S(f"s_add_u32 s{sT2}, s{sT2}, s{sT1}")
        S(f"s_cmp_ge_u32 s{sT2}, 7")
        S(f"s_cselect_b32 s{sT1}, 7, 0")
        S(f"s_sub_u32 s{sT2}, s{sT2}, s{sT1}")
        S(f"s_lshl_b32 s{sT1}, s{sT2}, 19")
        S(f"s_add_u32 s{sWoff}, s{sWoff}, s{sT1}")
        S(f"s_lshl_b32 s{sT1}, s{sT2}, 7")
        S(f"s_add_u32 s{sXoff}, s{sXoff}, s{sT1}")
    S(f"s_lshl_b32 s{sDst0}, s{sW}, 12")
    if OPT["qx"]:
        S(f"s_mov_b32 s{sWrd}, s{sT1}") if OPT["rot"] else S(f"s_mov_b32 s{sWrd}, 0")
        S(f"s_mul_i32 s{sXdst}, s{sXW}, 28672")
        S(f"s_lshl_b32 s{sT2}, s{sSP}, 1")
        S(f"s_add_u32 s{sT2}, s{sT2}, s{sHW}")
        S(f"s_mul_i32 s{sT2}, s{sT2}, {8 * 896}")
        S(f"s_mul_i32 s{sXrd}, s{sB}, {160 * 896}")
        S(f"s_add_u32 s{sXrd}, s{sXrd}, s{sT2}")
        S(f"s_lshl_b32 s{sWdst}, s{sW}, 10")
    else:
        S(f"s_add_u32 s{sWdst}, s{sDst0}, {SLOT}")
        S(f"s_lshl_b32 s{sXdst}, s{sW}, 10")
        S(f"s_add_u32 s{sXdst}, s{sXdst}, {XBASE}")
    c.append(I("s_waitcnt lgkmcnt(0)", "W"))
    if STAMP:
        c.append(raw("s_memrealtime s[92:93]"))
    if OPT.get("swarm", 1):
        S(f"s_lshl_b32 s{sT1}, s{sKoff}, 20")
        c.append(raw(f"s_load_dword s95, s[{sArg}:{sArg + 1}], s{sXoff}"))
        c.append(raw(f"s_load_dword s95, s[{sArg + 2}:{sArg + 3}], s{sT1}"))
        c.append(raw(f"s_load_dword s95, s[{sArg + 4}:{sArg + 5}], s{sT1}"))
        c.append(raw(f"s_load_dword s95, s[{sArg + 6}:{sArg + 7}], 0"))
        c.append(raw(f"s_load_dword s95, s[{sArg + 6}:{sArg + 7}], 0xffffc"))
        S(f"s_mov_b32 s{sT1}, {448 * 4096 * 2 - 4}")
        c.append(raw(f"s_load_dword s95, s[{sArg + 6}:{sArg + 7}], s{sT1}"))
    srd(c, sWQ, 6, 448 * 4096 * 2)
    srd(c, sX, 0, 8 * 160 * 448 * 2)
    f = []
    c2, c = c, f
    S = lambda t: f.append(salu(t))
    V = lambda t: f.append(valu(t))
    V(f"v_and_b32 v{vST}, 1, v{vT0}")
    V(f"v_lshl_add_u32 v{vST}, v{vT2}, 3, v{vST}")
    V(f"v_lshlrev_b32 v{vST}, 9, v{vST}")
    V(f"v_add_u32 v{vST}, s{sT3}, v{vST}")
    V(f"v_add_u32 v{vK0}, v{vK0}, v{vST}")
    V(f"v_add_u32 v{vV}, v{vV}, v{vST}")
    V(f"v_xor_b32 v{vK1}, 64, v{vK0}")
    srd(f, sK, 2, 0x4000000)
    srd(f, sV, 4, 0x4000000)
    srd(f, sWO, 8, 448 * 4096 * 2)
    srd(f, sWS, 14, 0x10000000)
    S(f"s_lshl_b32 s{sKoff}, s{sKoff}, 20")
    S(f"s_lshl_b32 s{sVoff}, s{sSP}, 19")
    S(f"s_add_u32 s{sKoff}, s{sKoff}, s{sVoff}")
    S(f"s_mov_b32 s{sVoff}, s{sKoff}")
    S(f"s_lshl_b32 s{sID}, s{sB}, 1")
    S(f"s_add_u32 s{sID}, s{sID}, s{sSP}")
    S(f"s_lshl_b32 s{sID}, s{sID}, 4")
    S(f"s_add_u32 s{sID}, s{sID}, s{sH}")
    srd(f, sDBG, 12, 256)
    S(f"s_lshl_b32 s{sIN}, s{sID}, {ISH}")
    S(f"s_add_u32 s{sIN}, s{sIN}, {INBOX}")
    f.append(I(f"s_cmp_eq_u32 s{sW}, 0\ns_cselect_b32 s{sT2}, s{sIN}, {OOB:#x}\ns_cselect_b32 s{sIN + 1}, s{sID}, {OOB:#x}", "S"))
    V(f"v_and_b32 v{vT0}, 31, v{vLANE}")
    V(f"v_lshlrev_b32 v{vT0}, 2, v{vT0}")
    V(f"v_mov_b32 v{vU[2]}, 0")
    V(f"v_mov_b32 v{vU[3]}, 1")
    f.append(bstore(1, ("v", vU[2]), vT0, sWS, sT2, 0, " sc0 sc1"))
    f.append(nop(1))
    V(f"v_and_b32 v{vT0}, 15, v{vLANE}")
    V(f"v_lshrrev_b32 v{vT1}, 4, v{vLANE}")
    V(f"v_lshrrev_b32 v{vT2}, 1, v{vT0}")
    V(f"v_xor_b32 v{LK0}, v{vT1}, v{vT2}")
    V(f"v_lshlrev_b32 v{LK0}, 4, v{LK0}")
    V(f"v_lshl_add_u32 v{LK0}, v{vT0}, 7, v{LK0}")
    V(f"v_lshrrev_b32 v{vT0}, 2, v{vLANE}")
    V(f"v_and_b32 v{vT1}, 6, v{vT0}")
    V(f"v_bfe_u32 v{vT2}, v{vLANE}, 1, 1")
    V(f"v_xor_b32 v{vT1}, v{vT1}, v{vT2}")
    V(f"v_lshlrev_b32 v{vT1}, 4, v{vT1}")
    V(f"v_lshl_add_u32 v{vT1}, v{vT0}, 7, v{vT1}")
    V(f"v_and_b32 v{vT2}, 1, v{vLANE}")
    V(f"v_lshl_add_u32 v{LV[0]}, v{vT2}, 3, v{vT1}")
    for k in range(1, 4):
        V(f"v_xor_b32 v{LV[k]}, {32 * k}, v{LV[0]}")
    if OPT["qx"]:
        for k in range(4):
            V(f"v_add_u32 v{VA[k]}, s{sDst0}, v{LV[k]}")
            V(f"v_add_u32 v{WB2[k]}, 0x10000, v{VA[k]}")
        V(f"v_add_u32 v{XA[0]}, {XB2}, v{LK0}")
        V(f"v_xor_b32 v{XA[1]}, 64, v{XA[0]}")
        V(f"v_add_u32 v{KA[0]}, {6 * 10240}, v{XA[0]}")
        V(f"v_add_u32 v{KA[1]}, {6 * 10240}, v{XA[1]}")
        S(f"s_lshl_b32 s{sXlim}, s{sID}, 8")
        S(f"s_add_u32 s{sXlim}, s{sXlim}, {QBOX}")
        S(f"s_xor_b32 s91, s{sXlim}, {16 << 8}")
        S(f"s_lshl_b32 s{sT2}, s{sW}, 2")
        S(f"s_add_u32 s91, s91, s{sT2}")
        f.append(bload(4, ("v", ET), vU[2], sWS, sXlim, 0, FLF))
        f.append(bload(1, ("v", ET + 4), vU[2], sWS, 91, 0, FLF))
    else:
        S(f"s_add_u32 s{sT2}, s{sDst0}, {SLOT}")
        for k in range(4):
            V(f"v_add_u32 v{VA[k]}, s{sT2}, v{LV[k]}")
        V(f"v_add_u32 v{XA[0]}, {XBASE}, v{LK0}")
        V(f"v_xor_b32 v{XA[1]}, 64, v{XA[0]}")
        S(f"s_mov_b32 s{sWrd}, {SLOT}")
        S(f"s_mov_b32 s{sXrd}, 0")
    S(f"s_add_u32 s{sDstLim}, s{sDst0}, {5 * SLOT}")
    S(f"s_mov_b32 s{sDst}, s{sDst0}")
    S(f"s_lshl_b32 s{sHalf}, s{sXW}, 15")
    S(f"s_sub_u32 s{sHalf}, s{sHalf}, 16384")
    S(f"s_sub_u32 s{sC1}, {2 * SLOT}, s{sHalf}")
    S(f"s_sub_u32 s{sC2}, {(-3 * SLOT) & 0xffffffff}, s{sHalf}")
    S(f"s_mov_b32 s{sThr}, 0x53800000")
    pat = 0
    for j in range(40):
        if (j + 1) % 5 < (j - 1) % 5:
            pat |= 1 << j
    S(f"s_mov_b32 s{sPat}, {pat & 0xffffffff:#x}")
    S(f"s_mov_b32 s{sPat + 1}, {pat >> 32:#x}")
    if OPT["qx"]:
        V(f"v_and_b32 v{vT0}, 15, v{vLANE}")
        V(f"v_lshlrev_b32 v{vT0}, 4, v{vT0}")
        V(f"v_lshrrev_b32 v{vT1}, 5, v{vLANE}")
        V(f"v_lshl_add_u32 v{vT0}, v{vT1}, 8, v{vT0}")
        V(f"v_bfe_u32 v{vT1}, v{vLANE}, 4, 1")
        V(f"v_lshl_add_u32 v{vT0}, v{vT1}, 3, v{vT0}")
        S(f"s_lshl_b32 s{sT2}, s{sW}, 11")
        S(f"s_add_u32 s{sT3}, s{sT2}, {XB2}")
        V(f"v_add_u32 v{vU[1]}, s{sT3}, v{vT0}")
        V(f"v_lshlrev_b32 v{vST}, 4, v{vLANE}")
    else:
        S(f"s_lshl_b32 s{sT2}, s{sXW}, 14")
        S(f"s_sub_u32 s{sT2}, 16384, s{sT2}")
        V(f"v_add_u32 v{KA[0]}, s{sT2}, v{LK0}")
        V(f"v_xor_b32 v{KA[1]}, 64, v{KA[0]}")
        V(f"v_and_b32 v{vT0}, 15, v{vLANE}")
        V(f"v_lshlrev_b32 v{vT0}, 4, v{vT0}")
        V(f"v_lshrrev_b32 v{vT1}, 5, v{vLANE}")
        V(f"v_lshl_add_u32 v{vT0}, v{vT1}, 8, v{vT0}")
        V(f"v_bfe_u32 v{vT1}, v{vLANE}, 4, 1")
        V(f"v_lshl_add_u32 v{vT0}, v{vT1}, 3, v{vT0}")
        S(f"s_lshl_b32 s{sT2}, s{sW}, 11")
        S(f"s_add_u32 s{sT3}, s{sT2}, {XBASE}")
        V(f"v_add_u32 v{vU[0]}, s{sT3}, v{vT0}")
        S(f"s_add_u32 s{sT3}, s{sT2}, {SLOT}")
        V(f"v_add_u32 v{vU[1]}, s{sT3}, v{vT0}")
        V(f"v_lshlrev_b32 v{vST}, 4, v{vLANE}")
        S(f"s_lshl_b32 s{sT2}, s{sW}, 1")
        S(f"s_add_u32 s{sT2}, s{sT2}, s{sSP}")
        S(f"s_lshl_b32 s{sT2}, s{sT2}, 13")
        S(f"s_add_u32 s{sT2}, s{sT2}, {XBASE}")
        V(f"v_add_u32 v{QA[0]}, s{sT2}, v{vST}")
        V(f"v_xor_b32 v{QA[1]}, 8192, v{QA[0]}")
        S(f"s_xor_b32 s{sT2}, s{sHW}, s{sSP}")
        S(f"s_lshl_b32 s{sT2}, s{sT2}, 13")
        S(f"s_add_u32 s{sT2}, s{sT2}, {SLOT}")
        V(f"v_add_u32 v{QA[2]}, s{sT2}, v{vST}")
    S(f"s_lshl_b32 s{sK2}, s{sH}, 2")
    S(f"s_add_u32 s{sK2}, s{sK2}, s{sW}")
    S(f"s_mul_i32 s{sK2}, s{sK2}, {64 * 896}")
    S(f"s_add_u32 s{sK3}, s{sK2}, 896")
    S(f"s_and_b32 s{sRot}, s{sB}, 1")
    S(f"s_lshl_b32 s{sT2}, s{sSP}, 1")
    S(f"s_add_u32 s{sRot}, s{sRot}, s{sT2}")
    S(f"s_mul_i32 s{sRot}, s{sRot}, {2 * OPT['rot']}")
    S(f"s_lshl_b32 s{sT2}, s{sRot}, 7")
    S(f"s_add_u32 s{sK2}, s{sK2}, s{sT2}")
    c = c2
    for fn, cidx in (((qw2, 0), (qx2, 0), (qx2, 1), (qx2, 2), (qw2, 1), (qw2, 2), (qw2, 3), (qx2, 3), (qx2, 4)) if OPT["qx"] else ((qw_dma, 0), (qx_dma, 0), (qw_dma, 1))):
        g, adv = fn(cidx)
        emit_serial(c, g, adv, f)
        if STAMP and fn is qx_dma:
            c.append(raw("s_memrealtime s[94:95]"))
        if fn is qx_dma and OPT.get("cpf") == 2:
            code_prefetch(c)
    c += f
    if STAMP:
        c.append(raw("s_memrealtime s[86:87]"))
    c.append(I("s_waitcnt lgkmcnt(0)", "W"))
    if OPT["pref"]:
        S = lambda t: c.append(salu(t))
        V = lambda t: c.append(valu(t))
        S(f"s_and_b32 s{sT0}, s{sB}, 1")
        S(f"s_lshl_b32 s{sT0}, s{sT0}, 1")
        S(f"s_add_u32 s{sT0}, s{sT0}, s{sSP}")
        S(f"s_lshl_b32 s{sT0}, s{sT0}, 2")
        S(f"s_add_u32 s{sT0}, s{sT0}, s{sW}")
        V(f"v_lshrrev_b32 v{vT0}, 2, v{vLANE}")
        V(f"v_lshlrev_b32 v{vT0}, 13, v{vT0}")
        V(f"v_and_b32 v{vT1}, 3, v{vLANE}")
        V(f"v_lshl_add_u32 v{vT0}, v{vT1}, 7, v{vT0}")
        S(f"s_lshl_b32 s{sT1}, s{sT0}, 17")
        S(f"s_add_u32 s{sT1}, s{sT1}, s{sWoff}")
        c.append(bload(1, ("v", 32), vT0, sWQ, sT1, 0))
        S(f"s_lshr_b32 s{sT1}, s2, 3")
        S(f"s_and_b32 s{sT2}, s{sT1}, 3")
        S(f"s_lshr_b32 s{sT1}, s{sT1}, 3")
        S(f"s_lshl_b32 s{sT1}, s{sT1}, 2")
        S(f"s_add_u32 s{sT1}, s{sT1}, s{sT2}")
        S(f"s_lshl_b32 s{sT1}, s{sT1}, 2")
        S(f"s_add_u32 s{sT1}, s{sT1}, s{sW}")
        S(f"s_mul_i32 s{sT1}, s{sT1}, {18 * 128}")
        S(f"s_mul_i32 s{sT2}, s{sB}, {160 * 896}")
        S(f"s_add_u32 s{sT1}, s{sT1}, s{sT2}")
        V(f"v_min_u32 v{vT1}, 17, v{vLANE}")
        V(f"v_lshlrev_b32 v{vT1}, 7, v{vT1}")
        c.append(bload(1, ("v", 33), vT1, sX, sT1, 0))
        c.append(raw(f"s_getpc_b64 s[{sT2}:{sT3}]"))
        S(f"s_and_b32 s{sT1}, s{sT0}, 7")
        S(f"s_lshl_b32 s{sT1}, s{sT1}, 13")
        V(f"v_lshlrev_b32 v{vT1}, 7, v{vLANE}")
        V(f"v_add_u32 v{vT1}, s{sT1}, v{vT1}")
        V(f"v_min_u32 v{vT1}, @CODEMAX, v{vT1}")
        c.append(I(f"global_load_dword v34, v{vT1}, s[{sT2}:{sT3}]", "D", [("v", vT1)], [("v", 34)]))
        S(f"s_mul_i32 s{sT1}, s{sH}, {256 * 896}")
        S(f"s_mul_i32 s{sT0}, s{sT0}, {112 * 128}")
        S(f"s_add_u32 s{sT1}, s{sT1}, s{sT0}")
        V(f"v_lshlrev_b32 v{vT1}, 7, v{vLANE}")
        if OPT["pref"] > 1:
            c.append(bload(1, ("v", 35), vT1, sWO, sT1, 0))
            S(f"s_add_u32 s{sT1}, s{sT1}, {48 * 128}")
            c.append(bload(1, ("v", 36), vT1, sWO, sT1, 0))
    return c


def qacc(blk, t):
    return 96 + (blk * 4 + t) * 4


def q_phase():
    mf, tasks, marks = [], [], []
    WF = lambda c, ks, t: (c & 1) * 32 + (ks * 4 + t) * 4
    XF = lambda blk, ks: 64 + (blk * 2 + ks) * 4
    bar, lastx, lastaddr, xuse, wuse = {}, {}, {}, {}, {}
    prev_dma, prev_aups = None, []
    allreads = []
    for cidx in range(7):
        start = 80 * cidx
        marks.append(start)
        if cidx == 0:
            bar[0] = Task(wait_bar([("QX", 0)], None), "BAR", rel=-1, dl=-1, name="bar0")
            wready = bar[0]
        else:
            bar[cidx] = Task(wait_bar([("QX", cidx)], ("XR", cidx - 1)), "BAR", rel=start - 20, dl=start - 10, deps=[(lastx[cidx - 1], 4)], name=f"bar{cidx}")
            wready = Task(waitr([("QW", cidx)], None), "S", rel=start - 44, name="wready")
            tasks.append(wready)
        tasks.append(bar[cidx])
        aup = {}
        if cidx > 0:
            sd = [Task([salu(f"s_cmp_eq_u32 s{sWrd}, 0"), salu(f"s_cselect_b32 s{sD}, {3 * SLOT}, 0")], "S", rel=start - 76, deps=[(t, 0) for t in prev_aups], name="sd")]
            for t in (f"s_sub_u32 s{sD}, s{sD}, {SLOT}", f"s_add_u32 s{sWrd}, s{sWrd}, s{sD}"):
                sd.append(Task(salu(t), "S", deps=[(sd[-1], 0)], name="sd"))
            sd.append(Task([salu(f"s_cmp_eq_u32 s{sXrd}, {2 * XSL}"), salu(f"s_cselect_b32 s{sDX}, {3 * XSL}, 0")], "S", deps=[(sd[-1], 0)], name="sd"))
            for t in (f"s_sub_u32 s{sDX}, {XSL}, s{sDX}", f"s_add_u32 s{sXrd}, s{sXrd}, s{sDX}"):
                sd.append(Task(salu(t), "S", deps=[(sd[-1], 0)], name="sd"))
            tasks += sd
            for r in VA:
                aup[r] = Task(valu(f"v_add_u32 v{r}, s{sD}, v{r}"), "V", deps=[(sd[-1], 1), (lastaddr[r], 0)], name="aup")
            for r in XA:
                aup[r] = Task(valu(f"v_add_u32 v{r}, s{sDX}, v{r}"), "V", deps=[(sd[-1], 1), (lastaddr[r], 0)], name="aup")
            tasks += list(aup.values())
            prev_aups = list(aup.values())

        def rd(ins, consumer, gate, tag, rel, war):
            ins.tag = tag
            a = ins.rd[0][1]
            deps = [(gate, 0)] + ([(aup[a], 1)] if a in aup else []) + ([(lastaddr[a], 0)] if a in lastaddr else [])
            first = cidx == 0 and consumer < 12
            t = Task(ins, "L", rel=-1 if first else max(rel, war), dl=-1 if first else consumer - 6, deps=deps, name="rd")
            tasks.append(t)
            lastaddr[a] = t
            allreads.append(t)
            return t

        for ks in range(2):
            for t in range(4):
                for e in range(2):
                    rd(ds_rtr(("a", WF(cidx, ks, t) + 2 * e), VA[t], ks * 16384 + e * 2048), start + 2 * t, wready, ("WR", cidx),
                       start - 42, wuse.get(cidx & 1, -1))
        early = 60 if cidx == 6 else 22
        for blk in range(10):
            c0 = len(mf)
            for ks in range(2):
                lastx[cidx] = rd(ds_r128(("a", XF(blk, ks)), XA[ks], blk * 2048), c0 + ks, bar[cidx], ("XR", cidx), c0 - early, xuse.get((blk, ks), -1))
            for t in range(4):
                for ks in ((0, 1) if (t % 2 == 0 or cidx == 0) else (1, 0)):
                    d = ("v", qacc(blk, t))
                    mf.append(mfma(d, ("a", WF(cidx, ks, t)), ("a", XF(blk, ks)), 0 if (cidx == 0 and ks == 0) else d))
            xuse[(blk, 0)] = xuse[(blk, 1)] = len(mf) - 1
        wuse[cidx & 1] = len(mf) - 1
    q = []
    for cidx in range(1, 7):
        q.append((qx_dma(cidx), bar[max(cidx - 2, 0)], max(0, 80 * (cidx - 2) - 10), 80 * (cidx - 1) + (30 if cidx > 1 else 16)))
        if cidx + 1 <= 6:
            q.append((qw_dma(cidx + 1), bar[0], max(0, 80 * (cidx - 2) + 10), 80 * (cidx - 1) + 62))
    g, adv = kv_dma("K", ("T", -1))
    q.append(((g, adv + dst_adv()), bar[0], 80 * 4 + 10, 80 * 5 + 40))
    q.append((kv_dma("K", ("T", 1)), bar[0], 80 * 5 + 10, 80 * 6 + 20))
    for (g, adv), gate, r0, d0 in q:
        first = Task([], "S", rel=r0, deps=[(gate, 0)] + ([(prev_dma, 0)] if prev_dma else []), name="dmastart")
        tasks.append(first)
        prev_dma = add_dma(tasks, g, adv, first, r0, d0, spread=0, gapmin=OPT.get("qgap", 3))
    an = I(f"buffer_store_byte v{vU[3]}, v{vU[2]}, s[{sDBG}:{sDBG + 3}], s{sIN + 1} offen sc0 sc1", "D", [("v", vU[3]), ("v", vU[2])], [], tag="store")
    seq = [an]
    if OPT.get("tlb", 1):
        seq += [bload(1, ("v", vX), vU[2], sV, sVoff, 0), bload(1, ("v", vX), vU[2], sWO, sK2, 0)]
    for i in seq:
        prev_dma = Task(i, i.kind, deps=[(prev_dma, 1)], dl=80 * 6 + 60, name="warm")
        tasks.append(prev_dma)
    start = 480
    dead = Task(wait_bar([], ("XR", 6)), "BAR", deps=[(lastx[6], 4)], name="dead")
    tasks.append(dead)
    sc = Task([salu(f"s_mov_b32 s{sT2}, {QSCALE:#x}"), salu(f"s_mov_b32 s{sT3}, {QSCALE:#x}")], "S", rel=start, name="sc")
    tasks.append(sc)
    for blk in range(10):
        for t in range(4):
            s = qacc(blk, t)
            done = start + blk * 8 + 2 * t + 1
            if blk < OPT.get("pkfrom", 4):
                ms = [Task(valu(f"v_mul_f32 v{s + r}, s{sT3}, v{s + r}"), "V", rel=done + MLAT, deps=[(sc, 1)], name="qmul") for r in range(4)]
            else:
                m2 = [Task(valu(f"v_pk_mul_f32 v[{s + r}:{s + r + 1}], v[{s + r}:{s + r + 1}], s[{sT2}:{sT3}]"), "V", rel=done + MLAT, deps=[(sc, 1)], name="qmul") for r in (0, 2)]
                ms = [m2[0], m2[0], m2[1], m2[1]]
            c0 = Task(valu(f"v_cvt_pk_bf16_f32 v{s}, v{s}, v{s + 1}"), "V", deps=[(ms[0], 0), (ms[1], 0)], name="qcv")
            c1 = Task(valu(f"v_cvt_pk_bf16_f32 v{s + 1}, v{s + 2}, v{s + 3}"), "V", deps=[(ms[2], 0), (ms[3], 0), (c0, 0)], name="qcv")
            w = ds_w64(vU[0] if blk < 8 else vU[1], ("v", s), (blk & 7) * 8192 + (t >> 1) * 1024 + (t & 1) * 512)
            wt = Task(w, "L", deps=[(c1, 0), (dead, 0)], name="qwr")
            tasks += list(dict.fromkeys(ms)) + [c0, c1, wt]
    gaps = schedule(mf, tasks, verbose=True)
    for k, m in enumerate(marks):
        mf[m].mark = ("Q", k)
    return linearize(mf, gaps)


def q_finish():
    c = []
    S = lambda t: c.append(salu(t))
    V = lambda t: c.append(valu(t))
    S(f"s_lshl_b32 s{sT0}, s{sXW}, 14")
    S(f"s_sub_u32 s{sT0}, {3 * SLOT + 16384}, s{sT0}")
    for k in range(4):
        V(f"v_add_u32 v{VA[k]}, s{sT0}, v{LV[k]}")
    V(f"v_lshrrev_b32 v{vT0}, 3, v{vLANE}")
    V(f"v_mul_u32_u24 v{vT0}, 896, v{vT0}")
    V(f"v_and_b32 v{vWt}, 0x70, v{vV}")
    V(f"v_add_u32 v{vWt}, v{vWt}, v{vT0}")
    S(f"s_lshl_b32 s{sE6}, s{sW}, 13")
    c.append(I("s_waitcnt lgkmcnt(0)", "W"))
    for r in list(range(NEGM[0], NEGM[0] + 12)) + LS:
        V(f"v_mov_b32 v{r}, 0")
    c += wait_bar([("T", -1)], None)
    return c


XB2 = 92160
QEX0, QEX_WG = 40 << 20, 40960
QBOX = 57 << 20
WB2 = [16, 17, 18, 19]
vQB = 60
sXr, sXc, sXb = sXdst, sWrd, sXrd


def qw2(k):
    g = []
    x = k & 1
    for t in range(4):
        rows = 32 * x + 16 * (t & 1) + 4 * (t >> 1)
        pre = [salu(f"s_add_u32 m0, s{sDst0}, {(k % 5) * 16384}")] if t == 0 else []
        pre.append(salu(f"s_add_u32 s{sT0}, s{sWoff}, {rows * 8192 - t * 1024}"))
        g.append((pre, dma(vWt, sWQ, sT0, t * 1024, tag=("QW", k))))
    adv = []
    if x:
        adv = [[salu(f"s_add_u32 s{sWoff}, s{sWoff}, {64 * 8192}")],
               [salu(f"s_cmp_ge_u32 s{sWoff}, {448 * 8192}"), salu(f"s_cselect_b32 s{sT1}, {448 * 8192}, 0")],
               [salu(f"s_sub_u32 s{sWoff}, s{sWoff}, s{sT1}")]]
    return g, adv


def qx2(k):
    pre = [salu(f"s_add_u32 m0, s{sWdst}, {XB2 + k * 4096}"), salu(f"s_add_u32 s{sT0}, s{sXr}, s{sXc}"), salu(f"s_add_u32 s{sT0}, s{sT0}, s{sXb}")]
    if k == 17:
        pre.append(salu(f"s_lshl_b32 s{sT1}, s{sXW}, 30"))
        pre.append(salu(f"s_add_u32 s{sT0}, s{sT0}, s{sT1}"))
    adv = [[salu(f"s_add_u32 s{sXr}, s{sXr}, {2 * 28672}")],
           [salu(f"s_cmp_ge_u32 s{sXr}, {5 * 28672}"), salu(f"s_cselect_b32 s{sT1}, {5 * 28672}, 0"), salu(f"s_cselect_b32 s{sT0}, 128, 0")],
           [salu(f"s_sub_u32 s{sXr}, s{sXr}, s{sT1}")], [salu(f"s_add_u32 s{sXc}, s{sXc}, s{sT0}")],
           [salu(f"s_cmp_eq_u32 s{sXc}, 896"), salu(f"s_cselect_b32 s{sXc}, 0, s{sXc}")]]
    return [(pre, dma(vX, sX, sT0, 0, tag=("QX", k)))], adv


def xneed(c):
    return (10 * (c + 1) - 1) // 4


def qacc2(blk, t):
    return 128 + (blk * 4 + t) * 4


def q_phase2():
    mf, tasks, marks = [], [], []
    WF = lambda c, ks, t: (c & 1) * 32 + (ks * 4 + t) * 4
    XF = lambda c, blk, ks: 64 + (((c & 1) * 5 + blk) * 2 + ks) * 4
    bar, lastx, xuse, wuse, wlast = {}, {}, {}, {}, {}
    prevl = None
    for c in range(7):
        start = 40 * c
        marks.append(start)
        if c == 0:
            bar[0] = Task(wait_bar([("QX", xneed(0)), ("QW", 1)], None), "BAR", rel=-1, dl=-1, name="bar0")
        else:
            bar[c] = Task(wait_bar([("QX", xneed(c))], ("XR", c - 1)), "BAR", rel=start - 24, dl=start - 12, deps=[(lastx[c - 1], 2)], name=f"bar{c}")
        tasks.append(bar[c])

        def rd(ins, consumer, gate, tag, rel, war):
            nonlocal prevl
            ins.tag = tag
            first = c == 0 and consumer < 12
            t = Task(ins, "L", rel=-1 if first else max(rel, war), dl=-1 if first else consumer - 6, deps=[(gate, 0)], name="rd")
            tasks.append(t)
            return t

        for ks in range(2):
            k = 2 * c + ks
            if c == 0:
                wready = bar[0]
            else:
                wready = Task(waitr([("QW", k)], None), "S", rel=start - 36 + 8 * ks, name="wready")
                tasks.append(wready)
            u = k % 5
            for t in range(4):
                for e in range(2):
                    wlast[k] = rd(ds_rtr(("a", WF(c, ks, t) + 2 * e), (VA if u < 4 else WB2)[t], (u & 3) * 16384 + e * 2048), start + 2 * t, wready,
                                  ("WR", k), start - 36, wuse.get(c & 1, -1))
        for blk in range(5):
            c0 = len(mf)
            for ks in range(2):
                a = XA[ks] if c < 6 else KA[ks]
                lastx[c] = rd(ds_r128(("a", XF(c, blk, ks)), a, (c % 6) * 10240 + blk * 2048), c0 + ks, bar[c], ("XR", c), c0 - 30, xuse.get((c & 1, blk), -1))
            for t in range(4):
                for ks in ((0, 1) if (t % 2 == 0 or c == 0) else (1, 0)):
                    d = ("v", qacc2(blk, t))
                    mf.append(mfma(d, ("a", WF(c, ks, t)), ("a", XF(c, blk, ks)), 0 if (c == 0 and ks == 0) else d))
            xuse[(c & 1, blk)] = len(mf) - 1
        wuse[c & 1] = len(mf) - 1
    q = []
    nx = 5
    for k in range(4, 14):
        rel = 0 if k < 5 else 40 * ((k - 5) // 2) + 9
        q.append((qw2(k), rel, max(10, 40 * (k // 2) - 44)))
        while nx <= 17 and nx <= xneed(min(6, k // 2 + 1)):
            q.append((qx2(nx), 0, max(10, 40 * (k // 2) - 20)))
            nx += 1
    g, adv = kv_dma("K", ("T", -1))
    q.append(((g, adv + dst_adv()), 40 * 5 + 9, 279))
    prev = None
    for (g, adv), r0, d0 in q:
        first = Task([], "S", rel=r0, deps=[(prev, 0)] if prev else [], name="dmastart")
        tasks.append(first)
        prev = add_dma(tasks, g, adv, first, r0, max(d0, r0 + 3 * len(g) + 4), spread=0, gapmin=3)
    start = 240
    sc = Task([salu(f"s_mov_b32 s{sT2}, {QSCALE:#x}"), salu(f"s_mov_b32 s{sT3}, {QSCALE:#x}")], "S", rel=start, name="sc")
    tasks.append(sc)
    for blk in range(5):
        for t in range(4):
            s_ = qacc2(blk, t)
            done = start + blk * 8 + 2 * t + 1
            m2 = [Task(valu(f"v_pk_mul_f32 v[{s_ + r}:{s_ + r + 1}], v[{s_ + r}:{s_ + r + 1}], s[{sT2}:{sT3}]"), "V", rel=done + MLAT, deps=[(sc, 1)], name="qmul") for r in (0, 2)]
            c0 = Task(valu(f"v_cvt_pk_bf16_f32 v{s_}, v{s_}, v{s_ + 1}"), "V", deps=[(m2[0], 0)], name="qcv")
            c1 = Task(valu(f"v_cvt_pk_bf16_f32 v{s_ + 1}, v{s_ + 2}, v{s_ + 3}"), "V", deps=[(m2[1], 0), (c0, 0)], name="qcv")
            wt = Task(ds_w64(vU[1], ("v", s_), blk * 8192 + (t >> 1) * 1024 + (t & 1) * 512), "L", deps=[(c1, 0), (bar[6], 0)], name="qwr")
            tasks += m2 + [c0, c1, wt]
    gaps = schedule(mf, tasks, verbose=True)
    for k, m in enumerate(marks):
        mf[m].mark = ("R", k)
    return linearize(mf, gaps)


def q_finish2():
    c = []
    S = lambda t: c.append(salu(t))
    V = lambda t: c.append(valu(t))
    W = lambda t: c.append(I(f"s_waitcnt {t}", "W"))
    HT = 128
    S(f"s_lshl_b32 s{sE6}, s{sW}, 13")
    S(f"s_add_u32 s{sT0}, s{sE6}, {XB2}")
    V(f"v_add_u32 v{QA[0]}, s{sT0}, v{vST}")
    V(f"v_add_u32 v{QA[2]}, {XB2 + 32768}, v{vST}")
    S(f"s_lshl_b32 s{sT0}, s{sW}, 11")
    V(f"v_add_u32 v{QA[1]}, s{sT0}, v{QA[2]}")
    S(f"s_mul_i32 s{sE0}, s{sID}, {QEX_WG}")
    S(f"s_add_u32 s{sE0}, s{sE0}, {QEX0}")
    S(f"s_xor_b32 s{sT1}, s{sID}, 16")
    S(f"s_mul_i32 s{sE1}, s{sT1}, {QEX_WG}")
    S(f"s_add_u32 s{sE1}, s{sE1}, {QEX0}")
    S(f"s_add_u32 s{sE2}, s{sE0}, s{sE6}")
    S(f"s_add_u32 s{sE3}, s{sE2}, 4096")
    S(f"s_add_u32 s{sE4}, s{sE0}, s{sT0}")
    S(f"s_add_u32 s{sE4}, s{sE4}, 32768")
    W("lgkmcnt(0)")
    c.append(I("s_barrier", "B"))
    for k in range(8):
        c.append(ds_r128(("v", QB[0] + 4 * k), QA[0], k * 1024))
    for k in range(2):
        c.append(ds_r128(("v", HT + 4 * k), QA[1], k * 1024))
    for k in range(8):
        c.append(ds_r128(("v", QB[2] + 4 * k), QA[2], k * 1024))
    for k in range(8):
        c.append(bstore(4, ("v", QB[0] + 4 * k), vST, sWS, sE2 if k < 4 else sE3, (k & 3) * 1024, STF))
    for k in range(2):
        c.append(bstore(4, ("v", HT + 4 * k), vST, sWS, sE4, k * 1024, STF))
    S(f"s_lshl_b32 s{sT0}, s{sXW}, 14")
    S(f"s_sub_u32 s{sT2}, {(16384 - XB2) & 0xffffffff}, s{sT0}")
    V(f"v_add_u32 v{KA[0]}, s{sT2}, v{XA[0]}")
    V(f"v_xor_b32 v{KA[1]}, 64, v{KA[0]}")
    S(f"s_sub_u32 s{sT0}, {3 * SLOT + 16384}, s{sT0}")
    for k in range(4):
        V(f"v_add_u32 v{VA[k]}, s{sT0}, v{LV[k]}")
    V(f"v_lshrrev_b32 v{vT0}, 3, v{vLANE}")
    V(f"v_mul_u32_u24 v{vT0}, 896, v{vT0}")
    V(f"v_and_b32 v{vWt}, 0x70, v{vV}")
    V(f"v_add_u32 v{vWt}, v{vWt}, v{vT0}")
    for r in list(range(NEGM[0], NEGM[0] + 12)) + LS:
        V(f"v_mov_b32 v{r}, 0")
    V(f"v_add_u32 v{ET + 4}, 1, v{ET + 4}")
    S(f"s_add_u32 s{sE2}, s{sE1}, s{sE6}")
    S(f"s_add_u32 s{sE3}, s{sE2}, 4096")
    S(f"s_add_u32 s{sE4}, s{sE1}, 32768")
    S(f"s_add_u32 s{sE5}, s{sE4}, 4096")
    S(f"s_xor_b32 s{sT1}, s{sID}, 16")
    W("vmcnt(0) lgkmcnt(0)")
    c.append(bstore(1, ("v", ET + 4), vU[2], sWS, 91, 0, FLF))
    c.append(I("s_barrier", "B"))
    S(f"s_mov_b32 s{sCnt}, 0")
    c.append(I("L_q1:", "LAB"))
    c.append(raw(f"buffer_load_dwordx4 v[{PB}:{PB + 3}], v{vU[2]}, s[{sWS}:{sWS + 3}], s{sXlim} offen{FLF}", "X"))
    S(f"s_add_u32 s{sCnt}, s{sCnt}, 1")
    S(f"s_and_b32 s{sT0}, s{sCnt}, 63")
    c.append(I("s_cbranch_scc1 L_q2", "BR"))
    c.append(raw(f"buffer_load_ubyte v{PB + 4}, v{vU[2]}, s[{sDBG}:{sDBG + 3}], s{sT1} offen sc0 sc1", "X"))
    c.append(raw("s_waitcnt vmcnt(0)", "X"))
    V(f"v_readfirstlane_b32 s{sT0}, v{PB + 4}")
    S(f"s_cmp_lg_u32 s{sT0}, 0")
    c.append(I("s_cbranch_scc1 L_q3", "BR"))
    S(f"s_cmp_gt_u32 s{sCnt}, 300000")
    c.append(I("s_cbranch_scc1 L_q3", "BR"))
    c.append(I("L_q2:", "LAB"))
    c.append(raw("s_waitcnt vmcnt(0)", "X"))
    V(f"v_cmp_eq_u32 vcc, v{PB}, v{ET}")
    V(f"v_cmp_eq_u32 s[{sT2}:{sT3}], v{PB + 1}, v{ET + 1}")
    c.append(I(f"s_or_b64 vcc, vcc, s[{sT2}:{sT3}]", "S", [("vcc", 0), ("s", sT2), ("s", sT3)], [("vcc", 0)]))
    V(f"v_cmp_eq_u32 s[{sT2}:{sT3}], v{PB + 2}, v{ET + 2}")
    c.append(I(f"s_or_b64 vcc, vcc, s[{sT2}:{sT3}]", "S", [("vcc", 0), ("s", sT2), ("s", sT3)], [("vcc", 0)]))
    V(f"v_cmp_eq_u32 s[{sT2}:{sT3}], v{PB + 3}, v{ET + 3}")
    c.append(I(f"s_or_b64 vcc, vcc, s[{sT2}:{sT3}]", "S", [("vcc", 0), ("s", sT2), ("s", sT3)], [("vcc", 0)]))
    c.append(I("s_cbranch_scc1 L_q1", "BR"))
    c.append(I("L_q3:", "LAB"))
    S(f"s_cmp_eq_u32 s{sHW}, 0")
    c.append(I("s_cbranch_scc1 L_q4", "BR"))
    for k in range(8):
        i = bload(4, ("v", QB[2] + 4 * k), vST, sWS, sE4 if k < 4 else sE5, (k & 3) * 1024, LDF)
        i.kind = "X"
        c.append(i)
    c.append(I("L_q4:", "LAB"))
    for k in range(8):
        c.append(bload(4, ("v", QB[1] + 4 * k), vST, sWS, sE2 if k < 4 else sE3, (k & 3) * 1024, LDF))
    emit_serial(c, *kv_dma("K", ("T", 1)))
    emit_serial(c, *kv_dma("V", ("T", 2)))
    W("vmcnt(16)")
    return c


sites = []


def rowmax_tasks(tasks, src, t, u, dep, name):
    seq = [f"v_max3_f32 v{t}, v{src}, v{src + 1}, v{src + 2}", f"v_max_f32 v{t}, v{t}, v{src + 3}", f"v_mov_b32 v{u}, v{t}",
           f"v_permlane32_swap_b32 v{t}, v{u}", f"v_max_f32 v{t}, v{t}, v{u}", f"v_mov_b32 v{u}, v{t}",
           f"v_permlane16_swap_b32 v{t}, v{u}", f"v_max_f32 v{t}, v{t}, v{u}", f"v_ceil_f32 v{t}, v{t}"]
    prev = dep
    for x in seq:
        i = valu(x)
        tk = Task(i, "V", deps=[(prev, 1 if i.kind == "P" else 0)], name=name)
        tasks.append(tk)
        prev = tk
    return prev


def main_phase():
    NS = 35
    mf, tasks = [], []
    nfrag = 0
    start, chain_first, chain_last, plan, qfirst = {}, {}, {}, [], {}
    CH = OPT.get("chain", 4)
    fraguse = {}
    cfirst_blk = {}
    pvdone = {}
    for j in range(NS):
        start[j] = len(mf)
        qb = ((0, 1, 2) if j & 1 else (0, 1)) if j <= 31 else ()
        pbk = ((0, 1, 2) if (j & 1) == 0 else (0, 1)) if j >= 3 else ()
        for sg in range(16 // CH):
            gams = list(range(sg * CH, sg * CH + CH))
            qitems = [("Q", b) for b in (qb if sg % 2 == 0 else qb[::-1])]
            pitems = [("P", g_) for g_ in gams] if pbk else []
            order = []
            nq = len(qitems)
            if nq == 0:
                order = pitems
            else:
                per = [len(pitems) // nq + (1 if k < len(pitems) % nq else 0) for k in range(nq)]
                pi = 0
                for k, q in enumerate(qitems):
                    ps_ = pitems[pi:pi + per[k]]
                    pi += per[k]
                    order += (ps_ + [q]) if sg % 2 == 0 else ([q] + ps_)
            kf = {}
            for kind, x in order:
                if kind == "Q":
                    for gam in gams:
                        kt, ks = gam >> 3, gam & 7
                        if gam not in kf:
                            kf[gam] = nfrag % 16
                            nfrag += 1
                            plan.append(("K", j, gam, FB + kf[gam] * 4, len(mf), fraguse.get(kf[gam], -1)))
                        d = ("v", Sreg(j, kt, x))
                        qfirst.setdefault((x, ks), len(mf))
                        mf.append(mfma(d, ("a", FB + kf[gam] * 4), ("v", QB[x] + 4 * ks), ("v", NEGM[x]) if ks == 0 else d))
                        chain_first.setdefault((j, kt), len(mf) - 1)
                        cfirst_blk.setdefault((j, kt, x), len(mf) - 1)
                        chain_last[(j, kt, x)] = len(mf) - 1
                        lastk = kf[gam]
                        kf_use = fraguse
                        pend_use = (kf[gam], len(mf) - 1)
                        kf.setdefault("u", {})[kf[gam]] = len(mf) - 1
                else:
                    fr = nfrag % 16
                    nfrag += 1
                    plan.append(("V", j, x, FB + fr * 4, len(mf), fraguse.get(fr, -1)))
                    for blk in pbk:
                        d = ("a", OB[blk] + 4 * x)
                        mf.append(mfma(d, ("a", FB + fr * 4), ("v", Preg(j - 3, blk)), 0 if j == (3 if blk < 2 else 4) else d))
                        pvdone[(j, x, blk)] = len(mf) - 1
                    fraguse[fr] = len(mf) - 1
            fraguse.update(kf.get("u", {}))
    start[NS] = start[NS + 1] = len(mf)
    bar, aup, lastread, lastaddr = {}, {}, {}, {}
    qlast = None
    for (blk, ks), c0 in (sorted(qfirst.items(), key=lambda x: x[1]) if not OPT["qx"] else []):
        i = ds_r128(("v", QB[blk] + 4 * ks), QA[blk], ks * 1024)
        i.tag = ("QS", 0)
        first = c0 < 8
        qlast = Task(i, "L", rel=-1, dl=-1 if first else min(c0 - 6, 22), deps=[(qlast, 0)] if qlast else [], name="qrd")
        tasks.append(qlast)
    bar[0] = Task(wait_bar([], ("QS", 0)), "BAR", deps=[(qlast, 4)], name="barq") if not OPT["qx"] else Task([], "S", rel=-1, dl=-1, name="barq")
    tasks.append(bar[0])
    st = dict(sd=None, aups=[])
    done_steps = set()

    def tile_of(kind, j):
        return ("K", j >> 1) if kind == "K" else ("V", (j - 3) >> 1)

    def add_wreads(o, gate, rel, dl):
        c = []
        wfrag_reads(c, o)
        prev = gate
        for i in c:
            prev = Task(i, "L", rel=rel, dl=dl, deps=[(prev, 0), (setup_done, 1)], prio=-40, name="wrd")
            tasks.append(prev)
        return prev

    su = []
    tail_setup(su)
    setup_done = None
    for i in su:
        setup_done = Task(i, i.kind if i.kind in ("S", "D") else "V", rel=start[29], dl=start[32] - 30, deps=[(setup_done, 0)] if setup_done else [], name="su")
        tasks.append(setup_done)

    def enter(j):
        done_steps.add(j)
        sw = "K" if j % 2 == 0 else "V"
        old = tile_of(sw, j - 1)
        newvalid = (sw == "K" and j <= 30) or (sw == "V" and 3 <= j <= 33)
        vm = [("T", j - 1)] if newvalid else []
        deps, lg = [], None
        if old in lastread:
            deps.append((lastread[old], OPT["barlag"]))
            lg = old
        if j == 32:
            vm = [("WO", 0)]
        if j == 33:
            vm = vm + [("WO", 1)]
        if j in (33, 34):
            wl = add_wreads(j - 33, bar[j - 1], start[j - 1], start[j] - DIST)
            deps = [(wl, 3)] + deps
            lg = ("ANY", j)
            for t in [wl] + ([lastread[old]] if old in lastread else []):
                t.ins[0].tag = ("ANY", j)
        if vm or lg:
            pb = max(k for k in bar)
            bar[j] = Task(wait_bar(vm, lg), "BAR", rel=start[j] - DIST + 1 + OPT["barlag"], dl=start[j] - 8, deps=deps + [(bar[pb], 1)], name=f"bar{j}")
            tasks.append(bar[j])
        sd0 = Task([salu(f"s_bitcmp1_b64 s[{sPat}:{sPat + 1}], 0"), salu(f"s_cselect_b32 s{sD}, s{sC2}, s{sC1}")], "S", rel=start[j - 1] + 8,
                   deps=[(t, 0) for t in st["aups"]] + ([(st["sd"], 0)] if st["sd"] else []), name="sd")
        sd0.ins[0].wr = [("scc", 0)]
        sd = Task(salu(f"s_lshr_b64 s[{sPat}:{sPat + 1}], s[{sPat}:{sPat + 1}], 1"), "S", deps=[(sd0, 0)], name="sd")
        tasks.extend([sd0, sd])
        st["sd"], st["aups"] = sd, []
        for kind, regs in (("K", KA), ("V", VA)):
            if not ((kind == "K" and 1 <= j <= 31) or (kind == "V" and 4 <= j <= 34)):
                continue
            for r in regs:
                t = Task(valu(f"v_add_u32 v{r}, s{sD if kind == sw else sHalf}, v{r}"), "V", deps=[(sd0, 1), (lastaddr[r], 0)], name="aup")
                aup[(j, r)] = t
                tasks.append(t)
                st["aups"].append(t)

    for kind, j, gam, f, c0, war in plan:
        if j >= 1 and j not in done_steps:
            enter(j)
        kt, ks = gam >> 3, gam & 7
        if kind == "K":
            a = KA[ks & 1]
            ins = [ds_r128(("a", f), a, (ks >> 1) * 4096 + kt * 2048)]
        else:
            a = VA[gam & 3]
            ins = [ds_rtr(("a", f), a, (gam >> 2) * 4096), ds_rtr(("a", f + 2), a, (gam >> 2) * 4096 + 2048)]
        tl = tile_of(kind, j)
        for i in ins:
            i.tag = tl
            deps = []
            swj = j if (kind == "K") == (j % 2 == 0) else j - 1
            if swj in bar and swj > 0:
                deps.append((bar[swj], 0))
            if (j, a) in aup:
                deps.append((aup[(j, a)], 1))
            if a in lastaddr:
                deps.append((lastaddr[a], 0))
            first = c0 < 8
            t = Task(i, "L", rel=-1 if first else max(c0 - DIST, war), dl=-1 if first else c0 - 5, deps=deps, name=f"rd{kind}{j}.{gam}")
            tasks.append(t)
            lastread[tl] = t
            lastaddr[a] = t
    prev = None
    for j in range(NS):
        n = j + 2
        if OPT["qx"] and j == 0:
            continue
        if n <= 32 and n != 31:
            g, adv = kv_dma("K" if n & 1 else "V", ("T", n))
        elif n in (31, 33):
            g, adv = wo_dma((n - 31) // 2, (n + 1) % 5)
            adv = dst_adv()
        elif n in (34, 35):
            g, adv = wo_dma(n - 32, WSL[n - 32])
        else:
            continue
        pb = max(k for k in bar if k <= j)
        first = Task([], "S", rel=start[j] - LEAD, deps=[(bar[pb], 0)] + ([(prev, 0)] if prev else []), name="dmastart")
        tasks.append(first)
        L = start[j + 1] - start[j]
        dl = start[j + 1] - OPT.get("dmadl", DIST) if OPT.get("fill", 6) <= j < 32 else start[j + 2] - DIST
        if j == 0:
            dl = start[1] + 34
        prev = add_dma(tasks, g, adv, first, start[j] - LEAD, dl, spread=max(3, (L - DIST) // OPT.get("sdiv", 9)), gapmin=OPT.get("mgap", 4) if j < 32 else 0)
    if OPT["qx"]:
        an = I(f"buffer_store_byte v{vU[3]}, v{vU[2]}, s[{sDBG}:{sDBG + 3}], s{sIN + 1} offen sc0 sc1", "D", [("v", vU[3]), ("v", vU[2])], [], tag="store")
        tasks.append(Task(an, "D", rel=2, dl=20, name="announce"))
    ecount, econs, prev_branch, prev_ladd = 0, {}, None, {}
    for j in range(32):
        blks = (0, 1, 2) if j & 1 else (0, 1)
        dl_chk = chain_first[(j + 2, 0)] - 1 if j + 2 <= 31 else start[j + 3] - 4
        allcv, tsdep, fix = [], {}, {}
        for blk in blks:
            if (j == 0 and blk < 2) or (j == 1 and blk == 2):
                t, u = ET + 2 * (blk & 1), ET + 2 * (blk & 1) + 1
                base = Task([], "V", rel=chain_last[(j, 0, blk)] + MLAT, deps=[(prev_branch, 0)] if prev_branch else [], name="mx0")
                tasks.append(base)
                last = rowmax_tasks(tasks, Sreg(j, 0, blk), t, u, base, "mx")
                nm = [Task(valu(f"v_sub_f32 v{NEGM[blk] + r}, 0, v{t}"), "V", rel=cfirst_blk[(j, 1, blk)] + 4,
                           dl=cfirst_blk[(j + (1 if blk < 2 else 2), 0, blk)] - 3, deps=[(last, 0)], name="negm") for r in range(4)]
                tasks += nm
                for kt in range(2):
                    for r in range(4):
                        s = Sreg(j, kt, blk) + r
                        x = Task(valu(f"v_sub_f32 v{s}, v{s}, v{t}"), "V", rel=chain_last[(j, kt, blk)] + MLAT, deps=[(last, 0)], name="sfix")
                        tasks.append(x)
                        fix[(kt, blk, r)] = x
                        econs.setdefault(t - ET, []).append(x)
                econs.setdefault(t - ET, []).extend(nm)
                econs.setdefault(u - ET, []).append(last)
        for kt in range(2):
            for blk in blks:
                ts = TS[j & 1][blk]
                for pr in range(2):
                    es = []
                    for r in (2 * pr, 2 * pr + 1):
                        e = ecount % 8
                        ecount += 1
                        deps = [(x, 0) for x in econs.get(e, [])] + ([(prev_branch, 0)] if prev_branch else [])
                        if (kt, blk, r) in fix:
                            deps.append((fix[(kt, blk, r)], 1))
                        t = Task(valu(f"v_exp_f32 v{ET + e}, v{Sreg(j, kt, blk) + r}"), "E", rel=chain_last[(j, kt, blk)] + MLAT, deps=deps, name=f"exp{j}.{kt}")
                        tasks.append(t)
                        econs[e] = []
                        es.append((e, t))
                    (e0, t0), (e1, t1) = es
                    cv = Task(valu(f"v_cvt_pk_bf16_f32 v{Preg(j, blk) + 2 * kt + pr}, v{ET + e0}, v{ET + e1}"), "V", deps=[(t0, 1), (t1, 1)], name="cvt")
                    tasks.append(cv)
                    allcv.append(cv)
                    if blk not in tsdep:
                        ad = Task(valu(f"v_add_f32 v{ts}, v{ET + e0}, v{ET + e1}"), "V",
                                  deps=[(t0, 1), (t1, 1)] + ([(prev_ladd[(j & 1, blk)], 0)] if (j & 1, blk) in prev_ladd else []), name="add")
                        tasks.append(ad)
                        econs[e0] += [cv, ad]
                        econs[e1] += [cv, ad]
                        tsdep[blk] = ad
                    else:
                        a0 = Task(valu(f"v_add_f32 v{ts}, v{ET + e0}, v{ts}"), "V", deps=[(t0, 1), (tsdep[blk], 1)], name="add")
                        a1 = Task(valu(f"v_add_f32 v{ts}, v{ET + e1}, v{ts}"), "V", deps=[(t1, 1), (a0, 1)], name="add")
                        tasks += [a0, a1]
                        econs[e0] += [cv, a0]
                        econs[e1] += [cv, a1]
                        tsdep[blk] = a1
        tsr = [TS[j & 1][b] for b in blks]
        mx = Task(valu(f"v_max3_f32 v{vC}, v{tsr[0]}, v{tsr[1]}, v{tsr[2]}") if len(tsr) == 3 else valu(f"v_max_f32 v{vC}, v{tsr[0]}, v{tsr[1]}"),
                  "V", deps=[(t, 1) for t in tsdep.values()], name="mx")
        cmp_ = Task(valu(f"v_cmp_lt_f32 vcc, s{sThr}, v{vC}"), "V", deps=[(mx, 1)], name="cmp")
        br = Task([I(f"s_cbranch_vccnz L_slow_@{j}", "BR", [("vcc", 0)], [], tag=("site", j)), I(f"L_ret_@{j}:", "LAB", tag=("ret", j))],
                  "S", dl=dl_chk, deps=[(cmp_, 1)] + [(t, 0) for t in allcv] + [(t, 0) for t in prev_ladd.values()], name=f"br{j}")
        tasks += [mx, cmp_, br]
        for blk in blks:
            la = Task(valu(f"v_add_f32 v{LS[blk]}, v{TS[j & 1][blk]}, v{LS[blk]}"), "V", deps=[(br, 0)], dl=dl_chk + 12, name="ladd")
            tasks.append(la)
            prev_ladd[(j & 1, blk)] = la
        prev_branch = br
        sites.append(dict(j=j, task=br, blks=blks))
    last = None
    for blk in (1, 2, 0):
        xs = []
        xsum(xs, LS[blk], vT1)
        for i in xs:
            last = Task(i, "V", deps=[(t, 0) for t in prev_ladd.values()] + ([(last, 1 if i.kind == "P" else 0)] if last else []), name="xsum")
            tasks.append(last)
        if blk == 1:
            m0_ = Task(valu(f"v_mov_b32 v{ET}, v{NEGM[1]}"), "V", deps=[(last, 0)], name="st")
            m1_ = Task(valu(f"v_mov_b32 v{ET + 1}, v{LS[1]}"), "V", deps=[(last, 0)], name="st")
            stt = Task(bstore(2, ("v", ET), vT2, sWS, sT3, 0, STF), "D", deps=[(m0_, 1), (m1_, 1), (prev, 0)], name="st")
            tasks += [m0_, m1_, stt]
    pcv = {}
    for T in range(16):
        done = pvdone[(34, T, 1)]
        tmp = SB + 4 * (T & 3)
        ars = [Task(AR(tmp + r, OB[1] + 4 * T + r), "V", rel=done + MLAT, deps=[(prev_branch, 0)] + [(x, 0) for x in pcv.get(T & 3, [])], name="ar") for r in range(4)]
        cv = [Task(valu(f"v_cvt_pk_bf16_f32 v{FSB + 2 * T + h}, v{tmp + 2 * h}, v{tmp + 2 * h + 1}"), "V", deps=[(ars[2 * h], 0), (ars[2 * h + 1], 0)], name="cv") for h in range(2)]
        tasks += ars + cv
        if T & 1:
            kb = T >> 1
            tasks.append(Task(bstore(4, ("v", FSB + 4 * kb), vST, sWS, sE4 if kb < 4 else sE5, (kb & 3) * 1024, STF), "D",
                              deps=[(x, 1) for x in cv + pcv[(T - 1) & 3]] + [(prev, 0)], name="fst"))
        pcv[T & 3] = cv
    gaps = schedule(mf, tasks, verbose=True)
    for s in sites:
        j, g = s["j"], s["task"].gap
        s["later_blk"] = {}
        for (jj, kt, blk), idx in cfirst_blk.items():
            if jj > j and idx <= g:
                s["later_blk"].setdefault(blk, []).append(Sreg(jj, kt, blk))
        s["pend"] = [jj for jj in range(max(0, j - 3), j) if start[jj + 4] - 1 > g]
    for j in range(NS):
        mf[start[j]].mark = ("M", j)
    ab = str(OPT.get("ablate", ""))
    if ab:
        for t in tasks:
            if t.gap is None or not (start[5] <= t.gap < start[29]):
                continue
            if t.name.startswith("br"):
                t.ins = [i for i in t.ins if i.kind != "BR"]
            if "v" in ab and (t.name.startswith("exp") or t.name in ("add", "cvt", "mx", "cmp", "ladd")):
                t.ins = []
            if "a" in ab and t.name in ("add", "mx", "cmp", "ladd"):
                t.ins = []
            if "l" in ab and t.name.startswith("rd") and t.ins[0].tag is not None and t is not lastread.get(t.ins[0].tag):
                t.ins = []
            if "d" in ab and t.name == "dma" and "offset:3072" not in t.ins[0].text:
                t.ins = []
    return linearize(mf, gaps)


def slow_path(s, name):
    c = []
    V = lambda t: c.append(valu(t))
    j = s["j"]
    c.append(I(f"L_slow_{name}:", "LAB"))
    c.append(nop(15))
    t, u, x, y = ET, ET + 1, ET + 2, ET + 3
    for blk in range(3):
        if blk not in s["blks"]:
            V(f"v_mov_b32 v{vF[blk]}, 1.0")
            continue
        s0, s1 = Sreg(j, 0, blk), Sreg(j, 1, blk)
        V(f"v_max3_f32 v{t}, v{s0}, v{s0 + 1}, v{s0 + 2}")
        V(f"v_max3_f32 v{t}, v{t}, v{s0 + 3}, v{s1}")
        V(f"v_max3_f32 v{t}, v{t}, v{s1 + 1}, v{s1 + 2}")
        V(f"v_max_f32 v{t}, v{t}, v{s1 + 3}")
        for sw in ("v_permlane32_swap_b32", "v_permlane16_swap_b32"):
            V(f"v_mov_b32 v{u}, v{t}")
            V(f"{sw} v{t}, v{u}")
            V(f"v_max_f32 v{t}, v{t}, v{u}")
        V(f"v_ceil_f32 v{t}, v{t}")
        V(f"v_max_f32 v{t}, 0, v{t}")
        V(f"v_exp_f32 v{vF[blk]}, -v{t}")
        for base in [NEGM[blk], s0, s1] + s["later_blk"].get(blk, []):
            for r in range(4):
                V(f"v_sub_f32 v{base + r}, v{base + r}, v{t}")
        for jj in s["pend"]:
            if blk == 2 and not (jj & 1):
                continue
            for r in range(4):
                p = Preg(jj, blk) + r
                V(f"v_lshlrev_b32 v{x}, 16, v{p}")
                V(f"v_and_b32 v{y}, 0xffff0000, v{p}")
                V(f"v_mul_f32 v{x}, v{x}, v{vF[blk]}")
                V(f"v_mul_f32 v{y}, v{y}, v{vF[blk]}")
                V(f"v_cvt_pk_bf16_f32 v{p}, v{x}, v{y}")
        ts = TS[j & 1][blk]
        V(f"v_mov_b32 v{ts}, 0")
        for kt in range(2):
            for pr in range(2):
                sr = Sreg(j, kt, blk) + 2 * pr
                V(f"v_exp_f32 v{x}, v{sr}")
                V(f"v_exp_f32 v{y}, v{sr + 1}")
                V(f"v_cvt_pk_bf16_f32 v{Preg(j, blk) + 2 * kt + pr}, v{x}, v{y}")
                V(f"v_add_f32 v{ts}, v{x}, v{ts}")
                V(f"v_add_f32 v{ts}, v{y}, v{ts}")
    return c


def slow_tail(names):
    c = []
    V = lambda t: c.append(valu(t))
    c.append(I("L_slow_tail:", "LAB"))
    for blk in range(3):
        V(f"v_mul_f32 v{LS[blk]}, v{LS[blk]}, v{vF[blk]}")
        for r in range(0, 64, 4):
            for k in range(4):
                c.append(AR(ET + k, OB[blk] + r + k))
            for k in range(4):
                V(f"v_mul_f32 v{ET + k}, v{ET + k}, v{vF[blk]}")
            for k in range(4):
                c.append(I(f"v_accvgpr_write_b32 a{OB[blk] + r + k}, v{ET + k}", "V", [("v", ET + k)], [("a", OB[blk] + r + k)]))
    c.append(nop(3))
    for k, nm in enumerate(names):
        c.append(salu(f"s_cmp_eq_u32 s{sSite}, {k}"))
        c.append(I(f"s_cbranch_scc1 L_ret_{nm}", "BR"))
    c.append(I(f"s_branch L_ret_{names[-1]}", "BR"))
    return c


def xsum(c, r, u):
    for sw in ("v_permlane32_swap_b32", "v_permlane16_swap_b32"):
        c += [valu(f"v_mov_b32 v{u}, v{r}"), valu(f"{sw} v{r}, v{u}"), valu(f"v_add_f32 v{r}, v{r}, v{u}")]


WFR = [("v", 32), ("v", 64), ("a", 96), ("a", 128), ("a", 160), ("a", 192), ("a", 224)]
WSL = [2, 4, 0, 2, 3, 1, 4]
FSB = 96
RI, RA, RB = [QA[0], QA[1]], [QA[2], vU[0]], [vU[1], vX]


def OFR(blk, kb):
    n = blk * 8 + kb
    return ("a", 4 * n) if n < 24 else ("v", 128 + 4 * (n - 24))


def wfrag_reads(c, o):
    off = WSL[o] * SLOT
    a = vU[2] if off < 65536 else (vU[3] if off < 131072 else vU[4])
    off &= 65535
    k, b = WFR[o]
    for kb in range(8):
        for e in range(2):
            c.append(ds_rtr((k, b + 4 * kb + 2 * e), a, off + kb * 4096 + e * 2048))


def tail_setup(c):
    S = lambda t: c.append(salu(t))
    V = lambda t: c.append(valu(t))
    if OPT.get("cpf2", 1):
        c.append(raw(f"s_getpc_b64 s[{sT2}:{sT3}]"))
        S(f"s_lshl_b32 s{sT1}, s{sW}, 13")
        V(f"v_lshlrev_b32 v{vT2}, 7, v{vLANE}")
        V(f"v_add_u32 v{vT2}, s{sT1}, v{vT2}")
        V(f"v_min_u32 v{vT2}, {OPT.get('cpf2max', 20000)}, v{vT2}")
        c.append(I(f"global_load_dword v{vX}, v{vT2}, s[{sT2}:{sT3}]", "D", [("v", vT2)], [("v", vX)]))
    V(f"v_and_b32 v{vU[1]}, 7, v{vLANE}")
    V(f"v_lshlrev_b32 v{vU[1]}, 2, v{vU[1]}")
    S(f"s_lshl_b32 s91, s{sB}, 5")
    S(f"s_mov_b32 s{sIN + 1}, 0x01010101")
    c.append(bload(1, ("v", vU[0]), vU[1], sDBG, 91, 0, " sc0 sc1"))
    srd(c, sOUT, 10, 8 * 160 * 448 * 2)
    S(f"s_mul_i32 s{sE0}, s{sID}, {EX_WG}")
    S(f"s_xor_b32 s{sT1}, s{sID}, 16")
    S(f"s_mul_i32 s{sE1}, s{sT1}, {EX_WG}")
    S(f"s_add_u32 s{sE4}, s{sE0}, s{sE6}")
    S(f"s_add_u32 s{sE5}, s{sE4}, 4096")
    S(f"s_lshl_b32 s{sT3}, s{sW}, 9")
    S(f"s_add_u32 s{sT2}, s{sT3}, {4 * SLOT}")
    S(f"s_add_u32 s{sT3}, s{sT3}, s{sE0}")
    S(f"s_add_u32 s{sT3}, s{sT3}, 40960")
    V(f"v_lshlrev_b32 v{vT2}, 3, v{vLANE}")
    V(f"v_add_u32 v{XA[0]}, s{sT2}, v{vT2}")
    V(f"v_xor_b32 v{XA[1]}, 1024, v{XA[0]}")
    S(f"s_lshl_b32 s{sT1}, s{sW}, 5")
    V(f"v_xor_b32 v{vU[2]}, s{sT1}, v{LV[0]}")
    V(f"v_add_u32 v{vU[3]}, 0x10000, v{vU[2]}")
    V(f"v_add_u32 v{vU[4]}, 0x20000, v{vU[2]}")


def merge_coef(c, nm_o, l_o, pst_, co, cp, t):
    V = lambda x: c.append(valu(x))
    V(f"v_min_f32 v{t}, v{nm_o}, v{pst_}")
    V(f"v_sub_f32 v{co}, v{t}, v{nm_o}")
    V(f"v_sub_f32 v{cp}, v{t}, v{pst_}")
    V(f"v_exp_f32 v{co}, v{co}")
    V(f"v_exp_f32 v{cp}, v{cp}")
    V(f"v_mul_f32 v{t}, v{co}, v{l_o}")
    V(f"v_fmac_f32 v{t}, v{cp}, v{pst_ + 1}")
    V(f"v_rcp_f32 v{t}, v{t}")
    V(f"v_mul_f32 v{co}, v{co}, v{t}")
    V(f"v_mul_f32 v{cp}, v{cp}, v{t}")
    V(f"v_mov_b32 v{co + 1}, v{co}")
    V(f"v_mov_b32 v{cp + 1}, v{cp}")


def pk(op, d, *src):
    return valu(f"{op} v[{d}:{d + 1}], " + ", ".join(f"v[{x}:{x + 1}]" for x in src))


def decode(c):
    S = lambda t: c.append(salu(t))
    V = lambda t: c.append(valu(t))
    S(f"s_mul_i32 s{sC1}, s{sH}, 288")
    S(f"s_mul_i32 s{sT1}, s{sW}, 72")
    S(f"s_add_u32 s{sC1}, s{sC1}, s{sT1}")
    S(f"s_lshr_b32 s{sT1}, s{sH}, 2")
    S(f"s_mul_i32 s{sT2}, s{sT1}, 18")
    S(f"s_lshl_b32 s{sT1}, s{sT1}, 5")
    S(f"s_mul_i32 s{sT3}, s{sB}, 160")
    S(f"s_lshl_b32 s{sD}, s{sSP}, 4")
    S(f"s_add_u32 s{sT3}, s{sT3}, s{sD}")
    S(f"s_mul_i32 s{sT3}, s{sT3}, 896")
    S(f"s_add_u32 s{sT3}, s{sT3}, s{sT1}")
    S(f"s_mov_b32 s{sD}, {PART_WG}")
    for n in range(2):
        g, k, x, y = vK0, vK1, vV, vT0
        if n == 0:
            V(f"v_add_u32 v{g}, s{sC1}, v{vLANE}")
            V(f"v_lshlrev_b32 v{RI[n]}, 4, v{g}")
        else:
            V(f"v_and_b32 v{g}, 7, v{vLANE}")
            V(f"v_add_u32 v{g}, s{sC1}, v{g}")
            V(f"v_add_u32 v{g}, 64, v{g}")
            V(f"v_lshrrev_b32 v{k}, 3, v{vLANE}")
            V(f"v_mul_lo_u32 v{k}, v{k}, s{sD}")
            V(f"v_lshl_add_u32 v{RI[n]}, v{g}, 4, v{k}")
        V(f"v_lshrrev_b32 v{k}, 6, v{g}")
        V(f"v_subrev_u32 v{k}, s{sT2}, v{k}")
        V(f"v_and_b32 v{x}, 15, v{g}")
        V(f"v_mul_u32_u24 v{x}, 896, v{x}")
        V(f"v_bfe_u32 v{y}, v{g}, 4, 2")
        V(f"v_lshl_add_u32 v{x}, v{y}, 3, v{x}")
        V(f"v_add_u32 v{x}, s{sT3}, v{x}")
        z = VA[1]
        V(f"v_lshrrev_b32 v{y}, 1, v{k}")
        V(f"v_lshlrev_b32 v{g}, 1, v{k}")
        V(f"v_subrev_u32 v{g}, 28, v{g}")
        V(f"v_cmp_gt_u32 vcc, 14, v{k}")
        V(f"v_cndmask_b32 v{y}, v{g}, v{y}, vcc")
        V(f"v_add_u32 v{g}, 1, v{y}")
        V(f"v_cndmask_b32 v{z}, v{g}, v{y}, vcc")
        V(f"v_and_b32 v{g}, 1, v{k}")
        V(f"v_mul_u32_u24 v{g}, {64 * 896}, v{g}")
        V(f"v_mov_b32 v{RB[n]}, {128 * 896}")
        V(f"v_cndmask_b32 v{g}, v{RB[n]}, v{g}, vcc")
        V(f"v_add_u32 v{RA[n]}, v{x}, v{g}")
        V(f"v_mov_b32 v{g}, {32 * 896}")
        V(f"v_cndmask_b32 v{g}, 0, v{g}, vcc")
        V(f"v_add_u32 v{RB[n]}, v{RA[n]}, v{g}")
        for pz, dst in ((y, RA[n]), (z, RB[n])):
            V(f"v_add_u32 v{pz}, s{sRot}, v{pz}")
            V(f"v_subrev_u32 v{g}, 7, v{pz}")
            V(f"v_min_u32 v{pz}, v{pz}, v{g}")
            V(f"v_lshl_add_u32 v{dst}, v{pz}, 7, v{dst}")
        V(f"v_mov_b32 v{g}, {OOB:#x}")
        V(f"v_cmp_eq_u32 vcc, 17, v{k}")
        V(f"v_cndmask_b32 v{RB[n]}, v{RB[n]}, v{g}, vcc")
        if n:
            V(f"v_cmp_gt_u32 vcc, 8, v{vLANE}")
            for r in (RA[1], RB[1]):
                V(f"v_cndmask_b32 v{r}, v{g}, v{r}, vcc")


def tail():
    c = []
    S = lambda t: c.append(salu(t))
    V = lambda t: c.append(valu(t))
    W = lambda t: c.append(I(f"s_waitcnt {t}", "W"))
    BAR = lambda: c.append(I("s_barrier", "B"))
    HK, OWN, HSB, PH = 192, 128, 160, 224
    hs, fs_p, hs_p, own_nm = 246, 240, 242, 244
    c += pst()
    V(f"v_add_u32 v{KA[0]}, s{sE6}, v{vST}")
    V(f"v_xor_b32 v{KA[1]}, 16384, v{KA[0]}")
    V(f"v_mov_b32 v{hs}, v{NEGM[2]}")
    V(f"v_mov_b32 v{hs + 1}, v{LS[2]}")
    V(f"v_mov_b32 v{own_nm}, v{NEGM[0]}")
    c.append(ds_w64(XA[0], ("v", hs), 0))
    S(f"s_cmp_eq_u32 s{sXW}, 0")
    c.append(I("s_cbranch_scc1 L_h0", "BR"))
    for half, lab, nxt in ((1, None, "L_h1"), (0, "L_h0", None)):
        if lab:
            c.append(I(f"{lab}:", "LAB"))
        for T in range(8):
            i = ds_w128(KA[0], ("a", OB[2] + 32 * (1 - half) + 4 * T), SLOT + T * 1024)
            if half == 1:
                i.kind = "X"
            c.append(i)
        for r in range(32):
            c.append(AR(HK + r, OB[2] + 32 * half + r))
        if nxt:
            c.append(I(f"s_branch {nxt}", "BR"))
    c.append(I("L_h1:", "LAB"))
    S(f"s_lshl_b32 s{sT0}, s{sXW}, 12")
    S(f"s_add_u32 s{sT0}, s{sT0}, 32768")
    S(f"s_lshl_b32 s{sT1}, s{sXW}, 9")
    S(f"s_add_u32 s{sT1}, s{sT1}, 43008")
    S(f"s_cmp_eq_u32 s{sHW}, 1")
    S(f"s_cselect_b32 s{sT2}, s{sE0}, {OOB:#x}")
    S(f"s_cselect_b32 s{sT3}, {OOB:#x}, s{sE1}")
    S(f"s_add_u32 s{sE2}, s{sT3}, s{sT0}")
    S(f"s_add_u32 s{sE3}, s{sT3}, s{sT1}")
    S(f"s_add_u32 s{sE4}, s{sT2}, s{sT0}")
    S(f"s_add_u32 s{sE5}, s{sT2}, s{sT1}")
    W("lgkmcnt(0)")
    BAR()
    c += pst()
    c.append(ds_r64(("v", hs_p), XA[1], 0))
    for T in range(8):
        c.append(ds_r128(("v", OWN + 4 * T), KA[1], SLOT + T * 1024))
    W("vmcnt(0)")
    S(f"s_mov_b32 s{sCnt}, 0")
    c.append(I("L_an:", "LAB"))
    V(f"v_cmp_ne_u32 vcc, s{sIN + 1}, v{vU[0]}")
    S(f"s_add_u32 s{sCnt}, s{sCnt}, 1")
    c.append(I("s_cbranch_vccz L_and", "BR", [("vcc", 0)]))
    c.append(raw(f"buffer_load_dword v{vU[0]}, v{vU[1]}, s[{sDBG}:{sDBG + 3}], s91 offen sc0 sc1", "X"))
    c.append(raw("s_waitcnt vmcnt(0)", "X"))
    S(f"s_cmp_lt_u32 s{sCnt}, 300000")
    c.append(I("s_cbranch_scc1 L_an", "BR"))
    c.append(I("L_and:", "LAB"))
    S(f"s_xor_b32 s{sC1}, s{sIN}, {16 << ISH}")
    S(f"s_lshl_b32 s{sT1}, s{sW}, 2")
    S(f"s_add_u32 s{sC1}, s{sC1}, s{sT1}")
    V(f"v_mov_b32 v{vT0}, 1")
    V(f"v_mov_b32 v{vT1}, 0")
    c.append(bstore(1, ("v", vT0), vT1, sWS, sC1, 64, FLF))
    nm, a_o, a_p = 253, 248, 236
    V(f"v_min_f32 v{nm}, v{hs}, v{hs_p}")
    V(f"v_sub_f32 v{a_o}, v{nm}, v{hs}")
    V(f"v_sub_f32 v{a_p}, v{nm}, v{hs_p}")
    V(f"v_exp_f32 v{a_o}, v{a_o}")
    V(f"v_exp_f32 v{a_p}, v{a_p}")
    V(f"v_mov_b32 v{hs}, v{nm}")
    V(f"v_mul_f32 v{hs + 1}, v{a_o}, v{hs + 1}")
    V(f"v_fmac_f32 v{hs + 1}, v{a_p}, v{hs_p + 1}")
    V(f"v_mov_b32 v{a_o + 1}, v{a_o}")
    V(f"v_mov_b32 v{a_p + 1}, v{a_p}")
    c.append(bstore(2, ("v", hs), vT2, sWS, sE5, 0, STF))
    for r in range(0, 32, 2):
        c.append(pk("v_pk_mul_f32", HK + r, HK + r, a_o))
    for T in range(8):
        for r in (0, 2):
            c.append(pk("v_pk_fma_f32", HK + 4 * T + r, OWN + 4 * T + r, a_p, HK + 4 * T + r))
        V(f"v_cvt_pk_bf16_f32 v{HSB + 2 * T}, v{HK + 4 * T}, v{HK + 4 * T + 1}")
        V(f"v_cvt_pk_bf16_f32 v{HSB + 2 * T + 1}, v{HK + 4 * T + 2}, v{HK + 4 * T + 3}")
        if T & 1:
            c.append(bstore(4, ("v", HSB + 2 * (T - 1)), vST, sWS, sE4, (T >> 1) * 1024, STF))
    c += pst()
    c += [AR(OWN + r, OB[0] + r) for r in range(64)]
    S(f"s_add_u32 s{sT1}, s{sE1}, s{sE6}")
    S(f"s_add_u32 s{sT2}, s{sT1}, 4096")
    S(f"s_lshl_b32 s{sT3}, s{sW}, 9")
    S(f"s_add_u32 s{sT3}, s{sT3}, s{sE1}")
    S(f"s_add_u32 s{sT3}, s{sT3}, 40960")
    S(f"s_lshl_b32 s{sT0}, s{sW}, 2")
    S(f"s_add_u32 s{sT0}, s{sT0}, s{sIN}")
    S(f"s_or_b32 s{sC2}, s{sT0}, 4")
    c += pst()

    def poll(lab, sreg, off, first=None):
        pv = 253
        S(f"s_mov_b32 s{sCnt}, 0")
        ld = f"buffer_load_dword v{pv}, v{vT1}, s[{sWS}:{sWS + 3}], s{sreg} offen offset:{off}{FLF}"
        if first:
            c.append(raw(ld, "X"))
            c.append(raw("s_waitcnt vmcnt(0)", "X"))
            c.extend(first)
            c.append(I(f"s_branch {lab}c", "BR"))
        c.append(I(f"{lab}:", "LAB"))
        c.append(raw(ld, "X"))
        S(f"s_add_u32 s{sCnt}, s{sCnt}, 1")
        c.append(raw("s_waitcnt vmcnt(0)", "X"))
        c.append(I(f"{lab}c:", "LAB"))
        V(f"v_readfirstlane_b32 s{sD}, v{pv}")
        S(f"s_cmp_gt_u32 s{sCnt}, 300000")
        c.append(I(f"s_cbranch_scc1 {lab}d", "BR"))
        S(f"s_cmp_eq_u32 s{sD}, 0")
        c.append(I(f"s_cbranch_scc1 {lab}", "BR"))
        c.append(I(f"{lab}d:", "LAB"))

    poll("L_p1", sT0, 64, [bstore(1, ("v", vT0), vT1, sWS, sC1, 80, FLF)])
    c += pst()
    c.append(bload(2, ("v", fs_p), vT2, sWS, sT3, 0, LDF))
    for kb in range(8):
        c.append(bload(4, ("v", FSB + 4 * kb), vST, sWS, sT1 if kb < 4 else sT2, (kb & 3) * 1024, LDF))
    BAR()
    c += pst()
    f = []
    wfrag_reads(f, 2)
    wfrag_reads(f, 3)
    decode(f)
    for o in range(4, 4 + OPT.get("wearly", 0)):
        for pre, d in wo_dma(o, WSL[o])[0]:
            c += [f.pop(0) for _ in range(min(12, len(f)))] + pre + [d]
    c += f
    c += pst()
    poll("L_p1h", sC2, 80)
    c.append(bload(2, ("v", hs_p), vT2, sWS, sE3, 0, LDF))
    for kb in range(4):
        c.append(bload(4, ("v", PH + 4 * kb), vST, sWS, sE2, kb * 1024, LDF))
    W("lgkmcnt(0)")
    BAR()
    S(f"s_lshl_b32 s{sT0}, s{sXW}, 12")
    S(f"s_lshl_b32 s{sT1}, s{sHW}, 13")
    S(f"s_add_u32 s{sT0}, s{sT0}, s{sT1}")
    S(f"s_add_u32 s{sT0}, s{sT0}, {2 * SLOT}")
    V(f"v_add_u32 v{KA[1]}, s{sT0}, v{vST}")
    S(f"s_mul_i32 s{sE0}, s{sID}, {PART_WG}")
    S(f"s_mul_i32 s{sT0}, s{sW}, {18 * 1024}")
    S(f"s_add_u32 s{sE0}, s{sE0}, s{sT0}")
    S(f"s_add_u32 s{sE0}, s{sE0}, {PART0}")
    S(f"s_add_u32 s{sE1}, s{sE0}, {14 * 1024}")
    V(f"v_add_u32 v{XA[0]}, {2 * SLOT}, v{vST}")
    c += pst()
    co, cp, ch, cq = 248, 254, vK0, VA[0]
    u = [vU[2] + 1, 252]
    u = [240, 244]
    for own_, pay, n, cc, cs, addr in ((OWN, FSB, 8, cp, co, KA[0]), (HK, PH, 4, cq, ch, KA[1])):
        if own_ == OWN:
            merge_coef(c, own_nm, LS[0], fs_p, co, cp, 253)
        else:
            W("vmcnt(0)")
            merge_coef(c, hs, hs + 1, hs_p, ch, cq, 253)
        for kb in range(n):
            for r in range(4):
                p, o, t = pay + 4 * kb + r, own_ + 8 * kb + 2 * r, u[r & 1]
                c.append(pk("v_pk_mul_f32", o, o, cs))
                V(f"v_lshlrev_b32 v{t}, 16, v{p}")
                V(f"v_and_b32 v{t + 1}, 0xffff0000, v{p}")
                c.append(pk("v_pk_fma_f32", o, t, cc, o))
                V(f"v_cvt_pk_bf16_f32 v{p}, v{o}, v{o + 1}")
            c.append(ds_w128(addr, ("v", pay + 4 * kb), kb * 1024))
    W("lgkmcnt(0)")
    BAR()
    return c


def o_phase():
    mf, tasks = [], []
    ACC = [192, 212]
    PK = [[232, 236], [240, 244]]
    HST = 248
    prev = None
    for kb in range(8):
        for blk in range(5):
            c0 = kb * 5 + blk
            i = ds_r128(OFR(blk, kb), vST, blk * 8192 + kb * 1024) if blk < 4 else ds_r128(OFR(blk, kb), XA[0], kb * 1024)
            prev = Task(i, "L", rel=-1, dl=-1 if c0 < 10 else c0 - 8, deps=[(prev, 0)] if prev else [], name="ord")
            tasks.append(prev)
    pd = Task([], "S", rel=0, name="dmastart")
    tasks.append(pd)
    for o in range(4 + OPT.get("wearly", 0), 7):
        pd = add_dma(tasks, wo_dma(o, WSL[o])[0], [], pd, 0, 40 * o - 60, spread=0, gapmin=OPT.get("ogap", 4))
    for o in (4, 5, 6):
        if o >= 4 + OPT.get("wearly", 0):
            prev = Task(wait_bar([("WO", o)], None), "BAR", rel=40 * o - 34, deps=[(prev, 0)], name="latebar")
            tasks.append(prev)
        cc = []
        wfrag_reads(cc, o)
        for k, i in enumerate(cc):
            prev = Task(i, "L", dl=40 * o + (k >> 1) - 8, deps=[(prev, 0)], name="wrd")
            tasks.append(prev)
    prev_st, prev_inc = {}, None
    for o in range(7):
        p = o & 1
        firstm = len(mf)
        lastm = {}
        for kb, blk in ([(kb, blk) for kb in range(8) for blk in range(5)] if o == 0 else [(kb, blk) for blk in range(5) for kb in range(8)]):
            d = ("v", ACC[p] + 4 * blk)
            mf.append(mfma(d, (WFR[o][0], WFR[o][1] + 4 * kb), OFR(blk, kb), 0 if kb == 0 else d))
            lastm[blk] = len(mf) - 1
        dl = firstm + 80 - 3
        cvs = {}
        for blk in range(5):
            for h in range(2):
                dst, key = (HST + 2 * p + h, "H") if blk == 4 else (PK[p][blk >> 1] + 2 * (blk & 1) + h, (p, blk >> 1))
                s = ACC[p] + 4 * blk + 2 * h
                t = Task(valu(f"v_cvt_pk_bf16_f32 v{dst}, v{s}, v{s + 1}"), "V", rel=lastm[blk] + MLAT, dl=dl,
                         deps=[(prev_st[key], 2)] if key in prev_st else [], name="cvt")
                tasks.append(t)
                cvs.setdefault(key, []).append(t)
        sts = []
        for pr in range(2):
            st = Task(bstore(4, ("v", PK[p][pr]), vST, sWS, sE0, p * 2048 + pr * 1024, STF), "D",
                      deps=[(t, 1) for t in cvs[(p, pr)]] + ([(prev_inc, 0)] if prev_inc else []), name="st")
            tasks.append(st)
            prev_st[(p, pr)] = st
            sts.append(st)
        if p == 0:
            hcv, sts0 = cvs["H"], sts
        if p == 1 or o == 6:
            st = Task(bstore(4, ("v", HST), vST, sWS, sE1, (o >> 1) * 1024, STF), "D", deps=[(t, 1) for t in hcv + cvs["H"]], name="stH")
            tasks.append(st)
            prev_st["H"] = st
            prev_inc = Task(salu(f"s_add_u32 s{sE0}, s{sE0}, 4096"), "S", deps=[(t, 0) for t in sts + sts0], name="inc")
            tasks.append(prev_inc)
    gaps = schedule(mf, tasks, verbose=True)
    for o in range(7):
        mf[40 * o].mark = ("N", o)
    return linearize(mf, gaps)


def final():
    c = []
    S = lambda t: c.append(salu(t))
    V = lambda t: c.append(valu(t))
    W = lambda t: c.append(I(f"s_waitcnt {t}", "W"))
    S(f"s_and_b32 s{sT0}, s{sID}, 0xf0")
    S(f"s_mul_i32 s{sE2}, s{sT0}, {PART_WG}")
    S(f"s_add_u32 s{sE2}, s{sE2}, {PART0}")
    S(f"s_add_u32 s{sE3}, s{sE2}, {8 * PART_WG}")
    S(f"s_lshl_b32 s{sT1}, s{sW}, 2")
    S(f"s_add_u32 s{sT1}, s{sT1}, s{sT0}")
    S(f"s_lshl_b32 s{sT1}, s{sT1}, {ISH}")
    S(f"s_lshl_b32 s{sT2}, s{sH}, 2")
    S(f"s_add_u32 s{sT1}, s{sT1}, s{sT2}")
    S(f"s_add_u32 s{sT1}, s{sT1}, {INBOX}")
    V(f"v_and_b32 v{vK0}, 3, v{vLANE}")
    V(f"v_lshlrev_b32 v{vK0}, {ISH}, v{vK0}")
    V(f"v_and_b32 v{vK1}, 15, v{vLANE}")
    V(f"v_lshlrev_b32 v{vK1}, 2, v{vK1}")
    V(f"v_mov_b32 v{vT0}, 1")
    c += pst()
    c.append(raw(f"buffer_load_dword v{vV}, v{vK1}, s[{sWS}:{sWS + 3}], s{sIN} offen{FLF}", "X"))
    W("vmcnt(0)")
    c += pst()
    c.append(bstore(1, ("v", vT0), vK0, sWS, sT1, 0, FLF))
    S(f"s_mov_b32 s{sCnt}, 0")
    S(f"s_mov_b32 s{sT2}, 0")
    c.append(I("L_p2:", "LAB"))
    V(f"v_cmp_ne_u32 vcc, 0, v{vV}")
    S(f"s_add_u32 s{sCnt}, s{sCnt}, 1")
    c.append(I(f"s_and_b32 s{sT3}, vcc_lo, 0xffff", "S", [("vcc", 0)], [("s", sT3)]))
    S(f"s_cmp_gt_u32 s{sCnt}, 300000")
    S(f"s_cselect_b32 s{sT3}, 0xffff, s{sT3}")
    S(f"s_andn2_b32 s{sT1}, s{sT3}, s{sT2}")
    S(f"s_mov_b32 s{sT2}, s{sT3}")
    for p in range(16):
        c.append(raw(f"s_bitcmp1_b32 s{sT1}, {p}"))
        c.append(I(f"s_cbranch_scc0 L_g{p}", "BR"))
        S(f"s_add_u32 s{sD}, s{sE2}, {p * PART_WG}")
        i = bload(4, ("v", 32 + p * 4), RI[0], sWS, sD, 0, LDF)
        i.kind = "X"
        c.append(i)
        c.append(I(f"L_g{p}:", "LAB"))
    S(f"s_cmp_eq_u32 s{sT2}, 0xffff")
    c.append(I("s_cbranch_scc1 L_p2d", "BR"))
    c.append(raw(f"buffer_load_dword v{vV}, v{vK1}, s[{sWS}:{sWS + 3}], s{sIN} offen{FLF}", "X"))
    c.append(raw("s_waitcnt vmcnt(0)", "X"))
    c.append(I("s_branch L_p2", "BR"))
    c.append(I("L_p2d:", "LAB"))
    c += pst()
    c.append(bload(4, ("v", 96), RI[1], sWS, sE2, 0, LDF))
    c.append(bload(4, ("v", 100), RI[1], sWS, sE3, 0, LDF))
    A0, A1, U = 192, 200, [208, 210]
    c += pst()

    def acc(a, x, first):
        for r in range(4):
            t = a + 2 * r if first else U[r & 1]
            V(f"v_lshlrev_b32 v{t}, 16, v{x + r}")
            V(f"v_and_b32 v{t + 1}, 0xffff0000, v{x + r}")
            if not first:
                c.append(pk("v_pk_add_f32", a + 2 * r, a + 2 * r, t))

    W("vmcnt(2)")
    c += pst()
    for p in range(16):
        acc(A0, 32 + 4 * p, p == 0)
    W("vmcnt(0)")
    acc(A1, 96, True)
    acc(A1, 100, False)
    for sw in ("v_permlane32_swap_b32", "v_permlane16_swap_b32"):
        for r in range(8):
            V(f"v_mov_b32 v{212 + r}, v{A1 + r}")
        for r in range(8):
            V(f"{sw} v{A1 + r}, v{212 + r}")
        for r in range(0, 8, 2):
            c.append(pk("v_pk_add_f32", A1 + r, A1 + r, 212 + r))
    c.append(nop(1))
    for r in range(8):
        c.append(I(f"v_add_f32_dpp v{A1 + r}, v{A1 + r}, v{A1 + r} row_ror:8 row_mask:0xf bank_mask:0xf", "V", [("v", A1 + r)], [("v", A1 + r)]))
    for n, a in enumerate((A0, A1)):
        for r in range(4):
            V(f"v_cvt_pk_bf16_f32 v{220 + n * 4 + r}, v{a + 2 * r}, v{a + 2 * r + 1}")
        c.append(bstore(2, ("v", 220 + n * 4), RA[n], sOUT, "0", 0))
        c.append(bstore(2, ("v", 220 + n * 4 + 2), RB[n], sOUT, "0", 0))
    c += pst() + pst()
    return c


def norm(ins):
    t = ins.text
    if "@" in t:
        a, b = t.split("@")
        if b.startswith("CODE"):
            return t
        return f"{a}@{int(b.rstrip(':')) % 4}"
    return t


def fold(code):
    segs, cur, keys, key = [], [], [], None
    for ins in code:
        if ins.kind == "M" and ins.mark is not None:
            segs.append(cur)
            keys.append(key)
            cur, key = [], ins.mark
        if ins.kind == "LAB" and ins.tag and ins.tag[0] == "cut":
            segs.append(cur)
            keys.append(key)
            cur, key = [], None
            continue
        cur.append(ins)
    segs.append(cur)
    keys.append(key)
    print("; est cycles/seg:", [gap_cost(s) for s in segs])
    txt = [tuple(norm(i) for i in s) for s in segs]
    out, i, nloop, n = [], 0, 0, len(segs)
    sitekey = lambda s: (s["j"] % 4, tuple(sorted((b, tuple(v)) for b, v in s["later_blk"].items())), tuple(x % 4 for x in s["pend"]), s["blks"])
    sinfo = {s["j"]: s for s in sites}
    sites_in = lambda seg: [sitekey(sinfo[x.tag[1]]) for x in seg if x.kind == "BR" and x.tag and x.tag[0] == "site"]
    while i < n:
        k = 1
        if keys[i] is not None:
            p = {"M": 4, "Q": 2}.get(keys[i][0], 1)
            while i + (k + 1) * p <= n and all(keys[i + k * p + r] is not None and txt[i + k * p + r] == txt[i + r] and
                                               sites_in(segs[i + k * p + r]) == sites_in(segs[i + r]) for r in range(p)):
                k += 1
        if k >= 2:
            x = 0
            while x < p - 1 and i + k * p + x < n and keys[i + k * p + x] is not None and txt[i + k * p + x] == txt[i + x] and \
                    sites_in(segs[i + k * p + x]) == sites_in(segs[i + x]):
                x += 1
            out.append(salu(f"s_mov_b32 s{sCnt}, {k + (1 if x else 0)}"))
            out.append(I(f"L_loop{nloop}:", "LAB"))
            for r in range(p):
                out += segs[i + r]
                if x and r == x - 1:
                    out += [salu(f"s_sub_u32 s{sCnt}, s{sCnt}, 1"), salu(f"s_cmp_eq_u32 s{sCnt}, 0"), I(f"s_cbranch_scc1 L_exit{nloop}", "BR")]
            if x:
                out += [I(f"s_branch L_loop{nloop}", "BR"), I(f"L_exit{nloop}:", "LAB")]
            else:
                out += [salu(f"s_sub_u32 s{sCnt}, s{sCnt}, 1"), salu(f"s_cmp_lg_u32 s{sCnt}, 0"), I(f"s_cbranch_scc1 L_loop{nloop}", "BR")]
            nloop += 1
            i += p * k + x
        else:
            out += segs[i]
            i += 1
    return out


def cut():
    return I("", "LAB", tag=("cut",))


def build():
    code = prologue() + stamp(1) + (q_phase2() if OPT['qx'] else q_phase()) + [cut()] + stamp(2) + (q_finish2() if OPT['qx'] else q_finish()) + stamp(3) + main_phase() + [cut()] + stamp(4)
    code += tail() + stamp(6) + o_phase() + [cut()] + final()
    if STAMP:
        nc = []
        for ins in code:
            nc.append(ins)
            if ins.kind == "M" and ins.mark is not None:
                if ins.mark[0] == "N" and ins.mark[1] not in (0,):
                    continue
                if OPT.get("light") and ins.mark[0] == "M" and 4 <= ins.mark[1] <= 27:
                    continue
                nc += pst()[1:]
        code = [raw("s_mov_b64 s[80:81], 1"), raw("s_mov_b32 s96, 0")] + nc
    if OPT.get("padstep"):
        nc = []
        for ins in code:
            nc.append(ins)
            if ins.kind == "M" and ins.mark is not None and ins.mark[0] == OPT.get("padph", "M"):
                nc += [nop(15) for _ in range(OPT["padstep"])]
        code = nc
    code = insert_lgkm_waits(code, age=OPT["age"])
    code = resolve_vm_waits(code)
    code, nf = check_hazards(code)
    print(f"; hazard nops inserted: {nf}; est cycles {gap_cost(code)}")
    code = fold(code)
    names, slow = [], []
    sinfo = {s["j"]: s for s in sites}
    for ins in code:
        ins.text = ins.text.replace("@CODEMAX", str(OPT.get("codemax", 45056))).replace("@", "")
        if ins.kind == "BR" and ins.tag and ins.tag[0] == "site":
            j = ins.tag[1]
            sp = slow_path(sinfo[j], str(j)) + [salu(f"s_mov_b32 s{sSite}, {len(names)}"), I("s_branch L_slow_tail", "BR")]
            names.append(str(j))
            slow += check_hazards(sp)[0]
    slow += check_hazards(slow_tail(names))[0]
    fin = []
    if STAMP:
        fin.append(I("s_waitcnt vmcnt(0) lgkmcnt(0)", "W"))
        fin += [raw(f"s_memtime s[100:101]"), raw(f"s_memrealtime s[96:97]"), I("s_waitcnt lgkmcnt(0)", "W")]
        for t in (f"s_lshl_b32 s{sT0}, s2, 2", f"s_add_u32 s{sT0}, s{sT0}, s{sW}", f"s_lshl_b32 s{sT0}, s{sT0}, 6",
                  f"s_lshl_b32 s{sT1}, s{sT0}, 2", f"s_add_u32 s{sT0}, s{sT0}, {128 << 20}", f"s_add_u32 s{sT1}, s{sT1}, {132 << 20}"):
            fin.append(salu(t))
        fin.append(valu(f"v_mov_b32 v{vT0}, 0"))
        for k in range(8):
            fin.append(valu(f"v_mov_b32 v{128 + k}, s{[84, 84, 92, 94, 86, 84, 84, 84][k]}"))
        fin += [valu("v_mov_b32 v136, s100"), valu("v_mov_b32 v137, s96"), valu("v_mov_b32 v138, s98")]
        for k in range(0, 12, 4):
            fin.append(bstore(4, ("v", 128 + k), vT0, sWS, sT0, k * 4))
        fin.append(valu(f"v_lshlrev_b32 v{vT1}, 2, v{vLANE}"))
        fin.append(bstore(1, ("v", 0), vT1, sWS, sT1, 0))
    NAME = "standalone__gqa_block_cached__near_ridge_kernel"
    hdr = open("standalone__gqa_block_cached__near_ridge.s.ref").read().split("; Override launch")[0]
    L = [hdr.rstrip()]
    A = L.append
    A("; @launch grid=(256,1,1) block=(256,1,1) lds=163840")
    A('.amdgcn_target "amdgcn-amd-amdhsa--gfx950"')
    A(".text")
    A(f".globl {NAME}")
    A(".p2align 8")
    A(f".type {NAME},@function")
    A(f"{NAME}:")
    A("s_cmp_ge_u32 s2, 256")
    A("s_cbranch_scc1 L_end")
    if OPT.get("delay"):
        L += ["s_memrealtime s[8:9]", "s_waitcnt lgkmcnt(0)", f"s_add_u32 s10, s8, {OPT['delay'] * 100}", "L_dly:", "s_memrealtime s[8:9]", "s_waitcnt lgkmcnt(0)",
              "s_sub_u32 s11, s10, s8", "s_cmp_gt_i32 s11, 0", "s_cbranch_scc1 L_dly"]
    L += [i.text for i in code if i.text]
    L += [i.text for i in fin]
    if OPT.get("padto"):
        L += [f"s_add_u32 s10, s98, {OPT['padto'] * 100}", "L_pad:", "s_memrealtime s[8:9]", "s_waitcnt lgkmcnt(0)",
              "s_sub_u32 s11, s10, s8", "s_cmp_gt_i32 s11, 0", "s_cbranch_scc1 L_pad"]
    A("L_end:")
    A("s_endpgm")
    L += [i.text for i in slow]
    A('.section .rodata,"a"')
    A(".p2align 6")
    A(f".amdhsa_kernel {NAME}")
    for t in ("next_free_vgpr 512", "next_free_sgpr 102", "accum_offset 256", "group_segment_fixed_size 0", "kernarg_size 64",
              "user_sgpr_count 2", "user_sgpr_kernarg_segment_ptr 1", "system_sgpr_workgroup_id_x 1"):
        A(f"  .amdhsa_{t}")
    A(".end_amdhsa_kernel")
    return "\n".join(L) + "\n"


if __name__ == "__main__":
    out = [a for a in sys.argv[1:] if a.endswith(".s")]
    open(out[0] if out else "k2.s", "w").write(build())
```
